```python
import torch

def _softmax(x, axis=-1):
    return torch.softmax(x, dim=axis)
def _gelu(x):
    return torch.nn.functional.gelu(x, approximate="tanh")
def _silu(x):
    return torch.nn.functional.silu(x)
def _sigmoid(x):
    return torch.sigmoid(x)
def _layernorm(x, axis=-1, eps=1e-5):
    m = x.mean(dim=axis, keepdim=True)
    v = x.var(dim=axis, keepdim=True, unbiased=False)
    return (x - m) / torch.sqrt(v + eps)
def _scatter_add(tgt, idx, src, axis=0):
    return tgt.clone().index_add_(axis, idx, src)
def _segment_sum(src, seg, n):
    out = torch.zeros((n,) + src.shape[1:], dtype=src.dtype)
    return out.index_add_(0, seg, src)
def _pad(x, pw):
    flat = tuple(v for pair in reversed(pw) for v in pair)
    return torch.nn.functional.pad(x, flat)

kernel_name = 'recurrent_scan__mha_block_cached__geglu_ffn__decode'

def setup_inputs():

    _w = (lambda a: (lambda t: t.to(torch.bfloat16) if t.is_floating_point() else t)(torch.as_tensor(a)))
    def _A_setup():
        B, Sq, D = 4, 1, 640
        H, Sk, Dh = 32, 8192, 128
        return {
            "x": _w((lambda *s: torch.randn(*s, dtype=torch.bfloat16) * 0.05)(B, Sq, D)),
            "k_cache": _w((lambda *s: torch.randn(*s, dtype=torch.bfloat16) * 1.6)(B, H, Sk, Dh)),
            "v_cache": _w((lambda *s: torch.randn(*s, dtype=torch.bfloat16) * 0.2)(B, H, Sk, Dh)),
            "wq": _w((lambda *s: torch.randn(*s, dtype=torch.bfloat16) * 1.6)(D, H * Dh) * (D ** -0.5)),
            "wo": _w((lambda *s: torch.randn(*s, dtype=torch.bfloat16) * 0.2)(H * Dh, D) * ((H * Dh) ** -0.5)),
        }
    _A_in = _A_setup()

    def _B_setup():
        B, S, D, F = 4, 1, 640, 1728
        return {
            "x": _w((lambda *s: torch.randn(*s, dtype=torch.bfloat16) * 0.05)(B, S, D)),
            "w_gate": _w((lambda *s: torch.randn(*s, dtype=torch.bfloat16) * 0.1)(D, F)),
            "w_up": _w((lambda *s: torch.randn(*s, dtype=torch.bfloat16) * 0.1)(D, F)),
            "w_down": _w((lambda *s: torch.randn(*s, dtype=torch.bfloat16) * 0.1)(F, D)),
        }
    _B_in = _B_setup()

    return {
        "A_x": _A_in["x"],
        "A_k_cache": _A_in["k_cache"],
        "A_v_cache": _A_in["v_cache"],
        "A_wq": _A_in["wq"],
        "A_wo": _A_in["wo"],
        "B_x": _B_in["x"],
        "B_w_gate": _B_in["w_gate"],
        "B_w_up": _B_in["w_up"],
        "B_w_down": _B_in["w_down"],
    }

def reference(A_x, A_k_cache, A_v_cache, A_wq, A_wo, B_x, B_w_gate, B_w_up, B_w_down):
    def _A_ref(x, k_cache, v_cache, wq, wo):
        B, Sq, D = x.shape
        H, Dh = 32, 128
        q = (lambda x, *d: x.permute(*d))((x @ wq).reshape(B, Sq, H, Dh), 0, 2, 1, 3)
        scores = torch.einsum("bhqd,bhkd->bhqk", q, k_cache) * (Dh ** -0.5)
        p = _softmax(scores, axis=-1)
        o = torch.einsum("bhqk,bhkd->bhqd", p, v_cache)
        return (lambda x, *d: x.permute(*d))(o, 0, 2, 1, 3).reshape(B, Sq, H * Dh) @ wo

    def _B_ref(x, w_gate, w_up, w_down):
        return (_gelu(x @ w_gate) * (x @ w_up)) @ w_down

    x = A_x
    xn = _layernorm(x, axis=-1)
    s = _A_ref(xn, A_k_cache, A_v_cache, A_wq, A_wo)
    g = _silu(_B_ref(xn, B_w_gate, B_w_up, B_w_down))
    return x + s * g
```

```python
import sys, struct

NAME = "recurrent_scan__mha_block_cached__geglu_ffn__decode_kernel"

def f2u(x):
    return struct.unpack("<I", struct.pack("<f", x))[0]

HEADER = """; Kernarg layout for this problem (96 bytes, ptrs only, base s[0:1]):
"""

class Gen:
    def __init__(self):
        self.o = []
    def __call__(self, s):
        self.o.append("    " + s)
    def label(self, s):
        self.o.append(s + ":")
    def c(self, s):
        self.o.append("    ; " + s)
    def text(self):
        return "\n".join(self.o) + "\n"


def gen(NS=4, NA=4, DEPTH=4, kvflags="nt", wqflags="", woflags="", ffnflags="", auxprio=1, stamps=0, vgpr=None):
    A = Gen()
    NW = NS + NA
    XND = 0
    XNB = XND + 10240
    QP = XNB + 5120
    QB = QP + NA * 512
    OP = QB + NS * 256
    ML = OP + NS * 512
    GB = ML + 64
    TP = GB + 256
    HB = TP + NA * 2560
    WT = HB + 14336
    LDS = WT + 55296
    assert WT % 16 == 0 and HB % 16 == 0 and TP % 16 == 0
    WS_T = 0
    WS_ML = 0xA0000
    WS_H = 0xB0000
    WS_SIZE = WS_H + 13824
    WS_STAMP = 0x100000
    L2E = 1.4426950408889634
    SCALE = 128 ** -0.5

    sWAVE, sX8, sSLOT, sSPLIT, sB, sH = 3, 4, 5, 6, 7, 60
    KS, VS = 8, 12
    WQS, WOS = 8, 12
    WSS = 16
    XS = 20
    F0S, F1S = 24, 28
    OUTS = 32
    P = 36
    pX, pK, pV, pWQ, pWO, pBX, pWG, pWU, pWD, pOUT, pDBG, pWS = [P + 2 * i for i in range(12)]
    sT0, sT1, sT2, sT3 = 61, 62, 63, 64
    sOFF, sCNT, sM, sL2E, sSC, sA, sHS = 65, 66, 67, 68, 69, 70, 71
    sEX = 72
    sST0, sST1 = 76, 78

    def srd(dst, ptr, add_lo, nrec):
        if add_lo is None:
            A(f"s_mov_b32 s{dst}, s{ptr}")
            A(f"s_mov_b32 s{dst+1}, s{ptr+1}")
        else:
            A(f"s_add_u32 s{dst}, s{ptr}, {add_lo}")
            A(f"s_addc_u32 s{dst+1}, s{ptr+1}, 0")
        A(f"s_mov_b32 s{dst+2}, {nrec}")
        A(f"s_mov_b32 s{dst+3}, 0x20000")

    out = HEADER
    out += f"; @launch grid=(256,1,1) block=({NW*64},1,1) lds={LDS}\n"
    out += '.amdgcn_target "amdgcn-amd-amdhsa--gfx950"\n.text\n'
    out += f".globl {NAME}\n.p2align 8\n.type {NAME},@function\n{NAME}:\n"

    A("s_cmp_ge_u32 s2, 256")
    A("s_cbranch_scc1 L_end")
    if stamps:
        A(f"s_memrealtime s[{sST0}:{sST0+1}]")
    A(f"s_load_dwordx16 s[{P}:{P+15}], s[0:1], 0")
    A(f"s_load_dwordx8 s[{P+16}:{P+23}], s[0:1], 64")
    A("v_lshrrev_b32 v4, 6, v0")
    A("v_and_b32 v1, 63, v0")
    A(f"v_readfirstlane_b32 s{sWAVE}, v4")
    A("v_and_b32 v2, 15, v1")
    A("v_lshrrev_b32 v3, 4, v1")
    A(f"s_and_b32 s{sX8}, s2, 7")
    A(f"s_lshr_b32 s{sSLOT}, s2, 3")
    A(f"s_and_b32 s{sSPLIT}, s{sSLOT}, 1")
    A(f"s_lshr_b32 s{sB}, s{sSLOT}, 1")
    A(f"s_and_b32 s{sB}, s{sB}, 3")
    A(f"s_lshr_b32 s{sH}, s{sSLOT}, 3")
    A(f"s_lshl_b32 s{sH}, s{sH}, 3")
    A(f"s_add_u32 s{sH}, s{sH}, s{sX8}")
    A(f"s_mov_b32 s{sL2E}, {f2u(L2E):#x}")
    A(f"s_mov_b32 s{sSC}, {f2u(SCALE):#x}")
    MK = 4
    A("v_and_b32 v8, 1, v2")
    A("v_lshlrev_b32 v8, 4, v8")
    A("v_mov_b32 v9, 0xffff")
    A("v_lshlrev_b32 v8, v8, v9")
    A("v_lshrrev_b32 v9, 1, v2")
    for rr in range(4):
        A(f"v_cmp_eq_u32 vcc, {rr}, v9")
        A("s_nop 1")
        A(f"v_cndmask_b32 v{MK+rr}, 0, v8, vcc")
    A(f"s_cmp_ge_u32 s{sWAVE}, {NS}")
    A("s_cbranch_scc1 L_aux")

    vKO, vVO = 8, 9
    vM, vL, vNM, vAL, vTM, vT0, vT1 = 10, 11, 12, 13, 14, 15, 16
    vACC = 20
    vS = 24
    vP = 28
    vQ = 32
    vA = 48
    RING = 64
    def kreg(slot, i): return RING + slot * 32 + i * 4
    def vreg(slot, i): return RING + slot * 32 + 16 + i * 4
    A.c("---- streaming wave ----")
    A(f"v_lshlrev_b32 v{vKO}, 8, v2")
    A(f"v_lshl_add_u32 v{vKO}, v3, 4, v{vKO}")
    A(f"v_lshlrev_b32 v{vVO}, 10, v3")
    A(f"v_lshl_add_u32 v{vVO}, v2, 4, v{vVO}")
    A(f"s_lshl_b32 s{sT0}, s{sB}, 5")
    A(f"s_add_u32 s{sT0}, s{sT0}, s{sH}")
    A(f"s_lshl_b32 s{sT0}, s{sT0}, 1")
    A(f"s_add_u32 s{sT0}, s{sT0}, s{sSPLIT}")
    A(f"s_lshl_b32 s{sT0}, s{sT0}, 20")
    A(f"s_lshl_b32 s{sOFF}, s{sWAVE}, 12")
    A("s_waitcnt lgkmcnt(0)")
    srd(KS, pK, f"s{sT0}", 1 << 20)
    srd(VS, pV, f"s{sT0}", 1 << 20)
    STEP = NS * 4096
    def issueK(slot):
        for i in range(4):
            r = kreg(slot, i)
            A(f"buffer_load_dwordx4 v[{r}:{r+3}], v{vKO}, s[{KS}:{KS+3}], s{sOFF} offen offset:{64*i} {kvflags}")
    def issueV(slot):
        for i in range(4):
            r = vreg(slot, i)
            A(f"buffer_load_dwordx4 v[{r}:{r+3}], v{vVO}, s[{VS}:{VS+3}], s{sOFF} offen offset:{256*i} {kvflags}")
        A(f"s_add_u32 s{sOFF}, s{sOFF}, {STEP}")
    for s in range(DEPTH):
        issueK(s)
        issueV(s)
    A(f"v_mov_b32 v{vM}, 0xff7fffff")
    A(f"v_mov_b32 v{vL}, 0")
    for i in range(4):
        A(f"v_mov_b32 v{vACC+i}, 0")
    A("s_barrier")
    A("s_barrier")
    A(f"v_lshlrev_b32 v{vT0}, 3, v1")
    for a in range(NA):
        A(f"ds_read_b64 v[{vA+2*a}:{vA+2*a+1}], v{vT0} offset:{QP + a*512}")
    A(f"s_lshl_b32 s{sT0}, s{sWAVE}, 8")
    A(f"s_add_u32 s{sT0}, s{sT0}, {QB}")
    A(f"v_lshl_add_u32 v{vT1}, v1, 2, s{sT0}")
    A("s_waitcnt lgkmcnt(0)")
    for a in range(1, NA):
        A(f"v_add_f32 v{vA}, v{vA}, v{vA+2*a}")
        A(f"v_add_f32 v{vA+1}, v{vA+1}, v{vA+2*a+1}")
    A(f"v_cvt_pk_bf16_f32 v{vA}, v{vA}, v{vA+1}")
    A(f"ds_write_b32 v{vT1}, v{vA}")
    A(f"v_lshl_add_u32 v{vT1}, v3, 4, s{sT0}")
    A("s_waitcnt lgkmcnt(0)")
    for j in range(4):
        A(f"ds_read_b128 v[{vQ+4*j}:{vQ+4*j+3}], v{vT1} offset:{64*j}")
    NT = 256 // NS
    assert NT % DEPTH == 0
    A(f"s_mov_b32 s{sCNT}, {NT // DEPTH}")
    A("s_waitcnt lgkmcnt(0)")
    A.label("L_loop")
    W = 8 * DEPTH - 4
    for s in range(DEPTH):
        A(f"s_waitcnt vmcnt({W})")
        for j in range(4):
            r = kreg(s, j)
            c = "0" if j == 0 else f"v[{vS}:{vS+3}]"
            A(f"v_mfma_f32_16x16x32_bf16 v[{vS}:{vS+3}], v[{r}:{r+3}], v[{vQ+4*j}:{vQ+4*j+3}], {c}")
        issueK(s)
        A("s_nop 3")
        A(f"v_cvt_pk_bf16_f32 v{vT0}, v{vS}, v{vS+1}")
        A(f"v_cvt_pk_bf16_f32 v{vT1}, v{vS+2}, v{vS+3}")
        A(f"v_lshlrev_b32 v{vP}, 16, v{vT0}")
        A(f"v_and_b32 v{vP+1}, 0xffff0000, v{vT0}")
        A(f"v_lshlrev_b32 v{vP+2}, 16, v{vT1}")
        A(f"v_and_b32 v{vP+3}, 0xffff0000, v{vT1}")
        for i in range(4):
            A(f"v_mul_f32 v{vP+i}, s{sSC}, v{vP+i}")
        A(f"v_cvt_pk_bf16_f32 v{vT0}, v{vP}, v{vP+1}")
        A(f"v_cvt_pk_bf16_f32 v{vT1}, v{vP+2}, v{vP+3}")
        A(f"v_lshlrev_b32 v{vP}, 16, v{vT0}")
        A(f"v_and_b32 v{vP+1}, 0xffff0000, v{vT0}")
        A(f"v_lshlrev_b32 v{vP+2}, 16, v{vT1}")
        A(f"v_and_b32 v{vP+3}, 0xffff0000, v{vT1}")
        A(f"v_max3_f32 v{vTM}, v{vP}, v{vP+1}, v{vM}")
        A(f"v_max3_f32 v{vTM}, v{vP+2}, v{vP+3}, v{vTM}")
        A("s_nop 1")
        A(f"v_max_f32_dpp v{vTM}, v{vTM}, v{vTM} row_bcast:15 row_mask:0xa bank_mask:0xf")
        A("s_nop 1")
        A(f"v_max_f32_dpp v{vTM}, v{vTM}, v{vTM} row_bcast:31 row_mask:0xc bank_mask:0xf")
        A("s_nop 0")
        A(f"v_readlane_b32 s{sM}, v{vTM}, 63")
        A(f"v_mov_b32 v{vNM}, s{sL2E}")
        A("s_nop 0")
        A(f"v_mul_f32 v{vNM}, s{sM}, v{vNM}")
        for i in range(4):
            A(f"v_fma_f32 v{vP+i}, v{vP+i}, s{sL2E}, -v{vNM}")
        A(f"v_fma_f32 v{vAL}, v{vM}, s{sL2E}, -v{vNM}")
        for i in range(4):
            A(f"v_exp_f32 v{vP+i}, v{vP+i}")
        A(f"v_exp_f32 v{vAL}, v{vAL}")
        A(f"v_mov_b32 v{vM}, s{sM}")
        A(f"v_add_f32 v{vT0}, v{vP}, v{vP+1}")
        A(f"v_add_f32 v{vT1}, v{vP+2}, v{vP+3}")
        for i in range(4):
            A(f"v_cvt_pk_bf16_f32 v{vP+i}, v{vP+i}, v{vP+i}")
        A(f"v_add_f32 v{vT0}, v{vT0}, v{vT1}")
        A(f"v_fma_f32 v{vL}, v{vL}, v{vAL}, v{vT0}")
        for i in range(4):
            A(f"v_mul_f32 v{vACC+i}, v{vACC+i}, v{vAL}")
        for i in range(4):
            for rr in range(4):
                A(f"v_and_b32 v{vA+4*i+rr}, v{vP+i}, v{MK+rr}")
        A(f"s_waitcnt vmcnt({W})")
        A("s_nop 0")
        for i in range(4):
            r = vreg(s, i)
            A(f"v_mfma_f32_16x16x32_bf16 v[{vACC}:{vACC+3}], v[{vA+4*i}:{vA+4*i+3}], v[{r}:{r+3}], v[{vACC}:{vACC+3}]")
        issueV(s)
    A(f"s_sub_u32 s{sCNT}, s{sCNT}, 1")
    A(f"s_cmp_lg_u32 s{sCNT}, 0")
    A("s_cbranch_scc1 L_loop")
    A(f"v_add_f32_dpp v{vL}, v{vL}, v{vL} row_bcast:15 row_mask:0xa bank_mask:0xf")
    A(f"s_lshl_b32 s{sT0}, s{sWAVE}, 9")
    A(f"s_add_u32 s{sT0}, s{sT0}, {OP}")
    A(f"v_add_f32_dpp v{vL}, v{vL}, v{vL} row_bcast:31 row_mask:0xc bank_mask:0xf")
    A(f"v_lshlrev_b32 v{vT0}, 5, v2")
    A(f"v_lshl_add_u32 v{vT0}, v3, 4, v{vT0}")
    A(f"v_add_u32 v{vT0}, s{sT0}, v{vT0}")
    A(f"s_lshl_b32 s{sT1}, s{sWAVE}, 3")
    A(f"s_add_u32 s{sT1}, s{sT1}, {ML}")
    A(f"v_mov_b32 v{vT1}, s{sT1}")
    A("s_mov_b64 exec, 0xffffffff")
    A(f"ds_write_b128 v{vT0}, v[{vACC}:{vACC+3}]")
    A("s_mov_b32 exec_lo, 0")
    A("s_mov_b32 exec_hi, 0x80000000")
    A(f"ds_write_b64 v{vT1}, v[{vM}:{vM+1}]")
    A("s_mov_b64 exec, -1")
    A("s_waitcnt lgkmcnt(0)")
    A("s_barrier")
    A("s_endpgm")

    A.label("L_aux")
    A.c("---- aux wave ----")
    NL = 160 // NA
    RW = 640 // NA
    RT = RW // 4
    RO = 128 // NA
    OT = RO // 4
    vU = 8
    vTO = 9
    vO1, vO2, vO3 = 10, 11, 12
    vX = 14
    vF = 20
    vC = 30
    vAA = 36
    vD = 44
    vXD = 64
    vW = 256 - 4 * NL if NL == 40 else 104
    if NA == 4:
        vW = 96
        vXD = 56
        vD = 36 + 8
    if auxprio:
        A(f"s_setprio {auxprio}")
    A(f"s_sub_u32 s{sA}, s{sWAVE}, {NS}")
    A(f"v_subrev_u32 v{vU}, {NS*64}, v0")
    A(f"v_lshlrev_b32 v{vO1}, 2, v1")
    A(f"v_mul_u32_u24 v{vO2}, {RT*8192}, v3")
    A(f"v_lshl_add_u32 v{vO2}, v2, 4, v{vO2}")
    A(f"s_and_b32 s{sT0}, s{sA}, 3")
    A(f"s_mul_i32 s{sT0}, s{sT0}, 1280")
    A(f"s_lshl_b32 s{sT1}, s{sH}, 8")
    A(f"s_mul_i32 s{sT2}, s{sA}, {RW*8192}")
    A(f"s_add_u32 s{sT1}, s{sT1}, s{sT2}")
    A(f"s_sub_u32 s{sT2}, {640*8192}, s{sT1}")
    A("s_waitcnt lgkmcnt(0)")
    srd(XS, pX, None, 5120)
    for i in range(5):
        A(f"buffer_load_dword v{vX+i}, v{vO1}, s[{XS}:{XS+3}], s{sT0} offen offset:{256*i}")
    srd(WQS, pWQ, f"s{sT1}", f"s{sT2}")
    A(f"s_mov_b32 s{sOFF}, 0")
    for t in range(NL):
        r = vW + 4 * t
        A(f"buffer_load_dwordx4 v[{r}:{r+3}], v{vO2}, s[{WQS}:{WQS+3}], s{sOFF} offen {wqflags}")
        A(f"s_add_u32 s{sOFF}, s{sOFF}, 8192")
    srd(WSS, pWS, None, WS_SIZE)
    A(f"s_lshl_b32 s{sHS}, s{sH}, 1")
    A(f"s_add_u32 s{sHS}, s{sHS}, s{sSPLIT}")
    A(f"s_lshl_b32 s{sT0}, s{sB}, 6")
    A(f"s_add_u32 s{sT0}, s{sT0}, s{sHS}")
    A(f"s_lshl_b32 s{sT1}, s{sT0}, 6")
    A(f"v_lshrrev_b32 v{vTO}, 2, v{vU}")
    A(f"v_lshlrev_b32 v{vTO}, 14, v{vTO}")
    A(f"v_and_b32 v{vC}, 3, v{vU}")
    A(f"v_lshl_add_u32 v{vTO}, v{vC}, 4, v{vTO}")
    A(f"v_add_u32 v{vTO}, s{sT1}, v{vTO}")
    A(f"s_lshl_b32 s{sT1}, s{sT0}, 3")
    A(f"s_add_u32 s{sT1}, s{sT1}, {WS_ML}")
    A(f"v_mov_b32 v{vO3}, s{sT1}")
    for i in range(4):
        A(f"v_mov_b32 v{vC+i}, -1")
    A(f"v_cmp_gt_u32 vcc, 160, v{vU}")
    A(f"s_and_saveexec_b64 s[{sEX}:{sEX+1}], vcc")
    A("s_cbranch_execz L_noclr")
    A(f"buffer_store_dwordx4 v[{vC}:{vC+3}], v{vTO}, s[{WSS}:{WSS+3}], 0 offen sc1")
    A.label("L_noclr")
    A(f"s_mov_b64 exec, s[{sEX}:{sEX+1}]")
    A(f"v_cmp_eq_u32 vcc, 192, v{vU}")
    A(f"s_and_saveexec_b64 s[{sEX}:{sEX+1}], vcc")
    A("s_cbranch_execz L_noclr2")
    A(f"buffer_store_dwordx2 v[{vC}:{vC+1}], v{vO3}, s[{WSS}:{WSS+3}], 0 offen sc1")
    A.label("L_noclr2")
    A(f"s_mov_b64 exec, s[{sEX}:{sEX+1}]")
    A(f"s_waitcnt vmcnt({NL})")
    for i in range(5):
        A(f"v_lshlrev_b32 v{vF+2*i}, 16, v{vX+i}")
        A(f"v_and_b32 v{vF+2*i+1}, 0xffff0000, v{vX+i}")
    def wave_sum(v, s):
        for sh in (1, 2, 4, 8):
            A("s_nop 1")
            A(f"v_add_f32_dpp v{v}, v{v}, v{v} row_shr:{sh} row_mask:0xf bank_mask:0xf bound_ctrl:0")
        A("s_nop 1")
        A(f"v_add_f32_dpp v{v}, v{v}, v{v} row_bcast:15 row_mask:0xa bank_mask:0xf")
        A("s_nop 1")
        A(f"v_add_f32_dpp v{v}, v{v}, v{v} row_bcast:31 row_mask:0xc bank_mask:0xf")
        A("s_nop 0")
        A(f"v_readlane_b32 s{s}, v{v}, 63")
        A("s_nop 1")
    A("s_nop 1")
    A(f"v_add_f32 v{vC+4}, v{vF}, v{vF+1}")
    for i in range(2, 10):
        A(f"v_add_f32 v{vC+4}, v{vC+4}, v{vF+i}")
    wave_sum(vC + 4, sT0)
    A(f"v_mov_b32 v{vC+5}, {f2u(1.0/640):#x}")
    A(f"v_mul_f32 v{vC+4}, s{sT0}, v{vC+5}")
    A(f"v_sub_f32 v{vC}, v{vF}, v{vC+4}")
    A(f"v_mul_f32 v{vC+1}, v{vC}, v{vC}")
    for i in range(1, 10):
        A(f"v_sub_f32 v{vC}, v{vF+i}, v{vC+4}")
        A(f"v_fmac_f32 v{vC+1}, v{vC}, v{vC}")
    wave_sum(vC + 1, sT0)
    A(f"v_mul_f32 v{vC+1}, s{sT0}, v{vC+5}")
    A(f"v_cvt_pk_bf16_f32 v{vC}, v{vC+4}, v{vC+1}")
    A(f"v_lshlrev_b32 v{vC+4}, 16, v{vC}")
    A(f"v_and_b32 v{vC+1}, 0xffff0000, v{vC}")
    A(f"v_add_f32 v{vC+1}, {f2u(1e-5):#x}, v{vC+1}")
    A(f"v_cvt_pk_bf16_f32 v{vC+1}, v{vC+1}, v{vC+1}")
    A(f"v_and_b32 v{vC+1}, 0xffff0000, v{vC+1}")
    A(f"v_sqrt_f32 v{vC+1}, v{vC+1}")
    A("s_nop 0")
    A(f"v_cvt_pk_bf16_f32 v{vC+1}, v{vC+1}, v{vC+1}")
    A(f"v_and_b32 v{vC+1}, 0xffff0000, v{vC+1}")
    A(f"v_rcp_f32 v{vC+1}, v{vC+1}")
    for i in range(10):
        A(f"v_sub_f32 v{vF+i}, v{vF+i}, v{vC+4}")
    A(f"s_and_b32 s{sT0}, s{sA}, 3")
    A(f"s_mul_i32 s{sT1}, s{sT0}, 1280")
    A(f"s_mul_i32 s{sT2}, s{sT0}, 2560")
    A(f"v_add_u32 v{vC+2}, s{sT1}, v{vO1}")
    A(f"v_lshl_add_u32 v{vC+3}, v1, 3, s{sT2}")
    for i in range(5):
        A(f"v_cvt_pk_bf16_f32 v{vX+i}, v{vF+2*i}, v{vF+2*i+1}")
        A(f"v_lshlrev_b32 v{vF+2*i}, 16, v{vX+i}")
        A(f"v_and_b32 v{vF+2*i+1}, 0xffff0000, v{vX+i}")
        A(f"v_mul_f32 v{vF+2*i}, v{vF+2*i}, v{vC+1}")
        A(f"v_mul_f32 v{vF+2*i+1}, v{vF+2*i+1}, v{vC+1}")
        A(f"v_cvt_pk_bf16_f32 v{vX+i}, v{vF+2*i}, v{vF+2*i+1}")
        A(f"v_cvt_pk_bf16_f32 v{vF+2*i}, v{vF+2*i}, v{vF+2*i}")
        A(f"v_cvt_pk_bf16_f32 v{vF+2*i+1}, v{vF+2*i+1}, v{vF+2*i+1}")
        A(f"ds_write_b32 v{vC+2}, v{vX+i} offset:{XNB + 256*i}")
        A(f"ds_write_b64 v{vC+3}, v[{vF+2*i}:{vF+2*i+1}] offset:{XND + 512*i}")
    A("s_waitcnt lgkmcnt(0)")
    A("s_barrier")
    A(f"s_mul_i32 s{sT0}, s{sB}, 2560")
    A(f"s_mul_i32 s{sT1}, s{sA}, {RW*4}")
    A(f"s_add_u32 s{sT0}, s{sT0}, s{sT1}")
    A(f"v_mul_u32_u24 v{vC}, {RT*4}, v3")
    A(f"v_add_u32 v{vC}, s{sT0}, v{vC}")
    for i in range(RT // 4):
        A(f"ds_read_b128 v[{vXD+4*i}:{vXD+4*i+3}], v{vC} offset:{XND + 16*i}")
    A("s_waitcnt lgkmcnt(0)")
    vQA = 44
    for t in range(NL):
        aa = vAA + 4 * (t & 1)
        for rr in range(4):
            A(f"v_and_b32 v{aa+rr}, v{vXD+t}, v{MK+rr}")
        A(f"s_waitcnt vmcnt({NL - 1 - t})")
        A("s_nop 0")
        r = vW + 4 * t
        c = "0" if t == 0 else f"v[{vQA}:{vQA+3}]"
        A(f"v_mfma_f32_16x16x32_bf16 v[{vQA}:{vQA+3}], v[{aa}:{aa+3}], v[{r}:{r+3}], {c}")
    A(f"s_lshl_b32 s{sT0}, s{sA}, 9")
    A(f"s_add_u32 s{sT0}, s{sT0}, {QP}")
    A(f"v_lshlrev_b32 v{vC}, 5, v2")
    A(f"v_lshl_add_u32 v{vC}, v3, 4, v{vC}")
    A(f"v_add_u32 v{vC}, s{sT0}, v{vC}")
    A("s_nop 3")
    A("s_mov_b64 exec, 0xffffffff")
    A(f"ds_write_b128 v{vC}, v[{vQA}:{vQA+3}]")
    A("s_mov_b64 exec, -1")
    A("s_waitcnt vmcnt(0) lgkmcnt(0)")
    A("s_barrier")
    if auxprio:
        A("s_setprio 0")
    A(f"s_mul_i32 s{sT0}, s{sH}, {128*1280}")
    A(f"s_mul_i32 s{sT1}, s{sA}, {RO*1280}")
    A(f"s_add_u32 s{sT0}, s{sT0}, s{sT1}")
    srd(WOS, pWO, f"s{sT0}", RO * 1280)
    A(f"v_mul_u32_u24 v{vO2}, {OT*1280}, v3")
    A(f"v_lshl_add_u32 v{vO2}, v2, 4, v{vO2}")
    A(f"s_mov_b32 s{sOFF}, 0")
    for t in range(OT):
        for seg in range(5):
            r = vW + 4 * (t * 5 + seg)
            A(f"buffer_load_dwordx4 v[{r}:{r+3}], v{vO2}, s[{WOS}:{WOS+3}], s{sOFF} offen offset:{256*seg} {woflags}")
        A(f"s_add_u32 s{sOFF}, s{sOFF}, 1280")
    A(f"s_cmp_lg_u32 s{sA}, 0")
    A("s_cbranch_scc1 L_wait3")
    vTR, vAO = 14, 15
    A(f"s_cmp_ge_u32 s{sSLOT}, 27")
    A("s_cbranch_scc1 L_f2")
    A.c("F1: 8 columns of gate/up for all 4 batches")
    A(f"s_mul_i32 s{sT3}, s{sX8}, 27")
    A(f"s_add_u32 s{sT3}, s{sT3}, s{sSLOT}")
    A(f"s_lshl_b32 s{sT0}, s{sT3}, 4")
    srd(F0S, pWG, None, 640 * 3456)
    srd(F1S, pWU, None, 640 * 3456)
    A(f"v_mul_u32_u24 v{vC}, 3456, v1")
    A(f"v_add_u32 v{vC}, s{sT0}, v{vC}")
    for mat, S in enumerate((F0S, F1S)):
        A(f"s_mov_b32 s{sOFF}, 0")
        for i in range(10):
            A(f"s_mov_b32 m0, {WT + mat*10240 + i*1024}")
            A("s_nop 0")
            A(f"buffer_load_dwordx4 v{vC}, s[{S}:{S+3}], s{sOFF} offen {ffnflags} lds")
            A(f"s_add_u32 s{sOFF}, s{sOFF}, {64*3456}")
    A(f"v_lshrrev_b32 v{vC+1}, 2, v2")
    A(f"v_lshl_add_u32 v{vC+1}, v3, 3, v{vC+1}")
    A(f"v_lshlrev_b32 v{vTR}, 4, v{vC+1}")
    A(f"v_and_b32 v{vC+1}, 1, v1")
    A(f"v_lshl_add_u32 v{vTR}, v{vC+1}, 3, v{vTR}")
    A(f"v_bfe_u32 v{vC+1}, v1, 1, 1")
    A(f"v_mul_u32_u24 v{vC+1}, 10240, v{vC+1}")
    A(f"v_add_u32 v{vTR}, v{vTR}, v{vC+1}")
    A(f"v_add_u32 v{vTR}, {WT}, v{vTR}")
    A(f"v_and_b32 v{vC+1}, 3, v1")
    A(f"v_mul_u32_u24 v{vAO}, 1280, v{vC+1}")
    A(f"v_lshl_add_u32 v{vAO}, v3, 4, v{vAO}")
    A("s_waitcnt vmcnt(0)")
    vFA, vFB, vFD = 20, 24, 28
    for ks in range(20):
        A(f"ds_read_b128 v[{vFA}:{vFA+3}], v{vAO} offset:{XNB + 64*ks}")
        A(f"ds_read_b64_tr_b16 v[{vFB}:{vFB+1}], v{vTR} offset:{512*ks}")
        A(f"ds_read_b64_tr_b16 v[{vFB+2}:{vFB+3}], v{vTR} offset:{512*ks + 64}")
        A("s_waitcnt lgkmcnt(0)")
        c = "0" if ks == 0 else f"v[{vFD}:{vFD+3}]"
        A(f"v_mfma_f32_16x16x32_bf16 v[{vFD}:{vFD+3}], v[{vFA}:{vFA+3}], v[{vFB}:{vFB+3}], {c}")
    A("s_nop 7")
    def round_bf16(regs):
        for v in regs:
            A(f"v_cvt_pk_bf16_f32 v{v}, v{v}, v{v}")
        for v in regs:
            A(f"v_and_b32 v{v}, 0xffff0000, v{v}")
    D4 = [vFD + i for i in range(4)]
    round_bf16(D4)
    K0 = 0.7978845608028654
    A(f"s_mov_b32 s{sT0}, {f2u(0.044715):#x}")
    A(f"s_mov_b32 s{sT1}, {f2u(-2.0 * K0 * L2E):#x}")
    for i in range(4):
        A(f"v_mul_f32 v{vFA+i}, v{vFD+i}, v{vFD+i}")
    for i in range(4):
        A(f"v_fma_f32 v{vFA+i}, v{vFA+i}, s{sT0}, 1.0")
    for i in range(4):
        A(f"v_mul_f32 v{vFA+i}, v{vFA+i}, v{vFD+i}")
    for i in range(4):
        A(f"v_mul_f32 v{vFA+i}, s{sT1}, v{vFA+i}")
    for i in range(4):
        A(f"v_exp_f32 v{vFA+i}, v{vFA+i}")
    A("s_nop 0")
    for i in range(4):
        A(f"v_add_f32 v{vFA+i}, 1.0, v{vFA+i}")
    for i in range(4):
        A(f"v_rcp_f32 v{vFA+i}, v{vFA+i}")
    A("s_nop 0")
    for i in range(4):
        A(f"v_mul_f32 v{vFA+i}, v{vFA+i}, v{vFD+i}")
    round_bf16([vFA + i for i in range(4)])
    A("s_nop 1")
    for i in range(4):
        A(f"v_mul_f32_dpp v{vFA+i}, v{vFD+i}, v{vFA+i} row_ror:8 row_mask:0xf bank_mask:0xf")
    A("s_nop 1")
    for i in range(4):
        A(f"v_mov_b32_dpp v{vFB+i}, v{vFA+i} quad_perm:[1,0,3,2] row_mask:0xf bank_mask:0xf")
    for i in range(4):
        A(f"v_cvt_pk_bf16_f32 v{vFA+i}, v{vFA+i}, v{vFB+i}")
    A(f"s_lshl_b32 s{sT0}, s{sT3}, 4")
    A(f"s_add_u32 s{sT0}, s{sT0}, {WS_H}")
    A(f"v_lshl_add_u32 v{vC}, v1, 1, s{sT0}")
    A("s_mov_b64 exec, 0x55")
    for i in range(4):
        A(f"s_mov_b32 s{sT1}, {3456*i}")
        A(f"buffer_store_dword v{vFA+i}, v{vC}, s[{WSS}:{WSS+3}], s{sT1} offen sc1")
    A("s_mov_b64 exec, 1")
    A("s_waitcnt vmcnt(0)")
    A(f"v_mov_b32 v{vC}, 0")
    A(f"v_mov_b32 v{vC+1}, 1")
    A(f"global_atomic_add v{vC}, v{vC+1}, s[{pDBG}:{pDBG+1}] sc1")
    A("s_mov_b64 exec, -1")
    A("s_branch L_wait3")

    A.label("L_f2")
    A.c("F2: 16 output columns of the down projection for all 4 batches")
    A("s_mov_b64 exec, 1")
    A(f"v_mov_b32 v{vC}, 0")
    A(f"v_mov_b32 v{vC+1}, 1")
    A(f"global_atomic_add v{vC}, v{vC+1}, s[{pDBG}:{pDBG+1}] sc1")
    A("s_mov_b64 exec, -1")
    A(f"s_mul_i32 s{sT3}, s{sX8}, 5")
    A(f"s_add_u32 s{sT3}, s{sT3}, s{sSLOT}")
    A(f"s_sub_u32 s{sT3}, s{sT3}, 27")
    A(f"s_lshl_b32 s{sT0}, s{sT3}, 5")
    srd(F0S, pWD, None, 1728 * 1280)
    A(f"v_lshrrev_b32 v{vC+2}, 1, v1")
    A(f"v_mul_u32_u24 v{vC+2}, 1280, v{vC+2}")
    A(f"v_and_b32 v{vC+3}, 1, v1")
    A(f"v_lshl_add_u32 v{vC+2}, v{vC+3}, 4, v{vC+2}")
    A(f"v_add_u32 v{vC+2}, s{sT0}, v{vC+2}")
    A(f"s_mov_b32 s{sOFF}, 0")
    A(f"s_mov_b32 s{sT1}, {WT}")
    A(f"s_mov_b32 s{sCNT}, 54")
    A.label("L_f2_ld")
    A(f"s_mov_b32 m0, s{sT1}")
    A(f"s_add_u32 s{sT1}, s{sT1}, 1024")
    A(f"buffer_load_dwordx4 v{vC+2}, s[{F0S}:{F0S+3}], s{sOFF} offen {ffnflags} lds")
    A(f"s_add_u32 s{sOFF}, s{sOFF}, {32*1280}")
    A("s_waitcnt vmcnt(16)")
    A(f"s_sub_u32 s{sCNT}, s{sCNT}, 1")
    A(f"s_cmp_lg_u32 s{sCNT}, 0")
    A("s_cbranch_scc1 L_f2_ld")
    A(f"v_mov_b32 v{vC}, 0")
    A.label("L_f2_poll")
    A(f"global_load_dword v{vC+1}, v{vC}, s[{pDBG}:{pDBG+1}] sc1")
    A("s_waitcnt vmcnt(0)")
    A(f"v_readfirstlane_b32 s{sT0}, v{vC+1}")
    A("s_nop 0")
    A(f"s_cmp_ge_u32 s{sT0}, 256")
    A("s_cbranch_scc1 L_f2_go")
    A("s_sleep 8")
    A("s_branch L_f2_poll")
    A.label("L_f2_go")
    vH = 36
    A(f"v_lshlrev_b32 v{vC}, 4, v1")
    A(f"s_mov_b32 s{sOFF}, {WS_H}")
    for i in range(14):
        A(f"buffer_load_dwordx4 v[{vH+4*i}:{vH+4*i+3}], v{vC}, s[{WSS}:{WSS+3}], s{sOFF} offen sc1")
        A(f"s_add_u32 s{sOFF}, s{sOFF}, 1024")
    for i in range(14):
        A(f"s_waitcnt vmcnt({13-i})")
        A(f"ds_write_b128 v{vC}, v[{vH+4*i}:{vH+4*i+3}] offset:{HB + 1024*i}")
    A(f"v_lshrrev_b32 v{vC+1}, 2, v2")
    A(f"v_lshl_add_u32 v{vC+1}, v3, 3, v{vC+1}")
    A(f"v_lshlrev_b32 v{vTR}, 5, v{vC+1}")
    A(f"v_and_b32 v{vC+1}, 3, v1")
    A(f"v_lshl_add_u32 v{vTR}, v{vC+1}, 3, v{vTR}")
    A(f"v_add_u32 v{vTR}, {WT}, v{vTR}")
    A(f"v_mul_u32_u24 v{vAO}, 3456, v{vC+1}")
    A(f"v_lshl_add_u32 v{vAO}, v3, 4, v{vAO}")
    A(f"v_add_u32 v{vAO}, {HB}, v{vAO}")
    for i in range(4):
        A(f"v_mov_b32 v{vFD+i}, 0")
    A(f"s_mov_b32 s{sCNT}, 54")
    A("s_waitcnt lgkmcnt(0)")
    A.label("L_f2_mm")
    A(f"ds_read_b128 v[{vFA}:{vFA+3}], v{vAO}")
    A(f"ds_read_b64_tr_b16 v[{vFB}:{vFB+1}], v{vTR}")
    A(f"ds_read_b64_tr_b16 v[{vFB+2}:{vFB+3}], v{vTR} offset:128")
    A(f"v_add_u32 v{vAO}, 64, v{vAO}")
    A(f"v_add_u32 v{vTR}, 1024, v{vTR}")
    A("s_waitcnt lgkmcnt(0)")
    A(f"v_mfma_f32_16x16x32_bf16 v[{vFD}:{vFD+3}], v[{vFA}:{vFA+3}], v[{vFB}:{vFB+3}], v[{vFD}:{vFD+3}]")
    A(f"s_sub_u32 s{sCNT}, s{sCNT}, 1")
    A(f"s_cmp_lg_u32 s{sCNT}, 0")
    A("s_cbranch_scc1 L_f2_mm")
    A("s_nop 7")
    round_bf16(D4)
    A(f"s_mov_b32 s{sT1}, {f2u(-L2E):#x}")
    for i in range(4):
        A(f"v_mul_f32 v{vFA+i}, s{sT1}, v{vFD+i}")
    for i in range(4):
        A(f"v_exp_f32 v{vFA+i}, v{vFA+i}")
    A("s_nop 0")
    for i in range(4):
        A(f"v_add_f32 v{vFA+i}, 1.0, v{vFA+i}")
    for i in range(4):
        A(f"v_rcp_f32 v{vFA+i}, v{vFA+i}")
    A("s_nop 0")
    for i in range(4):
        A(f"v_mul_f32 v{vFA+i}, v{vFA+i}, v{vFD+i}")
    round_bf16([vFA + i for i in range(4)])
    A(f"v_lshlrev_b32 v{vC}, 2, v1")
    A("s_mov_b64 exec, 0xffff")
    for i in range(4):
        A(f"ds_write_b32 v{vC}, v{vFA+i} offset:{GB + 64*i}")
    A("s_mov_b64 exec, -1")
    A("s_waitcnt lgkmcnt(0)")

    A.label("L_wait3")
    A("s_waitcnt vmcnt(0)")
    A("s_barrier")
    vML = 14
    vE = 30
    vOV = 64
    vOS = 88
    A(f"v_mov_b32 v{vE}, 0")
    for w in range(0, NS, 2):
        A(f"ds_read_b128 v[{vML+2*w}:{vML+2*w+3}], v{vE} offset:{ML + 8*w}")
    A(f"s_mul_i32 s{sT0}, s{sA}, {RO*4}")
    A(f"v_mul_u32_u24 v{vE+1}, {OT*4}, v3")
    A(f"v_add_u32 v{vE+1}, s{sT0}, v{vE+1}")
    nset = 24 // OT
    def oread(w):
        base = vOV + (w % nset) * OT
        for i in range(OT // 4):
            A(f"ds_read_b128 v[{base+4*i}:{base+4*i+3}], v{vE+1} offset:{OP + 512*w + 16*i}")
    npre = min(NS, nset)
    for w in range(npre):
        oread(w)
    A(f"s_waitcnt lgkmcnt({npre * OT // 4})")
    A(f"v_max_f32 v{vE+2}, v{vML}, v{vML+2}")
    for w in range(2, NS):
        A(f"v_max_f32 v{vE+2}, v{vE+2}, v{vML+2*w}")
    for w in range(NS):
        A(f"v_sub_f32 v{vML+2*w}, v{vML+2*w}, v{vE+2}")
    for w in range(NS):
        A(f"v_mul_f32 v{vML+2*w}, s{sL2E}, v{vML+2*w}")
    for w in range(NS):
        A(f"v_exp_f32 v{vML+2*w}, v{vML+2*w}")
    A("s_nop 0")
    A(f"v_mul_f32 v{vE+3}, v{vML}, v{vML+1}")
    for w in range(1, NS):
        A(f"v_fmac_f32 v{vE+3}, v{vML+2*w}, v{vML+2*w+1}")
    for w in range(NS):
        left = min(NS - 1 - w, npre - 1)
        A(f"s_waitcnt lgkmcnt({left * OT // 4})")
        base = vOV + (w % nset) * OT
        for t in range(OT):
            if w == 0:
                A(f"v_mul_f32 v{vOS+t}, v{base+t}, v{vML}")
            else:
                A(f"v_fmac_f32 v{vOS+t}, v{base+t}, v{vML+2*w}")
        if w + npre < NS:
            oread(w + npre)
    for t in range(OT):
        A(f"v_cvt_pk_bf16_f32 v{vOS+t}, v{vOS+t}, v{vOS+t}")
    vTA = 44
    for t in range(OT):
        aa = vAA + 4 * (t & 1)
        for rr in range(4):
            A(f"v_and_b32 v{aa+rr}, v{vOS+t}, v{MK+rr}")
        A("s_nop 1")
        for seg in range(5):
            r = vW + 4 * (t * 5 + seg)
            d = vTA + 4 * seg
            c = "0" if t == 0 else f"v[{d}:{d+3}]"
            A(f"v_mfma_f32_16x16x32_bf16 v[{d}:{d+3}], v[{aa}:{aa+3}], v[{r}:{r+3}], {c}")
    A(f"s_mul_i32 s{sT0}, s{sA}, 2560")
    A(f"v_lshlrev_b32 v{vE}, 5, v2")
    A(f"v_lshl_add_u32 v{vE}, v3, 4, v{vE}")
    A(f"v_add_u32 v{vE}, s{sT0}, v{vE}")
    A(f"v_lshlrev_b32 v{vE+1}, 4, v{vU}")
    A("s_nop 3")
    A("s_mov_b64 exec, 0xffffffff")
    for seg in range(5):
        d = vTA + 4 * seg
        A(f"ds_write_b128 v{vE}, v[{d}:{d+3}] offset:{TP + 512*seg}")
    A("s_mov_b64 exec, -1")
    A("s_waitcnt lgkmcnt(0)")
    A("s_barrier")
    A(f"v_cmp_gt_u32 vcc, 160, v{vU}")
    A(f"s_and_saveexec_b64 s[{sEX}:{sEX+1}], vcc")
    A("s_cbranch_execz L_nopub")
    for a in range(NA):
        A(f"ds_read_b128 v[{64+4*a}:{64+4*a+3}], v{vE+1} offset:{TP + 2560*a}")
    for a in range(1, NA):
        A(f"s_waitcnt lgkmcnt({NA-1-a})")
        for i in range(4):
            A(f"v_add_f32 v{64+i}, v{64+i}, v{64+4*a+i}")
    for i in range(4):
        A(f"v_min_u32 v{64+i}, -2, v{64+i}")
    A(f"buffer_store_dwordx4 v[64:67], v{vTO}, s[{WSS}:{WSS+3}], 0 offen sc1")
    A.label("L_nopub")
    A(f"s_mov_b64 exec, s[{sEX}:{sEX+1}]")
    A(f"v_min_u32 v{vE+2}, -2, v{vE+2}")
    A(f"v_min_u32 v{vE+3}, -2, v{vE+3}")
    A(f"v_cmp_eq_u32 vcc, 192, v{vU}")
    A(f"s_and_saveexec_b64 s[{sEX}:{sEX+1}], vcc")
    A("s_cbranch_execz L_nopub2")
    A(f"buffer_store_dwordx2 v[{vE+2}:{vE+3}], v{vO3}, s[{WSS}:{WSS+3}], 0 offen sc1")
    A.label("L_nopub2")
    A(f"s_mov_b64 exec, s[{sEX}:{sEX+1}]")
    A(f"s_cmp_lt_u32 s{sSLOT}, 27")
    A("s_cbranch_scc1 L_fin")
    if NA > 4:
        A(f"s_cmp_ge_u32 s{sA}, 4")
        A("s_cbranch_scc1 L_fin")
    A(f"s_mul_i32 s{sT3}, s{sX8}, 5")
    A(f"s_add_u32 s{sT3}, s{sT3}, s{sSLOT}")
    A(f"s_sub_u32 s{sT3}, s{sT3}, 27")
    A(f"s_lshl_b32 s{sT0}, s{sT3}, 2")
    A(f"s_add_u32 s{sT0}, s{sT0}, s{sA}")
    A(f"s_lshl_b32 s{sT0}, s{sT0}, 12")
    A(f"v_lshlrev_b32 v14, 4, v1")
    A(f"s_lshl_b32 s{sT1}, s{sA}, 9")
    A(f"s_add_u32 s{sT1}, s{sT1}, {WS_ML}")
    A(f"v_lshrrev_b32 v15, 3, v1")
    A(f"v_lshlrev_b32 v15, 4, v15")
    A("v_and_b32 v16, 3, v1")
    A("v_lshlrev_b32 v16, 2, v16")
    A("v_and_b32 v17, 1, v3")
    A("v_lshl_add_u32 v16, v17, 1, v16")
    A("v_lshrrev_b32 v17, 1, v3")
    A("v_add_u32 v16, v16, v17")
    A(f"s_mul_i32 s{sT2}, s{sA}, 1280")
    A(f"s_lshl_b32 s{sOFF}, s{sT3}, 5")
    A(f"s_add_u32 s{sT2}, s{sT2}, s{sOFF}")
    A(f"v_lshl_add_u32 v17, v16, 1, s{sT2}")
    A(f"buffer_load_ushort v18, v17, s[{XS}:{XS+3}], 0 offen")
    A(f"s_lshl_b32 s{sOFF}, s{sA}, 6")
    A(f"v_lshl_add_u32 v19, v16, 2, s{sOFF}")
    A(f"ds_read_b32 v19, v19 offset:{GB}")
    srd(OUTS, pOUT, None, 5120)
    vT, vMLp = 96, 112
    A.label("L_poll")
    for n in range(4):
        A(f"buffer_load_dwordx4 v[{vT+4*n}:{vT+4*n+3}], v14, s[{WSS}:{WSS+3}], s{sT0} offen offset:{1024*n} sc1")
    for n in range(4):
        A(f"buffer_load_dwordx4 v[{vMLp+4*n}:{vMLp+4*n+3}], v15, s[{WSS}:{WSS+3}], s{sT1} offen offset:{128*n} sc1")
    A("s_waitcnt vmcnt(0)")
    A(f"v_max3_u32 v20, v{vT}, v{vT+1}, v{vT+2}")
    A(f"v_max3_u32 v21, v{vT+3}, v{vT+4}, v{vT+5}")
    for i in range(6, 30, 4):
        A(f"v_max3_u32 v20, v20, v{vT+i}, v{vT+i+1}")
        A(f"v_max3_u32 v21, v21, v{vT+i+2}, v{vT+i+3}")
    A(f"v_max3_u32 v20, v20, v{vT+30}, v{vT+31}")
    A("v_max_u32 v20, v20, v21")
    A("v_cmp_eq_u32 vcc, -1, v20")
    A("s_nop 1")
    A("s_cbranch_vccnz L_poll")
    A("v_bfe_u32 v20, v1, 2, 1")
    A("v_cmp_eq_u32 vcc, 1, v20")
    for n in range(4):
        m0, l0, m1, l1 = [vMLp + 4 * n + i for i in range(4)]
        A(f"v_max_f32 v21, v{m0}, v{m1}")
        A(f"v_sub_f32 v{m0}, v{m0}, v21")
        A(f"v_sub_f32 v{m1}, v{m1}, v21")
        A(f"v_mul_f32 v{m0}, s{sL2E}, v{m0}")
        A(f"v_mul_f32 v{m1}, s{sL2E}, v{m1}")
        A(f"v_exp_f32 v{m0}, v{m0}")
        A(f"v_exp_f32 v{m1}, v{m1}")
    A("s_nop 0")
    for n in range(4):
        m0, l0, m1, l1 = [vMLp + 4 * n + i for i in range(4)]
        A(f"v_mul_f32 v{l0}, v{l0}, v{m0}")
        A(f"v_fmac_f32 v{l0}, v{l1}, v{m1}")
        A(f"v_rcp_f32 v{l0}, v{l0}")
        A(f"v_cndmask_b32 v{m0}, v{m0}, v{m1}, vcc")
    A("s_nop 0")
    for n in range(4):
        m0, l0, m1, l1 = [vMLp + 4 * n + i for i in range(4)]
        A(f"v_mul_f32 v{m0}, v{m0}, v{l0}")
    for n in range(4):
        for i in range(4):
            if n == 0:
                A(f"v_mul_f32 v{24+i}, v{vT+i}, v{vMLp}")
            else:
                A(f"v_fmac_f32 v{24+i}, v{vT+4*n+i}, v{vMLp+4*n}")
    A("s_nop 1")
    A("v_permlane32_swap_b32 v24, v25")
    A("v_permlane32_swap_b32 v26, v27")
    A("v_add_f32 v24, v24, v25")
    A("v_add_f32 v26, v26, v27")
    A("s_nop 1")
    A("v_permlane16_swap_b32 v24, v26")
    A("v_add_f32 v24, v24, v26")
    A("s_nop 1")
    A("v_add_f32_dpp v24, v24, v24 row_ror:4 row_mask:0xf bank_mask:0xf")
    A("s_nop 1")
    A("v_add_f32_dpp v24, v24, v24 row_ror:8 row_mask:0xf bank_mask:0xf")
    A("s_waitcnt lgkmcnt(0)")
    round_bf16([24])
    A("v_mul_f32 v24, v24, v19")
    round_bf16([24])
    A("v_lshlrev_b32 v18, 16, v18")
    A("v_add_f32 v24, v24, v18")
    A("v_cvt_pk_bf16_f32 v24, v24, v24")
    A("s_mov_b32 exec_lo, 0x000f000f")
    A("s_mov_b32 exec_hi, 0x000f000f")
    A(f"buffer_store_short v24, v17, s[{OUTS}:{OUTS+3}], 0 offen")
    A("s_mov_b64 exec, -1")
    A.label("L_fin")
    if stamps:
        A("s_waitcnt vmcnt(0)")
        A(f"s_memrealtime s[{sST1}:{sST1+1}]")
        A(f"s_cmp_lg_u32 s{sA}, 0")
        A("s_cbranch_scc1 L_end")
        A("s_waitcnt lgkmcnt(0)")
        A(f"v_mov_b32 v20, s{sST0}")
        A(f"v_mov_b32 v21, s{sST1}")
        A(f"s_lshl_b32 s{sT0}, s2, 3")
        A(f"s_add_u32 s{sT0}, s{sT0}, {WS_STAMP}")
        A(f"v_mov_b32 v22, s{sT0}")
        A("s_mov_b64 exec, 1")
        A(f"global_store_dwordx2 v22, v[20:21], s[{pWS}:{pWS+1}]")
    A.label("L_end")
    A("s_endpgm")
    out += A.text()
    nv = max(RING + 32 * DEPTH, vW + 4 * NL, 128)
    if vgpr: nv = max(nv, vgpr)
    out += f"""
.section .rodata,"a"
.p2align 6
.amdhsa_kernel {NAME}
  .amdhsa_next_free_vgpr {nv}
  .amdhsa_next_free_sgpr 80
  .amdhsa_accum_offset {(nv + 3) // 4 * 4}
  .amdhsa_group_segment_fixed_size 0
  .amdhsa_kernarg_size 96
  .amdhsa_user_sgpr_count 2
  .amdhsa_user_sgpr_kernarg_segment_ptr 1
  .amdhsa_system_sgpr_workgroup_id_x 1
  .amdhsa_float_denorm_mode_32 3
.end_amdhsa_kernel
"""
    return out

if __name__ == "__main__":
    kw = eval("dict(" + (sys.argv[1] if len(sys.argv) > 1 else "") + ")")
    sys.stdout.write(gen(**kw))
```

```python
import sys, struct

NAME = "recurrent_scan__mha_block_cached__geglu_ffn__decode_kernel"

def f2u(x):
    return struct.unpack("<I", struct.pack("<f", x))[0]

HEADER = """; Kernarg layout for this problem (96 bytes, ptrs only, base s[0:1]):
"""

class Gen:
    def __init__(self):
        self.o = []
    def __call__(self, s):
        self.o.append("    " + s)
    def label(self, s):
        self.o.append(s + ":")
    def c(self, s):
        self.o.append("    ; " + s)
    def text(self):
        return "\n".join(self.o) + "\n"


def gen(NS=4, DEPTH=4, kvflags="nt", wqflags="nt", woflags="nt", ffnflags="nt", auxprio=1, stamps=0,
        wqwin=40, wowin=40, f1win=20, f2win=16, shift=0, gsleep=127,
        nowo=0, noffn=0, nowq=0, noaux=0, nosig=0, nofinal=0, bar0=0):
    A = Gen()
    NA = 4
    NW = NS + NA
    XND = 0
    XNB = XND + 10240
    QP = XNB + 5120
    QB = QP + NA * 512
    OP = QB + NS * 256
    ML = OP + NS * 512
    FLG = ML + 64
    GB = FLG + 16
    TP = GB + 256
    HB = TP + NA * 2560
    WT = HB + 13824
    LDS = WT + 55296
    assert WT % 16 == 0 and HB % 16 == 0 and TP % 16 == 0
    WS_T = 0
    WS_ML = 0xA0000
    WS_H = 0xA4000
    WS_EP = 0xAC000
    WS_SIZE = WS_EP + 128
    WS_STAMP = 0x100000
    L2E = 1.4426950408889634
    SCALE = 128 ** -0.5

    sWAVE, sX8, sSLOT, sSPLIT, sB, sH = 3, 4, 5, 6, 7, 60
    KS, VS = 8, 12
    WQS, WOS = 8, 12
    WSS = 16
    XS = 20
    F0S, F1S = 24, 28
    OUTS = 32
    P = 36
    pX, pK, pV, pWQ, pWO, pBX, pWG, pWU, pWD, pOUT, pDBG, pWS = [P + 2 * i for i in range(12)]
    sT0, sT1, sT2, sT3 = 61, 62, 63, 64
    sOFF, sCNT, sM, sL2E, sSC, sA, sHS = 65, 66, 67, 68, 69, 70, 71
    sEX = 72
    sTAG, sROLE = 74, 75
    sST = 76
    NSTAMP = 8
    def stamp(i):
        if stamps:
            A(f"s_memrealtime s[{sST+2*i}:{sST+2*i+1}]")

    def srd(dst, ptr, add_lo, nrec):
        if add_lo is None:
            A(f"s_mov_b32 s{dst}, s{ptr}")
            A(f"s_mov_b32 s{dst+1}, s{ptr+1}")
        else:
            A(f"s_add_u32 s{dst}, s{ptr}, {add_lo}")
            A(f"s_addc_u32 s{dst+1}, s{ptr+1}, 0")
        A(f"s_mov_b32 s{dst+2}, {nrec}")
        A(f"s_mov_b32 s{dst+3}, 0x20000")

    out = HEADER
    out += f"; @launch grid=(256,1,1) block=({NW*64},1,1) lds={LDS}\n"
    out += '.amdgcn_target "amdgcn-amd-amdhsa--gfx950"\n.text\n'
    out += f".globl {NAME}\n.p2align 8\n.type {NAME},@function\n{NAME}:\n"

    A("s_cmp_ge_u32 s2, 256")
    A("s_cbranch_scc1 L_end")
    stamp(0)
    A(f"s_load_dwordx16 s[{P}:{P+15}], s[0:1], 0")
    A(f"s_load_dwordx8 s[{P+16}:{P+23}], s[0:1], 64")
    A("v_lshrrev_b32 v4, 6, v0")
    A("v_and_b32 v1, 63, v0")
    A(f"v_readfirstlane_b32 s{sWAVE}, v4")
    A("v_and_b32 v2, 15, v1")
    A("v_lshrrev_b32 v3, 4, v1")
    A(f"s_and_b32 s{sX8}, s2, 7")
    A(f"s_lshr_b32 s{sSLOT}, s2, 3")
    A(f"s_and_b32 s{sSPLIT}, s{sSLOT}, 1")
    A(f"s_lshr_b32 s{sB}, s{sSLOT}, 1")
    A(f"s_and_b32 s{sB}, s{sB}, 3")
    A(f"s_lshr_b32 s{sH}, s{sSLOT}, 3")
    A(f"s_lshl_b32 s{sH}, s{sH}, 3")
    A(f"s_add_u32 s{sH}, s{sH}, s{sX8}")
    A(f"s_mov_b32 s{sL2E}, {f2u(L2E):#x}")
    A(f"s_mov_b32 s{sSC}, {f2u(SCALE):#x}")
    MK = 4
    A("v_and_b32 v8, 1, v2")
    A("v_lshlrev_b32 v8, 4, v8")
    A("v_mov_b32 v9, 0xffff")
    A("v_lshlrev_b32 v8, v8, v9")
    A("v_lshrrev_b32 v9, 1, v2")
    A(f"s_cmp_lt_u32 s{sWAVE}, {NA}")
    A("s_cbranch_scc1 L_aux")

    vKO, vVO = 18, 19
    vM, vL, vNM, vAL, vTM, vT0, vT1 = 10, 11, 12, 13, 14, 15, 16
    vACC = 20
    vS = 24
    vP = 28
    vQ = 32
    vS2 = 40
    vA = 48
    RING = 64
    def kreg(slot, i): return RING + slot * 32 + i * 4
    def vreg(slot, i): return RING + slot * 32 + 16 + i * 4
    A.c("---- streaming wave ----")
    A(f"s_sub_u32 s{sWAVE}, s{sWAVE}, {NA}")
    A(f"v_lshlrev_b32 v{vKO}, 8, v9")
    A(f"v_and_b32 v{vVO}, 1, v2")
    A(f"v_lshl_add_u32 v{vKO}, v{vVO}, 6, v{vKO}")
    A(f"v_lshl_add_u32 v{vKO}, v3, 4, v{vKO}")
    A(f"v_lshlrev_b32 v{vVO}, 9, v3")
    A(f"v_lshl_add_u32 v{vVO}, v2, 4, v{vVO}")
    koff = [0, 128, 2048, 2176]
    voff = [0, 256, 2048, 2304]
    RB = 2 << 20
    STEP = NS * 4096
    A(f"s_cmp_ge_u32 s{sSLOT}, 22")
    A(f"s_cselect_b32 s{sT1}, {shift}, 0")
    A(f"s_add_u32 s{sT1}, s{sT1}, 256")
    A(f"s_sub_u32 s{sT2}, 512, s{sT1}")
    A(f"s_cmp_eq_u32 s{sSPLIT}, 0")
    A(f"s_cselect_b32 s{sCNT}, s{sT1}, s{sT2}")
    A(f"s_cselect_b32 s{sOFF}, 0, s{sT1}")
    A(f"s_add_u32 s{sOFF}, s{sOFF}, s{sWAVE}")
    A(f"s_lshl_b32 s{sOFF}, s{sOFF}, 12")
    A(f"s_sub_u32 s{sCNT}, s{sCNT}, s{sWAVE}")
    A(f"s_add_u32 s{sCNT}, s{sCNT}, {NS-1}")
    A(f"s_lshr_b32 s{sCNT}, s{sCNT}, {NS.bit_length()-1}")
    A(f"s_lshl_b32 s{sT0}, s{sB}, 5")
    A(f"s_add_u32 s{sT0}, s{sT0}, s{sH}")
    A(f"s_lshl_b32 s{sT0}, s{sT0}, 21")
    A("s_waitcnt lgkmcnt(0)")
    srd(KS, pK, f"s{sT0}", RB)
    srd(VS, pV, f"s{sT0}", RB)
    def issueK(slot):
        for i in range(4):
            r = kreg(slot, i)
            A(f"buffer_load_dwordx4 v[{r}:{r+3}], v{vKO}, s[{KS}:{KS+3}], s{sOFF} offen offset:{koff[i]} {kvflags}")
    def issueV(slot):
        for i in range(4):
            r = vreg(slot, i)
            A(f"buffer_load_dwordx4 v[{r}:{r+3}], v{vVO}, s[{VS}:{VS+3}], s{sOFF} offen offset:{voff[i]} {kvflags}")
        A(f"s_add_u32 s{sOFF}, s{sOFF}, {STEP}")
    if bar0:
        A("s_barrier")
    for s in range(DEPTH):
        issueK(s)
        issueV(s)
    for rr in range(4):
        A(f"v_cmp_eq_u32 vcc, {rr+4}, v9")
        A("s_nop 1")
        A(f"v_cndmask_b32 v{MK+rr}, 0, v8, vcc")
    A(f"v_mov_b32 v{vM}, 0xff7fffff")
    A(f"v_mov_b32 v{vL}, 0")
    for i in range(4):
        A(f"v_mov_b32 v{vACC+i}, 0")
    A(f"v_lshlrev_b32 v{vT0}, 3, v1")
    A(f"s_lshl_b32 s{sT0}, s{sWAVE}, 8")
    A(f"s_add_u32 s{sT0}, s{sT0}, {QB}")
    A(f"v_lshl_add_u32 v{vT1}, v1, 2, s{sT0}")
    A(f"v_lshl_add_u32 v{vTM}, v3, 4, s{sT0}")
    A(f"v_lshrrev_b32 v{vAL}, 3, v2")
    A(f"v_lshl_add_u32 v{vTM}, v{vAL}, 6, v{vTM}")
    A("s_barrier")
    for a in range(NA):
        A(f"ds_read_b64 v[{vA+2*a}:{vA+2*a+1}], v{vT0} offset:{QP + a*512}")
    A("s_waitcnt lgkmcnt(0)")
    for a in range(1, NA):
        A(f"v_add_f32 v{vA}, v{vA}, v{vA+2*a}")
        A(f"v_add_f32 v{vA+1}, v{vA+1}, v{vA+2*a+1}")
    A(f"v_cvt_pk_bf16_f32 v{vA}, v{vA}, v{vA+1}")
    A(f"ds_write_b32 v{vT1}, v{vA}")
    A("s_waitcnt lgkmcnt(0)")
    for j in range(2):
        A(f"ds_read_b128 v[{vQ+4*j}:{vQ+4*j+3}], v{vTM} offset:{128*j}")
    A("s_waitcnt lgkmcnt(0)")
    A.label("L_loop")
    W = 8 * DEPTH - 4
    for s in range(DEPTH):
        A(f"s_cmp_le_u32 s{sCNT}, {DEPTH}")
        A(f"s_cselect_b32 s{KS+2}, 0, {RB}")
        A(f"s_cselect_b32 s{VS+2}, 0, {RB}")
        A(f"s_waitcnt vmcnt({W})")
        for (j, d, qj) in ((0, vS2, 0), (2, vS2 + 4, 0), (1, vS2, 1), (3, vS2 + 4, 1)):
            r = kreg(s, j)
            c = "0" if qj == 0 else f"v[{d}:{d+3}]"
            A(f"v_mfma_f32_16x16x32_bf16 v[{d}:{d+3}], v[{r}:{r+3}], v[{vQ+4*qj}:{vQ+4*qj+3}], {c}")
        issueK(s)
        A("s_nop 3")
        for i in range(4):
            A(f"v_add_f32_dpp v{vS+i}, v{vS2+2*i}, v{vS2+2*i+1} row_ror:8 row_mask:0xf bank_mask:0xf")
        A(f"v_cvt_pk_bf16_f32 v{vT0}, v{vS}, v{vS+1}")
        A(f"v_cvt_pk_bf16_f32 v{vT1}, v{vS+2}, v{vS+3}")
        A(f"v_lshlrev_b32 v{vP}, 16, v{vT0}")
        A(f"v_and_b32 v{vP+1}, 0xffff0000, v{vT0}")
        A(f"v_lshlrev_b32 v{vP+2}, 16, v{vT1}")
        A(f"v_and_b32 v{vP+3}, 0xffff0000, v{vT1}")
        for i in range(4):
            A(f"v_mul_f32 v{vP+i}, s{sSC}, v{vP+i}")
        A(f"v_cvt_pk_bf16_f32 v{vT0}, v{vP}, v{vP+1}")
        A(f"v_cvt_pk_bf16_f32 v{vT1}, v{vP+2}, v{vP+3}")
        A(f"v_lshlrev_b32 v{vP}, 16, v{vT0}")
        A(f"v_and_b32 v{vP+1}, 0xffff0000, v{vT0}")
        A(f"v_lshlrev_b32 v{vP+2}, 16, v{vT1}")
        A(f"v_and_b32 v{vP+3}, 0xffff0000, v{vT1}")
        A(f"v_max3_f32 v{vTM}, v{vP}, v{vP+1}, v{vM}")
        A(f"v_max3_f32 v{vTM}, v{vP+2}, v{vP+3}, v{vTM}")
        A("s_nop 1")
        A(f"v_max_f32_dpp v{vTM}, v{vTM}, v{vTM} row_bcast:15 row_mask:0xa bank_mask:0xf")
        A("s_nop 1")
        A(f"v_max_f32_dpp v{vTM}, v{vTM}, v{vTM} row_bcast:31 row_mask:0xc bank_mask:0xf")
        A("s_nop 0")
        A(f"v_readlane_b32 s{sM}, v{vTM}, 63")
        A(f"v_mov_b32 v{vNM}, s{sL2E}")
        A("s_nop 0")
        A(f"v_mul_f32 v{vNM}, s{sM}, v{vNM}")
        for i in range(4):
            A(f"v_fma_f32 v{vP+i}, v{vP+i}, s{sL2E}, -v{vNM}")
        A(f"v_fma_f32 v{vAL}, v{vM}, s{sL2E}, -v{vNM}")
        for i in range(4):
            A(f"v_exp_f32 v{vP+i}, v{vP+i}")
        A(f"v_exp_f32 v{vAL}, v{vAL}")
        A(f"v_mov_b32 v{vM}, s{sM}")
        A(f"v_add_f32 v{vT0}, v{vP}, v{vP+1}")
        A(f"v_add_f32 v{vT1}, v{vP+2}, v{vP+3}")
        for i in range(4):
            A(f"v_cvt_pk_bf16_f32 v{vP+i}, v{vP+i}, v{vP+i}")
        A(f"v_add_f32 v{vT0}, v{vT0}, v{vT1}")
        A(f"v_fma_f32 v{vL}, v{vL}, v{vAL}, v{vT0}")
        for i in range(4):
            A(f"v_mul_f32 v{vACC+i}, v{vACC+i}, v{vAL}")
        for i in range(4):
            for rr in range(4):
                A(f"v_and_b32 v{vA+4*i+rr}, v{vP+i}, v{MK+rr}")
        A(f"s_waitcnt vmcnt({W})")
        A("s_nop 0")
        for i in range(4):
            r = vreg(s, i)
            A(f"v_mfma_f32_16x16x32_bf16 v[{vACC}:{vACC+3}], v[{vA+4*i}:{vA+4*i+3}], v[{r}:{r+3}], v[{vACC}:{vACC+3}]")
        issueV(s)
        A(f"s_sub_u32 s{sCNT}, s{sCNT}, 1")
        A(f"s_cmp_eq_u32 s{sCNT}, 0")
        if s < DEPTH - 1:
            A("s_cbranch_scc1 L_sdone")
        else:
            A("s_cbranch_scc0 L_loop")
    A.label("L_sdone")
    A(f"v_add_f32_dpp v{vL}, v{vL}, v{vL} row_bcast:15 row_mask:0xa bank_mask:0xf")
    A(f"s_lshl_b32 s{sT0}, s{sWAVE}, 9")
    A(f"s_add_u32 s{sT0}, s{sT0}, {OP - 32}")
    A(f"v_add_f32_dpp v{vL}, v{vL}, v{vL} row_bcast:31 row_mask:0xc bank_mask:0xf")
    A(f"v_lshlrev_b32 v{vT0}, 5, v2")
    A(f"v_lshl_add_u32 v{vT0}, v3, 4, v{vT0}")
    A(f"v_add_u32 v{vT0}, s{sT0}, v{vT0}")
    A(f"s_lshl_b32 s{sT1}, s{sWAVE}, 3")
    A(f"s_add_u32 s{sT1}, s{sT1}, {ML}")
    A(f"v_mov_b32 v{vT1}, s{sT1}")
    A("s_mov_b32 exec_lo, 0")
    A(f"ds_write_b128 v{vT0}, v[{vACC}:{vACC+3}]")
    A("s_mov_b32 exec_hi, 0x80000000")
    A(f"ds_write_b64 v{vT1}, v[{vM}:{vM+1}]")
    A("s_mov_b64 exec, -1")
    A("s_waitcnt lgkmcnt(0)")
    A("s_barrier")
    A("s_endpgm")

    A.label("L_aux")
    A.c("---- aux wave ----")
    NL = 160 // NA
    RW = 640 // NA
    RT = RW // 4
    RO = 128 // NA
    OT = RO // 4
    vTO = 13
    vO1, vO2, vO3 = 10, 11, 12
    vX = 14
    vF = 20
    vC = 30
    vAA = 36
    vQA = 44
    vX2 = 48
    vXD = 56
    vW = 96
    if auxprio:
        A(f"s_setprio {auxprio}")
    A(f"s_mov_b32 s{sA}, s{sWAVE}")
    if noaux:
        A("s_waitcnt lgkmcnt(0)")
        if bar0: A("s_barrier")
        stamp(1)
        A("s_barrier")
        stamp(2); stamp(3)
        A("s_barrier")
        stamp(4); stamp(5); stamp(6)
        A("s_branch L_fin")
    A(f"v_lshlrev_b32 v{vO1}, 2, v1")
    A(f"v_mul_u32_u24 v{vO2}, {RT*8192}, v3")
    A(f"v_lshl_add_u32 v{vO2}, v2, 4, v{vO2}")
    A(f"s_mul_i32 s{sT0}, s{sA}, 1280")
    A(f"s_mul_i32 s{sT3}, s{sB}, 1280")
    A(f"s_lshl_b32 s{sT1}, s{sH}, 8")
    A(f"s_mul_i32 s{sT2}, s{sA}, {RW*8192}")
    A(f"s_add_u32 s{sT1}, s{sT1}, s{sT2}")
    A(f"s_sub_u32 s{sT2}, {640*8192}, s{sT1}")
    A("s_waitcnt lgkmcnt(0)")
    srd(XS, pX, None, 5120)
    for i in range(5):
        A(f"buffer_load_dword v{vX+i}, v{vO1}, s[{XS}:{XS+3}], s{sT3} offen offset:{256*i}")
    for i in range(5):
        A(f"buffer_load_dword v{vX2+i}, v{vO1}, s[{XS}:{XS+3}], s{sT0} offen offset:{256*i}")
    A(f"s_load_dword s{sTAG}, s[{pWS}:{pWS+1}], {WS_EP:#x}")
    srd(WQS, pWQ, f"s{sT1}", 0 if nowq else f"s{sT2}")
    A(f"s_mov_b32 s{sOFF}, 0")
    def wq_issue(t):
        r = vW + 4 * t
        A(f"buffer_load_dwordx4 v[{r}:{r+3}], v{vO2}, s[{WQS}:{WQS+3}], s{sOFF} offen {wqflags}")
        A(f"s_add_u32 s{sOFF}, s{sOFF}, 8192")
    wqwin = min(wqwin, NL)
    for t in range(wqwin):
        wq_issue(t)
    if bar0:
        A("s_barrier")
    for rr in range(4):
        A(f"v_cmp_eq_u32 vcc, {rr}, v9")
        A("s_nop 1")
        A(f"v_cndmask_b32 v{MK+rr}, 0, v8, vcc")
    def wave_sum(v, s):
        for sh in (1, 2, 4, 8):
            A("s_nop 1")
            A(f"v_add_f32_dpp v{v}, v{v}, v{v} row_shr:{sh} row_mask:0xf bank_mask:0xf bound_ctrl:0")
        A("s_nop 1")
        A(f"v_add_f32_dpp v{v}, v{v}, v{v} row_bcast:15 row_mask:0xa bank_mask:0xf")
        A("s_nop 1")
        A(f"v_add_f32_dpp v{v}, v{v}, v{v} row_bcast:31 row_mask:0xc bank_mask:0xf")
        A("s_nop 0")
        A(f"v_readlane_b32 s{s}, v{v}, 63")
        A("s_nop 1")
    def layernorm(vX, dup):
        for i in range(5):
            A(f"v_lshlrev_b32 v{vF+2*i}, 16, v{vX+i}")
            A(f"v_and_b32 v{vF+2*i+1}, 0xffff0000, v{vX+i}")
        A(f"v_add_f32 v{vC+4}, v{vF}, v{vF+1}")
        for i in range(2, 10):
            A(f"v_add_f32 v{vC+4}, v{vC+4}, v{vF+i}")
        wave_sum(vC + 4, sT0)
        A(f"v_mov_b32 v{vC+5}, {f2u(1.0/640):#x}")
        A(f"v_mul_f32 v{vC+4}, s{sT0}, v{vC+5}")
        A(f"v_sub_f32 v{vC}, v{vF}, v{vC+4}")
        A(f"v_mul_f32 v{vC+1}, v{vC}, v{vC}")
        for i in range(1, 10):
            A(f"v_sub_f32 v{vC}, v{vF+i}, v{vC+4}")
            A(f"v_fmac_f32 v{vC+1}, v{vC}, v{vC}")
        wave_sum(vC + 1, sT0)
        A(f"v_mul_f32 v{vC+1}, s{sT0}, v{vC+5}")
        A(f"v_cvt_pk_bf16_f32 v{vC}, v{vC+4}, v{vC+1}")
        A(f"v_lshlrev_b32 v{vC+4}, 16, v{vC}")
        A(f"v_and_b32 v{vC+1}, 0xffff0000, v{vC}")
        A(f"v_add_f32 v{vC+1}, {f2u(1e-5):#x}, v{vC+1}")
        A(f"v_cvt_pk_bf16_f32 v{vC+1}, v{vC+1}, v{vC+1}")
        A(f"v_and_b32 v{vC+1}, 0xffff0000, v{vC+1}")
        A(f"v_sqrt_f32 v{vC+1}, v{vC+1}")
        A("s_nop 0")
        A(f"v_cvt_pk_bf16_f32 v{vC+1}, v{vC+1}, v{vC+1}")
        A(f"v_and_b32 v{vC+1}, 0xffff0000, v{vC+1}")
        A(f"v_rcp_f32 v{vC+1}, v{vC+1}")
        for i in range(10):
            A(f"v_sub_f32 v{vF+i}, v{vF+i}, v{vC+4}")
        if dup:
            A(f"s_mul_i32 s{sT2}, s{sA}, 2560")
            A(f"v_lshl_add_u32 v{vC+3}, v1, 3, s{sT2}")
        else:
            A(f"s_mul_i32 s{sT1}, s{sA}, 1280")
            A(f"v_add_u32 v{vC+2}, s{sT1}, v{vO1}")
        for i in range(5):
            A(f"v_cvt_pk_bf16_f32 v{vX+i}, v{vF+2*i}, v{vF+2*i+1}")
            A(f"v_lshlrev_b32 v{vF+2*i}, 16, v{vX+i}")
            A(f"v_and_b32 v{vF+2*i+1}, 0xffff0000, v{vX+i}")
            A(f"v_mul_f32 v{vF+2*i}, v{vF+2*i}, v{vC+1}")
            A(f"v_mul_f32 v{vF+2*i+1}, v{vF+2*i+1}, v{vC+1}")
            if dup:
                A(f"v_cvt_pk_bf16_f32 v{vF+2*i}, v{vF+2*i}, v{vF+2*i}")
                A(f"v_cvt_pk_bf16_f32 v{vF+2*i+1}, v{vF+2*i+1}, v{vF+2*i+1}")
                A(f"ds_write_b64 v{vC+3}, v[{vF+2*i}:{vF+2*i+1}] offset:{XND + 512*i}")
            else:
                A(f"v_cvt_pk_bf16_f32 v{vX+i}, v{vF+2*i}, v{vF+2*i+1}")
                A(f"ds_write_b32 v{vC+2}, v{vX+i} offset:{XNB + 256*i}")
    A(f"s_waitcnt vmcnt({wqwin + 5})")
    layernorm(vX, True)
    stamp(1)
    A(f"s_mul_i32 s{sT1}, s{sA}, {RW*4}")
    A(f"s_add_u32 s{sT0}, s{sT2}, s{sT1}")
    A(f"v_mul_u32_u24 v{vX}, {RT*4}, v3")
    A(f"v_add_u32 v{vX}, s{sT0}, v{vX}")
    A("s_waitcnt lgkmcnt(0)")
    for i in range(RT // 4):
        A(f"ds_read_b128 v[{vXD+4*i}:{vXD+4*i+3}], v{vX} offset:{XND + 16*i}")
    A("s_waitcnt lgkmcnt(0)")
    for t in range(NL):
        aa = vAA + 4 * (t & 1)
        for rr in range(4):
            A(f"v_and_b32 v{aa+rr}, v{vXD+t}, v{MK+rr}")
        issued = min(NL, wqwin + t)
        A(f"s_waitcnt vmcnt({issued - 1 - t})")
        if wqwin + t < NL:
            wq_issue(wqwin + t)
        else:
            A("s_nop 0")
        r = vW + 4 * t
        c = "0" if t == 0 else f"v[{vQA}:{vQA+3}]"
        A(f"v_mfma_f32_16x16x32_bf16 v[{vQA}:{vQA+3}], v[{aa}:{aa+3}], v[{r}:{r+3}], {c}")
    A(f"s_lshl_b32 s{sT0}, s{sA}, 9")
    A(f"s_add_u32 s{sT0}, s{sT0}, {QP}")
    A(f"v_lshlrev_b32 v{vC}, 5, v2")
    A(f"v_lshl_add_u32 v{vC}, v3, 4, v{vC}")
    A(f"v_add_u32 v{vC}, s{sT0}, v{vC}")
    A("s_nop 3")
    A("s_mov_b64 exec, 0xffffffff")
    A(f"ds_write_b128 v{vC}, v[{vQA}:{vQA+3}]")
    A("s_mov_b64 exec, -1")
    A(f"s_lshl_b32 s{sT0}, s{sA}, 2")
    A(f"v_mov_b32 v{vC+1}, s{sT0}")
    A(f"v_mov_b32 v{vC+2}, 0")
    A(f"ds_write_b32 v{vC+1}, v{vC+2} offset:{FLG}")
    A("s_waitcnt lgkmcnt(0)")
    A("s_barrier")
    stamp(2)
    layernorm(vX2, False)
    srd(WSS, pWS, None, WS_SIZE)
    A(f"s_mul_i32 s{sTAG}, s{sTAG}, 0x9e3779b1")
    A(f"s_add_u32 s{sTAG}, s{sTAG}, 0x7f4a7c15")
    A(f"s_lshl_b32 s{sHS}, s{sH}, 1")
    A(f"s_add_u32 s{sHS}, s{sHS}, s{sSPLIT}")
    A(f"s_lshl_b32 s{sT0}, s{sB}, 6")
    A(f"s_add_u32 s{sT0}, s{sT0}, s{sHS}")
    A(f"s_lshl_b32 s{sT1}, s{sT0}, 6")
    A(f"v_lshrrev_b32 v{vTO}, 2, v0")
    A(f"v_lshlrev_b32 v{vTO}, 14, v{vTO}")
    A(f"v_and_b32 v{vC}, 3, v0")
    A(f"v_lshl_add_u32 v{vTO}, v{vC}, 4, v{vTO}")
    A(f"v_add_u32 v{vTO}, s{sT1}, v{vTO}")
    A(f"s_lshr_b32 s{sT1}, s{sT0}, 1")
    A(f"s_lshl_b32 s{sT1}, s{sT1}, 7")
    A(f"s_lshl_b32 s{sT2}, s{sSPLIT}, 3")
    A(f"s_add_u32 s{sT1}, s{sT1}, s{sT2}")
    A(f"s_add_u32 s{sT1}, s{sT1}, {WS_ML}")
    A(f"v_mov_b32 v{vO3}, s{sT1}")
    for i in range(4):
        A(f"v_mov_b32 v{vC+i}, -1")
    A(f"v_cmp_gt_u32 vcc, 160, v0")
    A(f"s_and_saveexec_b64 s[{sEX}:{sEX+1}], vcc")
    A("s_cbranch_execz L_noclr")
    A(f"buffer_store_dwordx4 v[{vC}:{vC+3}], v{vTO}, s[{WSS}:{WSS+3}], 0 offen sc1")
    A.label("L_noclr")
    A(f"s_mov_b64 exec, s[{sEX}:{sEX+1}]")
    A(f"v_cmp_eq_u32 vcc, 192, v0")
    A(f"s_and_saveexec_b64 s[{sEX}:{sEX+1}], vcc")
    A("s_cbranch_execz L_noclr2")
    A(f"buffer_store_dwordx2 v[{vC}:{vC+1}], v{vO3}, s[{WSS}:{WSS+3}], 0 offen sc1")
    A.label("L_noclr2")
    A(f"s_mov_b64 exec, s[{sEX}:{sEX+1}]")
    A("s_waitcnt vmcnt(0) lgkmcnt(0)")
    A(f"s_lshl_b32 s{sT0}, s{sA}, 2")
    A(f"v_mov_b32 v{vC}, s{sT0}")
    A(f"v_mov_b32 v{vC+1}, 1")
    A(f"ds_write_b32 v{vC}, v{vC+1} offset:{FLG}")
    A(f"s_sub_u32 s{sT0}, s{sSLOT}, 22")
    A(f"s_lshr_b32 s{sT1}, s{sT0}, 1")
    A(f"s_add_u32 s{sT2}, s{sT1}, 22")
    A(f"s_cmp_ge_u32 s{sSLOT}, 22")
    A(f"s_cselect_b32 s{sT2}, s{sT2}, s{sSLOT}")
    A(f"s_cselect_b32 s{sT3}, s{sSPLIT}, 0")
    A(f"s_mul_i32 s{sROLE}, s{sX8}, 27")
    A(f"s_add_u32 s{sROLE}, s{sROLE}, s{sT2}")
    A(f"s_mul_i32 s{sT0}, s{sX8}, 5")
    A(f"s_add_u32 s{sT0}, s{sT0}, s{sT1}")
    A(f"s_add_u32 s{sT0}, s{sT0}, 216")
    A(f"s_cmp_lg_u32 s{sT3}, 0")
    A(f"s_cselect_b32 s{sROLE}, s{sT0}, s{sROLE}")
    def wo_load():
        A(f"s_mul_i32 s{sT0}, s{sH}, {128*1280}")
        A(f"s_mul_i32 s{sT1}, s{sA}, {RO*1280}")
        A(f"s_add_u32 s{sT0}, s{sT0}, s{sT1}")
        srd(WOS, pWO, f"s{sT0}", RO * 1280)
        A(f"v_mul_u32_u24 v{vO2}, {OT*1280}, v3")
        A(f"v_lshl_add_u32 v{vO2}, v2, 4, v{vO2}")
        A(f"s_mov_b32 s{sOFF}, 0")
        for t in range(OT):
            for seg in range(5):
                r = vW + 4 * (t * 5 + seg)
                if not nowo:
                    A(f"buffer_load_dwordx4 v[{r}:{r+3}], v{vO2}, s[{WOS}:{WOS+3}], s{sOFF} offen offset:{256*seg} {woflags}")
                    if wowin < NL:
                        A(f"s_waitcnt vmcnt({wowin - 1})")
            A(f"s_add_u32 s{sOFF}, s{sOFF}, 1280")
    wo_load()
    A(f"s_cmp_lg_u32 s{sA}, 0")
    A("s_cbranch_scc1 L_wait3")
    if nosig:
        A("s_branch L_wait3")
    vTR, vAO = 14, 15
    vFA, vFB, vFD = 20, 24, 28
    D4 = [vFD + i for i in range(4)]
    def round_bf16(regs):
        for v in regs:
            A(f"v_cvt_pk_bf16_f32 v{v}, v{v}, v{v}")
        for v in regs:
            A(f"v_and_b32 v{v}, 0xffff0000, v{v}")
    A(f"v_mov_b32 v{vC+4}, 0")
    A.label("L_flg")
    A(f"ds_read_b128 v[{vFA}:{vFA+3}], v{vC+4} offset:{FLG}")
    A("s_waitcnt lgkmcnt(0)")
    A(f"v_add3_u32 v{vFA}, v{vFA}, v{vFA+1}, v{vFA+2}")
    A(f"v_add_u32 v{vFA}, v{vFA}, v{vFA+3}")
    A(f"v_cmp_ne_u32 vcc, 4, v{vFA}")
    A("s_nop 1")
    A("s_cbranch_vccnz L_flg")
    A(f"s_lshl_b32 s{sT3}, s{sROLE}, 7")
    A(f"s_add_u32 s{sT3}, s{sT3}, {WS_H}")
    A(f"s_cmp_ge_u32 s{sROLE}, 216")
    A("s_cbranch_scc1 L_f2")
    A.c("F1: 8 columns of gate/up for all 4 batches")
    A(f"s_lshl_b32 s{sT0}, s{sROLE}, 4")
    srd(F0S, pWG, None, 640 * 3456)
    srd(F1S, pWU, None, 640 * 3456)
    A(f"v_mul_u32_u24 v{vC}, 3456, v1")
    A(f"v_add_u32 v{vC}, s{sT0}, v{vC}")
    for mat, S in enumerate((F0S, F1S)):
        A(f"s_mov_b32 s{sOFF}, 0")
        for i in range(10):
            A(f"s_mov_b32 m0, {WT + mat*10240 + i*1024}")
            A("s_nop 0")
            if not noffn:
                A(f"buffer_load_dwordx4 v{vC}, s[{S}:{S+3}], s{sOFF} offen {ffnflags} lds")
                if f1win < 20:
                    A(f"s_waitcnt vmcnt({f1win - 1})")
            A(f"s_add_u32 s{sOFF}, s{sOFF}, {64*3456}")
    A(f"v_lshrrev_b32 v{vC+1}, 2, v2")
    A(f"v_lshl_add_u32 v{vC+1}, v3, 3, v{vC+1}")
    A(f"v_lshlrev_b32 v{vTR}, 4, v{vC+1}")
    A(f"v_and_b32 v{vC+1}, 1, v1")
    A(f"v_lshl_add_u32 v{vTR}, v{vC+1}, 3, v{vTR}")
    A(f"v_bfe_u32 v{vC+1}, v1, 1, 1")
    A(f"v_mul_u32_u24 v{vC+1}, 10240, v{vC+1}")
    A(f"v_add_u32 v{vTR}, v{vTR}, v{vC+1}")
    A(f"v_add_u32 v{vTR}, {WT}, v{vTR}")
    A(f"v_and_b32 v{vC+1}, 3, v1")
    A(f"v_mul_u32_u24 v{vAO}, 1280, v{vC+1}")
    A(f"v_lshl_add_u32 v{vAO}, v3, 4, v{vAO}")
    A(f"v_add_u32 v{vAO}, {XNB}, v{vAO}")
    for i in range(4):
        A(f"v_mov_b32 v{vFD+i}, 0")
    A(f"s_mov_b32 s{sCNT}, 20")
    A("s_waitcnt vmcnt(0)")
    A.label("L_f1_mm")
    A(f"ds_read_b128 v[{vFA}:{vFA+3}], v{vAO}")
    A(f"ds_read_b64_tr_b16 v[{vFB}:{vFB+1}], v{vTR}")
    A(f"ds_read_b64_tr_b16 v[{vFB+2}:{vFB+3}], v{vTR} offset:64")
    A(f"v_add_u32 v{vAO}, 64, v{vAO}")
    A(f"v_add_u32 v{vTR}, 512, v{vTR}")
    A("s_waitcnt lgkmcnt(0)")
    A(f"v_mfma_f32_16x16x32_bf16 v[{vFD}:{vFD+3}], v[{vFA}:{vFA+3}], v[{vFB}:{vFB+3}], v[{vFD}:{vFD+3}]")
    A(f"s_sub_u32 s{sCNT}, s{sCNT}, 1")
    A(f"s_cmp_lg_u32 s{sCNT}, 0")
    A("s_cbranch_scc1 L_f1_mm")
    A("s_nop 7")
    for i in range(1, 4):
        A(f"v_cmp_eq_u32 vcc, {i}, v3")
        A("s_nop 1")
        A(f"v_cndmask_b32 v{vFD}, v{vFD}, v{vFD+i}, vcc")
    round_bf16([vFD])
    K0 = 0.7978845608028654
    A(f"s_mov_b32 s{sT0}, {f2u(0.044715):#x}")
    A(f"s_mov_b32 s{sT1}, {f2u(-2.0 * K0 * L2E):#x}")
    A(f"v_mul_f32 v{vFA}, v{vFD}, v{vFD}")
    A(f"v_fma_f32 v{vFA}, v{vFA}, s{sT0}, 1.0")
    A(f"v_mul_f32 v{vFA}, v{vFA}, v{vFD}")
    A(f"v_mul_f32 v{vFA}, s{sT1}, v{vFA}")
    A(f"v_exp_f32 v{vFA}, v{vFA}")
    A("s_nop 0")
    A(f"v_add_f32 v{vFA}, 1.0, v{vFA}")
    A(f"v_rcp_f32 v{vFA}, v{vFA}")
    A("s_nop 0")
    A(f"v_mul_f32 v{vFA}, v{vFA}, v{vFD}")
    round_bf16([vFA])
    A("s_nop 1")
    A(f"v_mul_f32_dpp v{vFA}, v{vFD}, v{vFA} row_ror:8 row_mask:0xf bank_mask:0xf")
    A("s_nop 1")
    A(f"v_mov_b32_dpp v{vFB}, v{vFA} quad_perm:[1,0,3,2] row_mask:0xf bank_mask:0xf")
    A(f"v_cvt_pk_bf16_f32 v{vFA}, v{vFA}, v{vFB}")
    A(f"v_mov_b32 v{vFA+1}, s{sTAG}")
    A(f"v_lshlrev_b32 v{vC}, 5, v3")
    A(f"v_lshl_add_u32 v{vC}, v2, 2, v{vC}")
    A("s_mov_b32 exec_lo, 0x00550055")
    A("s_mov_b32 exec_hi, 0x00550055")
    A(f"buffer_store_dwordx2 v[{vFA}:{vFA+1}], v{vC}, s[{WSS}:{WSS+3}], s{sT3} offen sc1")
    A("s_mov_b64 exec, -1")
    A("s_branch L_wait3")

    A.label("L_f2")
    A.c("F2: 16 output columns of the down projection for all 4 batches")
    A(f"v_mov_b32 v{vFA}, 0")
    A(f"v_mov_b32 v{vFA+1}, s{sTAG}")
    A(f"v_lshlrev_b32 v{vC}, 3, v1")
    A("s_mov_b64 exec, 0xffff")
    A(f"buffer_store_dwordx2 v[{vFA}:{vFA+1}], v{vC}, s[{WSS}:{WSS+3}], s{sT3} offen sc1")
    A("s_mov_b64 exec, -1")
    A(f"s_sub_u32 s{sT0}, s{sROLE}, 216")
    A(f"s_lshl_b32 s{sT0}, s{sT0}, 5")
    srd(F0S, pWD, None, 1728 * 1280)
    A(f"v_lshrrev_b32 v{vC+2}, 1, v1")
    A(f"v_mul_u32_u24 v{vC+2}, 1280, v{vC+2}")
    A(f"v_and_b32 v{vC+3}, 1, v1")
    A(f"v_lshl_add_u32 v{vC+2}, v{vC+3}, 4, v{vC+2}")
    A(f"v_add_u32 v{vC+2}, s{sT0}, v{vC+2}")
    A(f"s_mov_b32 s{sOFF}, 0")
    A(f"s_mov_b32 s{sT1}, {WT}")
    A(f"s_mov_b32 s{sCNT}, 54")
    A.label("L_f2_ld")
    A(f"s_mov_b32 m0, s{sT1}")
    A(f"s_add_u32 s{sT1}, s{sT1}, 1024")
    if not noffn:
        A(f"buffer_load_dwordx4 v{vC+2}, s[{F0S}:{F0S+3}], s{sOFF} offen {ffnflags} lds")
    A(f"s_add_u32 s{sOFF}, s{sOFF}, {32*1280}")
    A(f"s_waitcnt vmcnt({f2win - 1})")
    A(f"s_sub_u32 s{sCNT}, s{sCNT}, 1")
    A(f"s_cmp_lg_u32 s{sCNT}, 0")
    A("s_cbranch_scc1 L_f2_ld")
    vH = 36
    A(f"v_lshlrev_b32 v{vC}, 4, v1")
    A(f"v_bfe_u32 v{vC+1}, v1, 1, 2")
    A(f"v_mul_u32_u24 v{vC+1}, 3456, v{vC+1}")
    A(f"v_lshrrev_b32 v{vC+2}, 3, v1")
    A(f"v_lshl_add_u32 v{vC+1}, v{vC+2}, 4, v{vC+1}")
    A(f"v_and_b32 v{vC+2}, 1, v1")
    A(f"v_lshl_add_u32 v{vC+1}, v{vC+2}, 3, v{vC+1}")
    for rnd in range(4):
        A(f"s_branch L_g{rnd}")
        A.label(f"L_gr{rnd}")
        A(f"s_sleep {gsleep}")
        A.label(f"L_g{rnd}")
        A(f"s_mov_b32 s{sOFF}, {WS_H + rnd*8192}")
        for i in range(8):
            if i == 4:
                A(f"s_add_u32 s{sOFF}, s{sOFF}, 4096")
            A(f"buffer_load_dwordx4 v[{vH+4*i}:{vH+4*i+3}], v{vC}, s[{WSS}:{WSS+3}], s{sOFF} offen offset:{1024*(i&3)} sc1")
        A("s_waitcnt vmcnt(0)")
        A(f"v_mov_b32 v{vC+2}, 0")
        for i in range(8):
            A(f"v_xor_b32 v{vH+4*i+1}, s{sTAG}, v{vH+4*i+1}")
            A(f"v_xor_b32 v{vH+4*i+3}, s{sTAG}, v{vH+4*i+3}")
            A(f"v_or3_b32 v{vC+2}, v{vC+2}, v{vH+4*i+1}, v{vH+4*i+3}")
        A(f"v_cmp_ne_u32 vcc, 0, v{vC+2}")
        A("s_nop 1")
        A(f"s_cbranch_vccnz L_gr{rnd}")
        for i in range(8):
            n = rnd * 8 + i
            if n < 27:
                A(f"v_mov_b32 v{vH+4*i+1}, v{vH+4*i+2}")
                A(f"ds_write_b64 v{vC+1}, v[{vH+4*i}:{vH+4*i+1}] offset:{HB + 128*n}")
    A(f"s_cmp_lg_u32 s{sROLE}, 216")
    A("s_cbranch_scc1 L_noep")
    A(f"v_mov_b32 v{vC+2}, {WS_EP:#x}")
    A(f"v_mov_b32 v{vC+3}, s{sTAG}")
    A("s_mov_b64 exec, 1")
    A(f"buffer_store_dword v{vC+3}, v{vC+2}, s[{WSS}:{WSS+3}], 0 offen sc1")
    A("s_mov_b64 exec, -1")
    A.label("L_noep")
    A(f"v_lshrrev_b32 v{vC+4}, 2, v2")
    A(f"v_lshl_add_u32 v{vC+4}, v3, 3, v{vC+4}")
    A(f"v_lshlrev_b32 v{vTR}, 5, v{vC+4}")
    A(f"v_and_b32 v{vC+4}, 3, v1")
    A(f"v_lshl_add_u32 v{vTR}, v{vC+4}, 3, v{vTR}")
    A(f"v_add_u32 v{vTR}, {WT}, v{vTR}")
    A(f"v_mul_u32_u24 v{vAO}, 3456, v{vC+4}")
    A(f"v_lshl_add_u32 v{vAO}, v3, 4, v{vAO}")
    A(f"v_add_u32 v{vAO}, {HB}, v{vAO}")
    A("s_waitcnt lgkmcnt(0)")
    for i in range(4):
        A(f"v_mov_b32 v{vFD+i}, 0")
    A(f"s_mov_b32 s{sCNT}, 54")
    A.label("L_f2_mm")
    A(f"ds_read_b128 v[{vFA}:{vFA+3}], v{vAO}")
    A(f"ds_read_b64_tr_b16 v[{vFB}:{vFB+1}], v{vTR}")
    A(f"ds_read_b64_tr_b16 v[{vFB+2}:{vFB+3}], v{vTR} offset:128")
    A(f"v_add_u32 v{vAO}, 64, v{vAO}")
    A(f"v_add_u32 v{vTR}, 1024, v{vTR}")
    A("s_waitcnt lgkmcnt(0)")
    A(f"v_mfma_f32_16x16x32_bf16 v[{vFD}:{vFD+3}], v[{vFA}:{vFA+3}], v[{vFB}:{vFB+3}], v[{vFD}:{vFD+3}]")
    A(f"s_sub_u32 s{sCNT}, s{sCNT}, 1")
    A(f"s_cmp_lg_u32 s{sCNT}, 0")
    A("s_cbranch_scc1 L_f2_mm")
    A("s_nop 7")
    for i in range(1, 4):
        A(f"v_cmp_eq_u32 vcc, {i}, v3")
        A("s_nop 1")
        A(f"v_cndmask_b32 v{vFD}, v{vFD}, v{vFD+i}, vcc")
    round_bf16([vFD])
    A(f"s_mov_b32 s{sT1}, {f2u(-L2E):#x}")
    A(f"v_mul_f32 v{vFA}, s{sT1}, v{vFD}")
    A(f"v_exp_f32 v{vFA}, v{vFA}")
    A("s_nop 0")
    A(f"v_add_f32 v{vFA}, 1.0, v{vFA}")
    A(f"v_rcp_f32 v{vFA}, v{vFA}")
    A("s_nop 0")
    A(f"v_mul_f32 v{vFA}, v{vFA}, v{vFD}")
    round_bf16([vFA])
    A(f"ds_write_b32 v{vO1}, v{vFA} offset:{GB}")
    A("s_waitcnt lgkmcnt(0)")

    A.label("L_wait3")
    A("s_waitcnt vmcnt(0)")
    stamp(3)
    A("s_barrier")
    stamp(4)
    if stamps: A("s_waitcnt lgkmcnt(0)")
    vML = 14
    vE = 30
    vOV = 64
    vOS = 88
    A(f"v_mov_b32 v{vE}, 0")
    for w in range(0, NS, 2):
        A(f"ds_read_b128 v[{vML+2*w}:{vML+2*w+3}], v{vE} offset:{ML + 8*w}")
    A(f"s_mul_i32 s{sT0}, s{sA}, {RO*4}")
    A(f"v_mul_u32_u24 v{vE+1}, {OT*4}, v3")
    A(f"v_add_u32 v{vE+1}, s{sT0}, v{vE+1}")
    nset = 24 // OT
    def oread(w):
        base = vOV + (w % nset) * OT
        for i in range(OT // 4):
            A(f"ds_read_b128 v[{base+4*i}:{base+4*i+3}], v{vE+1} offset:{OP + 512*w + 16*i}")
    npre = min(NS, nset)
    for w in range(npre):
        oread(w)
    A(f"s_waitcnt lgkmcnt({npre * OT // 4})")
    A(f"v_max_f32 v{vE+2}, v{vML}, v{vML+2}")
    for w in range(2, NS):
        A(f"v_max_f32 v{vE+2}, v{vE+2}, v{vML+2*w}")
    for w in range(NS):
        A(f"v_sub_f32 v{vML+2*w}, v{vML+2*w}, v{vE+2}")
    for w in range(NS):
        A(f"v_mul_f32 v{vML+2*w}, s{sL2E}, v{vML+2*w}")
    for w in range(NS):
        A(f"v_exp_f32 v{vML+2*w}, v{vML+2*w}")
    A("s_nop 0")
    A(f"v_mul_f32 v{vE+3}, v{vML}, v{vML+1}")
    for w in range(1, NS):
        A(f"v_fmac_f32 v{vE+3}, v{vML+2*w}, v{vML+2*w+1}")
    for w in range(NS):
        left = min(NS - 1 - w, npre - 1)
        A(f"s_waitcnt lgkmcnt({left * OT // 4})")
        base = vOV + (w % nset) * OT
        for t in range(OT):
            if w == 0:
                A(f"v_mul_f32 v{vOS+t}, v{base+t}, v{vML}")
            else:
                A(f"v_fmac_f32 v{vOS+t}, v{base+t}, v{vML+2*w}")
        if w + npre < NS:
            oread(w + npre)
    for t in range(OT):
        A(f"v_cvt_pk_bf16_f32 v{vOS+t}, v{vOS+t}, v{vOS+t}")
    vTA = 44
    for t in range(OT):
        aa = vAA + 4 * (t & 1)
        for rr in range(4):
            A(f"v_and_b32 v{aa+rr}, v{vOS+t}, v{MK+rr}")
        A("s_nop 1")
        for seg in range(5):
            r = vW + 4 * (t * 5 + seg)
            d = vTA + 4 * seg
            c = "0" if t == 0 else f"v[{d}:{d+3}]"
            A(f"v_mfma_f32_16x16x32_bf16 v[{d}:{d+3}], v[{aa}:{aa+3}], v[{r}:{r+3}], {c}")
    A(f"s_mul_i32 s{sT0}, s{sA}, 2560")
    A(f"v_lshlrev_b32 v{vE}, 5, v2")
    A(f"v_lshl_add_u32 v{vE}, v3, 4, v{vE}")
    A(f"v_add_u32 v{vE}, s{sT0}, v{vE}")
    A(f"v_lshlrev_b32 v{vE+1}, 4, v0")
    A("s_nop 3")
    A("s_mov_b64 exec, 0xffffffff")
    for seg in range(5):
        d = vTA + 4 * seg
        A(f"ds_write_b128 v{vE}, v[{d}:{d+3}] offset:{TP + 512*seg}")
    A("s_mov_b64 exec, -1")
    A("s_waitcnt lgkmcnt(0)")
    A("s_barrier")
    stamp(5)
    if stamps: A("s_waitcnt lgkmcnt(0)")
    A(f"v_cmp_gt_u32 vcc, 160, v0")
    A(f"s_and_saveexec_b64 s[{sEX}:{sEX+1}], vcc")
    A("s_cbranch_execz L_nopub")
    for a in range(NA):
        A(f"ds_read_b128 v[{64+4*a}:{64+4*a+3}], v{vE+1} offset:{TP + 2560*a}")
    for a in range(1, NA):
        A(f"s_waitcnt lgkmcnt({NA-1-a})")
        for i in range(4):
            A(f"v_add_f32 v{64+i}, v{64+i}, v{64+4*a+i}")
    for i in range(4):
        A(f"v_min_u32 v{64+i}, -2, v{64+i}")
    A(f"buffer_store_dwordx4 v[64:67], v{vTO}, s[{WSS}:{WSS+3}], 0 offen sc1")
    A.label("L_nopub")
    A(f"s_mov_b64 exec, s[{sEX}:{sEX+1}]")
    A(f"v_min_u32 v{vE+2}, -2, v{vE+2}")
    A(f"v_min_u32 v{vE+3}, -2, v{vE+3}")
    A(f"v_cmp_eq_u32 vcc, 192, v0")
    A(f"s_and_saveexec_b64 s[{sEX}:{sEX+1}], vcc")
    A("s_cbranch_execz L_nopub2")
    A(f"buffer_store_dwordx2 v[{vE+2}:{vE+3}], v{vO3}, s[{WSS}:{WSS+3}], 0 offen sc1")
    A.label("L_nopub2")
    A(f"s_mov_b64 exec, s[{sEX}:{sEX+1}]")
    stamp(6)
    if stamps: A("s_waitcnt lgkmcnt(0)")
    A(f"s_cmp_lt_u32 s{sROLE}, 216")
    A("s_cbranch_scc1 L_fin")
    if nofinal:
        A("s_branch L_fin")
    A(f"s_sub_u32 s{sT3}, s{sROLE}, 216")
    A(f"s_lshl_b32 s{sT0}, s{sT3}, 2")
    A(f"s_add_u32 s{sT0}, s{sT0}, s{sA}")
    A(f"s_lshl_b32 s{sT0}, s{sT0}, 12")
    A(f"v_lshlrev_b32 v14, 4, v1")
    A(f"s_lshl_b32 s{sT1}, s{sA}, 12")
    A(f"s_add_u32 s{sT1}, s{sT1}, {WS_ML}")
    A(f"v_lshrrev_b32 v15, 3, v1")
    A(f"v_lshlrev_b32 v15, 7, v15")
    A("v_and_b32 v16, 3, v1")
    A("v_lshlrev_b32 v16, 2, v16")
    A("v_and_b32 v17, 1, v3")
    A("v_lshl_add_u32 v16, v17, 1, v16")
    A("v_lshrrev_b32 v17, 1, v3")
    A("v_add_u32 v16, v16, v17")
    A(f"s_mul_i32 s{sT2}, s{sA}, 1280")
    A(f"s_lshl_b32 s{sOFF}, s{sT3}, 5")
    A(f"s_add_u32 s{sT2}, s{sT2}, s{sOFF}")
    A(f"v_lshl_add_u32 v17, v16, 1, s{sT2}")
    A(f"buffer_load_ushort v18, v17, s[{XS}:{XS+3}], 0 offen")
    A(f"s_lshl_b32 s{sOFF}, s{sA}, 6")
    A(f"v_lshl_add_u32 v19, v16, 2, s{sOFF}")
    A(f"ds_read_b32 v19, v19 offset:{GB}")
    srd(OUTS, pOUT, None, 5120)
    vT, vMLp = 96, 112
    A.label("L_poll")
    for n in range(4):
        A(f"buffer_load_dwordx4 v[{vT+4*n}:{vT+4*n+3}], v14, s[{WSS}:{WSS+3}], s{sT0} offen offset:{1024*n} sc1")
    for n in range(4):
        A(f"buffer_load_dwordx4 v[{vMLp+4*n}:{vMLp+4*n+3}], v15, s[{WSS}:{WSS+3}], s{sT1} offen offset:{1024*n} sc1")
    A("s_waitcnt vmcnt(0)")
    A(f"v_max3_u32 v20, v{vT}, v{vT+1}, v{vT+2}")
    A(f"v_max3_u32 v21, v{vT+3}, v{vT+4}, v{vT+5}")
    for i in range(6, 30, 4):
        A(f"v_max3_u32 v20, v20, v{vT+i}, v{vT+i+1}")
        A(f"v_max3_u32 v21, v21, v{vT+i+2}, v{vT+i+3}")
    A(f"v_max3_u32 v20, v20, v{vT+30}, v{vT+31}")
    A("v_max_u32 v20, v20, v21")
    A("v_cmp_eq_u32 vcc, -1, v20")
    A("s_nop 1")
    A("s_cbranch_vccnz L_poll")
    A("v_bfe_u32 v20, v1, 2, 1")
    A("v_cmp_eq_u32 vcc, 1, v20")
    for n in range(4):
        m0, l0, m1, l1 = [vMLp + 4 * n + i for i in range(4)]
        A(f"v_max_f32 v21, v{m0}, v{m1}")
        A(f"v_sub_f32 v{m0}, v{m0}, v21")
        A(f"v_sub_f32 v{m1}, v{m1}, v21")
        A(f"v_mul_f32 v{m0}, s{sL2E}, v{m0}")
        A(f"v_mul_f32 v{m1}, s{sL2E}, v{m1}")
        A(f"v_exp_f32 v{m0}, v{m0}")
        A(f"v_exp_f32 v{m1}, v{m1}")
    A("s_nop 0")
    for n in range(4):
        m0, l0, m1, l1 = [vMLp + 4 * n + i for i in range(4)]
        A(f"v_mul_f32 v{l0}, v{l0}, v{m0}")
        A(f"v_fmac_f32 v{l0}, v{l1}, v{m1}")
        A(f"v_rcp_f32 v{l0}, v{l0}")
        A(f"v_cndmask_b32 v{m0}, v{m0}, v{m1}, vcc")
    A("s_nop 0")
    for n in range(4):
        m0, l0, m1, l1 = [vMLp + 4 * n + i for i in range(4)]
        A(f"v_mul_f32 v{m0}, v{m0}, v{l0}")
    for n in range(4):
        for i in range(4):
            if n == 0:
                A(f"v_mul_f32 v{24+i}, v{vT+i}, v{vMLp}")
            else:
                A(f"v_fmac_f32 v{24+i}, v{vT+4*n+i}, v{vMLp+4*n}")
    A("s_nop 1")
    A("v_permlane32_swap_b32 v24, v25")
    A("v_permlane32_swap_b32 v26, v27")
    A("v_add_f32 v24, v24, v25")
    A("v_add_f32 v26, v26, v27")
    A("s_nop 1")
    A("v_permlane16_swap_b32 v24, v26")
    A("v_add_f32 v24, v24, v26")
    A("s_nop 1")
    A("v_add_f32_dpp v24, v24, v24 row_ror:4 row_mask:0xf bank_mask:0xf")
    A("s_nop 1")
    A("v_add_f32_dpp v24, v24, v24 row_ror:8 row_mask:0xf bank_mask:0xf")
    A("s_waitcnt lgkmcnt(0)")
    round_bf16([24])
    A("v_mul_f32 v24, v24, v19")
    round_bf16([24])
    A("v_lshlrev_b32 v18, 16, v18")
    A("v_add_f32 v24, v24, v18")
    A("v_cvt_pk_bf16_f32 v24, v24, v24")
    A("s_mov_b32 exec_lo, 0x000f000f")
    A("s_mov_b32 exec_hi, 0x000f000f")
    A(f"buffer_store_short v24, v17, s[{OUTS}:{OUTS+3}], 0 offen")
    A("s_mov_b64 exec, -1")
    A.label("L_fin")
    if stamps:
        A("s_waitcnt vmcnt(0)")
        stamp(7)
        A(f"s_cmp_lg_u32 s{sA}, 0")
        A("s_cbranch_scc1 L_end")
        A("s_waitcnt lgkmcnt(0)")
        for i in range(NSTAMP):
            A(f"v_mov_b32 v{20+i}, s{sST+2*i}")
        A(f"s_lshl_b32 s{sT0}, s2, 5")
        A(f"s_add_u32 s{sT0}, s{sT0}, {WS_STAMP}")
        A(f"v_mov_b32 v30, s{sT0}")
        A("s_mov_b64 exec, 1")
        A(f"global_store_dwordx4 v30, v[20:23], s[{pWS}:{pWS+1}]")
        A(f"global_store_dwordx4 v30, v[24:27], s[{pWS}:{pWS+1}] offset:16")
    A.label("L_end")
    A("s_endpgm")
    out += A.text()
    nv = max(RING + 32 * DEPTH, vW + 4 * NL, 128)
    assert nv <= 256
    out += f"""
.section .rodata,"a"
.p2align 6
.amdhsa_kernel {NAME}
  .amdhsa_next_free_vgpr {nv}
  .amdhsa_next_free_sgpr 96
  .amdhsa_accum_offset {(nv + 3) // 4 * 4}
  .amdhsa_group_segment_fixed_size 0
  .amdhsa_kernarg_size 96
  .amdhsa_user_sgpr_count 2
  .amdhsa_user_sgpr_kernarg_segment_ptr 1
  .amdhsa_system_sgpr_workgroup_id_x 1
  .amdhsa_float_denorm_mode_32 3
.end_amdhsa_kernel
"""
    return out

if __name__ == "__main__":
    kw = eval("dict(" + (sys.argv[1] if len(sys.argv) > 1 else "") + ")")
    sys.stdout.write(gen(**kw))
```

```python
import sys, struct

NAME = "recurrent_scan__mha_block_cached__geglu_ffn__decode_kernel"

def f2u(x):
    return struct.unpack("<I", struct.pack("<f", x))[0]

HEADER = """; Kernarg layout for this problem (96 bytes, ptrs only, base s[0:1]):
"""

class Gen:
    def __init__(self):
        self.o = []
    def __call__(self, s):
        self.o.append("    " + s)
    def label(self, s):
        self.o.append(s + ":")
    def c(self, s):
        self.o.append("    ; " + s)
    def text(self):
        return "\n".join(self.o) + "\n"


def gen(NS=4, DEPTH=4, kvflags="nt", wqflags="nt", woflags="nt", ffnflags="nt", auxprio=1, stamps=0,
        wqwin=40, wowin=40, f1win=20, f2win=16, shift=0, gsleep=127,
        nowo=0, noffn=0, nowq=0, noaux=0, nosig=0, nofinal=0, bar0=0, badloc=0):
    A = Gen()
    NA = 4
    NW = NS + NA
    XND = 0
    XNB = XND + 10240
    QP = XNB + 5120
    QB = QP + NA * 512
    OP = QB + NS * 256
    ML = OP + NS * 512
    FLG = ML + 64
    GB = FLG + 16
    TP = GB + 256
    HB = TP + NA * 2560
    WT = HB + 13824
    LDS = WT + 55296
    assert WT % 16 == 0 and HB % 16 == 0 and TP % 16 == 0
    WS_T = 0
    WS_ML = 0xA0000
    WS_H = 0xA4000
    WS_EP = 0xAC000
    WS_SIZE = WS_EP + 128
    WS_STAMP = 0x100000
    L2E = 1.4426950408889634
    SCALE = 128 ** -0.5

    sWAVE, sX8, sSLOT, sSPLIT, sB, sH = 3, 4, 5, 6, 7, 60
    KS, VS = 8, 12
    WQS, WOS = 8, 12
    WSS = 16
    XS = 20
    F0S, F1S = 24, 28
    OUTS = 32
    P = 36
    pX, pK, pV, pWQ, pWO, pBX, pWG, pWU, pWD, pOUT, pDBG, pWS = [P + 2 * i for i in range(12)]
    sT0, sT1, sT2, sT3 = 61, 62, 63, 64
    sOFF, sCNT, sM, sL2E, sSC, sA, sHS = 65, 66, 67, 68, 69, 70, 71
    sEX = 72
    sTAG, sROLE = 74, 75
    sST = 76
    NSTAMP = 8
    def stamp(i):
        if stamps:
            A(f"s_memrealtime s[{sST+2*i}:{sST+2*i+1}]")

    def srd(dst, ptr, add_lo, nrec):
        if add_lo is None:
            A(f"s_mov_b32 s{dst}, s{ptr}")
            A(f"s_mov_b32 s{dst+1}, s{ptr+1}")
        else:
            A(f"s_add_u32 s{dst}, s{ptr}, {add_lo}")
            A(f"s_addc_u32 s{dst+1}, s{ptr+1}, 0")
        A(f"s_mov_b32 s{dst+2}, {nrec}")
        A(f"s_mov_b32 s{dst+3}, 0x20000")

    out = HEADER
    out += f"; @launch grid=(256,1,1) block=({NW*64},1,1) lds={LDS}\n"
    out += '.amdgcn_target "amdgcn-amd-amdhsa--gfx950"\n.text\n'
    out += f".globl {NAME}\n.p2align 8\n.type {NAME},@function\n{NAME}:\n"

    A("s_cmp_ge_u32 s2, 256")
    A("s_cbranch_scc1 L_end")
    stamp(0)
    A(f"s_load_dwordx16 s[{P}:{P+15}], s[0:1], 0")
    A(f"s_load_dwordx8 s[{P+16}:{P+23}], s[0:1], 64")
    A("v_lshrrev_b32 v4, 6, v0")
    A("v_and_b32 v1, 63, v0")
    A(f"v_readfirstlane_b32 s{sWAVE}, v4")
    A("v_and_b32 v2, 15, v1")
    A("v_lshrrev_b32 v3, 4, v1")
    if badloc:
        A(f"s_lshr_b32 s{sX8}, s2, 5")
        A(f"s_and_b32 s{sSLOT}, s2, 31")
    else:
        A(f"s_and_b32 s{sX8}, s2, 7")
        A(f"s_lshr_b32 s{sSLOT}, s2, 3")
    A(f"s_and_b32 s{sSPLIT}, s{sSLOT}, 1")
    A(f"s_lshr_b32 s{sB}, s{sSLOT}, 1")
    A(f"s_and_b32 s{sB}, s{sB}, 3")
    A(f"s_lshr_b32 s{sH}, s{sSLOT}, 3")
    A(f"s_lshl_b32 s{sH}, s{sH}, 3")
    A(f"s_add_u32 s{sH}, s{sH}, s{sX8}")
    A(f"s_mov_b32 s{sL2E}, {f2u(L2E):#x}")
    A(f"s_mov_b32 s{sSC}, {f2u(SCALE):#x}")
    MK = 4
    A("v_and_b32 v8, 1, v2")
    A("v_lshlrev_b32 v8, 4, v8")
    A("v_mov_b32 v9, 0xffff")
    A("v_lshlrev_b32 v8, v8, v9")
    A("v_lshrrev_b32 v9, 1, v2")
    A(f"s_cmp_lt_u32 s{sWAVE}, {NA}")
    A("s_cbranch_scc1 L_aux")

    vKO, vVO = 18, 19
    vM, vL, vNM, vAL, vTM, vT0, vT1 = 10, 11, 12, 13, 14, 15, 16
    vACC = 20
    vS = 24
    vP = 28
    vQ = 32
    vS2 = 40
    vA = 48
    RING = 64
    def kreg(slot, i): return RING + slot * 32 + i * 4
    def vreg(slot, i): return RING + slot * 32 + 16 + i * 4
    A.c("---- streaming wave ----")
    A(f"s_sub_u32 s{sWAVE}, s{sWAVE}, {NA}")
    A(f"v_lshlrev_b32 v{vKO}, 8, v9")
    A(f"v_and_b32 v{vVO}, 1, v2")
    A(f"v_lshl_add_u32 v{vKO}, v{vVO}, 6, v{vKO}")
    A(f"v_lshl_add_u32 v{vKO}, v3, 4, v{vKO}")
    A(f"v_lshlrev_b32 v{vVO}, 9, v3")
    A(f"v_lshl_add_u32 v{vVO}, v2, 4, v{vVO}")
    koff = [0, 128, 2048, 2176]
    voff = [0, 256, 2048, 2304]
    RB = 2 << 20
    STEP = NS * 4096
    A(f"s_cmp_ge_u32 s{sSLOT}, 22")
    A(f"s_cselect_b32 s{sT1}, {shift}, 0")
    A(f"s_add_u32 s{sT1}, s{sT1}, 256")
    A(f"s_sub_u32 s{sT2}, 512, s{sT1}")
    A(f"s_cmp_eq_u32 s{sSPLIT}, 0")
    A(f"s_cselect_b32 s{sCNT}, s{sT1}, s{sT2}")
    A(f"s_cselect_b32 s{sOFF}, 0, s{sT1}")
    A(f"s_add_u32 s{sOFF}, s{sOFF}, s{sWAVE}")
    A(f"s_lshl_b32 s{sOFF}, s{sOFF}, 12")
    A(f"s_sub_u32 s{sCNT}, s{sCNT}, s{sWAVE}")
    A(f"s_add_u32 s{sCNT}, s{sCNT}, {NS-1}")
    A(f"s_lshr_b32 s{sCNT}, s{sCNT}, {NS.bit_length()-1}")
    A(f"s_lshl_b32 s{sT0}, s{sB}, 5")
    A(f"s_add_u32 s{sT0}, s{sT0}, s{sH}")
    A(f"s_lshl_b32 s{sT0}, s{sT0}, 21")
    A("s_waitcnt lgkmcnt(0)")
    srd(KS, pK, f"s{sT0}", RB)
    srd(VS, pV, f"s{sT0}", RB)
    def issueK(slot):
        for i in range(4):
            r = kreg(slot, i)
            A(f"buffer_load_dwordx4 v[{r}:{r+3}], v{vKO}, s[{KS}:{KS+3}], s{sOFF} offen offset:{koff[i]} {kvflags}")
    def issueV(slot):
        for i in range(4):
            r = vreg(slot, i)
            A(f"buffer_load_dwordx4 v[{r}:{r+3}], v{vVO}, s[{VS}:{VS+3}], s{sOFF} offen offset:{voff[i]} {kvflags}")
        A(f"s_add_u32 s{sOFF}, s{sOFF}, {STEP}")
    if bar0:
        A("s_barrier")
    for s in range(DEPTH):
        issueK(s)
        issueV(s)
    for rr in range(4):
        A(f"v_cmp_eq_u32 vcc, {rr+4}, v9")
        A("s_nop 1")
        A(f"v_cndmask_b32 v{MK+rr}, 0, v8, vcc")
    A(f"v_mov_b32 v{vM}, 0xff7fffff")
    A(f"v_mov_b32 v{vL}, 0")
    for i in range(4):
        A(f"v_mov_b32 v{vACC+i}, 0")
    A(f"v_lshlrev_b32 v{vT0}, 3, v1")
    A(f"s_lshl_b32 s{sT0}, s{sWAVE}, 8")
    A(f"s_add_u32 s{sT0}, s{sT0}, {QB}")
    A(f"v_lshl_add_u32 v{vT1}, v1, 2, s{sT0}")
    A(f"v_lshl_add_u32 v{vTM}, v3, 4, s{sT0}")
    A(f"v_lshrrev_b32 v{vAL}, 3, v2")
    A(f"v_lshl_add_u32 v{vTM}, v{vAL}, 6, v{vTM}")
    A("s_barrier")
    for a in range(NA):
        A(f"ds_read_b64 v[{vA+2*a}:{vA+2*a+1}], v{vT0} offset:{QP + a*512}")
    A("s_waitcnt lgkmcnt(0)")
    for a in range(1, NA):
        A(f"v_add_f32 v{vA}, v{vA}, v{vA+2*a}")
        A(f"v_add_f32 v{vA+1}, v{vA+1}, v{vA+2*a+1}")
    A(f"v_cvt_pk_bf16_f32 v{vA}, v{vA}, v{vA+1}")
    A(f"ds_write_b32 v{vT1}, v{vA}")
    A("s_waitcnt lgkmcnt(0)")
    for j in range(2):
        A(f"ds_read_b128 v[{vQ+4*j}:{vQ+4*j+3}], v{vTM} offset:{128*j}")
    A("s_waitcnt lgkmcnt(0)")
    A.label("L_loop")
    W = 8 * DEPTH - 4
    for s in range(DEPTH):
        A(f"s_cmp_le_u32 s{sCNT}, {DEPTH}")
        A(f"s_cselect_b32 s{KS+2}, 0, {RB}")
        A(f"s_cselect_b32 s{VS+2}, 0, {RB}")
        A(f"s_waitcnt vmcnt({W})")
        for (j, d, qj) in ((0, vS2, 0), (2, vS2 + 4, 0), (1, vS2, 1), (3, vS2 + 4, 1)):
            r = kreg(s, j)
            c = "0" if qj == 0 else f"v[{d}:{d+3}]"
            A(f"v_mfma_f32_16x16x32_bf16 v[{d}:{d+3}], v[{r}:{r+3}], v[{vQ+4*qj}:{vQ+4*qj+3}], {c}")
        issueK(s)
        A("s_nop 3")
        for i in range(4):
            A(f"v_add_f32_dpp v{vS+i}, v{vS2+2*i}, v{vS2+2*i+1} row_ror:8 row_mask:0xf bank_mask:0xf")
        A(f"v_cvt_pk_bf16_f32 v{vT0}, v{vS}, v{vS+1}")
        A(f"v_cvt_pk_bf16_f32 v{vT1}, v{vS+2}, v{vS+3}")
        A(f"v_lshlrev_b32 v{vP}, 16, v{vT0}")
        A(f"v_and_b32 v{vP+1}, 0xffff0000, v{vT0}")
        A(f"v_lshlrev_b32 v{vP+2}, 16, v{vT1}")
        A(f"v_and_b32 v{vP+3}, 0xffff0000, v{vT1}")
        for i in range(4):
            A(f"v_mul_f32 v{vP+i}, s{sSC}, v{vP+i}")
        A(f"v_cvt_pk_bf16_f32 v{vT0}, v{vP}, v{vP+1}")
        A(f"v_cvt_pk_bf16_f32 v{vT1}, v{vP+2}, v{vP+3}")
        A(f"v_lshlrev_b32 v{vP}, 16, v{vT0}")
        A(f"v_and_b32 v{vP+1}, 0xffff0000, v{vT0}")
        A(f"v_lshlrev_b32 v{vP+2}, 16, v{vT1}")
        A(f"v_and_b32 v{vP+3}, 0xffff0000, v{vT1}")
        A(f"v_max3_f32 v{vTM}, v{vP}, v{vP+1}, v{vM}")
        A(f"v_max3_f32 v{vTM}, v{vP+2}, v{vP+3}, v{vTM}")
        A("s_nop 1")
        A(f"v_max_f32_dpp v{vTM}, v{vTM}, v{vTM} row_bcast:15 row_mask:0xa bank_mask:0xf")
        A("s_nop 1")
        A(f"v_max_f32_dpp v{vTM}, v{vTM}, v{vTM} row_bcast:31 row_mask:0xc bank_mask:0xf")
        A("s_nop 0")
        A(f"v_readlane_b32 s{sM}, v{vTM}, 63")
        A(f"v_mov_b32 v{vNM}, s{sL2E}")
        A("s_nop 0")
        A(f"v_mul_f32 v{vNM}, s{sM}, v{vNM}")
        for i in range(4):
            A(f"v_fma_f32 v{vP+i}, v{vP+i}, s{sL2E}, -v{vNM}")
        A(f"v_fma_f32 v{vAL}, v{vM}, s{sL2E}, -v{vNM}")
        for i in range(4):
            A(f"v_exp_f32 v{vP+i}, v{vP+i}")
        A(f"v_exp_f32 v{vAL}, v{vAL}")
        A(f"v_mov_b32 v{vM}, s{sM}")
        A(f"v_add_f32 v{vT0}, v{vP}, v{vP+1}")
        A(f"v_add_f32 v{vT1}, v{vP+2}, v{vP+3}")
        for i in range(4):
            A(f"v_cvt_pk_bf16_f32 v{vP+i}, v{vP+i}, v{vP+i}")
        A(f"v_add_f32 v{vT0}, v{vT0}, v{vT1}")
        A(f"v_fma_f32 v{vL}, v{vL}, v{vAL}, v{vT0}")
        for i in range(4):
            A(f"v_mul_f32 v{vACC+i}, v{vACC+i}, v{vAL}")
        for i in range(4):
            for rr in range(4):
                A(f"v_and_b32 v{vA+4*i+rr}, v{vP+i}, v{MK+rr}")
        A(f"s_waitcnt vmcnt({W})")
        A("s_nop 0")
        for i in range(4):
            r = vreg(s, i)
            A(f"v_mfma_f32_16x16x32_bf16 v[{vACC}:{vACC+3}], v[{vA+4*i}:{vA+4*i+3}], v[{r}:{r+3}], v[{vACC}:{vACC+3}]")
        issueV(s)
        A(f"s_sub_u32 s{sCNT}, s{sCNT}, 1")
        A(f"s_cmp_eq_u32 s{sCNT}, 0")
        if s < DEPTH - 1:
            A("s_cbranch_scc1 L_sdone")
        else:
            A("s_cbranch_scc0 L_loop")
    A.label("L_sdone")
    A(f"v_add_f32_dpp v{vL}, v{vL}, v{vL} row_bcast:15 row_mask:0xa bank_mask:0xf")
    A(f"s_lshl_b32 s{sT0}, s{sWAVE}, 9")
    A(f"s_add_u32 s{sT0}, s{sT0}, {OP - 32}")
    A(f"v_add_f32_dpp v{vL}, v{vL}, v{vL} row_bcast:31 row_mask:0xc bank_mask:0xf")
    A(f"v_lshlrev_b32 v{vT0}, 5, v2")
    A(f"v_lshl_add_u32 v{vT0}, v3, 4, v{vT0}")
    A(f"v_add_u32 v{vT0}, s{sT0}, v{vT0}")
    A(f"s_lshl_b32 s{sT1}, s{sWAVE}, 3")
    A(f"s_add_u32 s{sT1}, s{sT1}, {ML}")
    A(f"v_mov_b32 v{vT1}, s{sT1}")
    A("s_mov_b32 exec_lo, 0")
    A(f"ds_write_b128 v{vT0}, v[{vACC}:{vACC+3}]")
    A("s_mov_b32 exec_hi, 0x80000000")
    A(f"ds_write_b64 v{vT1}, v[{vM}:{vM+1}]")
    A("s_mov_b64 exec, -1")
    A("s_waitcnt lgkmcnt(0)")
    A("s_barrier")
    A("s_endpgm")

    A.label("L_aux")
    A.c("---- aux wave ----")
    NL = 160 // NA
    RW = 640 // NA
    RT = RW // 4
    RO = 128 // NA
    OT = RO // 4
    vTO = 13
    vO1, vO2, vO3 = 10, 11, 12
    vX = 14
    vF = 20
    vC = 30
    vAA = 36
    vQA = 44
    vX2 = 48
    vXD = 56
    vW = 96
    if auxprio:
        A(f"s_setprio {auxprio}")
    A(f"s_mov_b32 s{sA}, s{sWAVE}")
    if noaux:
        A("s_waitcnt lgkmcnt(0)")
        if bar0: A("s_barrier")
        stamp(1)
        A("s_barrier")
        stamp(2); stamp(3)
        A("s_barrier")
        stamp(4); stamp(5); stamp(6)
        A("s_branch L_fin")
    A(f"v_lshlrev_b32 v{vO1}, 2, v1")
    A(f"v_mul_u32_u24 v{vO2}, {RT*8192}, v3")
    A(f"v_lshl_add_u32 v{vO2}, v2, 4, v{vO2}")
    A(f"s_mul_i32 s{sT0}, s{sA}, 1280")
    A(f"s_mul_i32 s{sT3}, s{sB}, 1280")
    A(f"s_lshl_b32 s{sT1}, s{sH}, 8")
    A(f"s_mul_i32 s{sT2}, s{sA}, {RW*8192}")
    A(f"s_add_u32 s{sT1}, s{sT1}, s{sT2}")
    A(f"s_sub_u32 s{sT2}, {640*8192}, s{sT1}")
    A("s_waitcnt lgkmcnt(0)")
    srd(XS, pX, None, 5120)
    for i in range(5):
        A(f"buffer_load_dword v{vX+i}, v{vO1}, s[{XS}:{XS+3}], s{sT3} offen offset:{256*i}")
    for i in range(5):
        A(f"buffer_load_dword v{vX2+i}, v{vO1}, s[{XS}:{XS+3}], s{sT0} offen offset:{256*i}")
    A(f"s_load_dword s{sTAG}, s[{pWS}:{pWS+1}], {WS_EP:#x}")
    srd(WQS, pWQ, f"s{sT1}", 0 if nowq else f"s{sT2}")
    A(f"s_mov_b32 s{sOFF}, 0")
    def wq_issue(t):
        r = vW + 4 * t
        A(f"buffer_load_dwordx4 v[{r}:{r+3}], v{vO2}, s[{WQS}:{WQS+3}], s{sOFF} offen {wqflags}")
        A(f"s_add_u32 s{sOFF}, s{sOFF}, 8192")
    wqwin = min(wqwin, NL)
    for t in range(wqwin):
        wq_issue(t)
    if bar0:
        A("s_barrier")
    for rr in range(4):
        A(f"v_cmp_eq_u32 vcc, {rr}, v9")
        A("s_nop 1")
        A(f"v_cndmask_b32 v{MK+rr}, 0, v8, vcc")
    def wave_sum(v, s):
        for sh in (1, 2, 4, 8):
            A("s_nop 1")
            A(f"v_add_f32_dpp v{v}, v{v}, v{v} row_shr:{sh} row_mask:0xf bank_mask:0xf bound_ctrl:0")
        A("s_nop 1")
        A(f"v_add_f32_dpp v{v}, v{v}, v{v} row_bcast:15 row_mask:0xa bank_mask:0xf")
        A("s_nop 1")
        A(f"v_add_f32_dpp v{v}, v{v}, v{v} row_bcast:31 row_mask:0xc bank_mask:0xf")
        A("s_nop 0")
        A(f"v_readlane_b32 s{s}, v{v}, 63")
        A("s_nop 1")
    def layernorm(vX, dup):
        for i in range(5):
            A(f"v_lshlrev_b32 v{vF+2*i}, 16, v{vX+i}")
            A(f"v_and_b32 v{vF+2*i+1}, 0xffff0000, v{vX+i}")
        A(f"v_add_f32 v{vC+4}, v{vF}, v{vF+1}")
        for i in range(2, 10):
            A(f"v_add_f32 v{vC+4}, v{vC+4}, v{vF+i}")
        wave_sum(vC + 4, sT0)
        A(f"v_mov_b32 v{vC+5}, {f2u(1.0/640):#x}")
        A(f"v_mul_f32 v{vC+4}, s{sT0}, v{vC+5}")
        A(f"v_sub_f32 v{vC}, v{vF}, v{vC+4}")
        A(f"v_mul_f32 v{vC+1}, v{vC}, v{vC}")
        for i in range(1, 10):
            A(f"v_sub_f32 v{vC}, v{vF+i}, v{vC+4}")
            A(f"v_fmac_f32 v{vC+1}, v{vC}, v{vC}")
        wave_sum(vC + 1, sT0)
        A(f"v_mul_f32 v{vC+1}, s{sT0}, v{vC+5}")
        A(f"v_cvt_pk_bf16_f32 v{vC}, v{vC+4}, v{vC+1}")
        A(f"v_lshlrev_b32 v{vC+4}, 16, v{vC}")
        A(f"v_and_b32 v{vC+1}, 0xffff0000, v{vC}")
        A(f"v_add_f32 v{vC+1}, {f2u(1e-5):#x}, v{vC+1}")
        A(f"v_cvt_pk_bf16_f32 v{vC+1}, v{vC+1}, v{vC+1}")
        A(f"v_and_b32 v{vC+1}, 0xffff0000, v{vC+1}")
        A(f"v_sqrt_f32 v{vC+1}, v{vC+1}")
        A("s_nop 0")
        A(f"v_cvt_pk_bf16_f32 v{vC+1}, v{vC+1}, v{vC+1}")
        A(f"v_and_b32 v{vC+1}, 0xffff0000, v{vC+1}")
        A(f"v_rcp_f32 v{vC+1}, v{vC+1}")
        for i in range(10):
            A(f"v_sub_f32 v{vF+i}, v{vF+i}, v{vC+4}")
        if dup:
            A(f"s_mul_i32 s{sT2}, s{sA}, 2560")
            A(f"v_lshl_add_u32 v{vC+3}, v1, 3, s{sT2}")
        else:
            A(f"s_mul_i32 s{sT1}, s{sA}, 1280")
            A(f"v_add_u32 v{vC+2}, s{sT1}, v{vO1}")
        for i in range(5):
            A(f"v_cvt_pk_bf16_f32 v{vX+i}, v{vF+2*i}, v{vF+2*i+1}")
            A(f"v_lshlrev_b32 v{vF+2*i}, 16, v{vX+i}")
            A(f"v_and_b32 v{vF+2*i+1}, 0xffff0000, v{vX+i}")
            A(f"v_mul_f32 v{vF+2*i}, v{vF+2*i}, v{vC+1}")
            A(f"v_mul_f32 v{vF+2*i+1}, v{vF+2*i+1}, v{vC+1}")
            if dup:
                A(f"v_cvt_pk_bf16_f32 v{vF+2*i}, v{vF+2*i}, v{vF+2*i}")
                A(f"v_cvt_pk_bf16_f32 v{vF+2*i+1}, v{vF+2*i+1}, v{vF+2*i+1}")
                A(f"ds_write_b64 v{vC+3}, v[{vF+2*i}:{vF+2*i+1}] offset:{XND + 512*i}")
            else:
                A(f"v_cvt_pk_bf16_f32 v{vX+i}, v{vF+2*i}, v{vF+2*i+1}")
                A(f"ds_write_b32 v{vC+2}, v{vX+i} offset:{XNB + 256*i}")
    A(f"s_waitcnt vmcnt({wqwin + 5})")
    layernorm(vX, True)
    stamp(1)
    A(f"s_mul_i32 s{sT1}, s{sA}, {RW*4}")
    A(f"s_add_u32 s{sT0}, s{sT2}, s{sT1}")
    A(f"v_mul_u32_u24 v{vX}, {RT*4}, v3")
    A(f"v_add_u32 v{vX}, s{sT0}, v{vX}")
    A("s_waitcnt lgkmcnt(0)")
    for i in range(RT // 4):
        A(f"ds_read_b128 v[{vXD+4*i}:{vXD+4*i+3}], v{vX} offset:{XND + 16*i}")
    A("s_waitcnt lgkmcnt(0)")
    for t in range(NL):
        aa = vAA + 4 * (t & 1)
        for rr in range(4):
            A(f"v_and_b32 v{aa+rr}, v{vXD+t}, v{MK+rr}")
        issued = min(NL, wqwin + t)
        A(f"s_waitcnt vmcnt({issued - 1 - t})")
        if wqwin + t < NL:
            wq_issue(wqwin + t)
        else:
            A("s_nop 0")
        r = vW + 4 * t
        c = "0" if t == 0 else f"v[{vQA}:{vQA+3}]"
        A(f"v_mfma_f32_16x16x32_bf16 v[{vQA}:{vQA+3}], v[{aa}:{aa+3}], v[{r}:{r+3}], {c}")
    A(f"s_lshl_b32 s{sT0}, s{sA}, 9")
    A(f"s_add_u32 s{sT0}, s{sT0}, {QP}")
    A(f"v_lshlrev_b32 v{vC}, 5, v2")
    A(f"v_lshl_add_u32 v{vC}, v3, 4, v{vC}")
    A(f"v_add_u32 v{vC}, s{sT0}, v{vC}")
    A("s_nop 3")
    A("s_mov_b64 exec, 0xffffffff")
    A(f"ds_write_b128 v{vC}, v[{vQA}:{vQA+3}]")
    A("s_mov_b64 exec, -1")
    A(f"s_lshl_b32 s{sT0}, s{sA}, 2")
    A(f"v_mov_b32 v{vC+1}, s{sT0}")
    A(f"v_mov_b32 v{vC+2}, 0")
    A(f"ds_write_b32 v{vC+1}, v{vC+2} offset:{FLG}")
    A("s_waitcnt lgkmcnt(0)")
    A("s_barrier")
    stamp(2)
    layernorm(vX2, False)
    srd(WSS, pWS, None, WS_SIZE)
    A(f"s_mul_i32 s{sTAG}, s{sTAG}, 0x9e3779b1")
    A(f"s_add_u32 s{sTAG}, s{sTAG}, 0x7f4a7c15")
    A(f"s_lshl_b32 s{sHS}, s{sH}, 1")
    A(f"s_add_u32 s{sHS}, s{sHS}, s{sSPLIT}")
    A(f"s_lshl_b32 s{sT0}, s{sB}, 6")
    A(f"s_add_u32 s{sT0}, s{sT0}, s{sHS}")
    A(f"s_lshl_b32 s{sT1}, s{sT0}, 6")
    A(f"v_lshrrev_b32 v{vTO}, 2, v0")
    A(f"v_lshlrev_b32 v{vTO}, 14, v{vTO}")
    A(f"v_and_b32 v{vC}, 3, v0")
    A(f"v_lshl_add_u32 v{vTO}, v{vC}, 4, v{vTO}")
    A(f"v_add_u32 v{vTO}, s{sT1}, v{vTO}")
    A(f"s_lshr_b32 s{sT1}, s{sT0}, 1")
    A(f"s_lshl_b32 s{sT1}, s{sT1}, 7")
    A(f"s_lshl_b32 s{sT2}, s{sSPLIT}, 3")
    A(f"s_add_u32 s{sT1}, s{sT1}, s{sT2}")
    A(f"s_add_u32 s{sT1}, s{sT1}, {WS_ML}")
    A(f"v_mov_b32 v{vO3}, s{sT1}")
    for i in range(4):
        A(f"v_mov_b32 v{vC+i}, -1")
    A(f"v_cmp_gt_u32 vcc, 160, v0")
    A(f"s_and_saveexec_b64 s[{sEX}:{sEX+1}], vcc")
    A("s_cbranch_execz L_noclr")
    A(f"buffer_store_dwordx4 v[{vC}:{vC+3}], v{vTO}, s[{WSS}:{WSS+3}], 0 offen sc1")
    A.label("L_noclr")
    A(f"s_mov_b64 exec, s[{sEX}:{sEX+1}]")
    A(f"v_cmp_eq_u32 vcc, 192, v0")
    A(f"s_and_saveexec_b64 s[{sEX}:{sEX+1}], vcc")
    A("s_cbranch_execz L_noclr2")
    A(f"buffer_store_dwordx2 v[{vC}:{vC+1}], v{vO3}, s[{WSS}:{WSS+3}], 0 offen sc1")
    A.label("L_noclr2")
    A(f"s_mov_b64 exec, s[{sEX}:{sEX+1}]")
    A("s_waitcnt vmcnt(0) lgkmcnt(0)")
    A(f"s_lshl_b32 s{sT0}, s{sA}, 2")
    A(f"v_mov_b32 v{vC}, s{sT0}")
    A(f"v_mov_b32 v{vC+1}, 1")
    A(f"ds_write_b32 v{vC}, v{vC+1} offset:{FLG}")
    A(f"s_sub_u32 s{sT0}, s{sSLOT}, 22")
    A(f"s_lshr_b32 s{sT1}, s{sT0}, 1")
    A(f"s_add_u32 s{sT2}, s{sT1}, 22")
    A(f"s_cmp_ge_u32 s{sSLOT}, 22")
    A(f"s_cselect_b32 s{sT2}, s{sT2}, s{sSLOT}")
    A(f"s_cselect_b32 s{sT3}, s{sSPLIT}, 0")
    A(f"s_mul_i32 s{sROLE}, s{sX8}, 27")
    A(f"s_add_u32 s{sROLE}, s{sROLE}, s{sT2}")
    A(f"s_mul_i32 s{sT0}, s{sX8}, 5")
    A(f"s_add_u32 s{sT0}, s{sT0}, s{sT1}")
    A(f"s_add_u32 s{sT0}, s{sT0}, 216")
    A(f"s_cmp_lg_u32 s{sT3}, 0")
    A(f"s_cselect_b32 s{sROLE}, s{sT0}, s{sROLE}")
    def wo_load():
        A(f"s_mul_i32 s{sT0}, s{sH}, {128*1280}")
        A(f"s_mul_i32 s{sT1}, s{sA}, {RO*1280}")
        A(f"s_add_u32 s{sT0}, s{sT0}, s{sT1}")
        srd(WOS, pWO, f"s{sT0}", RO * 1280)
        A(f"v_mul_u32_u24 v{vO2}, {OT*1280}, v3")
        A(f"v_lshl_add_u32 v{vO2}, v2, 4, v{vO2}")
        A(f"s_mov_b32 s{sOFF}, 0")
        for t in range(OT):
            for seg in range(5):
                r = vW + 4 * (t * 5 + seg)
                if not nowo:
                    A(f"buffer_load_dwordx4 v[{r}:{r+3}], v{vO2}, s[{WOS}:{WOS+3}], s{sOFF} offen offset:{256*seg} {woflags}")
                    if wowin < NL:
                        A(f"s_waitcnt vmcnt({wowin - 1})")
            A(f"s_add_u32 s{sOFF}, s{sOFF}, 1280")
    wo_load()
    A(f"s_cmp_lg_u32 s{sA}, 0")
    A("s_cbranch_scc1 L_wait3")
    if nosig:
        A("s_branch L_wait3")
    vTR, vAO = 14, 15
    vFA, vFB, vFD = 20, 24, 28
    D4 = [vFD + i for i in range(4)]
    def round_bf16(regs):
        for v in regs:
            A(f"v_cvt_pk_bf16_f32 v{v}, v{v}, v{v}")
        for v in regs:
            A(f"v_and_b32 v{v}, 0xffff0000, v{v}")
    A(f"v_mov_b32 v{vC+4}, 0")
    A.label("L_flg")
    A(f"ds_read_b128 v[{vFA}:{vFA+3}], v{vC+4} offset:{FLG}")
    A("s_waitcnt lgkmcnt(0)")
    A(f"v_add3_u32 v{vFA}, v{vFA}, v{vFA+1}, v{vFA+2}")
    A(f"v_add_u32 v{vFA}, v{vFA}, v{vFA+3}")
    A(f"v_cmp_ne_u32 vcc, 4, v{vFA}")
    A("s_nop 1")
    A("s_cbranch_vccnz L_flg")
    A(f"s_lshl_b32 s{sT3}, s{sROLE}, 7")
    A(f"s_add_u32 s{sT3}, s{sT3}, {WS_H}")
    A(f"s_cmp_ge_u32 s{sROLE}, 216")
    A("s_cbranch_scc1 L_f2")
    A.c("F1: 8 columns of gate/up for all 4 batches")
    A(f"s_lshl_b32 s{sT0}, s{sROLE}, 4")
    srd(F0S, pWG, None, 640 * 3456)
    srd(F1S, pWU, None, 640 * 3456)
    A(f"v_mul_u32_u24 v{vC}, 3456, v1")
    A(f"v_add_u32 v{vC}, s{sT0}, v{vC}")
    for mat, S in enumerate((F0S, F1S)):
        A(f"s_mov_b32 s{sOFF}, 0")
        for i in range(10):
            A(f"s_mov_b32 m0, {WT + mat*10240 + i*1024}")
            A("s_nop 0")
            if not noffn:
                A(f"buffer_load_dwordx4 v{vC}, s[{S}:{S+3}], s{sOFF} offen {ffnflags} lds")
                if f1win < 20:
                    A(f"s_waitcnt vmcnt({f1win - 1})")
            A(f"s_add_u32 s{sOFF}, s{sOFF}, {64*3456}")
    A(f"v_lshrrev_b32 v{vC+1}, 2, v2")
    A(f"v_lshl_add_u32 v{vC+1}, v3, 3, v{vC+1}")
    A(f"v_lshlrev_b32 v{vTR}, 4, v{vC+1}")
    A(f"v_and_b32 v{vC+1}, 1, v1")
    A(f"v_lshl_add_u32 v{vTR}, v{vC+1}, 3, v{vTR}")
    A(f"v_bfe_u32 v{vC+1}, v1, 1, 1")
    A(f"v_mul_u32_u24 v{vC+1}, 10240, v{vC+1}")
    A(f"v_add_u32 v{vTR}, v{vTR}, v{vC+1}")
    A(f"v_add_u32 v{vTR}, {WT}, v{vTR}")
    A(f"v_and_b32 v{vC+1}, 3, v1")
    A(f"v_mul_u32_u24 v{vAO}, 1280, v{vC+1}")
    A(f"v_lshl_add_u32 v{vAO}, v3, 4, v{vAO}")
    A(f"v_add_u32 v{vAO}, {XNB}, v{vAO}")
    for i in range(4):
        A(f"v_mov_b32 v{vFD+i}, 0")
    A(f"s_mov_b32 s{sCNT}, 20")
    A("s_waitcnt vmcnt(0)")
    A.label("L_f1_mm")
    A(f"ds_read_b128 v[{vFA}:{vFA+3}], v{vAO}")
    A(f"ds_read_b64_tr_b16 v[{vFB}:{vFB+1}], v{vTR}")
    A(f"ds_read_b64_tr_b16 v[{vFB+2}:{vFB+3}], v{vTR} offset:64")
    A(f"v_add_u32 v{vAO}, 64, v{vAO}")
    A(f"v_add_u32 v{vTR}, 512, v{vTR}")
    A("s_waitcnt lgkmcnt(0)")
    A(f"v_mfma_f32_16x16x32_bf16 v[{vFD}:{vFD+3}], v[{vFA}:{vFA+3}], v[{vFB}:{vFB+3}], v[{vFD}:{vFD+3}]")
    A(f"s_sub_u32 s{sCNT}, s{sCNT}, 1")
    A(f"s_cmp_lg_u32 s{sCNT}, 0")
    A("s_cbranch_scc1 L_f1_mm")
    A("s_nop 7")
    for i in range(1, 4):
        A(f"v_cmp_eq_u32 vcc, {i}, v3")
        A("s_nop 1")
        A(f"v_cndmask_b32 v{vFD}, v{vFD}, v{vFD+i}, vcc")
    round_bf16([vFD])
    K0 = 0.7978845608028654
    A(f"s_mov_b32 s{sT0}, {f2u(0.044715):#x}")
    A(f"s_mov_b32 s{sT1}, {f2u(-2.0 * K0 * L2E):#x}")
    A(f"v_mul_f32 v{vFA}, v{vFD}, v{vFD}")
    A(f"v_fma_f32 v{vFA}, v{vFA}, s{sT0}, 1.0")
    A(f"v_mul_f32 v{vFA}, v{vFA}, v{vFD}")
    A(f"v_mul_f32 v{vFA}, s{sT1}, v{vFA}")
    A(f"v_exp_f32 v{vFA}, v{vFA}")
    A("s_nop 0")
    A(f"v_add_f32 v{vFA}, 1.0, v{vFA}")
    A(f"v_rcp_f32 v{vFA}, v{vFA}")
    A("s_nop 0")
    A(f"v_mul_f32 v{vFA}, v{vFA}, v{vFD}")
    round_bf16([vFA])
    A("s_nop 1")
    A(f"v_mul_f32_dpp v{vFA}, v{vFD}, v{vFA} row_ror:8 row_mask:0xf bank_mask:0xf")
    A("s_nop 1")
    A(f"v_mov_b32_dpp v{vFB}, v{vFA} quad_perm:[1,0,3,2] row_mask:0xf bank_mask:0xf")
    A(f"v_cvt_pk_bf16_f32 v{vFA}, v{vFA}, v{vFB}")
    A(f"v_mov_b32 v{vFA+1}, s{sTAG}")
    A(f"v_lshlrev_b32 v{vC}, 5, v3")
    A(f"v_lshl_add_u32 v{vC}, v2, 2, v{vC}")
    A("s_mov_b32 exec_lo, 0x00550055")
    A("s_mov_b32 exec_hi, 0x00550055")
    A(f"buffer_store_dwordx2 v[{vFA}:{vFA+1}], v{vC}, s[{WSS}:{WSS+3}], s{sT3} offen sc1")
    A("s_mov_b64 exec, -1")
    A("s_branch L_wait3")

    A.label("L_f2")
    A.c("F2: 16 output columns of the down projection for all 4 batches")
    A(f"v_mov_b32 v{vFA}, 0")
    A(f"v_mov_b32 v{vFA+1}, s{sTAG}")
    A(f"v_lshlrev_b32 v{vC}, 3, v1")
    A("s_mov_b64 exec, 0xffff")
    A(f"buffer_store_dwordx2 v[{vFA}:{vFA+1}], v{vC}, s[{WSS}:{WSS+3}], s{sT3} offen sc1")
    A("s_mov_b64 exec, -1")
    A(f"s_sub_u32 s{sT0}, s{sROLE}, 216")
    A(f"s_lshl_b32 s{sT0}, s{sT0}, 5")
    srd(F0S, pWD, None, 1728 * 1280)
    A(f"v_lshrrev_b32 v{vC+2}, 1, v1")
    A(f"v_mul_u32_u24 v{vC+2}, 1280, v{vC+2}")
    A(f"v_and_b32 v{vC+3}, 1, v1")
    A(f"v_lshl_add_u32 v{vC+2}, v{vC+3}, 4, v{vC+2}")
    A(f"v_add_u32 v{vC+2}, s{sT0}, v{vC+2}")
    A(f"s_mov_b32 s{sOFF}, 0")
    A(f"s_mov_b32 s{sT1}, {WT}")
    A(f"s_mov_b32 s{sCNT}, 54")
    A.label("L_f2_ld")
    A(f"s_mov_b32 m0, s{sT1}")
    A(f"s_add_u32 s{sT1}, s{sT1}, 1024")
    if not noffn:
        A(f"buffer_load_dwordx4 v{vC+2}, s[{F0S}:{F0S+3}], s{sOFF} offen {ffnflags} lds")
    A(f"s_add_u32 s{sOFF}, s{sOFF}, {32*1280}")
    A(f"s_waitcnt vmcnt({f2win - 1})")
    A(f"s_sub_u32 s{sCNT}, s{sCNT}, 1")
    A(f"s_cmp_lg_u32 s{sCNT}, 0")
    A("s_cbranch_scc1 L_f2_ld")
    vH = 36
    A(f"v_lshlrev_b32 v{vC}, 4, v1")
    A(f"v_bfe_u32 v{vC+1}, v1, 1, 2")
    A(f"v_mul_u32_u24 v{vC+1}, 3456, v{vC+1}")
    A(f"v_lshrrev_b32 v{vC+2}, 3, v1")
    A(f"v_lshl_add_u32 v{vC+1}, v{vC+2}, 4, v{vC+1}")
    A(f"v_and_b32 v{vC+2}, 1, v1")
    A(f"v_lshl_add_u32 v{vC+1}, v{vC+2}, 3, v{vC+1}")
    for rnd in range(4):
        A(f"s_branch L_g{rnd}")
        A.label(f"L_gr{rnd}")
        A(f"s_sleep {gsleep}")
        A.label(f"L_g{rnd}")
        A(f"s_mov_b32 s{sOFF}, {WS_H + rnd*8192}")
        for i in range(8):
            if i == 4:
                A(f"s_add_u32 s{sOFF}, s{sOFF}, 4096")
            A(f"buffer_load_dwordx4 v[{vH+4*i}:{vH+4*i+3}], v{vC}, s[{WSS}:{WSS+3}], s{sOFF} offen offset:{1024*(i&3)} sc1")
        A("s_waitcnt vmcnt(0)")
        A(f"v_mov_b32 v{vC+2}, 0")
        for i in range(8):
            A(f"v_xor_b32 v{vH+4*i+1}, s{sTAG}, v{vH+4*i+1}")
            A(f"v_xor_b32 v{vH+4*i+3}, s{sTAG}, v{vH+4*i+3}")
            A(f"v_or3_b32 v{vC+2}, v{vC+2}, v{vH+4*i+1}, v{vH+4*i+3}")
        A(f"v_cmp_ne_u32 vcc, 0, v{vC+2}")
        A("s_nop 1")
        A(f"s_cbranch_vccnz L_gr{rnd}")
        for i in range(8):
            n = rnd * 8 + i
            if n < 27:
                A(f"v_mov_b32 v{vH+4*i+1}, v{vH+4*i+2}")
                A(f"ds_write_b64 v{vC+1}, v[{vH+4*i}:{vH+4*i+1}] offset:{HB + 128*n}")
    A(f"s_cmp_lg_u32 s{sROLE}, 216")
    A("s_cbranch_scc1 L_noep")
    A(f"v_mov_b32 v{vC+2}, {WS_EP:#x}")
    A(f"v_mov_b32 v{vC+3}, s{sTAG}")
    A("s_mov_b64 exec, 1")
    A(f"buffer_store_dword v{vC+3}, v{vC+2}, s[{WSS}:{WSS+3}], 0 offen sc1")
    A("s_mov_b64 exec, -1")
    A.label("L_noep")
    A(f"v_lshrrev_b32 v{vC+4}, 2, v2")
    A(f"v_lshl_add_u32 v{vC+4}, v3, 3, v{vC+4}")
    A(f"v_lshlrev_b32 v{vTR}, 5, v{vC+4}")
    A(f"v_and_b32 v{vC+4}, 3, v1")
    A(f"v_lshl_add_u32 v{vTR}, v{vC+4}, 3, v{vTR}")
    A(f"v_add_u32 v{vTR}, {WT}, v{vTR}")
    A(f"v_mul_u32_u24 v{vAO}, 3456, v{vC+4}")
    A(f"v_lshl_add_u32 v{vAO}, v3, 4, v{vAO}")
    A(f"v_add_u32 v{vAO}, {HB}, v{vAO}")
    A("s_waitcnt lgkmcnt(0)")
    for i in range(4):
        A(f"v_mov_b32 v{vFD+i}, 0")
    A(f"s_mov_b32 s{sCNT}, 54")
    A.label("L_f2_mm")
    A(f"ds_read_b128 v[{vFA}:{vFA+3}], v{vAO}")
    A(f"ds_read_b64_tr_b16 v[{vFB}:{vFB+1}], v{vTR}")
    A(f"ds_read_b64_tr_b16 v[{vFB+2}:{vFB+3}], v{vTR} offset:128")
    A(f"v_add_u32 v{vAO}, 64, v{vAO}")
    A(f"v_add_u32 v{vTR}, 1024, v{vTR}")
    A("s_waitcnt lgkmcnt(0)")
    A(f"v_mfma_f32_16x16x32_bf16 v[{vFD}:{vFD+3}], v[{vFA}:{vFA+3}], v[{vFB}:{vFB+3}], v[{vFD}:{vFD+3}]")
    A(f"s_sub_u32 s{sCNT}, s{sCNT}, 1")
    A(f"s_cmp_lg_u32 s{sCNT}, 0")
    A("s_cbranch_scc1 L_f2_mm")
    A("s_nop 7")
    for i in range(1, 4):
        A(f"v_cmp_eq_u32 vcc, {i}, v3")
        A("s_nop 1")
        A(f"v_cndmask_b32 v{vFD}, v{vFD}, v{vFD+i}, vcc")
    round_bf16([vFD])
    A(f"s_mov_b32 s{sT1}, {f2u(-L2E):#x}")
    A(f"v_mul_f32 v{vFA}, s{sT1}, v{vFD}")
    A(f"v_exp_f32 v{vFA}, v{vFA}")
    A("s_nop 0")
    A(f"v_add_f32 v{vFA}, 1.0, v{vFA}")
    A(f"v_rcp_f32 v{vFA}, v{vFA}")
    A("s_nop 0")
    A(f"v_mul_f32 v{vFA}, v{vFA}, v{vFD}")
    round_bf16([vFA])
    A(f"ds_write_b32 v{vO1}, v{vFA} offset:{GB}")
    A("s_waitcnt lgkmcnt(0)")

    A.label("L_wait3")
    A("s_waitcnt vmcnt(0)")
    stamp(3)
    A("s_barrier")
    stamp(4)
    if stamps: A("s_waitcnt lgkmcnt(0)")
    vML = 14
    vE = 30
    vOV = 64
    vOS = 88
    A(f"v_mov_b32 v{vE}, 0")
    for w in range(0, NS, 2):
        A(f"ds_read_b128 v[{vML+2*w}:{vML+2*w+3}], v{vE} offset:{ML + 8*w}")
    A(f"s_mul_i32 s{sT0}, s{sA}, {RO*4}")
    A(f"v_mul_u32_u24 v{vE+1}, {OT*4}, v3")
    A(f"v_add_u32 v{vE+1}, s{sT0}, v{vE+1}")
    nset = 24 // OT
    def oread(w):
        base = vOV + (w % nset) * OT
        for i in range(OT // 4):
            A(f"ds_read_b128 v[{base+4*i}:{base+4*i+3}], v{vE+1} offset:{OP + 512*w + 16*i}")
    npre = min(NS, nset)
    for w in range(npre):
        oread(w)
    A(f"s_waitcnt lgkmcnt({npre * OT // 4})")
    A(f"v_max_f32 v{vE+2}, v{vML}, v{vML+2}")
    for w in range(2, NS):
        A(f"v_max_f32 v{vE+2}, v{vE+2}, v{vML+2*w}")
    for w in range(NS):
        A(f"v_sub_f32 v{vML+2*w}, v{vML+2*w}, v{vE+2}")
    for w in range(NS):
        A(f"v_mul_f32 v{vML+2*w}, s{sL2E}, v{vML+2*w}")
    for w in range(NS):
        A(f"v_exp_f32 v{vML+2*w}, v{vML+2*w}")
    A("s_nop 0")
    A(f"v_mul_f32 v{vE+3}, v{vML}, v{vML+1}")
    for w in range(1, NS):
        A(f"v_fmac_f32 v{vE+3}, v{vML+2*w}, v{vML+2*w+1}")
    for w in range(NS):
        left = min(NS - 1 - w, npre - 1)
        A(f"s_waitcnt lgkmcnt({left * OT // 4})")
        base = vOV + (w % nset) * OT
        for t in range(OT):
            if w == 0:
                A(f"v_mul_f32 v{vOS+t}, v{base+t}, v{vML}")
            else:
                A(f"v_fmac_f32 v{vOS+t}, v{base+t}, v{vML+2*w}")
        if w + npre < NS:
            oread(w + npre)
    for t in range(OT):
        A(f"v_cvt_pk_bf16_f32 v{vOS+t}, v{vOS+t}, v{vOS+t}")
    vTA = 44
    for t in range(OT):
        aa = vAA + 4 * (t & 1)
        for rr in range(4):
            A(f"v_and_b32 v{aa+rr}, v{vOS+t}, v{MK+rr}")
        A("s_nop 1")
        for seg in range(5):
            r = vW + 4 * (t * 5 + seg)
            d = vTA + 4 * seg
            c = "0" if t == 0 else f"v[{d}:{d+3}]"
            A(f"v_mfma_f32_16x16x32_bf16 v[{d}:{d+3}], v[{aa}:{aa+3}], v[{r}:{r+3}], {c}")
    A(f"s_mul_i32 s{sT0}, s{sA}, 2560")
    A(f"v_lshlrev_b32 v{vE}, 5, v2")
    A(f"v_lshl_add_u32 v{vE}, v3, 4, v{vE}")
    A(f"v_add_u32 v{vE}, s{sT0}, v{vE}")
    A(f"v_lshlrev_b32 v{vE+1}, 4, v0")
    A("s_nop 3")
    A("s_mov_b64 exec, 0xffffffff")
    for seg in range(5):
        d = vTA + 4 * seg
        A(f"ds_write_b128 v{vE}, v[{d}:{d+3}] offset:{TP + 512*seg}")
    A("s_mov_b64 exec, -1")
    A("s_waitcnt lgkmcnt(0)")
    A("s_barrier")
    stamp(5)
    if stamps: A("s_waitcnt lgkmcnt(0)")
    A(f"v_cmp_gt_u32 vcc, 160, v0")
    A(f"s_and_saveexec_b64 s[{sEX}:{sEX+1}], vcc")
    A("s_cbranch_execz L_nopub")
    for a in range(NA):
        A(f"ds_read_b128 v[{64+4*a}:{64+4*a+3}], v{vE+1} offset:{TP + 2560*a}")
    for a in range(1, NA):
        A(f"s_waitcnt lgkmcnt({NA-1-a})")
        for i in range(4):
            A(f"v_add_f32 v{64+i}, v{64+i}, v{64+4*a+i}")
    for i in range(4):
        A(f"v_min_u32 v{64+i}, -2, v{64+i}")
    A(f"buffer_store_dwordx4 v[64:67], v{vTO}, s[{WSS}:{WSS+3}], 0 offen sc1")
    A.label("L_nopub")
    A(f"s_mov_b64 exec, s[{sEX}:{sEX+1}]")
    A(f"v_min_u32 v{vE+2}, -2, v{vE+2}")
    A(f"v_min_u32 v{vE+3}, -2, v{vE+3}")
    A(f"v_cmp_eq_u32 vcc, 192, v0")
    A(f"s_and_saveexec_b64 s[{sEX}:{sEX+1}], vcc")
    A("s_cbranch_execz L_nopub2")
    A(f"buffer_store_dwordx2 v[{vE+2}:{vE+3}], v{vO3}, s[{WSS}:{WSS+3}], 0 offen sc1")
    A.label("L_nopub2")
    A(f"s_mov_b64 exec, s[{sEX}:{sEX+1}]")
    stamp(6)
    if stamps: A("s_waitcnt lgkmcnt(0)")
    A(f"s_cmp_lt_u32 s{sROLE}, 216")
    A("s_cbranch_scc1 L_fin")
    if nofinal:
        A("s_branch L_fin")
    A(f"s_sub_u32 s{sT3}, s{sROLE}, 216")
    A(f"s_lshl_b32 s{sT0}, s{sT3}, 2")
    A(f"s_add_u32 s{sT0}, s{sT0}, s{sA}")
    A(f"s_lshl_b32 s{sT0}, s{sT0}, 12")
    A(f"v_lshlrev_b32 v14, 4, v1")
    A(f"s_lshl_b32 s{sT1}, s{sA}, 12")
    A(f"s_add_u32 s{sT1}, s{sT1}, {WS_ML}")
    A(f"v_lshrrev_b32 v15, 3, v1")
    A(f"v_lshlrev_b32 v15, 7, v15")
    A("v_and_b32 v16, 3, v1")
    A("v_lshlrev_b32 v16, 2, v16")
    A("v_and_b32 v17, 1, v3")
    A("v_lshl_add_u32 v16, v17, 1, v16")
    A("v_lshrrev_b32 v17, 1, v3")
    A("v_add_u32 v16, v16, v17")
    A(f"s_mul_i32 s{sT2}, s{sA}, 1280")
    A(f"s_lshl_b32 s{sOFF}, s{sT3}, 5")
    A(f"s_add_u32 s{sT2}, s{sT2}, s{sOFF}")
    A(f"v_lshl_add_u32 v17, v16, 1, s{sT2}")
    A(f"buffer_load_ushort v18, v17, s[{XS}:{XS+3}], 0 offen")
    A(f"s_lshl_b32 s{sOFF}, s{sA}, 6")
    A(f"v_lshl_add_u32 v19, v16, 2, s{sOFF}")
    A(f"ds_read_b32 v19, v19 offset:{GB}")
    srd(OUTS, pOUT, None, 5120)
    vT, vMLp = 96, 112
    A.label("L_poll")
    for n in range(4):
        A(f"buffer_load_dwordx4 v[{vT+4*n}:{vT+4*n+3}], v14, s[{WSS}:{WSS+3}], s{sT0} offen offset:{1024*n} sc1")
    for n in range(4):
        A(f"buffer_load_dwordx4 v[{vMLp+4*n}:{vMLp+4*n+3}], v15, s[{WSS}:{WSS+3}], s{sT1} offen offset:{1024*n} sc1")
    A("s_waitcnt vmcnt(0)")
    A(f"v_max3_u32 v20, v{vT}, v{vT+1}, v{vT+2}")
    A(f"v_max3_u32 v21, v{vT+3}, v{vT+4}, v{vT+5}")
    for i in range(6, 30, 4):
        A(f"v_max3_u32 v20, v20, v{vT+i}, v{vT+i+1}")
        A(f"v_max3_u32 v21, v21, v{vT+i+2}, v{vT+i+3}")
    A(f"v_max3_u32 v20, v20, v{vT+30}, v{vT+31}")
    A("v_max_u32 v20, v20, v21")
    A("v_cmp_eq_u32 vcc, -1, v20")
    A("s_nop 1")
    A("s_cbranch_vccnz L_poll")
    A("v_bfe_u32 v20, v1, 2, 1")
    A("v_cmp_eq_u32 vcc, 1, v20")
    for n in range(4):
        m0, l0, m1, l1 = [vMLp + 4 * n + i for i in range(4)]
        A(f"v_max_f32 v21, v{m0}, v{m1}")
        A(f"v_sub_f32 v{m0}, v{m0}, v21")
        A(f"v_sub_f32 v{m1}, v{m1}, v21")
        A(f"v_mul_f32 v{m0}, s{sL2E}, v{m0}")
        A(f"v_mul_f32 v{m1}, s{sL2E}, v{m1}")
        A(f"v_exp_f32 v{m0}, v{m0}")
        A(f"v_exp_f32 v{m1}, v{m1}")
    A("s_nop 0")
    for n in range(4):
        m0, l0, m1, l1 = [vMLp + 4 * n + i for i in range(4)]
        A(f"v_mul_f32 v{l0}, v{l0}, v{m0}")
        A(f"v_fmac_f32 v{l0}, v{l1}, v{m1}")
        A(f"v_rcp_f32 v{l0}, v{l0}")
        A(f"v_cndmask_b32 v{m0}, v{m0}, v{m1}, vcc")
    A("s_nop 0")
    for n in range(4):
        m0, l0, m1, l1 = [vMLp + 4 * n + i for i in range(4)]
        A(f"v_mul_f32 v{m0}, v{m0}, v{l0}")
    for n in range(4):
        for i in range(4):
            if n == 0:
                A(f"v_mul_f32 v{24+i}, v{vT+i}, v{vMLp}")
            else:
                A(f"v_fmac_f32 v{24+i}, v{vT+4*n+i}, v{vMLp+4*n}")
    A("s_nop 1")
    A("v_permlane32_swap_b32 v24, v25")
    A("v_permlane32_swap_b32 v26, v27")
    A("v_add_f32 v24, v24, v25")
    A("v_add_f32 v26, v26, v27")
    A("s_nop 1")
    A("v_permlane16_swap_b32 v24, v26")
    A("v_add_f32 v24, v24, v26")
    A("s_nop 1")
    A("v_add_f32_dpp v24, v24, v24 row_ror:4 row_mask:0xf bank_mask:0xf")
    A("s_nop 1")
    A("v_add_f32_dpp v24, v24, v24 row_ror:8 row_mask:0xf bank_mask:0xf")
    A("s_waitcnt lgkmcnt(0)")
    round_bf16([24])
    A("v_mul_f32 v24, v24, v19")
    round_bf16([24])
    A("v_lshlrev_b32 v18, 16, v18")
    A("v_add_f32 v24, v24, v18")
    A("v_cvt_pk_bf16_f32 v24, v24, v24")
    A("s_mov_b32 exec_lo, 0x000f000f")
    A("s_mov_b32 exec_hi, 0x000f000f")
    A(f"buffer_store_short v24, v17, s[{OUTS}:{OUTS+3}], 0 offen")
    A("s_mov_b64 exec, -1")
    A.label("L_fin")
    if stamps:
        A("s_waitcnt vmcnt(0)")
        stamp(7)
        A(f"s_cmp_lg_u32 s{sA}, 0")
        A("s_cbranch_scc1 L_end")
        A("s_waitcnt lgkmcnt(0)")
        for i in range(NSTAMP):
            A(f"v_mov_b32 v{20+i}, s{sST+2*i}")
        A(f"s_lshl_b32 s{sT0}, s2, 5")
        A(f"s_add_u32 s{sT0}, s{sT0}, {WS_STAMP}")
        A(f"v_mov_b32 v30, s{sT0}")
        A("s_mov_b64 exec, 1")
        A(f"global_store_dwordx4 v30, v[20:23], s[{pWS}:{pWS+1}]")
        A(f"global_store_dwordx4 v30, v[24:27], s[{pWS}:{pWS+1}] offset:16")
    A.label("L_end")
    A("s_endpgm")
    out += A.text()
    nv = max(RING + 32 * DEPTH, vW + 4 * NL, 128)
    assert nv <= 256
    out += f"""
.section .rodata,"a"
.p2align 6
.amdhsa_kernel {NAME}
  .amdhsa_next_free_vgpr {nv}
  .amdhsa_next_free_sgpr 96
  .amdhsa_accum_offset {(nv + 3) // 4 * 4}
  .amdhsa_group_segment_fixed_size 0
  .amdhsa_kernarg_size 96
  .amdhsa_user_sgpr_count 2
  .amdhsa_user_sgpr_kernarg_segment_ptr 1
  .amdhsa_system_sgpr_workgroup_id_x 1
  .amdhsa_float_denorm_mode_32 3
.end_amdhsa_kernel
"""
    return out

if __name__ == "__main__":
    kw = eval("dict(" + (sys.argv[1] if len(sys.argv) > 1 else "") + ")")
    sys.stdout.write(gen(**kw))
```

```python
import sys, struct

NAME = "recurrent_scan__mha_block_cached__geglu_ffn__decode_kernel"

def f2u(x):
    return struct.unpack("<I", struct.pack("<f", x))[0]

HEADER = """; Kernarg layout for this problem (96 bytes, ptrs only, base s[0:1]):
"""

class Gen:
    def __init__(self):
        self.o = []
    def __call__(self, s):
        self.o.append("    " + s)
    def label(self, s):
        self.o.append(s + ":")
    def c(self, s):
        self.o.append("    ; " + s)
    def text(self):
        return "\n".join(self.o) + "\n"


def gen(tl=0, NS=4, DEPTH=4, kvflags="nt", wqflags="nt", woflags="nt", ffnflags="nt", auxprio=1, stamps=0,
        wqwin=40, wowin=40, f1win=20, f2win=16, shift=0, gsleep=127,
        nowo=0, noffn=0, nowq=0, noaux=0, nosig=0, nofinal=0, bar0=0, badloc=0, cap=0, ffnfirst=0, fine=0, pcap=0, nowqn=0, endn=0):
    A = Gen()
    NA = 4
    NW = NS + NA
    XND = 0
    XNB = XND + 10240
    QP = XNB + 5120
    QB = QP + NA * 512
    OP = QB + NS * 256
    ML = OP + NS * 512
    FLG = ML + 64
    GB = FLG + 16
    TP = GB + 256
    HB = TP + NA * 2560
    WT = HB + 13824
    LDS = WT + 55296
    assert WT % 16 == 0 and HB % 16 == 0 and TP % 16 == 0
    WS_T = 0
    WS_ML = 0xA0000
    WS_H = 0xA4000
    WS_EP = 0xAC000
    WS_SIZE = WS_EP + 128
    WS_STAMP = 0x100000
    L2E = 1.4426950408889634
    SCALE = 128 ** -0.5

    sWAVE, sX8, sSLOT, sSPLIT, sB, sH = 3, 4, 5, 6, 7, 60
    KS, VS = 8, 12
    WQS, WOS = 8, 12
    WSS = 16
    XS = 20
    F0S, F1S = 24, 28
    OUTS = 32
    P = 36
    pX, pK, pV, pWQ, pWO, pBX, pWG, pWU, pWD, pOUT, pDBG, pWS = [P + 2 * i for i in range(12)]
    sT0, sT1, sT2, sT3 = 61, 62, 63, 64
    sOFF, sCNT, sM, sL2E, sSC, sA, sHS = 65, 66, 67, 68, 69, 70, 71
    sEX = 72
    sTAG, sROLE = 74, 75
    sST = 76
    NSTAMP = 8
    def stamp(i):
        if stamps:
            A(f"s_memrealtime s[{sST+2*i}:{sST+2*i+1}]")

    def srd(dst, ptr, add_lo, nrec):
        if add_lo is None:
            A(f"s_mov_b32 s{dst}, s{ptr}")
            A(f"s_mov_b32 s{dst+1}, s{ptr+1}")
        else:
            A(f"s_add_u32 s{dst}, s{ptr}, {add_lo}")
            A(f"s_addc_u32 s{dst+1}, s{ptr+1}, 0")
        A(f"s_mov_b32 s{dst+2}, {nrec}")
        A(f"s_mov_b32 s{dst+3}, 0x20000")

    out = HEADER
    out += f"; @launch grid=(256,1,1) block=({NW*64},1,1) lds={LDS}\n"
    out += '.amdgcn_target "amdgcn-amd-amdhsa--gfx950"\n.text\n'
    out += f".globl {NAME}\n.p2align 8\n.type {NAME},@function\n{NAME}:\n"

    A("s_cmp_ge_u32 s2, 256")
    A("s_cbranch_scc1 L_end")
    stamp(0)
    A(f"s_load_dwordx16 s[{P}:{P+15}], s[0:1], 0")
    A(f"s_load_dwordx8 s[{P+16}:{P+23}], s[0:1], 64")
    A("v_lshrrev_b32 v4, 6, v0")
    A("v_and_b32 v1, 63, v0")
    A(f"v_readfirstlane_b32 s{sWAVE}, v4")
    A("v_and_b32 v2, 15, v1")
    A("v_lshrrev_b32 v3, 4, v1")
    if badloc:
        A(f"s_lshr_b32 s{sX8}, s2, 5")
        A(f"s_and_b32 s{sSLOT}, s2, 31")
    else:
        A(f"s_and_b32 s{sX8}, s2, 7")
        A(f"s_lshr_b32 s{sSLOT}, s2, 3")
    A(f"s_and_b32 s{sSPLIT}, s{sSLOT}, 1")
    A(f"s_lshr_b32 s{sB}, s{sSLOT}, 1")
    A(f"s_and_b32 s{sB}, s{sB}, 3")
    A(f"s_lshr_b32 s{sH}, s{sSLOT}, 3")
    A(f"s_lshl_b32 s{sH}, s{sH}, 3")
    A(f"s_add_u32 s{sH}, s{sH}, s{sX8}")
    A(f"s_mov_b32 s{sL2E}, {f2u(L2E):#x}")
    A(f"s_mov_b32 s{sSC}, {f2u(SCALE):#x}")
    MK = 4
    A("v_and_b32 v8, 1, v2")
    A("v_lshlrev_b32 v8, 4, v8")
    A("v_mov_b32 v9, 0xffff")
    A("v_lshlrev_b32 v8, v8, v9")
    A("v_lshrrev_b32 v9, 1, v2")
    A(f"s_cmp_lt_u32 s{sWAVE}, {NA}")
    A("s_cbranch_scc1 L_aux")

    vKO, vVO = 18, 19
    vM, vL, vNM, vAL, vTM, vT0, vT1 = 10, 11, 12, 13, 14, 15, 16
    vACC = 20
    vS = 24
    vP = 28
    vQ = 32
    vS2 = 40
    vA = 48
    RING = 64
    def kreg(slot, i): return RING + slot * 32 + i * 4
    def vreg(slot, i): return RING + slot * 32 + 16 + i * 4
    A.c("---- streaming wave ----")
    A(f"s_sub_u32 s{sWAVE}, s{sWAVE}, {NA}")
    A(f"v_lshlrev_b32 v{vKO}, 8, v9")
    A(f"v_and_b32 v{vVO}, 1, v2")
    A(f"v_lshl_add_u32 v{vKO}, v{vVO}, 6, v{vKO}")
    A(f"v_lshl_add_u32 v{vKO}, v3, 4, v{vKO}")
    A(f"v_lshlrev_b32 v{vVO}, 9, v3")
    A(f"v_lshl_add_u32 v{vVO}, v2, 4, v{vVO}")
    koff = [0, 128, 2048, 2176]
    voff = [0, 256, 2048, 2304]
    RB = 2 << 20
    STEP = NS * 4096
    A(f"s_cmp_ge_u32 s{sSLOT}, 22")
    A(f"s_cselect_b32 s{sT1}, {shift}, 0")
    A(f"s_add_u32 s{sT1}, s{sT1}, 256")
    A(f"s_sub_u32 s{sT2}, 512, s{sT1}")
    A(f"s_cmp_eq_u32 s{sSPLIT}, 0")
    A(f"s_cselect_b32 s{sCNT}, s{sT1}, s{sT2}")
    A(f"s_cselect_b32 s{sOFF}, 0, s{sT1}")
    A(f"s_add_u32 s{sOFF}, s{sOFF}, s{sWAVE}")
    A(f"s_lshl_b32 s{sOFF}, s{sOFF}, 12")
    A(f"s_sub_u32 s{sCNT}, s{sCNT}, s{sWAVE}")
    A(f"s_add_u32 s{sCNT}, s{sCNT}, {NS-1}")
    A(f"s_lshr_b32 s{sCNT}, s{sCNT}, {NS.bit_length()-1}")
    A(f"s_lshl_b32 s{sT0}, s{sB}, 5")
    A(f"s_add_u32 s{sT0}, s{sT0}, s{sH}")
    A(f"s_lshl_b32 s{sT0}, s{sT0}, 21")
    A("s_waitcnt lgkmcnt(0)")
    srd(KS, pK, f"s{sT0}", RB)
    srd(VS, pV, f"s{sT0}", RB)
    def issueK(slot, w=None):
        for i in range(4):
            r = kreg(slot, i)
            if w is not None and i % fine == 0: A(f"s_waitcnt vmcnt({w - fine})")
            A(f"buffer_load_dwordx4 v[{r}:{r+3}], v{vKO}, s[{KS}:{KS+3}], s{sOFF} offen offset:{koff[i]} {kvflags}")
    def issueV(slot, w=None):
        for i in range(4):
            r = vreg(slot, i)
            if w is not None and i % fine == 0: A(f"s_waitcnt vmcnt({w - fine})")
            A(f"buffer_load_dwordx4 v[{r}:{r+3}], v{vVO}, s[{VS}:{VS+3}], s{sOFF} offen offset:{voff[i]} {kvflags}")
        A(f"s_add_u32 s{sOFF}, s{sOFF}, {STEP}")
    if bar0:
        A("s_barrier")
    for s in range(DEPTH):
        issueK(s, pcap if pcap else None)
        issueV(s, pcap if pcap else None)
    for rr in range(4):
        A(f"v_cmp_eq_u32 vcc, {rr+4}, v9")
        A("s_nop 1")
        A(f"v_cndmask_b32 v{MK+rr}, 0, v8, vcc")
    A(f"v_mov_b32 v{vM}, 0xff7fffff")
    A(f"v_mov_b32 v{vL}, 0")
    for i in range(4):
        A(f"v_mov_b32 v{vACC+i}, 0")
    A(f"v_lshlrev_b32 v{vT0}, 3, v1")
    A(f"s_lshl_b32 s{sT0}, s{sWAVE}, 8")
    A(f"s_add_u32 s{sT0}, s{sT0}, {QB}")
    A(f"v_lshl_add_u32 v{vT1}, v1, 2, s{sT0}")
    A(f"v_lshl_add_u32 v{vTM}, v3, 4, s{sT0}")
    A(f"v_lshrrev_b32 v{vAL}, 3, v2")
    A(f"v_lshl_add_u32 v{vTM}, v{vAL}, 6, v{vTM}")
    A("s_barrier")
    for a in range(NA):
        A(f"ds_read_b64 v[{vA+2*a}:{vA+2*a+1}], v{vT0} offset:{QP + a*512}")
    A("s_waitcnt lgkmcnt(0)")
    for a in range(1, NA):
        A(f"v_add_f32 v{vA}, v{vA}, v{vA+2*a}")
        A(f"v_add_f32 v{vA+1}, v{vA+1}, v{vA+2*a+1}")
    A(f"v_cvt_pk_bf16_f32 v{vA}, v{vA}, v{vA+1}")
    A(f"ds_write_b32 v{vT1}, v{vA}")
    A("s_waitcnt lgkmcnt(0)")
    for j in range(2):
        A(f"ds_read_b128 v[{vQ+4*j}:{vQ+4*j+3}], v{vTM} offset:{128*j}")
    A("s_waitcnt lgkmcnt(0)")
    A.label("L_loop")
    W = 8 * DEPTH - 4
    for s in range(DEPTH):
        A(f"s_cmp_le_u32 s{sCNT}, {DEPTH}")
        A(f"s_cselect_b32 s{KS+2}, 0, {RB}")
        A(f"s_cselect_b32 s{VS+2}, 0, {RB}")
        A(f"s_waitcnt vmcnt({W})")
        for (j, d, qj) in ((0, vS2, 0), (2, vS2 + 4, 0), (1, vS2, 1), (3, vS2 + 4, 1)):
            r = kreg(s, j)
            c = "0" if qj == 0 else f"v[{d}:{d+3}]"
            A(f"v_mfma_f32_16x16x32_bf16 v[{d}:{d+3}], v[{r}:{r+3}], v[{vQ+4*qj}:{vQ+4*qj+3}], {c}")
        if cap:
            A(f"s_cmp_le_u32 s{sCNT}, {max(DEPTH, endn)}")
            A(f"s_cbranch_scc1 L_ck{s}")
            if fine:
                issueK(s, cap)
                A(f"s_branch L_ck2{s}")
            else:
                A(f"s_waitcnt vmcnt({cap - 4})")
            A.label(f"L_ck{s}")
        issueK(s)
        A.label(f"L_ck2{s}")
        A("s_nop 3")
        for i in range(4):
            A(f"v_add_f32_dpp v{vS+i}, v{vS2+2*i}, v{vS2+2*i+1} row_ror:8 row_mask:0xf bank_mask:0xf")
        A(f"v_cvt_pk_bf16_f32 v{vT0}, v{vS}, v{vS+1}")
        A(f"v_cvt_pk_bf16_f32 v{vT1}, v{vS+2}, v{vS+3}")
        A(f"v_lshlrev_b32 v{vP}, 16, v{vT0}")
        A(f"v_and_b32 v{vP+1}, 0xffff0000, v{vT0}")
        A(f"v_lshlrev_b32 v{vP+2}, 16, v{vT1}")
        A(f"v_and_b32 v{vP+3}, 0xffff0000, v{vT1}")
        for i in range(4):
            A(f"v_mul_f32 v{vP+i}, s{sSC}, v{vP+i}")
        A(f"v_cvt_pk_bf16_f32 v{vT0}, v{vP}, v{vP+1}")
        A(f"v_cvt_pk_bf16_f32 v{vT1}, v{vP+2}, v{vP+3}")
        A(f"v_lshlrev_b32 v{vP}, 16, v{vT0}")
        A(f"v_and_b32 v{vP+1}, 0xffff0000, v{vT0}")
        A(f"v_lshlrev_b32 v{vP+2}, 16, v{vT1}")
        A(f"v_and_b32 v{vP+3}, 0xffff0000, v{vT1}")
        A(f"v_max3_f32 v{vTM}, v{vP}, v{vP+1}, v{vM}")
        A(f"v_max3_f32 v{vTM}, v{vP+2}, v{vP+3}, v{vTM}")
        A("s_nop 1")
        A(f"v_max_f32_dpp v{vTM}, v{vTM}, v{vTM} row_bcast:15 row_mask:0xa bank_mask:0xf")
        A("s_nop 1")
        A(f"v_max_f32_dpp v{vTM}, v{vTM}, v{vTM} row_bcast:31 row_mask:0xc bank_mask:0xf")
        A("s_nop 0")
        A(f"v_readlane_b32 s{sM}, v{vTM}, 63")
        A(f"v_mov_b32 v{vNM}, s{sL2E}")
        A("s_nop 0")
        A(f"v_mul_f32 v{vNM}, s{sM}, v{vNM}")
        for i in range(4):
            A(f"v_fma_f32 v{vP+i}, v{vP+i}, s{sL2E}, -v{vNM}")
        A(f"v_fma_f32 v{vAL}, v{vM}, s{sL2E}, -v{vNM}")
        for i in range(4):
            A(f"v_exp_f32 v{vP+i}, v{vP+i}")
        A(f"v_exp_f32 v{vAL}, v{vAL}")
        A(f"v_mov_b32 v{vM}, s{sM}")
        A(f"v_add_f32 v{vT0}, v{vP}, v{vP+1}")
        A(f"v_add_f32 v{vT1}, v{vP+2}, v{vP+3}")
        for i in range(4):
            A(f"v_cvt_pk_bf16_f32 v{vP+i}, v{vP+i}, v{vP+i}")
        A(f"v_add_f32 v{vT0}, v{vT0}, v{vT1}")
        A(f"v_fma_f32 v{vL}, v{vL}, v{vAL}, v{vT0}")
        for i in range(4):
            A(f"v_mul_f32 v{vACC+i}, v{vACC+i}, v{vAL}")
        for i in range(4):
            for rr in range(4):
                A(f"v_and_b32 v{vA+4*i+rr}, v{vP+i}, v{MK+rr}")
        A(f"s_waitcnt vmcnt({W})")
        A("s_nop 0")
        for i in range(4):
            r = vreg(s, i)
            A(f"v_mfma_f32_16x16x32_bf16 v[{vACC}:{vACC+3}], v[{vA+4*i}:{vA+4*i+3}], v[{r}:{r+3}], v[{vACC}:{vACC+3}]")
        if cap:
            A(f"s_cmp_le_u32 s{sCNT}, {max(DEPTH, endn)}")
            A(f"s_cbranch_scc1 L_cv{s}")
            if fine:
                issueV(s, cap)
                A(f"s_branch L_cv2{s}")
            else:
                A(f"s_waitcnt vmcnt({cap - 4})")
            A.label(f"L_cv{s}")
        issueV(s)
        A.label(f"L_cv2{s}")
        if tl:
            A("s_memrealtime s[92:93]")
            A(f"s_and_b32 m0, s{sCNT}, 63")
            A("s_waitcnt lgkmcnt(0)")
            A("v_writelane_b32 v17, s92, m0")
        A(f"s_sub_u32 s{sCNT}, s{sCNT}, 1")
        A(f"s_cmp_eq_u32 s{sCNT}, 0")
        if s < DEPTH - 1:
            A("s_cbranch_scc1 L_sdone")
        else:
            A("s_cbranch_scc0 L_loop")
    A.label("L_sdone")
    A(f"v_add_f32_dpp v{vL}, v{vL}, v{vL} row_bcast:15 row_mask:0xa bank_mask:0xf")
    A(f"s_lshl_b32 s{sT0}, s{sWAVE}, 9")
    A(f"s_add_u32 s{sT0}, s{sT0}, {OP - 32}")
    A(f"v_add_f32_dpp v{vL}, v{vL}, v{vL} row_bcast:31 row_mask:0xc bank_mask:0xf")
    A(f"v_lshlrev_b32 v{vT0}, 5, v2")
    A(f"v_lshl_add_u32 v{vT0}, v3, 4, v{vT0}")
    A(f"v_add_u32 v{vT0}, s{sT0}, v{vT0}")
    A(f"s_lshl_b32 s{sT1}, s{sWAVE}, 3")
    A(f"s_add_u32 s{sT1}, s{sT1}, {ML}")
    A(f"v_mov_b32 v{vT1}, s{sT1}")
    A("s_mov_b32 exec_lo, 0")
    A(f"ds_write_b128 v{vT0}, v[{vACC}:{vACC+3}]")
    A("s_mov_b32 exec_hi, 0x80000000")
    A(f"ds_write_b64 v{vT1}, v[{vM}:{vM+1}]")
    A("s_mov_b64 exec, -1")
    A("s_waitcnt lgkmcnt(0)")
    A("s_barrier")
    if tl:
        A(f"s_lshl_b32 s{sT0}, s2, 2")
        A(f"s_add_u32 s{sT0}, s{sT0}, s{sWAVE}")
        A(f"s_lshl_b32 s{sT0}, s{sT0}, 8")
        A(f"s_add_u32 s{sT0}, s{sT0}, 0x300000")
        A(f"v_lshl_add_u32 v16, v1, 2, s{sT0}")
        A(f"global_store_dword v16, v17, s[{pWS}:{pWS+1}]")
    A("s_endpgm")

    A.label("L_aux")
    A.c("---- aux wave ----")
    NL = 160 // NA
    RW = 640 // NA
    RT = RW // 4
    RO = 128 // NA
    OT = RO // 4
    vTO = 13
    vO1, vO2, vO3 = 10, 11, 12
    vX = 14
    vF = 20
    vC = 30
    vAA = 36
    vQA = 44
    vX2 = 48
    vXD = 56
    vW = 96
    if auxprio:
        A(f"s_setprio {auxprio}")
    A(f"s_mov_b32 s{sA}, s{sWAVE}")
    if noaux:
        A("s_waitcnt lgkmcnt(0)")
        if bar0: A("s_barrier")
        stamp(1)
        A("s_barrier")
        stamp(2); stamp(3)
        A("s_barrier")
        stamp(4); stamp(5); stamp(6)
        A("s_branch L_fin")
    A(f"v_lshlrev_b32 v{vO1}, 2, v1")
    A(f"v_mul_u32_u24 v{vO2}, {RT*8192}, v3")
    A(f"v_lshl_add_u32 v{vO2}, v2, 4, v{vO2}")
    A(f"s_mul_i32 s{sT0}, s{sA}, 1280")
    A(f"s_mul_i32 s{sT3}, s{sB}, 1280")
    A(f"s_lshl_b32 s{sT1}, s{sH}, 8")
    A(f"s_mul_i32 s{sT2}, s{sA}, {RW*8192}")
    A(f"s_add_u32 s{sT1}, s{sT1}, s{sT2}")
    A(f"s_sub_u32 s{sT2}, {640*8192}, s{sT1}")
    A("s_waitcnt lgkmcnt(0)")
    srd(XS, pX, None, 5120)
    for i in range(5):
        A(f"buffer_load_dword v{vX+i}, v{vO1}, s[{XS}:{XS+3}], s{sT3} offen offset:{256*i}")
    for i in range(5):
        A(f"buffer_load_dword v{vX2+i}, v{vO1}, s[{XS}:{XS+3}], s{sT0} offen offset:{256*i}")
    A(f"s_load_dword s{sTAG}, s[{pWS}:{pWS+1}], {WS_EP:#x}")
    srd(WQS, pWQ, f"s{sT1}", 0 if nowq else f"s{sT2}")
    A(f"s_mov_b32 s{sOFF}, 0")
    def wq_issue(t):
        r = vW + 4 * t
        A(f"buffer_load_dwordx4 v[{r}:{r+3}], v{vO2}, s[{WQS}:{WQS+3}], s{sOFF} offen {wqflags}")
        A(f"s_add_u32 s{sOFF}, s{sOFF}, 8192")
    NLQ = nowqn if nowqn else NL
    wqwin = min(wqwin, NLQ)
    for t in range(wqwin):
        wq_issue(t)
    if bar0:
        A("s_barrier")
    for rr in range(4):
        A(f"v_cmp_eq_u32 vcc, {rr}, v9")
        A("s_nop 1")
        A(f"v_cndmask_b32 v{MK+rr}, 0, v8, vcc")
    def wave_sum(v, s):
        for sh in (1, 2, 4, 8):
            A("s_nop 1")
            A(f"v_add_f32_dpp v{v}, v{v}, v{v} row_shr:{sh} row_mask:0xf bank_mask:0xf bound_ctrl:0")
        A("s_nop 1")
        A(f"v_add_f32_dpp v{v}, v{v}, v{v} row_bcast:15 row_mask:0xa bank_mask:0xf")
        A("s_nop 1")
        A(f"v_add_f32_dpp v{v}, v{v}, v{v} row_bcast:31 row_mask:0xc bank_mask:0xf")
        A("s_nop 0")
        A(f"v_readlane_b32 s{s}, v{v}, 63")
        A("s_nop 1")
    def layernorm(vX, dup):
        for i in range(5):
            A(f"v_lshlrev_b32 v{vF+2*i}, 16, v{vX+i}")
            A(f"v_and_b32 v{vF+2*i+1}, 0xffff0000, v{vX+i}")
        A(f"v_add_f32 v{vC+4}, v{vF}, v{vF+1}")
        for i in range(2, 10):
            A(f"v_add_f32 v{vC+4}, v{vC+4}, v{vF+i}")
        wave_sum(vC + 4, sT0)
        A(f"v_mov_b32 v{vC+5}, {f2u(1.0/640):#x}")
        A(f"v_mul_f32 v{vC+4}, s{sT0}, v{vC+5}")
        A(f"v_sub_f32 v{vC}, v{vF}, v{vC+4}")
        A(f"v_mul_f32 v{vC+1}, v{vC}, v{vC}")
        for i in range(1, 10):
            A(f"v_sub_f32 v{vC}, v{vF+i}, v{vC+4}")
            A(f"v_fmac_f32 v{vC+1}, v{vC}, v{vC}")
        wave_sum(vC + 1, sT0)
        A(f"v_mul_f32 v{vC+1}, s{sT0}, v{vC+5}")
        A(f"v_cvt_pk_bf16_f32 v{vC}, v{vC+4}, v{vC+1}")
        A(f"v_lshlrev_b32 v{vC+4}, 16, v{vC}")
        A(f"v_and_b32 v{vC+1}, 0xffff0000, v{vC}")
        A(f"v_add_f32 v{vC+1}, {f2u(1e-5):#x}, v{vC+1}")
        A(f"v_cvt_pk_bf16_f32 v{vC+1}, v{vC+1}, v{vC+1}")
        A(f"v_and_b32 v{vC+1}, 0xffff0000, v{vC+1}")
        A(f"v_sqrt_f32 v{vC+1}, v{vC+1}")
        A("s_nop 0")
        A(f"v_cvt_pk_bf16_f32 v{vC+1}, v{vC+1}, v{vC+1}")
        A(f"v_and_b32 v{vC+1}, 0xffff0000, v{vC+1}")
        A(f"v_rcp_f32 v{vC+1}, v{vC+1}")
        for i in range(10):
            A(f"v_sub_f32 v{vF+i}, v{vF+i}, v{vC+4}")
        if dup:
            A(f"s_mul_i32 s{sT2}, s{sA}, 2560")
            A(f"v_lshl_add_u32 v{vC+3}, v1, 3, s{sT2}")
        else:
            A(f"s_mul_i32 s{sT1}, s{sA}, 1280")
            A(f"v_add_u32 v{vC+2}, s{sT1}, v{vO1}")
        for i in range(5):
            A(f"v_cvt_pk_bf16_f32 v{vX+i}, v{vF+2*i}, v{vF+2*i+1}")
            A(f"v_lshlrev_b32 v{vF+2*i}, 16, v{vX+i}")
            A(f"v_and_b32 v{vF+2*i+1}, 0xffff0000, v{vX+i}")
            A(f"v_mul_f32 v{vF+2*i}, v{vF+2*i}, v{vC+1}")
            A(f"v_mul_f32 v{vF+2*i+1}, v{vF+2*i+1}, v{vC+1}")
            if dup:
                A(f"v_cvt_pk_bf16_f32 v{vF+2*i}, v{vF+2*i}, v{vF+2*i}")
                A(f"v_cvt_pk_bf16_f32 v{vF+2*i+1}, v{vF+2*i+1}, v{vF+2*i+1}")
                A(f"ds_write_b64 v{vC+3}, v[{vF+2*i}:{vF+2*i+1}] offset:{XND + 512*i}")
            else:
                A(f"v_cvt_pk_bf16_f32 v{vX+i}, v{vF+2*i}, v{vF+2*i+1}")
                A(f"ds_write_b32 v{vC+2}, v{vX+i} offset:{XNB + 256*i}")
    A(f"s_waitcnt vmcnt({wqwin + 5})")
    layernorm(vX, True)
    stamp(1)
    A(f"s_mul_i32 s{sT1}, s{sA}, {RW*4}")
    A(f"s_add_u32 s{sT0}, s{sT2}, s{sT1}")
    A(f"v_mul_u32_u24 v{vX}, {RT*4}, v3")
    A(f"v_add_u32 v{vX}, s{sT0}, v{vX}")
    A("s_waitcnt lgkmcnt(0)")
    for i in range(RT // 4):
        A(f"ds_read_b128 v[{vXD+4*i}:{vXD+4*i+3}], v{vX} offset:{XND + 16*i}")
    A("s_waitcnt lgkmcnt(0)")
    for t in range(NLQ):
        aa = vAA + 4 * (t & 1)
        for rr in range(4):
            A(f"v_and_b32 v{aa+rr}, v{vXD+t}, v{MK+rr}")
        issued = min(NLQ, wqwin + t)
        A(f"s_waitcnt vmcnt({issued - 1 - t})")
        if wqwin + t < NLQ:
            wq_issue(wqwin + t)
        else:
            A("s_nop 0")
        r = vW + 4 * t
        c = "0" if t == 0 else f"v[{vQA}:{vQA+3}]"
        A(f"v_mfma_f32_16x16x32_bf16 v[{vQA}:{vQA+3}], v[{aa}:{aa+3}], v[{r}:{r+3}], {c}")
    A(f"s_lshl_b32 s{sT0}, s{sA}, 9")
    A(f"s_add_u32 s{sT0}, s{sT0}, {QP}")
    A(f"v_lshlrev_b32 v{vC}, 5, v2")
    A(f"v_lshl_add_u32 v{vC}, v3, 4, v{vC}")
    A(f"v_add_u32 v{vC}, s{sT0}, v{vC}")
    A("s_nop 3")
    A("s_mov_b64 exec, 0xffffffff")
    A(f"ds_write_b128 v{vC}, v[{vQA}:{vQA+3}]")
    A("s_mov_b64 exec, -1")
    A(f"s_lshl_b32 s{sT0}, s{sA}, 2")
    A(f"v_mov_b32 v{vC+1}, s{sT0}")
    A(f"v_mov_b32 v{vC+2}, 0")
    A(f"ds_write_b32 v{vC+1}, v{vC+2} offset:{FLG}")
    A("s_waitcnt lgkmcnt(0)")
    A("s_barrier")
    stamp(2)
    layernorm(vX2, False)
    srd(WSS, pWS, None, WS_SIZE)
    A(f"s_mul_i32 s{sTAG}, s{sTAG}, 0x9e3779b1")
    A(f"s_add_u32 s{sTAG}, s{sTAG}, 0x7f4a7c15")
    A(f"s_lshl_b32 s{sHS}, s{sH}, 1")
    A(f"s_add_u32 s{sHS}, s{sHS}, s{sSPLIT}")
    A(f"s_lshl_b32 s{sT0}, s{sB}, 6")
    A(f"s_add_u32 s{sT0}, s{sT0}, s{sHS}")
    A(f"s_lshl_b32 s{sT1}, s{sT0}, 6")
    A(f"v_lshrrev_b32 v{vTO}, 2, v0")
    A(f"v_lshlrev_b32 v{vTO}, 14, v{vTO}")
    A(f"v_and_b32 v{vC}, 3, v0")
    A(f"v_lshl_add_u32 v{vTO}, v{vC}, 4, v{vTO}")
    A(f"v_add_u32 v{vTO}, s{sT1}, v{vTO}")
    A(f"s_lshr_b32 s{sT1}, s{sT0}, 1")
    A(f"s_lshl_b32 s{sT1}, s{sT1}, 7")
    A(f"s_lshl_b32 s{sT2}, s{sSPLIT}, 3")
    A(f"s_add_u32 s{sT1}, s{sT1}, s{sT2}")
    A(f"s_add_u32 s{sT1}, s{sT1}, {WS_ML}")
    A(f"v_mov_b32 v{vO3}, s{sT1}")
    for i in range(4):
        A(f"v_mov_b32 v{vC+i}, -1")
    A(f"v_cmp_gt_u32 vcc, 160, v0")
    A(f"s_and_saveexec_b64 s[{sEX}:{sEX+1}], vcc")
    A("s_cbranch_execz L_noclr")
    A(f"buffer_store_dwordx4 v[{vC}:{vC+3}], v{vTO}, s[{WSS}:{WSS+3}], 0 offen sc1")
    A.label("L_noclr")
    A(f"s_mov_b64 exec, s[{sEX}:{sEX+1}]")
    A(f"v_cmp_eq_u32 vcc, 192, v0")
    A(f"s_and_saveexec_b64 s[{sEX}:{sEX+1}], vcc")
    A("s_cbranch_execz L_noclr2")
    A(f"buffer_store_dwordx2 v[{vC}:{vC+1}], v{vO3}, s[{WSS}:{WSS+3}], 0 offen sc1")
    A.label("L_noclr2")
    A(f"s_mov_b64 exec, s[{sEX}:{sEX+1}]")
    A("s_waitcnt vmcnt(0) lgkmcnt(0)")
    A(f"s_lshl_b32 s{sT0}, s{sA}, 2")
    A(f"v_mov_b32 v{vC}, s{sT0}")
    A(f"v_mov_b32 v{vC+1}, 1")
    A(f"ds_write_b32 v{vC}, v{vC+1} offset:{FLG}")
    A(f"s_sub_u32 s{sT0}, s{sSLOT}, 22")
    A(f"s_lshr_b32 s{sT1}, s{sT0}, 1")
    A(f"s_add_u32 s{sT2}, s{sT1}, 22")
    A(f"s_cmp_ge_u32 s{sSLOT}, 22")
    A(f"s_cselect_b32 s{sT2}, s{sT2}, s{sSLOT}")
    A(f"s_cselect_b32 s{sT3}, s{sSPLIT}, 0")
    A(f"s_mul_i32 s{sROLE}, s{sX8}, 27")
    A(f"s_add_u32 s{sROLE}, s{sROLE}, s{sT2}")
    A(f"s_mul_i32 s{sT0}, s{sX8}, 5")
    A(f"s_add_u32 s{sT0}, s{sT0}, s{sT1}")
    A(f"s_add_u32 s{sT0}, s{sT0}, 216")
    A(f"s_cmp_lg_u32 s{sT3}, 0")
    A(f"s_cselect_b32 s{sROLE}, s{sT0}, s{sROLE}")
    def wo_load():
        A(f"s_mul_i32 s{sT0}, s{sH}, {128*1280}")
        A(f"s_mul_i32 s{sT1}, s{sA}, {RO*1280}")
        A(f"s_add_u32 s{sT0}, s{sT0}, s{sT1}")
        srd(WOS, pWO, f"s{sT0}", RO * 1280)
        A(f"v_mul_u32_u24 v{vO2}, {OT*1280}, v3")
        A(f"v_lshl_add_u32 v{vO2}, v2, 4, v{vO2}")
        A(f"s_mov_b32 s{sOFF}, 0")
        for t in range(OT):
            for seg in range(5):
                r = vW + 4 * (t * 5 + seg)
                if not nowo:
                    A(f"buffer_load_dwordx4 v[{r}:{r+3}], v{vO2}, s[{WOS}:{WOS+3}], s{sOFF} offen offset:{256*seg} {woflags}")
                    if wowin < NL:
                        A(f"s_waitcnt vmcnt({wowin - 1})")
            A(f"s_add_u32 s{sOFF}, s{sOFF}, 1280")
    if not ffnfirst:
        wo_load()
    A(f"s_cmp_lg_u32 s{sA}, 0")
    A("s_cbranch_scc1 L_wait3")
    if nosig:
        A("s_branch L_wait3")
    vTR, vAO = 14, 15
    vFA, vFB, vFD = 20, 24, 28
    D4 = [vFD + i for i in range(4)]
    def round_bf16(regs):
        for v in regs:
            A(f"v_cvt_pk_bf16_f32 v{v}, v{v}, v{v}")
        for v in regs:
            A(f"v_and_b32 v{v}, 0xffff0000, v{v}")
    A(f"v_mov_b32 v{vC+4}, 0")
    A.label("L_flg")
    A(f"ds_read_b128 v[{vFA}:{vFA+3}], v{vC+4} offset:{FLG}")
    A("s_waitcnt lgkmcnt(0)")
    A(f"v_add3_u32 v{vFA}, v{vFA}, v{vFA+1}, v{vFA+2}")
    A(f"v_add_u32 v{vFA}, v{vFA}, v{vFA+3}")
    A(f"v_cmp_ne_u32 vcc, 4, v{vFA}")
    A("s_nop 1")
    A("s_cbranch_vccnz L_flg")
    A(f"s_lshl_b32 s{sT3}, s{sROLE}, 7")
    A(f"s_add_u32 s{sT3}, s{sT3}, {WS_H}")
    A(f"s_cmp_ge_u32 s{sROLE}, 216")
    A("s_cbranch_scc1 L_f2")
    A.c("F1: 8 columns of gate/up for all 4 batches")
    A(f"s_lshl_b32 s{sT0}, s{sROLE}, 4")
    srd(F0S, pWG, None, 640 * 3456)
    srd(F1S, pWU, None, 640 * 3456)
    A(f"v_mul_u32_u24 v{vC}, 3456, v1")
    A(f"v_add_u32 v{vC}, s{sT0}, v{vC}")
    for mat, S in enumerate((F0S, F1S)):
        A(f"s_mov_b32 s{sOFF}, 0")
        for i in range(10):
            A(f"s_mov_b32 m0, {WT + mat*10240 + i*1024}")
            A("s_nop 0")
            if not noffn:
                A(f"buffer_load_dwordx4 v{vC}, s[{S}:{S+3}], s{sOFF} offen {ffnflags} lds")
                if f1win < 20:
                    A(f"s_waitcnt vmcnt({f1win - 1})")
            A(f"s_add_u32 s{sOFF}, s{sOFF}, {64*3456}")
    A(f"v_lshrrev_b32 v{vC+1}, 2, v2")
    A(f"v_lshl_add_u32 v{vC+1}, v3, 3, v{vC+1}")
    A(f"v_lshlrev_b32 v{vTR}, 4, v{vC+1}")
    A(f"v_and_b32 v{vC+1}, 1, v1")
    A(f"v_lshl_add_u32 v{vTR}, v{vC+1}, 3, v{vTR}")
    A(f"v_bfe_u32 v{vC+1}, v1, 1, 1")
    A(f"v_mul_u32_u24 v{vC+1}, 10240, v{vC+1}")
    A(f"v_add_u32 v{vTR}, v{vTR}, v{vC+1}")
    A(f"v_add_u32 v{vTR}, {WT}, v{vTR}")
    A(f"v_and_b32 v{vC+1}, 3, v1")
    A(f"v_mul_u32_u24 v{vAO}, 1280, v{vC+1}")
    A(f"v_lshl_add_u32 v{vAO}, v3, 4, v{vAO}")
    A(f"v_add_u32 v{vAO}, {XNB}, v{vAO}")
    for i in range(4):
        A(f"v_mov_b32 v{vFD+i}, 0")
    A(f"s_mov_b32 s{sCNT}, 20")
    A("s_waitcnt vmcnt(0)")
    A.label("L_f1_mm")
    A(f"ds_read_b128 v[{vFA}:{vFA+3}], v{vAO}")
    A(f"ds_read_b64_tr_b16 v[{vFB}:{vFB+1}], v{vTR}")
    A(f"ds_read_b64_tr_b16 v[{vFB+2}:{vFB+3}], v{vTR} offset:64")
    A(f"v_add_u32 v{vAO}, 64, v{vAO}")
    A(f"v_add_u32 v{vTR}, 512, v{vTR}")
    A("s_waitcnt lgkmcnt(0)")
    A(f"v_mfma_f32_16x16x32_bf16 v[{vFD}:{vFD+3}], v[{vFA}:{vFA+3}], v[{vFB}:{vFB+3}], v[{vFD}:{vFD+3}]")
    A(f"s_sub_u32 s{sCNT}, s{sCNT}, 1")
    A(f"s_cmp_lg_u32 s{sCNT}, 0")
    A("s_cbranch_scc1 L_f1_mm")
    A("s_nop 7")
    for i in range(1, 4):
        A(f"v_cmp_eq_u32 vcc, {i}, v3")
        A("s_nop 1")
        A(f"v_cndmask_b32 v{vFD}, v{vFD}, v{vFD+i}, vcc")
    round_bf16([vFD])
    K0 = 0.7978845608028654
    A(f"s_mov_b32 s{sT0}, {f2u(0.044715):#x}")
    A(f"s_mov_b32 s{sT1}, {f2u(-2.0 * K0 * L2E):#x}")
    A(f"v_mul_f32 v{vFA}, v{vFD}, v{vFD}")
    A(f"v_fma_f32 v{vFA}, v{vFA}, s{sT0}, 1.0")
    A(f"v_mul_f32 v{vFA}, v{vFA}, v{vFD}")
    A(f"v_mul_f32 v{vFA}, s{sT1}, v{vFA}")
    A(f"v_exp_f32 v{vFA}, v{vFA}")
    A("s_nop 0")
    A(f"v_add_f32 v{vFA}, 1.0, v{vFA}")
    A(f"v_rcp_f32 v{vFA}, v{vFA}")
    A("s_nop 0")
    A(f"v_mul_f32 v{vFA}, v{vFA}, v{vFD}")
    round_bf16([vFA])
    A("s_nop 1")
    A(f"v_mul_f32_dpp v{vFA}, v{vFD}, v{vFA} row_ror:8 row_mask:0xf bank_mask:0xf")
    A("s_nop 1")
    A(f"v_mov_b32_dpp v{vFB}, v{vFA} quad_perm:[1,0,3,2] row_mask:0xf bank_mask:0xf")
    A(f"v_cvt_pk_bf16_f32 v{vFA}, v{vFA}, v{vFB}")
    A(f"v_mov_b32 v{vFA+1}, s{sTAG}")
    A(f"v_lshlrev_b32 v{vC}, 5, v3")
    A(f"v_lshl_add_u32 v{vC}, v2, 2, v{vC}")
    A("s_mov_b32 exec_lo, 0x00550055")
    A("s_mov_b32 exec_hi, 0x00550055")
    A(f"buffer_store_dwordx2 v[{vFA}:{vFA+1}], v{vC}, s[{WSS}:{WSS+3}], s{sT3} offen sc1")
    A("s_mov_b64 exec, -1")
    A("s_branch L_wait3")

    A.label("L_f2")
    A.c("F2: 16 output columns of the down projection for all 4 batches")
    A(f"v_mov_b32 v{vFA}, 0")
    A(f"v_mov_b32 v{vFA+1}, s{sTAG}")
    A(f"v_lshlrev_b32 v{vC}, 3, v1")
    A("s_mov_b64 exec, 0xffff")
    A(f"buffer_store_dwordx2 v[{vFA}:{vFA+1}], v{vC}, s[{WSS}:{WSS+3}], s{sT3} offen sc1")
    A("s_mov_b64 exec, -1")
    A(f"s_sub_u32 s{sT0}, s{sROLE}, 216")
    A(f"s_lshl_b32 s{sT0}, s{sT0}, 5")
    srd(F0S, pWD, None, 1728 * 1280)
    A(f"v_lshrrev_b32 v{vC+2}, 1, v1")
    A(f"v_mul_u32_u24 v{vC+2}, 1280, v{vC+2}")
    A(f"v_and_b32 v{vC+3}, 1, v1")
    A(f"v_lshl_add_u32 v{vC+2}, v{vC+3}, 4, v{vC+2}")
    A(f"v_add_u32 v{vC+2}, s{sT0}, v{vC+2}")
    A(f"s_mov_b32 s{sOFF}, 0")
    A(f"s_mov_b32 s{sT1}, {WT}")
    A(f"s_mov_b32 s{sCNT}, 54")
    A.label("L_f2_ld")
    A(f"s_mov_b32 m0, s{sT1}")
    A(f"s_add_u32 s{sT1}, s{sT1}, 1024")
    if not noffn:
        A(f"buffer_load_dwordx4 v{vC+2}, s[{F0S}:{F0S+3}], s{sOFF} offen {ffnflags} lds")
    A(f"s_add_u32 s{sOFF}, s{sOFF}, {32*1280}")
    A(f"s_waitcnt vmcnt({f2win - 1})")
    A(f"s_sub_u32 s{sCNT}, s{sCNT}, 1")
    A(f"s_cmp_lg_u32 s{sCNT}, 0")
    A("s_cbranch_scc1 L_f2_ld")
    vH = 36
    A(f"v_lshlrev_b32 v{vC}, 4, v1")
    A(f"v_bfe_u32 v{vC+1}, v1, 1, 2")
    A(f"v_mul_u32_u24 v{vC+1}, 3456, v{vC+1}")
    A(f"v_lshrrev_b32 v{vC+2}, 3, v1")
    A(f"v_lshl_add_u32 v{vC+1}, v{vC+2}, 4, v{vC+1}")
    A(f"v_and_b32 v{vC+2}, 1, v1")
    A(f"v_lshl_add_u32 v{vC+1}, v{vC+2}, 3, v{vC+1}")
    for rnd in range(4):
        A(f"s_branch L_g{rnd}")
        A.label(f"L_gr{rnd}")
        A(f"s_sleep {gsleep}")
        A.label(f"L_g{rnd}")
        A(f"s_mov_b32 s{sOFF}, {WS_H + rnd*8192}")
        for i in range(8):
            if i == 4:
                A(f"s_add_u32 s{sOFF}, s{sOFF}, 4096")
            A(f"buffer_load_dwordx4 v[{vH+4*i}:{vH+4*i+3}], v{vC}, s[{WSS}:{WSS+3}], s{sOFF} offen offset:{1024*(i&3)} sc1")
        A("s_waitcnt vmcnt(0)")
        A(f"v_mov_b32 v{vC+2}, 0")
        for i in range(8):
            A(f"v_xor_b32 v{vH+4*i+1}, s{sTAG}, v{vH+4*i+1}")
            A(f"v_xor_b32 v{vH+4*i+3}, s{sTAG}, v{vH+4*i+3}")
            A(f"v_or3_b32 v{vC+2}, v{vC+2}, v{vH+4*i+1}, v{vH+4*i+3}")
        A(f"v_cmp_ne_u32 vcc, 0, v{vC+2}")
        A("s_nop 1")
        A(f"s_cbranch_vccnz L_gr{rnd}")
        for i in range(8):
            n = rnd * 8 + i
            if n < 27:
                A(f"v_mov_b32 v{vH+4*i+1}, v{vH+4*i+2}")
                A(f"ds_write_b64 v{vC+1}, v[{vH+4*i}:{vH+4*i+1}] offset:{HB + 128*n}")
    A(f"s_cmp_lg_u32 s{sROLE}, 216")
    A("s_cbranch_scc1 L_noep")
    A(f"v_mov_b32 v{vC+2}, {WS_EP:#x}")
    A(f"v_mov_b32 v{vC+3}, s{sTAG}")
    A("s_mov_b64 exec, 1")
    A(f"buffer_store_dword v{vC+3}, v{vC+2}, s[{WSS}:{WSS+3}], 0 offen sc1")
    A("s_mov_b64 exec, -1")
    A.label("L_noep")
    A(f"v_lshrrev_b32 v{vC+4}, 2, v2")
    A(f"v_lshl_add_u32 v{vC+4}, v3, 3, v{vC+4}")
    A(f"v_lshlrev_b32 v{vTR}, 5, v{vC+4}")
    A(f"v_and_b32 v{vC+4}, 3, v1")
    A(f"v_lshl_add_u32 v{vTR}, v{vC+4}, 3, v{vTR}")
    A(f"v_add_u32 v{vTR}, {WT}, v{vTR}")
    A(f"v_mul_u32_u24 v{vAO}, 3456, v{vC+4}")
    A(f"v_lshl_add_u32 v{vAO}, v3, 4, v{vAO}")
    A(f"v_add_u32 v{vAO}, {HB}, v{vAO}")
    A("s_waitcnt lgkmcnt(0)")
    for i in range(4):
        A(f"v_mov_b32 v{vFD+i}, 0")
    A(f"s_mov_b32 s{sCNT}, 54")
    A.label("L_f2_mm")
    A(f"ds_read_b128 v[{vFA}:{vFA+3}], v{vAO}")
    A(f"ds_read_b64_tr_b16 v[{vFB}:{vFB+1}], v{vTR}")
    A(f"ds_read_b64_tr_b16 v[{vFB+2}:{vFB+3}], v{vTR} offset:128")
    A(f"v_add_u32 v{vAO}, 64, v{vAO}")
    A(f"v_add_u32 v{vTR}, 1024, v{vTR}")
    A("s_waitcnt lgkmcnt(0)")
    A(f"v_mfma_f32_16x16x32_bf16 v[{vFD}:{vFD+3}], v[{vFA}:{vFA+3}], v[{vFB}:{vFB+3}], v[{vFD}:{vFD+3}]")
    A(f"s_sub_u32 s{sCNT}, s{sCNT}, 1")
    A(f"s_cmp_lg_u32 s{sCNT}, 0")
    A("s_cbranch_scc1 L_f2_mm")
    A("s_nop 7")
    for i in range(1, 4):
        A(f"v_cmp_eq_u32 vcc, {i}, v3")
        A("s_nop 1")
        A(f"v_cndmask_b32 v{vFD}, v{vFD}, v{vFD+i}, vcc")
    round_bf16([vFD])
    A(f"s_mov_b32 s{sT1}, {f2u(-L2E):#x}")
    A(f"v_mul_f32 v{vFA}, s{sT1}, v{vFD}")
    A(f"v_exp_f32 v{vFA}, v{vFA}")
    A("s_nop 0")
    A(f"v_add_f32 v{vFA}, 1.0, v{vFA}")
    A(f"v_rcp_f32 v{vFA}, v{vFA}")
    A("s_nop 0")
    A(f"v_mul_f32 v{vFA}, v{vFA}, v{vFD}")
    round_bf16([vFA])
    A(f"ds_write_b32 v{vO1}, v{vFA} offset:{GB}")
    A("s_waitcnt lgkmcnt(0)")

    A.label("L_wait3")
    if ffnfirst:
        wo_load()
    A("s_waitcnt vmcnt(0)")
    stamp(3)
    A("s_barrier")
    stamp(4)
    if stamps: A("s_waitcnt lgkmcnt(0)")
    vML = 14
    vE = 30
    vOV = 64
    vOS = 88
    A(f"v_mov_b32 v{vE}, 0")
    for w in range(0, NS, 2):
        A(f"ds_read_b128 v[{vML+2*w}:{vML+2*w+3}], v{vE} offset:{ML + 8*w}")
    A(f"s_mul_i32 s{sT0}, s{sA}, {RO*4}")
    A(f"v_mul_u32_u24 v{vE+1}, {OT*4}, v3")
    A(f"v_add_u32 v{vE+1}, s{sT0}, v{vE+1}")
    nset = 24 // OT
    def oread(w):
        base = vOV + (w % nset) * OT
        for i in range(OT // 4):
            A(f"ds_read_b128 v[{base+4*i}:{base+4*i+3}], v{vE+1} offset:{OP + 512*w + 16*i}")
    npre = min(NS, nset)
    for w in range(npre):
        oread(w)
    A(f"s_waitcnt lgkmcnt({npre * OT // 4})")
    A(f"v_max_f32 v{vE+2}, v{vML}, v{vML+2}")
    for w in range(2, NS):
        A(f"v_max_f32 v{vE+2}, v{vE+2}, v{vML+2*w}")
    for w in range(NS):
        A(f"v_sub_f32 v{vML+2*w}, v{vML+2*w}, v{vE+2}")
    for w in range(NS):
        A(f"v_mul_f32 v{vML+2*w}, s{sL2E}, v{vML+2*w}")
    for w in range(NS):
        A(f"v_exp_f32 v{vML+2*w}, v{vML+2*w}")
    A("s_nop 0")
    A(f"v_mul_f32 v{vE+3}, v{vML}, v{vML+1}")
    for w in range(1, NS):
        A(f"v_fmac_f32 v{vE+3}, v{vML+2*w}, v{vML+2*w+1}")
    for w in range(NS):
        left = min(NS - 1 - w, npre - 1)
        A(f"s_waitcnt lgkmcnt({left * OT // 4})")
        base = vOV + (w % nset) * OT
        for t in range(OT):
            if w == 0:
                A(f"v_mul_f32 v{vOS+t}, v{base+t}, v{vML}")
            else:
                A(f"v_fmac_f32 v{vOS+t}, v{base+t}, v{vML+2*w}")
        if w + npre < NS:
            oread(w + npre)
    for t in range(OT):
        A(f"v_cvt_pk_bf16_f32 v{vOS+t}, v{vOS+t}, v{vOS+t}")
    vTA = 44
    for t in range(OT):
        aa = vAA + 4 * (t & 1)
        for rr in range(4):
            A(f"v_and_b32 v{aa+rr}, v{vOS+t}, v{MK+rr}")
        A("s_nop 1")
        for seg in range(5):
            r = vW + 4 * (t * 5 + seg)
            d = vTA + 4 * seg
            c = "0" if t == 0 else f"v[{d}:{d+3}]"
            A(f"v_mfma_f32_16x16x32_bf16 v[{d}:{d+3}], v[{aa}:{aa+3}], v[{r}:{r+3}], {c}")
    A(f"s_mul_i32 s{sT0}, s{sA}, 2560")
    A(f"v_lshlrev_b32 v{vE}, 5, v2")
    A(f"v_lshl_add_u32 v{vE}, v3, 4, v{vE}")
    A(f"v_add_u32 v{vE}, s{sT0}, v{vE}")
    A(f"v_lshlrev_b32 v{vE+1}, 4, v0")
    A("s_nop 3")
    A("s_mov_b64 exec, 0xffffffff")
    for seg in range(5):
        d = vTA + 4 * seg
        A(f"ds_write_b128 v{vE}, v[{d}:{d+3}] offset:{TP + 512*seg}")
    A("s_mov_b64 exec, -1")
    A("s_waitcnt lgkmcnt(0)")
    A("s_barrier")
    stamp(5)
    if stamps: A("s_waitcnt lgkmcnt(0)")
    A(f"v_cmp_gt_u32 vcc, 160, v0")
    A(f"s_and_saveexec_b64 s[{sEX}:{sEX+1}], vcc")
    A("s_cbranch_execz L_nopub")
    for a in range(NA):
        A(f"ds_read_b128 v[{64+4*a}:{64+4*a+3}], v{vE+1} offset:{TP + 2560*a}")
    for a in range(1, NA):
        A(f"s_waitcnt lgkmcnt({NA-1-a})")
        for i in range(4):
            A(f"v_add_f32 v{64+i}, v{64+i}, v{64+4*a+i}")
    for i in range(4):
        A(f"v_min_u32 v{64+i}, -2, v{64+i}")
    A(f"buffer_store_dwordx4 v[64:67], v{vTO}, s[{WSS}:{WSS+3}], 0 offen sc1")
    A.label("L_nopub")
    A(f"s_mov_b64 exec, s[{sEX}:{sEX+1}]")
    A(f"v_min_u32 v{vE+2}, -2, v{vE+2}")
    A(f"v_min_u32 v{vE+3}, -2, v{vE+3}")
    A(f"v_cmp_eq_u32 vcc, 192, v0")
    A(f"s_and_saveexec_b64 s[{sEX}:{sEX+1}], vcc")
    A("s_cbranch_execz L_nopub2")
    A(f"buffer_store_dwordx2 v[{vE+2}:{vE+3}], v{vO3}, s[{WSS}:{WSS+3}], 0 offen sc1")
    A.label("L_nopub2")
    A(f"s_mov_b64 exec, s[{sEX}:{sEX+1}]")
    stamp(6)
    if stamps: A("s_waitcnt lgkmcnt(0)")
    A(f"s_cmp_lt_u32 s{sROLE}, 216")
    A("s_cbranch_scc1 L_fin")
    if nofinal:
        A("s_branch L_fin")
    A(f"s_sub_u32 s{sT3}, s{sROLE}, 216")
    A(f"s_lshl_b32 s{sT0}, s{sT3}, 2")
    A(f"s_add_u32 s{sT0}, s{sT0}, s{sA}")
    A(f"s_lshl_b32 s{sT0}, s{sT0}, 12")
    A(f"v_lshlrev_b32 v14, 4, v1")
    A(f"s_lshl_b32 s{sT1}, s{sA}, 12")
    A(f"s_add_u32 s{sT1}, s{sT1}, {WS_ML}")
    A(f"v_lshrrev_b32 v15, 3, v1")
    A(f"v_lshlrev_b32 v15, 7, v15")
    A("v_and_b32 v16, 3, v1")
    A("v_lshlrev_b32 v16, 2, v16")
    A("v_and_b32 v17, 1, v3")
    A("v_lshl_add_u32 v16, v17, 1, v16")
    A("v_lshrrev_b32 v17, 1, v3")
    A("v_add_u32 v16, v16, v17")
    A(f"s_mul_i32 s{sT2}, s{sA}, 1280")
    A(f"s_lshl_b32 s{sOFF}, s{sT3}, 5")
    A(f"s_add_u32 s{sT2}, s{sT2}, s{sOFF}")
    A(f"v_lshl_add_u32 v17, v16, 1, s{sT2}")
    A(f"buffer_load_ushort v18, v17, s[{XS}:{XS+3}], 0 offen")
    A(f"s_lshl_b32 s{sOFF}, s{sA}, 6")
    A(f"v_lshl_add_u32 v19, v16, 2, s{sOFF}")
    A(f"ds_read_b32 v19, v19 offset:{GB}")
    srd(OUTS, pOUT, None, 5120)
    vT, vMLp = 96, 112
    A.label("L_poll")
    for n in range(4):
        A(f"buffer_load_dwordx4 v[{vT+4*n}:{vT+4*n+3}], v14, s[{WSS}:{WSS+3}], s{sT0} offen offset:{1024*n} sc1")
    for n in range(4):
        A(f"buffer_load_dwordx4 v[{vMLp+4*n}:{vMLp+4*n+3}], v15, s[{WSS}:{WSS+3}], s{sT1} offen offset:{1024*n} sc1")
    A("s_waitcnt vmcnt(0)")
    A(f"v_max3_u32 v20, v{vT}, v{vT+1}, v{vT+2}")
    A(f"v_max3_u32 v21, v{vT+3}, v{vT+4}, v{vT+5}")
    for i in range(6, 30, 4):
        A(f"v_max3_u32 v20, v20, v{vT+i}, v{vT+i+1}")
        A(f"v_max3_u32 v21, v21, v{vT+i+2}, v{vT+i+3}")
    A(f"v_max3_u32 v20, v20, v{vT+30}, v{vT+31}")
    A("v_max_u32 v20, v20, v21")
    A("v_cmp_eq_u32 vcc, -1, v20")
    A("s_nop 1")
    A("s_cbranch_vccnz L_poll")
    A("v_bfe_u32 v20, v1, 2, 1")
    A("v_cmp_eq_u32 vcc, 1, v20")
    for n in range(4):
        m0, l0, m1, l1 = [vMLp + 4 * n + i for i in range(4)]
        A(f"v_max_f32 v21, v{m0}, v{m1}")
        A(f"v_sub_f32 v{m0}, v{m0}, v21")
        A(f"v_sub_f32 v{m1}, v{m1}, v21")
        A(f"v_mul_f32 v{m0}, s{sL2E}, v{m0}")
        A(f"v_mul_f32 v{m1}, s{sL2E}, v{m1}")
        A(f"v_exp_f32 v{m0}, v{m0}")
        A(f"v_exp_f32 v{m1}, v{m1}")
    A("s_nop 0")
    for n in range(4):
        m0, l0, m1, l1 = [vMLp + 4 * n + i for i in range(4)]
        A(f"v_mul_f32 v{l0}, v{l0}, v{m0}")
        A(f"v_fmac_f32 v{l0}, v{l1}, v{m1}")
        A(f"v_rcp_f32 v{l0}, v{l0}")
        A(f"v_cndmask_b32 v{m0}, v{m0}, v{m1}, vcc")
    A("s_nop 0")
    for n in range(4):
        m0, l0, m1, l1 = [vMLp + 4 * n + i for i in range(4)]
        A(f"v_mul_f32 v{m0}, v{m0}, v{l0}")
    for n in range(4):
        for i in range(4):
            if n == 0:
                A(f"v_mul_f32 v{24+i}, v{vT+i}, v{vMLp}")
            else:
                A(f"v_fmac_f32 v{24+i}, v{vT+4*n+i}, v{vMLp+4*n}")
    A("s_nop 1")
    A("v_permlane32_swap_b32 v24, v25")
    A("v_permlane32_swap_b32 v26, v27")
    A("v_add_f32 v24, v24, v25")
    A("v_add_f32 v26, v26, v27")
    A("s_nop 1")
    A("v_permlane16_swap_b32 v24, v26")
    A("v_add_f32 v24, v24, v26")
    A("s_nop 1")
    A("v_add_f32_dpp v24, v24, v24 row_ror:4 row_mask:0xf bank_mask:0xf")
    A("s_nop 1")
    A("v_add_f32_dpp v24, v24, v24 row_ror:8 row_mask:0xf bank_mask:0xf")
    A("s_waitcnt lgkmcnt(0)")
    round_bf16([24])
    A("v_mul_f32 v24, v24, v19")
    round_bf16([24])
    A("v_lshlrev_b32 v18, 16, v18")
    A("v_add_f32 v24, v24, v18")
    A("v_cvt_pk_bf16_f32 v24, v24, v24")
    A("s_mov_b32 exec_lo, 0x000f000f")
    A("s_mov_b32 exec_hi, 0x000f000f")
    A(f"buffer_store_short v24, v17, s[{OUTS}:{OUTS+3}], 0 offen")
    A("s_mov_b64 exec, -1")
    A.label("L_fin")
    if stamps:
        A("s_waitcnt vmcnt(0)")
        stamp(7)
        A(f"s_cmp_lg_u32 s{sA}, 0")
        A("s_cbranch_scc1 L_end")
        A("s_waitcnt lgkmcnt(0)")
        for i in range(NSTAMP):
            A(f"v_mov_b32 v{20+i}, s{sST+2*i}")
        A(f"s_getreg_b32 s{sT1}, hwreg(HW_REG_XCC_ID)")
        A(f"s_getreg_b32 s{sT2}, hwreg(HW_REG_HW_ID)")
        A(f"s_lshl_b32 s{sT0}, s2, 3")
        A(f"s_add_u32 s{sT0}, s{sT0}, {WS_STAMP + 0x10000}")
        A(f"v_mov_b32 v30, s{sT0}")
        A(f"v_mov_b32 v28, s{sT1}")
        A(f"v_mov_b32 v29, s{sT2}")
        A("s_mov_b64 exec, 1")
        A(f"global_store_dwordx2 v30, v[28:29], s[{pWS}:{pWS+1}]")
        A("s_mov_b64 exec, -1")
        A(f"s_lshl_b32 s{sT0}, s2, 5")
        A(f"s_add_u32 s{sT0}, s{sT0}, {WS_STAMP}")
        A(f"v_mov_b32 v30, s{sT0}")
        A("s_mov_b64 exec, 1")
        A(f"global_store_dwordx4 v30, v[20:23], s[{pWS}:{pWS+1}]")
        A(f"global_store_dwordx4 v30, v[24:27], s[{pWS}:{pWS+1}] offset:16")
    A.label("L_end")
    A("s_endpgm")
    out += A.text()
    nv = max(RING + 32 * DEPTH, vW + 4 * NL, 128)
    assert nv <= 256
    out += f"""
.section .rodata,"a"
.p2align 6
.amdhsa_kernel {NAME}
  .amdhsa_next_free_vgpr {nv}
  .amdhsa_next_free_sgpr 96
  .amdhsa_accum_offset {(nv + 3) // 4 * 4}
  .amdhsa_group_segment_fixed_size 0
  .amdhsa_kernarg_size 96
  .amdhsa_user_sgpr_count 2
  .amdhsa_user_sgpr_kernarg_segment_ptr 1
  .amdhsa_system_sgpr_workgroup_id_x 1
  .amdhsa_float_denorm_mode_32 3
.end_amdhsa_kernel
"""
    return out

if __name__ == "__main__":
    kw = eval("dict(" + (sys.argv[1] if len(sys.argv) > 1 else "") + ")")
    sys.stdout.write(gen(**kw))
```

```python
import sys, struct

NAME = "recurrent_scan__mha_block_cached__geglu_ffn__decode_kernel"

def f2u(x):
    return struct.unpack("<I", struct.pack("<f", x))[0]

HEADER = """; Kernarg layout for this problem (96 bytes, ptrs only, base s[0:1]):
"""

class Gen:
    def __init__(self):
        self.o = []
    def __call__(self, s):
        self.o.append("    " + s)
    def label(self, s):
        self.o.append(s + ":")
    def c(self, s):
        self.o.append("    ; " + s)
    def text(self):
        return "\n".join(self.o) + "\n"


def gen(dbgst=0, tl=0, NS=4, DEPTH=4, kvflags="nt", wqflags="nt", woflags="nt", ffnflags="nt", auxprio=1, stamps=0,
        wqwin=40, wowin=40, f1win=20, f2win=16, shift=0, gsleep=127,
        nowo=0, noffn=0, nowq=0, noaux=0, nosig=0, nofinal=0, bar0=0, badloc=0, cap=0, ffnfirst=0, fine=0, pcap=0, nowqn=0, endn=0, tlbpf=0, tlbflags="nt"):
    A = Gen()
    NA = 4
    NW = NS + NA
    XND = 0
    XNB = XND + 10240
    QP = XNB + 5120
    QB = QP + NA * 512
    OP = QB + NS * 256
    ML = OP + NS * 512
    FLG = ML + 64
    GB = FLG + 16
    TP = GB + 256
    HB = TP + NA * 2560
    WT = HB + 13824
    LDS = WT + 55296
    assert WT % 16 == 0 and HB % 16 == 0 and TP % 16 == 0
    WS_T = 0
    WS_ML = 0xA0000
    WS_H = 0xA4000
    WS_EP = 0xAC000
    WS_SIZE = WS_EP + 128
    WS_STAMP = 0x100000
    L2E = 1.4426950408889634
    SCALE = 128 ** -0.5

    sWAVE, sX8, sSLOT, sSPLIT, sB, sH = 3, 4, 5, 6, 7, 60
    KS, VS = 8, 12
    WQS, WOS = 8, 12
    WSS = 16
    XS = 20
    F0S, F1S = 24, 28
    OUTS = 32
    P = 36
    pX, pK, pV, pWQ, pWO, pBX, pWG, pWU, pWD, pOUT, pDBG, pWS = [P + 2 * i for i in range(12)]
    sT0, sT1, sT2, sT3 = 61, 62, 63, 64
    sOFF, sCNT, sM, sL2E, sSC, sA, sHS = 65, 66, 67, 68, 69, 70, 71
    sEX = 72
    sTAG, sROLE = 74, 75
    sST = 76
    NSTAMP = 8
    def stamp(i):
        if stamps:
            A(f"s_memrealtime s[{sST+2*i}:{sST+2*i+1}]")

    def srd(dst, ptr, add_lo, nrec):
        if add_lo is None:
            A(f"s_mov_b32 s{dst}, s{ptr}")
            A(f"s_mov_b32 s{dst+1}, s{ptr+1}")
        else:
            A(f"s_add_u32 s{dst}, s{ptr}, {add_lo}")
            A(f"s_addc_u32 s{dst+1}, s{ptr+1}, 0")
        A(f"s_mov_b32 s{dst+2}, {nrec}")
        A(f"s_mov_b32 s{dst+3}, 0x20000")

    out = HEADER
    out += f"; @launch grid=(256,1,1) block=({NW*64},1,1) lds={LDS}\n"
    out += '.amdgcn_target "amdgcn-amd-amdhsa--gfx950"\n.text\n'
    out += f".globl {NAME}\n.p2align 8\n.type {NAME},@function\n{NAME}:\n"

    A("s_cmp_ge_u32 s2, 256")
    A("s_cbranch_scc1 L_end")
    stamp(0)
    A(f"s_load_dwordx16 s[{P}:{P+15}], s[0:1], 0")
    A(f"s_load_dwordx8 s[{P+16}:{P+23}], s[0:1], 64")
    A("v_lshrrev_b32 v4, 6, v0")
    A("v_and_b32 v1, 63, v0")
    A(f"v_readfirstlane_b32 s{sWAVE}, v4")
    A("v_and_b32 v2, 15, v1")
    A("v_lshrrev_b32 v3, 4, v1")
    if badloc:
        A(f"s_lshr_b32 s{sX8}, s2, 5")
        A(f"s_and_b32 s{sSLOT}, s2, 31")
    else:
        A(f"s_and_b32 s{sX8}, s2, 7")
        A(f"s_lshr_b32 s{sSLOT}, s2, 3")
    A(f"s_and_b32 s{sSPLIT}, s{sSLOT}, 1")
    A(f"s_lshr_b32 s{sB}, s{sSLOT}, 1")
    A(f"s_and_b32 s{sB}, s{sB}, 3")
    A(f"s_lshr_b32 s{sH}, s{sSLOT}, 3")
    A(f"s_lshl_b32 s{sH}, s{sH}, 3")
    A(f"s_add_u32 s{sH}, s{sH}, s{sX8}")
    A(f"s_mov_b32 s{sL2E}, {f2u(L2E):#x}")
    A(f"s_mov_b32 s{sSC}, {f2u(SCALE):#x}")
    MK = 4
    A("v_and_b32 v8, 1, v2")
    A("v_lshlrev_b32 v8, 4, v8")
    A("v_mov_b32 v9, 0xffff")
    A("v_lshlrev_b32 v8, v8, v9")
    A("v_lshrrev_b32 v9, 1, v2")
    A(f"s_cmp_lt_u32 s{sWAVE}, {NA}")
    A("s_cbranch_scc1 L_aux")

    vKO, vVO = 18, 19
    vM, vL, vNM, vAL, vTM, vT0, vT1 = 10, 11, 12, 13, 14, 15, 16
    vACC = 20
    vS = 24
    vP = 28
    vQ = 32
    vS2 = 40
    vA = 48
    RING = 64
    def kreg(slot, i): return RING + slot * 32 + i * 4
    def vreg(slot, i): return RING + slot * 32 + 16 + i * 4
    A.c("---- streaming wave ----")
    A(f"s_sub_u32 s{sWAVE}, s{sWAVE}, {NA}")
    A(f"v_lshlrev_b32 v{vKO}, 8, v9")
    A(f"v_and_b32 v{vVO}, 1, v2")
    A(f"v_lshl_add_u32 v{vKO}, v{vVO}, 6, v{vKO}")
    A(f"v_lshl_add_u32 v{vKO}, v3, 4, v{vKO}")
    A(f"v_lshlrev_b32 v{vVO}, 9, v3")
    A(f"v_lshl_add_u32 v{vVO}, v2, 4, v{vVO}")
    koff = [0, 128, 2048, 2176]
    voff = [0, 256, 2048, 2304]
    RB = 2 << 20
    STEP = NS * 4096
    A(f"s_cmp_ge_u32 s{sSLOT}, 22")
    A(f"s_cselect_b32 s{sT1}, {shift}, 0")
    A(f"s_add_u32 s{sT1}, s{sT1}, 256")
    A(f"s_sub_u32 s{sT2}, 512, s{sT1}")
    A(f"s_cmp_eq_u32 s{sSPLIT}, 0")
    A(f"s_cselect_b32 s{sCNT}, s{sT1}, s{sT2}")
    A(f"s_cselect_b32 s{sOFF}, 0, s{sT1}")
    A(f"s_add_u32 s{sOFF}, s{sOFF}, s{sWAVE}")
    A(f"s_lshl_b32 s{sOFF}, s{sOFF}, 12")
    A(f"s_sub_u32 s{sCNT}, s{sCNT}, s{sWAVE}")
    A(f"s_add_u32 s{sCNT}, s{sCNT}, {NS-1}")
    A(f"s_lshr_b32 s{sCNT}, s{sCNT}, {NS.bit_length()-1}")
    A(f"s_lshl_b32 s{sT0}, s{sB}, 5")
    A(f"s_add_u32 s{sT0}, s{sT0}, s{sH}")
    A(f"s_lshl_b32 s{sT0}, s{sT0}, 21")
    A("s_waitcnt lgkmcnt(0)")
    srd(KS, pK, f"s{sT0}", RB)
    srd(VS, pV, f"s{sT0}", RB)
    def issueK(slot, w=None):
        for i in range(4):
            r = kreg(slot, i)
            if w is not None and i % fine == 0: A(f"s_waitcnt vmcnt({w - fine})")
            A(f"buffer_load_dwordx4 v[{r}:{r+3}], v{vKO}, s[{KS}:{KS+3}], s{sOFF} offen offset:{koff[i]} {kvflags}")
    def issueV(slot, w=None):
        for i in range(4):
            r = vreg(slot, i)
            if w is not None and i % fine == 0: A(f"s_waitcnt vmcnt({w - fine})")
            A(f"buffer_load_dwordx4 v[{r}:{r+3}], v{vVO}, s[{VS}:{VS+3}], s{sOFF} offen offset:{voff[i]} {kvflags}")
        A(f"s_add_u32 s{sOFF}, s{sOFF}, {STEP}")
    if bar0:
        A("s_barrier")
    def tlb_prefetch():
        n = (1 << 20) // tlbpf
        per = max(1, n // (NS * 64))
        A(f"s_lshl_b32 s{sT1}, s{sSPLIT}, 20")
        A(f"v_lshl_add_u32 v{vT0}, s{sWAVE}, 6, v1")
        A(f"v_cmp_gt_u32 vcc, {n}, v{vT0}")
        A(f"v_mul_u32_u24 v{vT0}, {tlbpf}, v{vT0}")
        A(f"v_mov_b32 v{vT1}, 0x7ffffff0")
        A(f"v_cndmask_b32 v{vT0}, v{vT1}, v{vT0}, vcc")
        for i in range(per):
            A(f"buffer_load_dword v{vP}, v{vT0}, s[{KS}:{KS+3}], s{sT1} offen {tlbflags}")
            A(f"buffer_load_dword v{vP+1}, v{vT0}, s[{VS}:{VS+3}], s{sT1} offen {tlbflags}")
            A(f"s_add_u32 s{sT1}, s{sT1}, {NS*64*tlbpf}")
    for s in range(DEPTH):
        issueK(s, pcap if pcap else None)
        issueV(s, pcap if pcap else None)
        if s == 0 and tlbpf:
            tlb_prefetch()
    for rr in range(4):
        A(f"v_cmp_eq_u32 vcc, {rr+4}, v9")
        A("s_nop 1")
        A(f"v_cndmask_b32 v{MK+rr}, 0, v8, vcc")
    A(f"v_mov_b32 v{vM}, 0xff7fffff")
    A(f"v_mov_b32 v{vL}, 0")
    for i in range(4):
        A(f"v_mov_b32 v{vACC+i}, 0")
    A(f"v_lshlrev_b32 v{vT0}, 3, v1")
    A(f"s_lshl_b32 s{sT0}, s{sWAVE}, 8")
    A(f"s_add_u32 s{sT0}, s{sT0}, {QB}")
    A(f"v_lshl_add_u32 v{vT1}, v1, 2, s{sT0}")
    A(f"v_lshl_add_u32 v{vTM}, v3, 4, s{sT0}")
    A(f"v_lshrrev_b32 v{vAL}, 3, v2")
    A(f"v_lshl_add_u32 v{vTM}, v{vAL}, 6, v{vTM}")
    A("s_barrier")
    for a in range(NA):
        A(f"ds_read_b64 v[{vA+2*a}:{vA+2*a+1}], v{vT0} offset:{QP + a*512}")
    A("s_waitcnt lgkmcnt(0)")
    for a in range(1, NA):
        A(f"v_add_f32 v{vA}, v{vA}, v{vA+2*a}")
        A(f"v_add_f32 v{vA+1}, v{vA+1}, v{vA+2*a+1}")
    A(f"v_cvt_pk_bf16_f32 v{vA}, v{vA}, v{vA+1}")
    A(f"ds_write_b32 v{vT1}, v{vA}")
    A("s_waitcnt lgkmcnt(0)")
    for j in range(2):
        A(f"ds_read_b128 v[{vQ+4*j}:{vQ+4*j+3}], v{vTM} offset:{128*j}")
    A("s_waitcnt lgkmcnt(0)")
    A.label("L_loop")
    W = 8 * DEPTH - 4
    for s in range(DEPTH):
        A(f"s_cmp_le_u32 s{sCNT}, {DEPTH}")
        A(f"s_cselect_b32 s{KS+2}, 0, {RB}")
        A(f"s_cselect_b32 s{VS+2}, 0, {RB}")
        A(f"s_waitcnt vmcnt({W})")
        for (j, d, qj) in ((0, vS2, 0), (2, vS2 + 4, 0), (1, vS2, 1), (3, vS2 + 4, 1)):
            r = kreg(s, j)
            c = "0" if qj == 0 else f"v[{d}:{d+3}]"
            A(f"v_mfma_f32_16x16x32_bf16 v[{d}:{d+3}], v[{r}:{r+3}], v[{vQ+4*qj}:{vQ+4*qj+3}], {c}")
        if cap:
            A(f"s_cmp_le_u32 s{sCNT}, {max(DEPTH, endn)}")
            A(f"s_cbranch_scc1 L_ck{s}")
            if fine:
                issueK(s, cap)
                A(f"s_branch L_ck2{s}")
            else:
                A(f"s_waitcnt vmcnt({cap - 4})")
            A.label(f"L_ck{s}")
        issueK(s)
        A.label(f"L_ck2{s}")
        A("s_nop 3")
        for i in range(4):
            A(f"v_add_f32_dpp v{vS+i}, v{vS2+2*i}, v{vS2+2*i+1} row_ror:8 row_mask:0xf bank_mask:0xf")
        A(f"v_cvt_pk_bf16_f32 v{vT0}, v{vS}, v{vS+1}")
        A(f"v_cvt_pk_bf16_f32 v{vT1}, v{vS+2}, v{vS+3}")
        A(f"v_lshlrev_b32 v{vP}, 16, v{vT0}")
        A(f"v_and_b32 v{vP+1}, 0xffff0000, v{vT0}")
        A(f"v_lshlrev_b32 v{vP+2}, 16, v{vT1}")
        A(f"v_and_b32 v{vP+3}, 0xffff0000, v{vT1}")
        for i in range(4):
            A(f"v_mul_f32 v{vP+i}, s{sSC}, v{vP+i}")
        A(f"v_cvt_pk_bf16_f32 v{vT0}, v{vP}, v{vP+1}")
        A(f"v_cvt_pk_bf16_f32 v{vT1}, v{vP+2}, v{vP+3}")
        A(f"v_lshlrev_b32 v{vP}, 16, v{vT0}")
        A(f"v_and_b32 v{vP+1}, 0xffff0000, v{vT0}")
        A(f"v_lshlrev_b32 v{vP+2}, 16, v{vT1}")
        A(f"v_and_b32 v{vP+3}, 0xffff0000, v{vT1}")
        A(f"v_max3_f32 v{vTM}, v{vP}, v{vP+1}, v{vM}")
        A(f"v_max3_f32 v{vTM}, v{vP+2}, v{vP+3}, v{vTM}")
        A("s_nop 1")
        A(f"v_max_f32_dpp v{vTM}, v{vTM}, v{vTM} row_bcast:15 row_mask:0xa bank_mask:0xf")
        A("s_nop 1")
        A(f"v_max_f32_dpp v{vTM}, v{vTM}, v{vTM} row_bcast:31 row_mask:0xc bank_mask:0xf")
        A("s_nop 0")
        A(f"v_readlane_b32 s{sM}, v{vTM}, 63")
        A(f"v_mov_b32 v{vNM}, s{sL2E}")
        A("s_nop 0")
        A(f"v_mul_f32 v{vNM}, s{sM}, v{vNM}")
        for i in range(4):
            A(f"v_fma_f32 v{vP+i}, v{vP+i}, s{sL2E}, -v{vNM}")
        A(f"v_fma_f32 v{vAL}, v{vM}, s{sL2E}, -v{vNM}")
        for i in range(4):
            A(f"v_exp_f32 v{vP+i}, v{vP+i}")
        A(f"v_exp_f32 v{vAL}, v{vAL}")
        A(f"v_mov_b32 v{vM}, s{sM}")
        A(f"v_add_f32 v{vT0}, v{vP}, v{vP+1}")
        A(f"v_add_f32 v{vT1}, v{vP+2}, v{vP+3}")
        for i in range(4):
            A(f"v_cvt_pk_bf16_f32 v{vP+i}, v{vP+i}, v{vP+i}")
        A(f"v_add_f32 v{vT0}, v{vT0}, v{vT1}")
        A(f"v_fma_f32 v{vL}, v{vL}, v{vAL}, v{vT0}")
        for i in range(4):
            A(f"v_mul_f32 v{vACC+i}, v{vACC+i}, v{vAL}")
        for i in range(4):
            for rr in range(4):
                A(f"v_and_b32 v{vA+4*i+rr}, v{vP+i}, v{MK+rr}")
        A(f"s_waitcnt vmcnt({W})")
        A("s_nop 0")
        for i in range(4):
            r = vreg(s, i)
            A(f"v_mfma_f32_16x16x32_bf16 v[{vACC}:{vACC+3}], v[{vA+4*i}:{vA+4*i+3}], v[{r}:{r+3}], v[{vACC}:{vACC+3}]")
        if cap:
            A(f"s_cmp_le_u32 s{sCNT}, {max(DEPTH, endn)}")
            A(f"s_cbranch_scc1 L_cv{s}")
            if fine:
                issueV(s, cap)
                A(f"s_branch L_cv2{s}")
            else:
                A(f"s_waitcnt vmcnt({cap - 4})")
            A.label(f"L_cv{s}")
        issueV(s)
        A.label(f"L_cv2{s}")
        if tl:
            A("s_memrealtime s[92:93]")
            A(f"s_and_b32 m0, s{sCNT}, 63")
            A("s_waitcnt lgkmcnt(0)")
            A("v_writelane_b32 v17, s92, m0")
        A(f"s_sub_u32 s{sCNT}, s{sCNT}, 1")
        A(f"s_cmp_eq_u32 s{sCNT}, 0")
        if s < DEPTH - 1:
            A("s_cbranch_scc1 L_sdone")
        else:
            A("s_cbranch_scc0 L_loop")
    A.label("L_sdone")
    A(f"v_add_f32_dpp v{vL}, v{vL}, v{vL} row_bcast:15 row_mask:0xa bank_mask:0xf")
    A(f"s_lshl_b32 s{sT0}, s{sWAVE}, 9")
    A(f"s_add_u32 s{sT0}, s{sT0}, {OP - 32}")
    A(f"v_add_f32_dpp v{vL}, v{vL}, v{vL} row_bcast:31 row_mask:0xc bank_mask:0xf")
    A(f"v_lshlrev_b32 v{vT0}, 5, v2")
    A(f"v_lshl_add_u32 v{vT0}, v3, 4, v{vT0}")
    A(f"v_add_u32 v{vT0}, s{sT0}, v{vT0}")
    A(f"s_lshl_b32 s{sT1}, s{sWAVE}, 3")
    A(f"s_add_u32 s{sT1}, s{sT1}, {ML}")
    A(f"v_mov_b32 v{vT1}, s{sT1}")
    A("s_mov_b32 exec_lo, 0")
    A(f"ds_write_b128 v{vT0}, v[{vACC}:{vACC+3}]")
    A("s_mov_b32 exec_hi, 0x80000000")
    A(f"ds_write_b64 v{vT1}, v[{vM}:{vM+1}]")
    A("s_mov_b64 exec, -1")
    A("s_waitcnt lgkmcnt(0)")
    A("s_barrier")
    if tl:
        A(f"s_lshl_b32 s{sT0}, s2, 2")
        A(f"s_add_u32 s{sT0}, s{sT0}, s{sWAVE}")
        A(f"s_lshl_b32 s{sT0}, s{sT0}, 8")
        A(f"s_add_u32 s{sT0}, s{sT0}, 0x300000")
        A(f"v_lshl_add_u32 v16, v1, 2, s{sT0}")
        A(f"global_store_dword v16, v17, s[{pWS}:{pWS+1}]")
    A("s_endpgm")

    A.label("L_aux")
    A.c("---- aux wave ----")
    NL = 160 // NA
    RW = 640 // NA
    RT = RW // 4
    RO = 128 // NA
    OT = RO // 4
    vTO = 13
    vO1, vO2, vO3 = 10, 11, 12
    vX = 14
    vF = 20
    vC = 30
    vAA = 36
    vQA = 44
    vX2 = 48
    vXD = 56
    vW = 96
    if auxprio:
        A(f"s_setprio {auxprio}")
    A(f"s_mov_b32 s{sA}, s{sWAVE}")
    if noaux:
        A("s_waitcnt lgkmcnt(0)")
        if bar0: A("s_barrier")
        stamp(1)
        A("s_barrier")
        stamp(2); stamp(3)
        A("s_barrier")
        stamp(4); stamp(5); stamp(6)
        A("s_branch L_fin")
    A(f"v_lshlrev_b32 v{vO1}, 2, v1")
    A(f"v_mul_u32_u24 v{vO2}, {RT*8192}, v3")
    A(f"v_lshl_add_u32 v{vO2}, v2, 4, v{vO2}")
    A(f"s_mul_i32 s{sT0}, s{sA}, 1280")
    A(f"s_mul_i32 s{sT3}, s{sB}, 1280")
    A(f"s_lshl_b32 s{sT1}, s{sH}, 8")
    A(f"s_mul_i32 s{sT2}, s{sA}, {RW*8192}")
    A(f"s_add_u32 s{sT1}, s{sT1}, s{sT2}")
    A(f"s_sub_u32 s{sT2}, {640*8192}, s{sT1}")
    A("s_waitcnt lgkmcnt(0)")
    srd(XS, pX, None, 5120)
    for i in range(5):
        A(f"buffer_load_dword v{vX+i}, v{vO1}, s[{XS}:{XS+3}], s{sT3} offen offset:{256*i}")
    for i in range(5):
        A(f"buffer_load_dword v{vX2+i}, v{vO1}, s[{XS}:{XS+3}], s{sT0} offen offset:{256*i}")
    A(f"s_load_dword s{sTAG}, s[{pWS}:{pWS+1}], {WS_EP:#x}")
    srd(WQS, pWQ, f"s{sT1}", 0 if nowq else f"s{sT2}")
    A(f"s_mov_b32 s{sOFF}, 0")
    def wq_issue(t):
        r = vW + 4 * t
        A(f"buffer_load_dwordx4 v[{r}:{r+3}], v{vO2}, s[{WQS}:{WQS+3}], s{sOFF} offen {wqflags}")
        A(f"s_add_u32 s{sOFF}, s{sOFF}, 8192")
    NLQ = nowqn if nowqn else NL
    wqwin = min(wqwin, NLQ)
    for t in range(wqwin):
        wq_issue(t)
    if bar0:
        A("s_barrier")
    for rr in range(4):
        A(f"v_cmp_eq_u32 vcc, {rr}, v9")
        A("s_nop 1")
        A(f"v_cndmask_b32 v{MK+rr}, 0, v8, vcc")
    def wave_sum(v, s):
        for sh in (1, 2, 4, 8):
            A("s_nop 1")
            A(f"v_add_f32_dpp v{v}, v{v}, v{v} row_shr:{sh} row_mask:0xf bank_mask:0xf bound_ctrl:0")
        A("s_nop 1")
        A(f"v_add_f32_dpp v{v}, v{v}, v{v} row_bcast:15 row_mask:0xa bank_mask:0xf")
        A("s_nop 1")
        A(f"v_add_f32_dpp v{v}, v{v}, v{v} row_bcast:31 row_mask:0xc bank_mask:0xf")
        A("s_nop 0")
        A(f"v_readlane_b32 s{s}, v{v}, 63")
        A("s_nop 1")
    def layernorm(vX, dup):
        for i in range(5):
            A(f"v_lshlrev_b32 v{vF+2*i}, 16, v{vX+i}")
            A(f"v_and_b32 v{vF+2*i+1}, 0xffff0000, v{vX+i}")
        A(f"v_add_f32 v{vC+4}, v{vF}, v{vF+1}")
        for i in range(2, 10):
            A(f"v_add_f32 v{vC+4}, v{vC+4}, v{vF+i}")
        wave_sum(vC + 4, sT0)
        A(f"v_mov_b32 v{vC+5}, {f2u(1.0/640):#x}")
        A(f"v_mul_f32 v{vC+4}, s{sT0}, v{vC+5}")
        A(f"v_sub_f32 v{vC}, v{vF}, v{vC+4}")
        A(f"v_mul_f32 v{vC+1}, v{vC}, v{vC}")
        for i in range(1, 10):
            A(f"v_sub_f32 v{vC}, v{vF+i}, v{vC+4}")
            A(f"v_fmac_f32 v{vC+1}, v{vC}, v{vC}")
        wave_sum(vC + 1, sT0)
        A(f"v_mul_f32 v{vC+1}, s{sT0}, v{vC+5}")
        A(f"v_cvt_pk_bf16_f32 v{vC}, v{vC+4}, v{vC+1}")
        A(f"v_lshlrev_b32 v{vC+4}, 16, v{vC}")
        A(f"v_and_b32 v{vC+1}, 0xffff0000, v{vC}")
        A(f"v_add_f32 v{vC+1}, {f2u(1e-5):#x}, v{vC+1}")
        A(f"v_cvt_pk_bf16_f32 v{vC+1}, v{vC+1}, v{vC+1}")
        A(f"v_and_b32 v{vC+1}, 0xffff0000, v{vC+1}")
        A(f"v_sqrt_f32 v{vC+1}, v{vC+1}")
        A("s_nop 0")
        A(f"v_cvt_pk_bf16_f32 v{vC+1}, v{vC+1}, v{vC+1}")
        A(f"v_and_b32 v{vC+1}, 0xffff0000, v{vC+1}")
        A(f"v_rcp_f32 v{vC+1}, v{vC+1}")
        for i in range(10):
            A(f"v_sub_f32 v{vF+i}, v{vF+i}, v{vC+4}")
        if dup:
            A(f"s_mul_i32 s{sT2}, s{sA}, 2560")
            A(f"v_lshl_add_u32 v{vC+3}, v1, 3, s{sT2}")
        else:
            A(f"s_mul_i32 s{sT1}, s{sA}, 1280")
            A(f"v_add_u32 v{vC+2}, s{sT1}, v{vO1}")
        for i in range(5):
            A(f"v_cvt_pk_bf16_f32 v{vX+i}, v{vF+2*i}, v{vF+2*i+1}")
            A(f"v_lshlrev_b32 v{vF+2*i}, 16, v{vX+i}")
            A(f"v_and_b32 v{vF+2*i+1}, 0xffff0000, v{vX+i}")
            A(f"v_mul_f32 v{vF+2*i}, v{vF+2*i}, v{vC+1}")
            A(f"v_mul_f32 v{vF+2*i+1}, v{vF+2*i+1}, v{vC+1}")
            if dup:
                A(f"v_cvt_pk_bf16_f32 v{vF+2*i}, v{vF+2*i}, v{vF+2*i}")
                A(f"v_cvt_pk_bf16_f32 v{vF+2*i+1}, v{vF+2*i+1}, v{vF+2*i+1}")
                A(f"ds_write_b64 v{vC+3}, v[{vF+2*i}:{vF+2*i+1}] offset:{XND + 512*i}")
            else:
                A(f"v_cvt_pk_bf16_f32 v{vX+i}, v{vF+2*i}, v{vF+2*i+1}")
                A(f"ds_write_b32 v{vC+2}, v{vX+i} offset:{XNB + 256*i}")
    A(f"s_waitcnt vmcnt({wqwin + 5})")
    layernorm(vX, True)
    stamp(1)
    A(f"s_mul_i32 s{sT1}, s{sA}, {RW*4}")
    A(f"s_add_u32 s{sT0}, s{sT2}, s{sT1}")
    A(f"v_mul_u32_u24 v{vX}, {RT*4}, v3")
    A(f"v_add_u32 v{vX}, s{sT0}, v{vX}")
    A("s_waitcnt lgkmcnt(0)")
    for i in range(RT // 4):
        A(f"ds_read_b128 v[{vXD+4*i}:{vXD+4*i+3}], v{vX} offset:{XND + 16*i}")
    A("s_waitcnt lgkmcnt(0)")
    for t in range(NLQ):
        aa = vAA + 4 * (t & 1)
        for rr in range(4):
            A(f"v_and_b32 v{aa+rr}, v{vXD+t}, v{MK+rr}")
        issued = min(NLQ, wqwin + t)
        A(f"s_waitcnt vmcnt({issued - 1 - t})")
        if wqwin + t < NLQ:
            wq_issue(wqwin + t)
        else:
            A("s_nop 0")
        r = vW + 4 * t
        c = "0" if t == 0 else f"v[{vQA}:{vQA+3}]"
        A(f"v_mfma_f32_16x16x32_bf16 v[{vQA}:{vQA+3}], v[{aa}:{aa+3}], v[{r}:{r+3}], {c}")
    A(f"s_lshl_b32 s{sT0}, s{sA}, 9")
    A(f"s_add_u32 s{sT0}, s{sT0}, {QP}")
    A(f"v_lshlrev_b32 v{vC}, 5, v2")
    A(f"v_lshl_add_u32 v{vC}, v3, 4, v{vC}")
    A(f"v_add_u32 v{vC}, s{sT0}, v{vC}")
    A("s_nop 3")
    A("s_mov_b64 exec, 0xffffffff")
    A(f"ds_write_b128 v{vC}, v[{vQA}:{vQA+3}]")
    A("s_mov_b64 exec, -1")
    A(f"s_lshl_b32 s{sT0}, s{sA}, 2")
    A(f"v_mov_b32 v{vC+1}, s{sT0}")
    A(f"v_mov_b32 v{vC+2}, 0")
    A(f"ds_write_b32 v{vC+1}, v{vC+2} offset:{FLG}")
    A("s_waitcnt lgkmcnt(0)")
    A("s_barrier")
    stamp(2)
    layernorm(vX2, False)
    srd(WSS, pWS, None, WS_SIZE)
    A(f"s_mul_i32 s{sTAG}, s{sTAG}, 0x9e3779b1")
    A(f"s_add_u32 s{sTAG}, s{sTAG}, 0x7f4a7c15")
    A(f"s_lshl_b32 s{sHS}, s{sH}, 1")
    A(f"s_add_u32 s{sHS}, s{sHS}, s{sSPLIT}")
    A(f"s_lshl_b32 s{sT0}, s{sB}, 6")
    A(f"s_add_u32 s{sT0}, s{sT0}, s{sHS}")
    A(f"s_lshl_b32 s{sT1}, s{sT0}, 6")
    A(f"v_lshrrev_b32 v{vTO}, 2, v0")
    A(f"v_lshlrev_b32 v{vTO}, 14, v{vTO}")
    A(f"v_and_b32 v{vC}, 3, v0")
    A(f"v_lshl_add_u32 v{vTO}, v{vC}, 4, v{vTO}")
    A(f"v_add_u32 v{vTO}, s{sT1}, v{vTO}")
    A(f"s_lshr_b32 s{sT1}, s{sT0}, 1")
    A(f"s_lshl_b32 s{sT1}, s{sT1}, 7")
    A(f"s_lshl_b32 s{sT2}, s{sSPLIT}, 3")
    A(f"s_add_u32 s{sT1}, s{sT1}, s{sT2}")
    A(f"s_add_u32 s{sT1}, s{sT1}, {WS_ML}")
    A(f"v_mov_b32 v{vO3}, s{sT1}")
    for i in range(4):
        A(f"v_mov_b32 v{vC+i}, -1")
    A(f"v_cmp_gt_u32 vcc, 160, v0")
    A(f"s_and_saveexec_b64 s[{sEX}:{sEX+1}], vcc")
    A("s_cbranch_execz L_noclr")
    A(f"buffer_store_dwordx4 v[{vC}:{vC+3}], v{vTO}, s[{WSS}:{WSS+3}], 0 offen sc1")
    A.label("L_noclr")
    A(f"s_mov_b64 exec, s[{sEX}:{sEX+1}]")
    A(f"v_cmp_eq_u32 vcc, 192, v0")
    A(f"s_and_saveexec_b64 s[{sEX}:{sEX+1}], vcc")
    A("s_cbranch_execz L_noclr2")
    A(f"buffer_store_dwordx2 v[{vC}:{vC+1}], v{vO3}, s[{WSS}:{WSS+3}], 0 offen sc1")
    A.label("L_noclr2")
    A(f"s_mov_b64 exec, s[{sEX}:{sEX+1}]")
    A("s_waitcnt vmcnt(0) lgkmcnt(0)")
    A(f"s_lshl_b32 s{sT0}, s{sA}, 2")
    A(f"v_mov_b32 v{vC}, s{sT0}")
    A(f"v_mov_b32 v{vC+1}, 1")
    A(f"ds_write_b32 v{vC}, v{vC+1} offset:{FLG}")
    A(f"s_sub_u32 s{sT0}, s{sSLOT}, 22")
    A(f"s_lshr_b32 s{sT1}, s{sT0}, 1")
    A(f"s_add_u32 s{sT2}, s{sT1}, 22")
    A(f"s_cmp_ge_u32 s{sSLOT}, 22")
    A(f"s_cselect_b32 s{sT2}, s{sT2}, s{sSLOT}")
    A(f"s_cselect_b32 s{sT3}, s{sSPLIT}, 0")
    A(f"s_mul_i32 s{sROLE}, s{sX8}, 27")
    A(f"s_add_u32 s{sROLE}, s{sROLE}, s{sT2}")
    A(f"s_mul_i32 s{sT0}, s{sX8}, 5")
    A(f"s_add_u32 s{sT0}, s{sT0}, s{sT1}")
    A(f"s_add_u32 s{sT0}, s{sT0}, 216")
    A(f"s_cmp_lg_u32 s{sT3}, 0")
    A(f"s_cselect_b32 s{sROLE}, s{sT0}, s{sROLE}")
    def wo_load():
        A(f"s_mul_i32 s{sT0}, s{sH}, {128*1280}")
        A(f"s_mul_i32 s{sT1}, s{sA}, {RO*1280}")
        A(f"s_add_u32 s{sT0}, s{sT0}, s{sT1}")
        srd(WOS, pWO, f"s{sT0}", RO * 1280)
        A(f"v_mul_u32_u24 v{vO2}, {OT*1280}, v3")
        A(f"v_lshl_add_u32 v{vO2}, v2, 4, v{vO2}")
        A(f"s_mov_b32 s{sOFF}, 0")
        for t in range(OT):
            for seg in range(5):
                r = vW + 4 * (t * 5 + seg)
                if not nowo:
                    A(f"buffer_load_dwordx4 v[{r}:{r+3}], v{vO2}, s[{WOS}:{WOS+3}], s{sOFF} offen offset:{256*seg} {woflags}")
                    if wowin < NL:
                        A(f"s_waitcnt vmcnt({wowin - 1})")
            A(f"s_add_u32 s{sOFF}, s{sOFF}, 1280")
    if not ffnfirst:
        wo_load()
    A(f"s_cmp_lg_u32 s{sA}, 0")
    A("s_cbranch_scc1 L_wait3")
    if nosig:
        A("s_branch L_wait3")
    vTR, vAO = 14, 15
    vFA, vFB, vFD = 20, 24, 28
    D4 = [vFD + i for i in range(4)]
    def round_bf16(regs):
        for v in regs:
            A(f"v_cvt_pk_bf16_f32 v{v}, v{v}, v{v}")
        for v in regs:
            A(f"v_and_b32 v{v}, 0xffff0000, v{v}")
    A(f"v_mov_b32 v{vC+4}, 0")
    A.label("L_flg")
    A(f"ds_read_b128 v[{vFA}:{vFA+3}], v{vC+4} offset:{FLG}")
    A("s_waitcnt lgkmcnt(0)")
    A(f"v_add3_u32 v{vFA}, v{vFA}, v{vFA+1}, v{vFA+2}")
    A(f"v_add_u32 v{vFA}, v{vFA}, v{vFA+3}")
    A(f"v_cmp_ne_u32 vcc, 4, v{vFA}")
    A("s_nop 1")
    A("s_cbranch_vccnz L_flg")
    A(f"s_lshl_b32 s{sT3}, s{sROLE}, 7")
    A(f"s_add_u32 s{sT3}, s{sT3}, {WS_H}")
    A(f"s_cmp_ge_u32 s{sROLE}, 216")
    A("s_cbranch_scc1 L_f2")
    A.c("F1: 8 columns of gate/up for all 4 batches")
    A(f"s_lshl_b32 s{sT0}, s{sROLE}, 4")
    srd(F0S, pWG, None, 640 * 3456)
    srd(F1S, pWU, None, 640 * 3456)
    A(f"v_mul_u32_u24 v{vC}, 3456, v1")
    A(f"v_add_u32 v{vC}, s{sT0}, v{vC}")
    for mat, S in enumerate((F0S, F1S)):
        A(f"s_mov_b32 s{sOFF}, 0")
        for i in range(10):
            A(f"s_mov_b32 m0, {WT + mat*10240 + i*1024}")
            A("s_nop 0")
            if not noffn:
                A(f"buffer_load_dwordx4 v{vC}, s[{S}:{S+3}], s{sOFF} offen {ffnflags} lds")
                if f1win < 20:
                    A(f"s_waitcnt vmcnt({f1win - 1})")
            A(f"s_add_u32 s{sOFF}, s{sOFF}, {64*3456}")
    A(f"v_lshrrev_b32 v{vC+1}, 2, v2")
    A(f"v_lshl_add_u32 v{vC+1}, v3, 3, v{vC+1}")
    A(f"v_lshlrev_b32 v{vTR}, 4, v{vC+1}")
    A(f"v_and_b32 v{vC+1}, 1, v1")
    A(f"v_lshl_add_u32 v{vTR}, v{vC+1}, 3, v{vTR}")
    A(f"v_bfe_u32 v{vC+1}, v1, 1, 1")
    A(f"v_mul_u32_u24 v{vC+1}, 10240, v{vC+1}")
    A(f"v_add_u32 v{vTR}, v{vTR}, v{vC+1}")
    A(f"v_add_u32 v{vTR}, {WT}, v{vTR}")
    A(f"v_and_b32 v{vC+1}, 3, v1")
    A(f"v_mul_u32_u24 v{vAO}, 1280, v{vC+1}")
    A(f"v_lshl_add_u32 v{vAO}, v3, 4, v{vAO}")
    A(f"v_add_u32 v{vAO}, {XNB}, v{vAO}")
    for i in range(4):
        A(f"v_mov_b32 v{vFD+i}, 0")
    A(f"s_mov_b32 s{sCNT}, 20")
    A("s_waitcnt vmcnt(0)")
    A.label("L_f1_mm")
    A(f"ds_read_b128 v[{vFA}:{vFA+3}], v{vAO}")
    A(f"ds_read_b64_tr_b16 v[{vFB}:{vFB+1}], v{vTR}")
    A(f"ds_read_b64_tr_b16 v[{vFB+2}:{vFB+3}], v{vTR} offset:64")
    A(f"v_add_u32 v{vAO}, 64, v{vAO}")
    A(f"v_add_u32 v{vTR}, 512, v{vTR}")
    A("s_waitcnt lgkmcnt(0)")
    A(f"v_mfma_f32_16x16x32_bf16 v[{vFD}:{vFD+3}], v[{vFA}:{vFA+3}], v[{vFB}:{vFB+3}], v[{vFD}:{vFD+3}]")
    A(f"s_sub_u32 s{sCNT}, s{sCNT}, 1")
    A(f"s_cmp_lg_u32 s{sCNT}, 0")
    A("s_cbranch_scc1 L_f1_mm")
    A("s_nop 7")
    for i in range(1, 4):
        A(f"v_cmp_eq_u32 vcc, {i}, v3")
        A("s_nop 1")
        A(f"v_cndmask_b32 v{vFD}, v{vFD}, v{vFD+i}, vcc")
    round_bf16([vFD])
    K0 = 0.7978845608028654
    A(f"s_mov_b32 s{sT0}, {f2u(0.044715):#x}")
    A(f"s_mov_b32 s{sT1}, {f2u(-2.0 * K0 * L2E):#x}")
    A(f"v_mul_f32 v{vFA}, v{vFD}, v{vFD}")
    A(f"v_fma_f32 v{vFA}, v{vFA}, s{sT0}, 1.0")
    A(f"v_mul_f32 v{vFA}, v{vFA}, v{vFD}")
    A(f"v_mul_f32 v{vFA}, s{sT1}, v{vFA}")
    A(f"v_exp_f32 v{vFA}, v{vFA}")
    A("s_nop 0")
    A(f"v_add_f32 v{vFA}, 1.0, v{vFA}")
    A(f"v_rcp_f32 v{vFA}, v{vFA}")
    A("s_nop 0")
    A(f"v_mul_f32 v{vFA}, v{vFA}, v{vFD}")
    round_bf16([vFA])
    A("s_nop 1")
    A(f"v_mul_f32_dpp v{vFA}, v{vFD}, v{vFA} row_ror:8 row_mask:0xf bank_mask:0xf")
    A("s_nop 1")
    A(f"v_mov_b32_dpp v{vFB}, v{vFA} quad_perm:[1,0,3,2] row_mask:0xf bank_mask:0xf")
    A(f"v_cvt_pk_bf16_f32 v{vFA}, v{vFA}, v{vFB}")
    A(f"v_mov_b32 v{vFA+1}, s{sTAG}")
    A(f"v_lshlrev_b32 v{vC}, 5, v3")
    A(f"v_lshl_add_u32 v{vC}, v2, 2, v{vC}")
    A("s_mov_b32 exec_lo, 0x00550055")
    A("s_mov_b32 exec_hi, 0x00550055")
    A(f"buffer_store_dwordx2 v[{vFA}:{vFA+1}], v{vC}, s[{WSS}:{WSS+3}], s{sT3} offen sc1")
    A("s_mov_b64 exec, -1")
    A("s_branch L_wait3")

    A.label("L_f2")
    A.c("F2: 16 output columns of the down projection for all 4 batches")
    A(f"v_mov_b32 v{vFA}, 0")
    A(f"v_mov_b32 v{vFA+1}, s{sTAG}")
    A(f"v_lshlrev_b32 v{vC}, 3, v1")
    A("s_mov_b64 exec, 0xffff")
    A(f"buffer_store_dwordx2 v[{vFA}:{vFA+1}], v{vC}, s[{WSS}:{WSS+3}], s{sT3} offen sc1")
    A("s_mov_b64 exec, -1")
    A(f"s_sub_u32 s{sT0}, s{sROLE}, 216")
    A(f"s_lshl_b32 s{sT0}, s{sT0}, 5")
    srd(F0S, pWD, None, 1728 * 1280)
    A(f"v_lshrrev_b32 v{vC+2}, 1, v1")
    A(f"v_mul_u32_u24 v{vC+2}, 1280, v{vC+2}")
    A(f"v_and_b32 v{vC+3}, 1, v1")
    A(f"v_lshl_add_u32 v{vC+2}, v{vC+3}, 4, v{vC+2}")
    A(f"v_add_u32 v{vC+2}, s{sT0}, v{vC+2}")
    A(f"s_mov_b32 s{sOFF}, 0")
    A(f"s_mov_b32 s{sT1}, {WT}")
    A(f"s_mov_b32 s{sCNT}, 54")
    A.label("L_f2_ld")
    A(f"s_mov_b32 m0, s{sT1}")
    A(f"s_add_u32 s{sT1}, s{sT1}, 1024")
    if not noffn:
        A(f"buffer_load_dwordx4 v{vC+2}, s[{F0S}:{F0S+3}], s{sOFF} offen {ffnflags} lds")
    A(f"s_add_u32 s{sOFF}, s{sOFF}, {32*1280}")
    A(f"s_waitcnt vmcnt({f2win - 1})")
    A(f"s_sub_u32 s{sCNT}, s{sCNT}, 1")
    A(f"s_cmp_lg_u32 s{sCNT}, 0")
    A("s_cbranch_scc1 L_f2_ld")
    vH = 36
    A(f"v_lshlrev_b32 v{vC}, 4, v1")
    A(f"v_bfe_u32 v{vC+1}, v1, 1, 2")
    A(f"v_mul_u32_u24 v{vC+1}, 3456, v{vC+1}")
    A(f"v_lshrrev_b32 v{vC+2}, 3, v1")
    A(f"v_lshl_add_u32 v{vC+1}, v{vC+2}, 4, v{vC+1}")
    A(f"v_and_b32 v{vC+2}, 1, v1")
    A(f"v_lshl_add_u32 v{vC+1}, v{vC+2}, 3, v{vC+1}")
    for rnd in range(4):
        A(f"s_branch L_g{rnd}")
        A.label(f"L_gr{rnd}")
        A(f"s_sleep {gsleep}")
        A.label(f"L_g{rnd}")
        A(f"s_mov_b32 s{sOFF}, {WS_H + rnd*8192}")
        for i in range(8):
            if i == 4:
                A(f"s_add_u32 s{sOFF}, s{sOFF}, 4096")
            A(f"buffer_load_dwordx4 v[{vH+4*i}:{vH+4*i+3}], v{vC}, s[{WSS}:{WSS+3}], s{sOFF} offen offset:{1024*(i&3)} sc1")
        A("s_waitcnt vmcnt(0)")
        A(f"v_mov_b32 v{vC+2}, 0")
        for i in range(8):
            A(f"v_xor_b32 v{vH+4*i+1}, s{sTAG}, v{vH+4*i+1}")
            A(f"v_xor_b32 v{vH+4*i+3}, s{sTAG}, v{vH+4*i+3}")
            A(f"v_or3_b32 v{vC+2}, v{vC+2}, v{vH+4*i+1}, v{vH+4*i+3}")
        A(f"v_cmp_ne_u32 vcc, 0, v{vC+2}")
        A("s_nop 1")
        A(f"s_cbranch_vccnz L_gr{rnd}")
        for i in range(8):
            n = rnd * 8 + i
            if n < 27:
                A(f"v_mov_b32 v{vH+4*i+1}, v{vH+4*i+2}")
                A(f"ds_write_b64 v{vC+1}, v[{vH+4*i}:{vH+4*i+1}] offset:{HB + 128*n}")
    A(f"s_cmp_lg_u32 s{sROLE}, 216")
    A("s_cbranch_scc1 L_noep")
    A(f"v_mov_b32 v{vC+2}, {WS_EP:#x}")
    A(f"v_mov_b32 v{vC+3}, s{sTAG}")
    A("s_mov_b64 exec, 1")
    A(f"buffer_store_dword v{vC+3}, v{vC+2}, s[{WSS}:{WSS+3}], 0 offen sc1")
    A("s_mov_b64 exec, -1")
    A.label("L_noep")
    A(f"v_lshrrev_b32 v{vC+4}, 2, v2")
    A(f"v_lshl_add_u32 v{vC+4}, v3, 3, v{vC+4}")
    A(f"v_lshlrev_b32 v{vTR}, 5, v{vC+4}")
    A(f"v_and_b32 v{vC+4}, 3, v1")
    A(f"v_lshl_add_u32 v{vTR}, v{vC+4}, 3, v{vTR}")
    A(f"v_add_u32 v{vTR}, {WT}, v{vTR}")
    A(f"v_mul_u32_u24 v{vAO}, 3456, v{vC+4}")
    A(f"v_lshl_add_u32 v{vAO}, v3, 4, v{vAO}")
    A(f"v_add_u32 v{vAO}, {HB}, v{vAO}")
    A("s_waitcnt lgkmcnt(0)")
    for i in range(4):
        A(f"v_mov_b32 v{vFD+i}, 0")
    A(f"s_mov_b32 s{sCNT}, 54")
    A.label("L_f2_mm")
    A(f"ds_read_b128 v[{vFA}:{vFA+3}], v{vAO}")
    A(f"ds_read_b64_tr_b16 v[{vFB}:{vFB+1}], v{vTR}")
    A(f"ds_read_b64_tr_b16 v[{vFB+2}:{vFB+3}], v{vTR} offset:128")
    A(f"v_add_u32 v{vAO}, 64, v{vAO}")
    A(f"v_add_u32 v{vTR}, 1024, v{vTR}")
    A("s_waitcnt lgkmcnt(0)")
    A(f"v_mfma_f32_16x16x32_bf16 v[{vFD}:{vFD+3}], v[{vFA}:{vFA+3}], v[{vFB}:{vFB+3}], v[{vFD}:{vFD+3}]")
    A(f"s_sub_u32 s{sCNT}, s{sCNT}, 1")
    A(f"s_cmp_lg_u32 s{sCNT}, 0")
    A("s_cbranch_scc1 L_f2_mm")
    A("s_nop 7")
    for i in range(1, 4):
        A(f"v_cmp_eq_u32 vcc, {i}, v3")
        A("s_nop 1")
        A(f"v_cndmask_b32 v{vFD}, v{vFD}, v{vFD+i}, vcc")
    round_bf16([vFD])
    A(f"s_mov_b32 s{sT1}, {f2u(-L2E):#x}")
    A(f"v_mul_f32 v{vFA}, s{sT1}, v{vFD}")
    A(f"v_exp_f32 v{vFA}, v{vFA}")
    A("s_nop 0")
    A(f"v_add_f32 v{vFA}, 1.0, v{vFA}")
    A(f"v_rcp_f32 v{vFA}, v{vFA}")
    A("s_nop 0")
    A(f"v_mul_f32 v{vFA}, v{vFA}, v{vFD}")
    round_bf16([vFA])
    A(f"ds_write_b32 v{vO1}, v{vFA} offset:{GB}")
    A("s_waitcnt lgkmcnt(0)")

    A.label("L_wait3")
    if ffnfirst:
        wo_load()
    A("s_waitcnt vmcnt(0)")
    stamp(3)
    A("s_barrier")
    stamp(4)
    if stamps: A("s_waitcnt lgkmcnt(0)")
    vML = 14
    vE = 30
    vOV = 64
    vOS = 88
    A(f"v_mov_b32 v{vE}, 0")
    for w in range(0, NS, 2):
        A(f"ds_read_b128 v[{vML+2*w}:{vML+2*w+3}], v{vE} offset:{ML + 8*w}")
    A(f"s_mul_i32 s{sT0}, s{sA}, {RO*4}")
    A(f"v_mul_u32_u24 v{vE+1}, {OT*4}, v3")
    A(f"v_add_u32 v{vE+1}, s{sT0}, v{vE+1}")
    nset = 24 // OT
    def oread(w):
        base = vOV + (w % nset) * OT
        for i in range(OT // 4):
            A(f"ds_read_b128 v[{base+4*i}:{base+4*i+3}], v{vE+1} offset:{OP + 512*w + 16*i}")
    npre = min(NS, nset)
    for w in range(npre):
        oread(w)
    A(f"s_waitcnt lgkmcnt({npre * OT // 4})")
    A(f"v_max_f32 v{vE+2}, v{vML}, v{vML+2}")
    for w in range(2, NS):
        A(f"v_max_f32 v{vE+2}, v{vE+2}, v{vML+2*w}")
    for w in range(NS):
        A(f"v_sub_f32 v{vML+2*w}, v{vML+2*w}, v{vE+2}")
    for w in range(NS):
        A(f"v_mul_f32 v{vML+2*w}, s{sL2E}, v{vML+2*w}")
    for w in range(NS):
        A(f"v_exp_f32 v{vML+2*w}, v{vML+2*w}")
    A("s_nop 0")
    A(f"v_mul_f32 v{vE+3}, v{vML}, v{vML+1}")
    for w in range(1, NS):
        A(f"v_fmac_f32 v{vE+3}, v{vML+2*w}, v{vML+2*w+1}")
    for w in range(NS):
        left = min(NS - 1 - w, npre - 1)
        A(f"s_waitcnt lgkmcnt({left * OT // 4})")
        base = vOV + (w % nset) * OT
        for t in range(OT):
            if w == 0:
                A(f"v_mul_f32 v{vOS+t}, v{base+t}, v{vML}")
            else:
                A(f"v_fmac_f32 v{vOS+t}, v{base+t}, v{vML+2*w}")
        if w + npre < NS:
            oread(w + npre)
    for t in range(OT):
        A(f"v_cvt_pk_bf16_f32 v{vOS+t}, v{vOS+t}, v{vOS+t}")
    vTA = 44
    for t in range(OT):
        aa = vAA + 4 * (t & 1)
        for rr in range(4):
            A(f"v_and_b32 v{aa+rr}, v{vOS+t}, v{MK+rr}")
        A("s_nop 1")
        for seg in range(5):
            r = vW + 4 * (t * 5 + seg)
            d = vTA + 4 * seg
            c = "0" if t == 0 else f"v[{d}:{d+3}]"
            A(f"v_mfma_f32_16x16x32_bf16 v[{d}:{d+3}], v[{aa}:{aa+3}], v[{r}:{r+3}], {c}")
    A(f"s_mul_i32 s{sT0}, s{sA}, 2560")
    A(f"v_lshlrev_b32 v{vE}, 5, v2")
    A(f"v_lshl_add_u32 v{vE}, v3, 4, v{vE}")
    A(f"v_add_u32 v{vE}, s{sT0}, v{vE}")
    A(f"v_lshlrev_b32 v{vE+1}, 4, v0")
    A("s_nop 3")
    A("s_mov_b64 exec, 0xffffffff")
    for seg in range(5):
        d = vTA + 4 * seg
        A(f"ds_write_b128 v{vE}, v[{d}:{d+3}] offset:{TP + 512*seg}")
    A("s_mov_b64 exec, -1")
    A("s_waitcnt lgkmcnt(0)")
    A("s_barrier")
    stamp(5)
    if stamps: A("s_waitcnt lgkmcnt(0)")
    A(f"v_cmp_gt_u32 vcc, 160, v0")
    A(f"s_and_saveexec_b64 s[{sEX}:{sEX+1}], vcc")
    A("s_cbranch_execz L_nopub")
    for a in range(NA):
        A(f"ds_read_b128 v[{64+4*a}:{64+4*a+3}], v{vE+1} offset:{TP + 2560*a}")
    for a in range(1, NA):
        A(f"s_waitcnt lgkmcnt({NA-1-a})")
        for i in range(4):
            A(f"v_add_f32 v{64+i}, v{64+i}, v{64+4*a+i}")
    for i in range(4):
        A(f"v_min_u32 v{64+i}, -2, v{64+i}")
    A(f"buffer_store_dwordx4 v[64:67], v{vTO}, s[{WSS}:{WSS+3}], 0 offen sc1")
    A.label("L_nopub")
    A(f"s_mov_b64 exec, s[{sEX}:{sEX+1}]")
    A(f"v_min_u32 v{vE+2}, -2, v{vE+2}")
    A(f"v_min_u32 v{vE+3}, -2, v{vE+3}")
    A(f"v_cmp_eq_u32 vcc, 192, v0")
    A(f"s_and_saveexec_b64 s[{sEX}:{sEX+1}], vcc")
    A("s_cbranch_execz L_nopub2")
    A(f"buffer_store_dwordx2 v[{vE+2}:{vE+3}], v{vO3}, s[{WSS}:{WSS+3}], 0 offen sc1")
    A.label("L_nopub2")
    A(f"s_mov_b64 exec, s[{sEX}:{sEX+1}]")
    stamp(6)
    if stamps: A("s_waitcnt lgkmcnt(0)")
    A(f"s_cmp_lt_u32 s{sROLE}, 216")
    A("s_cbranch_scc1 L_fin")
    if nofinal:
        A("s_branch L_fin")
    A(f"s_sub_u32 s{sT3}, s{sROLE}, 216")
    A(f"s_lshl_b32 s{sT0}, s{sT3}, 2")
    A(f"s_add_u32 s{sT0}, s{sT0}, s{sA}")
    A(f"s_lshl_b32 s{sT0}, s{sT0}, 12")
    A(f"v_lshlrev_b32 v14, 4, v1")
    A(f"s_lshl_b32 s{sT1}, s{sA}, 12")
    A(f"s_add_u32 s{sT1}, s{sT1}, {WS_ML}")
    A(f"v_lshrrev_b32 v15, 3, v1")
    A(f"v_lshlrev_b32 v15, 7, v15")
    A("v_and_b32 v16, 3, v1")
    A("v_lshlrev_b32 v16, 2, v16")
    A("v_and_b32 v17, 1, v3")
    A("v_lshl_add_u32 v16, v17, 1, v16")
    A("v_lshrrev_b32 v17, 1, v3")
    A("v_add_u32 v16, v16, v17")
    A(f"s_mul_i32 s{sT2}, s{sA}, 1280")
    A(f"s_lshl_b32 s{sOFF}, s{sT3}, 5")
    A(f"s_add_u32 s{sT2}, s{sT2}, s{sOFF}")
    A(f"v_lshl_add_u32 v17, v16, 1, s{sT2}")
    A(f"buffer_load_ushort v18, v17, s[{XS}:{XS+3}], 0 offen")
    A(f"s_lshl_b32 s{sOFF}, s{sA}, 6")
    A(f"v_lshl_add_u32 v19, v16, 2, s{sOFF}")
    A(f"ds_read_b32 v19, v19 offset:{GB}")
    srd(OUTS, pOUT, None, 5120)
    vT, vMLp = 96, 112
    A.label("L_poll")
    for n in range(4):
        A(f"buffer_load_dwordx4 v[{vT+4*n}:{vT+4*n+3}], v14, s[{WSS}:{WSS+3}], s{sT0} offen offset:{1024*n} sc1")
    for n in range(4):
        A(f"buffer_load_dwordx4 v[{vMLp+4*n}:{vMLp+4*n+3}], v15, s[{WSS}:{WSS+3}], s{sT1} offen offset:{1024*n} sc1")
    A("s_waitcnt vmcnt(0)")
    A(f"v_max3_u32 v20, v{vT}, v{vT+1}, v{vT+2}")
    A(f"v_max3_u32 v21, v{vT+3}, v{vT+4}, v{vT+5}")
    for i in range(6, 30, 4):
        A(f"v_max3_u32 v20, v20, v{vT+i}, v{vT+i+1}")
        A(f"v_max3_u32 v21, v21, v{vT+i+2}, v{vT+i+3}")
    A(f"v_max3_u32 v20, v20, v{vT+30}, v{vT+31}")
    A("v_max_u32 v20, v20, v21")
    A("v_cmp_eq_u32 vcc, -1, v20")
    A("s_nop 1")
    A("s_cbranch_vccnz L_poll")
    A("v_bfe_u32 v20, v1, 2, 1")
    A("v_cmp_eq_u32 vcc, 1, v20")
    for n in range(4):
        m0, l0, m1, l1 = [vMLp + 4 * n + i for i in range(4)]
        A(f"v_max_f32 v21, v{m0}, v{m1}")
        A(f"v_sub_f32 v{m0}, v{m0}, v21")
        A(f"v_sub_f32 v{m1}, v{m1}, v21")
        A(f"v_mul_f32 v{m0}, s{sL2E}, v{m0}")
        A(f"v_mul_f32 v{m1}, s{sL2E}, v{m1}")
        A(f"v_exp_f32 v{m0}, v{m0}")
        A(f"v_exp_f32 v{m1}, v{m1}")
    A("s_nop 0")
    for n in range(4):
        m0, l0, m1, l1 = [vMLp + 4 * n + i for i in range(4)]
        A(f"v_mul_f32 v{l0}, v{l0}, v{m0}")
        A(f"v_fmac_f32 v{l0}, v{l1}, v{m1}")
        A(f"v_rcp_f32 v{l0}, v{l0}")
        A(f"v_cndmask_b32 v{m0}, v{m0}, v{m1}, vcc")
    A("s_nop 0")
    for n in range(4):
        m0, l0, m1, l1 = [vMLp + 4 * n + i for i in range(4)]
        A(f"v_mul_f32 v{m0}, v{m0}, v{l0}")
    for n in range(4):
        for i in range(4):
            if n == 0:
                A(f"v_mul_f32 v{24+i}, v{vT+i}, v{vMLp}")
            else:
                A(f"v_fmac_f32 v{24+i}, v{vT+4*n+i}, v{vMLp+4*n}")
    A("s_nop 1")
    A("v_permlane32_swap_b32 v24, v25")
    A("v_permlane32_swap_b32 v26, v27")
    A("v_add_f32 v24, v24, v25")
    A("v_add_f32 v26, v26, v27")
    A("s_nop 1")
    A("v_permlane16_swap_b32 v24, v26")
    A("v_add_f32 v24, v24, v26")
    A("s_nop 1")
    A("v_add_f32_dpp v24, v24, v24 row_ror:4 row_mask:0xf bank_mask:0xf")
    A("s_nop 1")
    A("v_add_f32_dpp v24, v24, v24 row_ror:8 row_mask:0xf bank_mask:0xf")
    A("s_waitcnt lgkmcnt(0)")
    round_bf16([24])
    A("v_mul_f32 v24, v24, v19")
    round_bf16([24])
    A("v_lshlrev_b32 v18, 16, v18")
    A("v_add_f32 v24, v24, v18")
    A("v_cvt_pk_bf16_f32 v24, v24, v24")
    A("s_mov_b32 exec_lo, 0x000f000f")
    A("s_mov_b32 exec_hi, 0x000f000f")
    A(f"buffer_store_short v24, v17, s[{OUTS}:{OUTS+3}], 0 offen")
    A("s_mov_b64 exec, -1")
    A.label("L_fin")
    if stamps:
        A("s_waitcnt vmcnt(0)")
        stamp(7)
        A(f"s_cmp_lg_u32 s{sA}, 0")
        A("s_cbranch_scc1 L_end")
        A("s_waitcnt lgkmcnt(0)")
        for i in range(NSTAMP):
            A(f"v_mov_b32 v{20+i}, s{sST+2*i}")
        if dbgst:
            A("s_cmp_eq_u32 s2, 0")
            A("s_cbranch_scc1 L_dbgw")
            A("s_cmp_lg_u32 s2, 255")
            A("s_cbranch_scc1 L_end")
            A.label("L_dbgw")
            for i in range(1, NSTAMP):
                A(f"v_sub_u32 v{20+i}, v{20+i}, v20")
            A("s_and_b32 s61, s2, 32")
            A("v_mov_b32 v30, s61")
            A("s_mov_b64 exec, 1")
            A(f"global_store_dwordx4 v30, v[20:23], s[{pDBG}:{pDBG+1}]")
            A(f"global_store_dwordx4 v30, v[24:27], s[{pDBG}:{pDBG+1}] offset:16")
            A("s_endpgm")
        A(f"s_getreg_b32 s{sT1}, hwreg(HW_REG_XCC_ID)")
        A(f"s_getreg_b32 s{sT2}, hwreg(HW_REG_HW_ID)")
        A(f"s_lshl_b32 s{sT0}, s2, 3")
        A(f"s_add_u32 s{sT0}, s{sT0}, {WS_STAMP + 0x10000}")
        A(f"v_mov_b32 v30, s{sT0}")
        A(f"v_mov_b32 v28, s{sT1}")
        A(f"v_mov_b32 v29, s{sT2}")
        A("s_mov_b64 exec, 1")
        A(f"global_store_dwordx2 v30, v[28:29], s[{pWS}:{pWS+1}]")
        A("s_mov_b64 exec, -1")
        A(f"s_lshl_b32 s{sT0}, s2, 5")
        A(f"s_add_u32 s{sT0}, s{sT0}, {WS_STAMP}")
        A(f"v_mov_b32 v30, s{sT0}")
        A("s_mov_b64 exec, 1")
        A(f"global_store_dwordx4 v30, v[20:23], s[{pWS}:{pWS+1}]")
        A(f"global_store_dwordx4 v30, v[24:27], s[{pWS}:{pWS+1}] offset:16")
    A.label("L_end")
    A("s_endpgm")
    out += A.text()
    nv = max(RING + 32 * DEPTH, vW + 4 * NL, 128)
    assert nv <= 256
    out += f"""
.section .rodata,"a"
.p2align 6
.amdhsa_kernel {NAME}
  .amdhsa_next_free_vgpr {nv}
  .amdhsa_next_free_sgpr 96
  .amdhsa_accum_offset {(nv + 3) // 4 * 4}
  .amdhsa_group_segment_fixed_size 0
  .amdhsa_kernarg_size 96
  .amdhsa_user_sgpr_count 2
  .amdhsa_user_sgpr_kernarg_segment_ptr 1
  .amdhsa_system_sgpr_workgroup_id_x 1
  .amdhsa_float_denorm_mode_32 3
.end_amdhsa_kernel
"""
    return out

if __name__ == "__main__":
    kw = eval("dict(" + (sys.argv[1] if len(sys.argv) > 1 else "") + ")")
    sys.stdout.write(gen(**kw))
```

```python
import sys, struct

NAME = "recurrent_scan__mha_block_cached__geglu_ffn__decode_kernel"

def f2u(x):
    return struct.unpack("<I", struct.pack("<f", x))[0]

HEADER = """; Kernarg layout for this problem (96 bytes, ptrs only, base s[0:1]):
"""

class Gen:
    def __init__(self):
        self.o = []
    def __call__(self, s):
        self.o.append("    " + s)
    def label(self, s):
        self.o.append(s + ":")
    def c(self, s):
        self.o.append("    ; " + s)
    def text(self):
        return "\n".join(self.o) + "\n"


def gen(dbgst=0, tl=0, NS=4, DEPTH=4, kvflags="nt", wqflags="nt", woflags="nt", ffnflags="nt", auxprio=1, stamps=0,
        wqwin=40, wowin=40, f1win=20, f2win=16, shift=0, gsleep=127,
        nowo=0, noffn=0, nowq=0, noaux=0, nosig=0, nofinal=0, bar0=0, badloc=0, cap=0, ffnfirst=0, fine=0, pcap=0, nowqn=0, endn=0, tlbpf=0, tlbflags="nt", evenc=0, hmap=0, rotq=0, pre0=0, bar0at=40, nofp=0, nogather=0, predelay=0, noflagpoll=0, nofpf=None, noclear=0, noclrf=None, boost=0, bcap=1):
    A = Gen()
    NA = 4
    NW = NS + NA
    XND = 0
    XNB = XND + 10240
    QP = XNB + 5120
    QB = QP + NA * 512
    OP = QB + NS * 256
    ML = OP + NS * 512
    FLG = ML + 64
    GB = FLG + 16
    TP = GB + 256
    HB = TP + NA * 2560
    WT = HB + 3584
    LDS = WT + 448 * 128
    assert WT % 16 == 0 and HB % 16 == 0 and TP % 16 == 0
    WS_T = 0
    WS_ML = 0xA0000
    WS_H = 0xA4000
    WS_EP = 0xAC000
    WS_HL = 0xB0000
    WS_FQ = 0xB8000
    WS_SIZE = WS_FQ + 160 * 512
    WS_STAMP = 0x200000
    L2E = 1.4426950408889634
    SCALE = 128 ** -0.5

    sWAVE, sX8, sSLOT, sSPLIT, sB, sH = 3, 4, 5, 6, 7, 60
    KS, VS = 8, 12
    WQS, WOS = 8, 12
    WSS = 16
    XS = 20
    F0S, F1S = 24, 28
    OUTS = 32
    P = 36
    pX, pK, pV, pWQ, pWO, pBX, pWG, pWU, pWD, pOUT, pDBG, pWS = [P + 2 * i for i in range(12)]
    sT0, sT1, sT2, sT3 = 61, 62, 63, 64
    sOFF, sCNT, sM, sL2E, sSC, sA, sHS = 65, 66, 67, 68, 69, 70, 71
    sEX = 72
    sTAG, sROLE = 74, 75
    sST = 76
    sNU = 95
    NSTAMP = 8
    def stamp(i):
        if stamps:
            A(f"s_memrealtime s[{sST+2*i}:{sST+2*i+1}]")

    def srd(dst, ptr, add_lo, nrec):
        if add_lo is None:
            A(f"s_mov_b32 s{dst}, s{ptr}")
            A(f"s_mov_b32 s{dst+1}, s{ptr+1}")
        else:
            A(f"s_add_u32 s{dst}, s{ptr}, {add_lo}")
            A(f"s_addc_u32 s{dst+1}, s{ptr+1}, 0")
        A(f"s_mov_b32 s{dst+2}, {nrec}")
        A(f"s_mov_b32 s{dst+3}, 0x20000")

    out = HEADER
    out += f"; @launch grid=(256,1,1) block=({NW*64},1,1) lds={LDS}\n"
    out += '.amdgcn_target "amdgcn-amd-amdhsa--gfx950"\n.text\n'
    out += f".globl {NAME}\n.p2align 8\n.type {NAME},@function\n{NAME}:\n"

    A("s_cmp_ge_u32 s2, 256")
    A("s_cbranch_scc1 L_end")
    stamp(0)
    A(f"s_load_dwordx16 s[{P}:{P+15}], s[0:1], 0")
    A(f"s_load_dwordx8 s[{P+16}:{P+23}], s[0:1], 64")
    A("v_lshrrev_b32 v4, 6, v0")
    A("v_and_b32 v1, 63, v0")
    A(f"v_readfirstlane_b32 s{sWAVE}, v4")
    A("v_and_b32 v2, 15, v1")
    A("v_lshrrev_b32 v3, 4, v1")
    if badloc:
        A(f"s_lshr_b32 s{sX8}, s2, 5")
        A(f"s_and_b32 s{sSLOT}, s2, 31")
    else:
        A(f"s_and_b32 s{sX8}, s2, 7")
        A(f"s_lshr_b32 s{sSLOT}, s2, 3")
    A(f"s_and_b32 s{sSPLIT}, s{sSLOT}, 1")
    A(f"s_lshr_b32 s{sB}, s{sSLOT}, 1")
    A(f"s_and_b32 s{sB}, s{sB}, 3")
    if hmap == "plan2":
        A(f"s_lshr_b32 s{sH}, s{sSLOT}, 3")
        A(f"s_lshl_b32 s{sT0}, s{sX8}, 2")
        A(f"s_add_u32 s{sH}, s{sH}, s{sT0}")
    else:
        A(f"s_lshr_b32 s{sH}, s{sSLOT}, 3")
        A(f"s_mul_i32 s{sT0}, s{sH}, {hmap}")
        A(f"s_add_u32 s{sT0}, s{sT0}, s{sX8}")
        A(f"s_and_b32 s{sT0}, s{sT0}, 7")
        A(f"s_lshl_b32 s{sH}, s{sH}, 3")
        A(f"s_add_u32 s{sH}, s{sH}, s{sT0}")
    A(f"s_mov_b32 s{sL2E}, {f2u(L2E):#x}")
    A(f"s_mov_b32 s{sSC}, {f2u(SCALE):#x}")
    MK = 4
    A("v_and_b32 v8, 1, v2")
    A("v_lshlrev_b32 v8, 4, v8")
    A("v_mov_b32 v9, 0xffff")
    A("v_lshlrev_b32 v8, v8, v9")
    A("v_lshrrev_b32 v9, 1, v2")
    A(f"s_lshr_b32 s{sT0}, 0x15, s{sX8}")
    A(f"s_and_b32 s{sT0}, s{sT0}, 1")
    A(f"s_lshl_b32 s{sT0}, s{sT0}, 2")
    A(f"s_add_u32 s{sNU}, s{sT0}, 12")
    A(f"s_cmp_lt_u32 s{sWAVE}, {NA}")
    A("s_cbranch_scc1 L_aux")

    vKO, vVO = 18, 19
    vM, vL, vNM, vAL, vTM, vT0, vT1 = 10, 11, 12, 13, 14, 15, 16
    vACC = 20
    vS = 24
    vP = 28
    vQ = 32
    vS2 = 40
    vA = 48
    RING = 64
    def kreg(slot, i): return RING + slot * 32 + i * 4
    def vreg(slot, i): return RING + slot * 32 + 16 + i * 4
    A.c("---- streaming wave ----")
    A(f"s_sub_u32 s{sWAVE}, s{sWAVE}, {NA}")
    A(f"v_lshlrev_b32 v{vKO}, 8, v9")
    A(f"v_and_b32 v{vVO}, 1, v2")
    A(f"v_lshl_add_u32 v{vKO}, v{vVO}, 6, v{vKO}")
    A(f"v_lshl_add_u32 v{vKO}, v3, 4, v{vKO}")
    A(f"v_lshlrev_b32 v{vVO}, 9, v3")
    A(f"v_lshl_add_u32 v{vVO}, v2, 4, v{vVO}")
    koff = [0, 128, 2048, 2176]
    voff = [0, 256, 2048, 2304]
    RB = 2 << 20
    STEP = NS * 4096
    A(f"s_lshr_b32 s{sT2}, s{sSLOT}, 1")
    A(f"s_cmp_lt_u32 s{sT2}, s{sNU}")
    A(f"s_cselect_b32 s{sT1}, {shift}, 0")
    A(f"s_add_u32 s{sT1}, s{sT1}, 256")
    A(f"s_sub_u32 s{sT2}, 512, s{sT1}")
    A(f"s_cmp_eq_u32 s{sSPLIT}, 0")
    A(f"s_cselect_b32 s{sCNT}, s{sT1}, s{sT2}")
    A(f"s_cselect_b32 s{sOFF}, 0, s{sT1}")
    A(f"s_add_u32 s{sOFF}, s{sOFF}, s{sWAVE}")
    A(f"s_lshl_b32 s{sOFF}, s{sOFF}, 12")
    A(f"s_sub_u32 s{sCNT}, s{sCNT}, s{sWAVE}")
    A(f"s_add_u32 s{sCNT}, s{sCNT}, {NS-1}")
    A(f"s_lshr_b32 s{sCNT}, s{sCNT}, {NS.bit_length()-1}")
    A(f"s_lshl_b32 s{sT0}, s{sB}, 5")
    A(f"s_add_u32 s{sT0}, s{sT0}, s{sH}")
    A(f"s_lshl_b32 s{sT0}, s{sT0}, 21")
    A("s_waitcnt lgkmcnt(0)")
    srd(KS, pK, f"s{sT0}", RB)
    srd(VS, pV, f"s{sT0}", RB)
    def issueK(slot, w=None):
        for i in range(4):
            r = kreg(slot, i)
            if w is not None and i % fine == 0: A(f"s_waitcnt vmcnt({w - fine})")
            A(f"buffer_load_dwordx4 v[{r}:{r+3}], v{vKO}, s[{KS}:{KS+3}], s{sOFF} offen offset:{koff[i]} {kvflags}")
    def issueV(slot, w=None):
        for i in range(4):
            r = vreg(slot, i)
            if w is not None and i % fine == 0: A(f"s_waitcnt vmcnt({w - fine})")
            A(f"buffer_load_dwordx4 v[{r}:{r+3}], v{vVO}, s[{VS}:{VS+3}], s{sOFF} offen offset:{voff[i]} {kvflags}")
        A(f"s_add_u32 s{sOFF}, s{sOFF}, {STEP}")
    if bar0 and pre0 == 0:
        A("s_barrier")
    def tlb_prefetch():
        n = (1 << 20) // tlbpf
        per = max(1, n // (NS * 64))
        A(f"s_lshl_b32 s{sT1}, s{sSPLIT}, 20")
        A(f"v_lshl_add_u32 v{vT0}, s{sWAVE}, 6, v1")
        A(f"v_cmp_gt_u32 vcc, {n}, v{vT0}")
        A(f"v_mul_u32_u24 v{vT0}, {tlbpf}, v{vT0}")
        A(f"v_mov_b32 v{vT1}, 0x7ffffff0")
        A(f"v_cndmask_b32 v{vT0}, v{vT1}, v{vT0}, vcc")
        for i in range(per):
            A(f"buffer_load_dword v{vP}, v{vT0}, s[{KS}:{KS+3}], s{sT1} offen {tlbflags}")
            A(f"buffer_load_dword v{vP+1}, v{vT0}, s[{VS}:{VS+3}], s{sT1} offen {tlbflags}")
            A(f"s_add_u32 s{sT1}, s{sT1}, {NS*64*tlbpf}")
    for s in range(DEPTH):
        issueK(s, pcap if pcap else None)
        if bar0 and pre0 == 8 * s + 4:
            A("s_barrier")
        issueV(s, pcap if pcap else None)
        if bar0 and pre0 == 8 * s + 8:
            A("s_barrier")
        if s == 0 and tlbpf:
            tlb_prefetch()
    for rr in range(4):
        A(f"v_cmp_eq_u32 vcc, {rr+4}, v9")
        A("s_nop 1")
        A(f"v_cndmask_b32 v{MK+rr}, 0, v8, vcc")
    A(f"v_mov_b32 v{vM}, 0xff7fffff")
    A(f"v_mov_b32 v{vL}, 0")
    for i in range(4):
        A(f"v_mov_b32 v{vACC+i}, 0")
    A(f"v_lshlrev_b32 v{vT0}, 3, v1")
    A(f"s_lshl_b32 s{sT0}, s{sWAVE}, 8")
    A(f"s_add_u32 s{sT0}, s{sT0}, {QB}")
    A(f"v_lshl_add_u32 v{vT1}, v1, 2, s{sT0}")
    A(f"v_lshl_add_u32 v{vTM}, v3, 4, s{sT0}")
    A(f"v_lshrrev_b32 v{vAL}, 3, v2")
    A(f"v_lshl_add_u32 v{vTM}, v{vAL}, 6, v{vTM}")
    A("s_barrier")
    for a in range(NA):
        A(f"ds_read_b64 v[{vA+2*a}:{vA+2*a+1}], v{vT0} offset:{QP + a*512}")
    A("s_waitcnt lgkmcnt(0)")
    for a in range(1, NA):
        A(f"v_add_f32 v{vA}, v{vA}, v{vA+2*a}")
        A(f"v_add_f32 v{vA+1}, v{vA+1}, v{vA+2*a+1}")
    A(f"v_cvt_pk_bf16_f32 v{vA}, v{vA}, v{vA+1}")
    A(f"ds_write_b32 v{vT1}, v{vA}")
    A("s_waitcnt lgkmcnt(0)")
    for j in range(2):
        A(f"ds_read_b128 v[{vQ+4*j}:{vQ+4*j+3}], v{vTM} offset:{128*j}")
    A("s_waitcnt lgkmcnt(0)")
    if boost:
        A(f"s_getreg_b32 s{sT3}, hwreg(HW_REG_XCC_ID)")
        A(f"s_and_b32 s{sT3}, s{sT3}, 1")
        A(f"s_sub_u32 s{sT3}, s{sT3}, 1")
    A.label("L_loop")
    W = 8 * DEPTH - 4
    for s in range(DEPTH):
        A(f"s_cmp_le_u32 s{sCNT}, {DEPTH}")
        A(f"s_cselect_b32 s{KS+2}, 0, {RB}")
        A(f"s_cselect_b32 s{VS+2}, 0, {RB}")
        A(f"s_waitcnt vmcnt({W})")
        for (j, d, qj) in ((0, vS2, 0), (2, vS2 + 4, 0), (1, vS2, 1), (3, vS2 + 4, 1)):
            r = kreg(s, j)
            c = "0" if qj == 0 else f"v[{d}:{d+3}]"
            A(f"v_mfma_f32_16x16x32_bf16 v[{d}:{d+3}], v[{r}:{r+3}], v[{vQ+4*qj}:{vQ+4*qj+3}], {c}")
        if cap:
            A(f"s_cmp_le_u32 s{sCNT}, {max(DEPTH, endn)}")
            A(f"s_cbranch_scc1 L_ck{s}")
            if fine:
                if boost:
                    A(f"s_and_b32 s{sT0}, s{sCNT}, {boost - 1}")
                    A(f"s_cmp_eq_u32 s{sT0}, s{sT3}")
                    A(f"s_cbranch_scc0 L_ck3{s}")
                    issueK(s, cap + bcap)
                    A(f"s_branch L_ck2{s}")
                    A.label(f"L_ck3{s}")
                issueK(s, cap)
                A(f"s_branch L_ck2{s}")
            else:
                A(f"s_waitcnt vmcnt({cap - 4})")
            A.label(f"L_ck{s}")
        issueK(s)
        A.label(f"L_ck2{s}")
        A("s_nop 3")
        for i in range(4):
            A(f"v_add_f32_dpp v{vS+i}, v{vS2+2*i}, v{vS2+2*i+1} row_ror:8 row_mask:0xf bank_mask:0xf")
        A(f"v_cvt_pk_bf16_f32 v{vT0}, v{vS}, v{vS+1}")
        A(f"v_cvt_pk_bf16_f32 v{vT1}, v{vS+2}, v{vS+3}")
        A(f"v_lshlrev_b32 v{vP}, 16, v{vT0}")
        A(f"v_and_b32 v{vP+1}, 0xffff0000, v{vT0}")
        A(f"v_lshlrev_b32 v{vP+2}, 16, v{vT1}")
        A(f"v_and_b32 v{vP+3}, 0xffff0000, v{vT1}")
        for i in range(4):
            A(f"v_mul_f32 v{vP+i}, s{sSC}, v{vP+i}")
        A(f"v_cvt_pk_bf16_f32 v{vT0}, v{vP}, v{vP+1}")
        A(f"v_cvt_pk_bf16_f32 v{vT1}, v{vP+2}, v{vP+3}")
        A(f"v_lshlrev_b32 v{vP}, 16, v{vT0}")
        A(f"v_and_b32 v{vP+1}, 0xffff0000, v{vT0}")
        A(f"v_lshlrev_b32 v{vP+2}, 16, v{vT1}")
        A(f"v_and_b32 v{vP+3}, 0xffff0000, v{vT1}")
        A(f"v_max3_f32 v{vTM}, v{vP}, v{vP+1}, v{vM}")
        A(f"v_max3_f32 v{vTM}, v{vP+2}, v{vP+3}, v{vTM}")
        A("s_nop 1")
        A(f"v_max_f32_dpp v{vTM}, v{vTM}, v{vTM} row_bcast:15 row_mask:0xa bank_mask:0xf")
        A("s_nop 1")
        A(f"v_max_f32_dpp v{vTM}, v{vTM}, v{vTM} row_bcast:31 row_mask:0xc bank_mask:0xf")
        A("s_nop 0")
        A(f"v_readlane_b32 s{sM}, v{vTM}, 63")
        A(f"v_mov_b32 v{vNM}, s{sL2E}")
        A("s_nop 0")
        A(f"v_mul_f32 v{vNM}, s{sM}, v{vNM}")
        for i in range(4):
            A(f"v_fma_f32 v{vP+i}, v{vP+i}, s{sL2E}, -v{vNM}")
        A(f"v_fma_f32 v{vAL}, v{vM}, s{sL2E}, -v{vNM}")
        for i in range(4):
            A(f"v_exp_f32 v{vP+i}, v{vP+i}")
        A(f"v_exp_f32 v{vAL}, v{vAL}")
        A(f"v_mov_b32 v{vM}, s{sM}")
        A(f"v_add_f32 v{vT0}, v{vP}, v{vP+1}")
        A(f"v_add_f32 v{vT1}, v{vP+2}, v{vP+3}")
        for i in range(4):
            A(f"v_cvt_pk_bf16_f32 v{vP+i}, v{vP+i}, v{vP+i}")
        A(f"v_add_f32 v{vT0}, v{vT0}, v{vT1}")
        A(f"v_fma_f32 v{vL}, v{vL}, v{vAL}, v{vT0}")
        for i in range(4):
            A(f"v_mul_f32 v{vACC+i}, v{vACC+i}, v{vAL}")
        for i in range(4):
            for rr in range(4):
                A(f"v_and_b32 v{vA+4*i+rr}, v{vP+i}, v{MK+rr}")
        A(f"s_waitcnt vmcnt({W})")
        A("s_nop 0")
        for i in range(4):
            r = vreg(s, i)
            A(f"v_mfma_f32_16x16x32_bf16 v[{vACC}:{vACC+3}], v[{vA+4*i}:{vA+4*i+3}], v[{r}:{r+3}], v[{vACC}:{vACC+3}]")
        if cap:
            A(f"s_cmp_le_u32 s{sCNT}, {max(DEPTH, endn)}")
            A(f"s_cbranch_scc1 L_cv{s}")
            if fine:
                if boost:
                    A(f"s_and_b32 s{sT0}, s{sCNT}, {boost - 1}")
                    A(f"s_cmp_eq_u32 s{sT0}, s{sT3}")
                    A(f"s_cbranch_scc0 L_cv3{s}")
                    issueV(s, cap + bcap)
                    A(f"s_branch L_cv2{s}")
                    A.label(f"L_cv3{s}")
                issueV(s, cap)
                A(f"s_branch L_cv2{s}")
            else:
                A(f"s_waitcnt vmcnt({cap - 4})")
            A.label(f"L_cv{s}")
        issueV(s)
        A.label(f"L_cv2{s}")
        if tl:
            A("s_memrealtime s[92:93]")
            A(f"s_and_b32 m0, s{sCNT}, 63")
            A("s_waitcnt lgkmcnt(0)")
            A("v_writelane_b32 v17, s92, m0")
        A(f"s_sub_u32 s{sCNT}, s{sCNT}, 1")
        A(f"s_cmp_eq_u32 s{sCNT}, 0")
        if s < DEPTH - 1:
            A("s_cbranch_scc1 L_sdone")
        else:
            A("s_cbranch_scc0 L_loop")
    A.label("L_sdone")
    A(f"v_add_f32_dpp v{vL}, v{vL}, v{vL} row_bcast:15 row_mask:0xa bank_mask:0xf")
    A(f"s_lshl_b32 s{sT0}, s{sWAVE}, 9")
    A(f"s_add_u32 s{sT0}, s{sT0}, {OP - 32}")
    A(f"v_add_f32_dpp v{vL}, v{vL}, v{vL} row_bcast:31 row_mask:0xc bank_mask:0xf")
    A(f"v_lshlrev_b32 v{vT0}, 5, v2")
    A(f"v_lshl_add_u32 v{vT0}, v3, 4, v{vT0}")
    A(f"v_add_u32 v{vT0}, s{sT0}, v{vT0}")
    A(f"s_lshl_b32 s{sT1}, s{sWAVE}, 3")
    A(f"s_add_u32 s{sT1}, s{sT1}, {ML}")
    A(f"v_mov_b32 v{vT1}, s{sT1}")
    A("s_mov_b32 exec_lo, 0")
    A(f"ds_write_b128 v{vT0}, v[{vACC}:{vACC+3}]")
    A("s_mov_b32 exec_hi, 0x80000000")
    A(f"ds_write_b64 v{vT1}, v[{vM}:{vM+1}]")
    A("s_mov_b64 exec, -1")
    A("s_waitcnt lgkmcnt(0)")
    A("s_barrier")
    if tl:
        A(f"s_lshl_b32 s{sT0}, s2, 2")
        A(f"s_add_u32 s{sT0}, s{sT0}, s{sWAVE}")
        A(f"s_lshl_b32 s{sT0}, s{sT0}, 8")
        A(f"s_add_u32 s{sT0}, s{sT0}, 0x300000")
        A(f"v_lshl_add_u32 v16, v1, 2, s{sT0}")
        A(f"global_store_dword v16, v17, s[{pWS}:{pWS+1}]")
    A("s_endpgm")

    A.label("L_aux")
    A.c("---- aux wave ----")
    NL = 160 // NA
    RW = 640 // NA
    RT = RW // 4
    RO = 128 // NA
    OT = RO // 4
    vTO = 13
    vO1, vO2, vO3 = 10, 11, 12
    vX = 14
    vF = 20
    vC = 30
    vAA = 36
    vQA = 44
    vX2 = 48
    vXD = 56
    vW = 96
    if auxprio:
        A(f"s_setprio {auxprio}")
    A(f"s_mov_b32 s{sA}, s{sWAVE}")
    if noaux:
        A("s_waitcnt lgkmcnt(0)")
        if bar0: A("s_barrier")
        stamp(1)
        A("s_barrier")
        stamp(2); stamp(3)
        A("s_barrier")
        stamp(4); stamp(5); stamp(6)
        A("s_branch L_fin")
    A(f"v_lshlrev_b32 v{vO1}, 2, v1")
    A(f"v_mul_u32_u24 v{vO2}, {RT*8192}, v3")
    A(f"v_lshl_add_u32 v{vO2}, v2, 4, v{vO2}")
    A(f"s_mul_i32 s{sT0}, s{sA}, 1280")
    A(f"s_mul_i32 s{sT3}, s{sB}, 1280")
    A(f"s_lshl_b32 s{sT1}, s{sH}, 8")
    A(f"s_mul_i32 s{sT2}, s{sA}, {RW*8192}")
    A(f"s_add_u32 s{sT1}, s{sT1}, s{sT2}")
    A(f"s_sub_u32 s{sT2}, {640*8192}, s{sT1}")
    A("s_waitcnt lgkmcnt(0)")
    srd(XS, pX, None, 5120)
    for i in range(5):
        A(f"buffer_load_dword v{vX+i}, v{vO1}, s[{XS}:{XS+3}], s{sT3} offen offset:{256*i}")
    for i in range(5):
        A(f"buffer_load_dword v{vX2+i}, v{vO1}, s[{XS}:{XS+3}], s{sT0} offen offset:{256*i}")
    A(f"s_load_dword s{sTAG}, s[{pWS}:{pWS+1}], {WS_EP:#x}")
    srd(WQS, pWQ, f"s{sT1}", 0 if nowq else f"s{sT2}")
    if rotq:
        A(f"s_and_b32 s{sHS}, s{sSLOT}, 7")
        A(f"s_mul_i32 s{sHS}, s{sHS}, 5")
        A(f"s_lshr_b32 s{sHS}, s{sHS}, 2")
        A(f"s_lshl_b32 s{sOFF}, s{sHS}, 15")
    else:
        A(f"s_mov_b32 s{sOFF}, 0")
    def wq_issue(t):
        r = vW + 4 * t
        A(f"buffer_load_dwordx4 v[{r}:{r+3}], v{vO2}, s[{WQS}:{WQS+3}], s{sOFF} offen {wqflags}")
        A(f"s_add_u32 s{sOFF}, s{sOFF}, 8192")
        if rotq and t % 4 == 3:
            A(f"s_cmp_eq_u32 s{sOFF}, {RT*8192}")
            A(f"s_cselect_b32 s{sOFF}, 0, s{sOFF}")
    NLQ = nowqn if nowqn else NL
    wqwin = min(wqwin, NLQ)
    for t in range(wqwin):
        wq_issue(t)
        if bar0 and t == min(wqwin, bar0at) - 1:
            A("s_barrier")
    A("v_and_b32 v9, 3, v9")
    for rr in range(4):
        A(f"v_cmp_eq_u32 vcc, {rr}, v9")
        A("s_nop 1")
        A(f"v_cndmask_b32 v{MK+rr}, 0, v8, vcc")
    def wave_sum(v, s):
        for sh in (1, 2, 4, 8):
            A("s_nop 1")
            A(f"v_add_f32_dpp v{v}, v{v}, v{v} row_shr:{sh} row_mask:0xf bank_mask:0xf bound_ctrl:0")
        A("s_nop 1")
        A(f"v_add_f32_dpp v{v}, v{v}, v{v} row_bcast:15 row_mask:0xa bank_mask:0xf")
        A("s_nop 1")
        A(f"v_add_f32_dpp v{v}, v{v}, v{v} row_bcast:31 row_mask:0xc bank_mask:0xf")
        A("s_nop 0")
        A(f"v_readlane_b32 s{s}, v{v}, 63")
        A("s_nop 1")
    def layernorm(vX, dup):
        for i in range(5):
            A(f"v_lshlrev_b32 v{vF+2*i}, 16, v{vX+i}")
            A(f"v_and_b32 v{vF+2*i+1}, 0xffff0000, v{vX+i}")
        A(f"v_add_f32 v{vC+4}, v{vF}, v{vF+1}")
        for i in range(2, 10):
            A(f"v_add_f32 v{vC+4}, v{vC+4}, v{vF+i}")
        wave_sum(vC + 4, sT0)
        A(f"v_mov_b32 v{vC+5}, {f2u(1.0/640):#x}")
        A(f"v_mul_f32 v{vC+4}, s{sT0}, v{vC+5}")
        A(f"v_sub_f32 v{vC}, v{vF}, v{vC+4}")
        A(f"v_mul_f32 v{vC+1}, v{vC}, v{vC}")
        for i in range(1, 10):
            A(f"v_sub_f32 v{vC}, v{vF+i}, v{vC+4}")
            A(f"v_fmac_f32 v{vC+1}, v{vC}, v{vC}")
        wave_sum(vC + 1, sT0)
        A(f"v_mul_f32 v{vC+1}, s{sT0}, v{vC+5}")
        A(f"v_cvt_pk_bf16_f32 v{vC}, v{vC+4}, v{vC+1}")
        A(f"v_lshlrev_b32 v{vC+4}, 16, v{vC}")
        A(f"v_and_b32 v{vC+1}, 0xffff0000, v{vC}")
        A(f"v_add_f32 v{vC+1}, {f2u(1e-5):#x}, v{vC+1}")
        A(f"v_cvt_pk_bf16_f32 v{vC+1}, v{vC+1}, v{vC+1}")
        A(f"v_and_b32 v{vC+1}, 0xffff0000, v{vC+1}")
        A(f"v_sqrt_f32 v{vC+1}, v{vC+1}")
        A("s_nop 0")
        A(f"v_cvt_pk_bf16_f32 v{vC+1}, v{vC+1}, v{vC+1}")
        A(f"v_and_b32 v{vC+1}, 0xffff0000, v{vC+1}")
        A(f"v_rcp_f32 v{vC+1}, v{vC+1}")
        for i in range(10):
            A(f"v_sub_f32 v{vF+i}, v{vF+i}, v{vC+4}")
        if dup:
            A(f"s_mul_i32 s{sT2}, s{sA}, 2560")
            A(f"v_lshl_add_u32 v{vC+3}, v1, 3, s{sT2}")
        else:
            A(f"s_mul_i32 s{sT1}, s{sA}, 1280")
            A(f"v_add_u32 v{vC+2}, s{sT1}, v{vO1}")
        for i in range(5):
            A(f"v_cvt_pk_bf16_f32 v{vX+i}, v{vF+2*i}, v{vF+2*i+1}")
            A(f"v_lshlrev_b32 v{vF+2*i}, 16, v{vX+i}")
            A(f"v_and_b32 v{vF+2*i+1}, 0xffff0000, v{vX+i}")
            A(f"v_mul_f32 v{vF+2*i}, v{vF+2*i}, v{vC+1}")
            A(f"v_mul_f32 v{vF+2*i+1}, v{vF+2*i+1}, v{vC+1}")
            if dup:
                A(f"v_cvt_pk_bf16_f32 v{vF+2*i}, v{vF+2*i}, v{vF+2*i}")
                A(f"v_cvt_pk_bf16_f32 v{vF+2*i+1}, v{vF+2*i+1}, v{vF+2*i+1}")
                A(f"ds_write_b64 v{vC+3}, v[{vF+2*i}:{vF+2*i+1}] offset:{XND + 512*i}")
            else:
                A(f"v_cvt_pk_bf16_f32 v{vX+i}, v{vF+2*i}, v{vF+2*i+1}")
                A(f"ds_write_b32 v{vC+2}, v{vX+i} offset:{XNB + 256*i}")
    A(f"s_waitcnt vmcnt({wqwin + 5})")
    layernorm(vX, True)
    stamp(1)
    A(f"s_mul_i32 s{sT1}, s{sA}, {RW*4}")
    A(f"s_add_u32 s{sT0}, s{sT2}, s{sT1}")
    A(f"v_mul_u32_u24 v{vX}, {RT*4}, v3")
    A(f"v_add_u32 v{vX}, s{sT0}, v{vX}")
    A("s_waitcnt lgkmcnt(0)")
    if rotq:
        A(f"s_lshl_b32 s{sT1}, s{sHS}, 4")
        for i in range(RT // 4):
            A(f"v_add_u32 v{vX+1+(i&1)}, s{sT1}, v{vX}")
            A(f"s_add_u32 s{sT1}, s{sT1}, 16")
            A(f"ds_read_b128 v[{vXD+4*i}:{vXD+4*i+3}], v{vX+1+(i&1)} offset:{XND}")
            A(f"s_cmp_eq_u32 s{sT1}, {RT*4}")
            A(f"s_cselect_b32 s{sT1}, 0, s{sT1}")
    else:
        for i in range(RT // 4):
            A(f"ds_read_b128 v[{vXD+4*i}:{vXD+4*i+3}], v{vX} offset:{XND + 16*i}")
    A("s_waitcnt lgkmcnt(0)")
    for t in range(NLQ):
        aa = vAA + 4 * (t & 1)
        for rr in range(4):
            A(f"v_and_b32 v{aa+rr}, v{vXD+t}, v{MK+rr}")
        issued = min(NLQ, wqwin + t)
        A(f"s_waitcnt vmcnt({issued - 1 - t})")
        if wqwin + t < NLQ:
            wq_issue(wqwin + t)
        else:
            A("s_nop 0")
        r = vW + 4 * t
        c = "0" if t == 0 else f"v[{vQA}:{vQA+3}]"
        A(f"v_mfma_f32_16x16x32_bf16 v[{vQA}:{vQA+3}], v[{aa}:{aa+3}], v[{r}:{r+3}], {c}")
    A(f"s_lshl_b32 s{sT0}, s{sA}, 9")
    A(f"s_add_u32 s{sT0}, s{sT0}, {QP}")
    A(f"v_lshlrev_b32 v{vC}, 5, v2")
    A(f"v_lshl_add_u32 v{vC}, v3, 4, v{vC}")
    A(f"v_add_u32 v{vC}, s{sT0}, v{vC}")
    A("s_nop 3")
    A("s_mov_b64 exec, 0xffffffff")
    A(f"ds_write_b128 v{vC}, v[{vQA}:{vQA+3}]")
    A("s_mov_b64 exec, -1")
    A(f"s_lshl_b32 s{sT0}, s{sA}, 2")
    A(f"v_mov_b32 v{vC+1}, s{sT0}")
    A(f"v_mov_b32 v{vC+2}, 0")
    A(f"ds_write_b32 v{vC+1}, v{vC+2} offset:{FLG}")
    A("s_waitcnt lgkmcnt(0)")
    A("s_barrier")
    stamp(2)
    layernorm(vX2, False)
    srd(WSS, pWS, None, WS_SIZE)
    A(f"s_mul_i32 s{sTAG}, s{sTAG}, 0x9e3779b1")
    A(f"s_add_u32 s{sTAG}, s{sTAG}, 0x7f4a7c15")
    A(f"s_lshl_b32 s{sHS}, s{sH}, 1")
    A(f"s_add_u32 s{sHS}, s{sHS}, s{sSPLIT}")
    A(f"s_lshl_b32 s{sT0}, s{sB}, 6")
    A(f"s_add_u32 s{sT0}, s{sT0}, s{sHS}")
    A(f"s_lshl_b32 s{sT1}, s{sT0}, 6")
    A(f"v_lshrrev_b32 v{vTO}, 2, v0")
    A(f"v_lshlrev_b32 v{vTO}, 14, v{vTO}")
    A(f"v_and_b32 v{vC}, 3, v0")
    A(f"v_lshl_add_u32 v{vTO}, v{vC}, 4, v{vTO}")
    A(f"v_add_u32 v{vTO}, s{sT1}, v{vTO}")
    A(f"s_lshr_b32 s{sT1}, s{sT0}, 1")
    A(f"s_lshl_b32 s{sT1}, s{sT1}, 7")
    A(f"s_lshl_b32 s{sT2}, s{sSPLIT}, 3")
    A(f"s_add_u32 s{sT1}, s{sT1}, s{sT2}")
    A(f"s_add_u32 s{sT1}, s{sT1}, {WS_ML}")
    A(f"v_mov_b32 v{vO3}, s{sT1}")
    for i in range(4):
        A(f"v_mov_b32 v{vC+i}, -1")
    A(f"v_cmp_gt_u32 vcc, 160, v0")
    A(f"s_and_saveexec_b64 s[{sEX}:{sEX+1}], vcc")
    A("s_cbranch_execz L_noclr")
    if not noclear:
        A(f"buffer_store_dwordx4 v[{vC}:{vC+3}], v{vTO}, s[{WSS}:{WSS+3}], 0 offen {'sc1' if noclrf is None else noclrf}")
    A.label("L_noclr")
    A(f"s_mov_b64 exec, s[{sEX}:{sEX+1}]")
    A(f"v_cmp_eq_u32 vcc, 192, v0")
    A(f"s_and_saveexec_b64 s[{sEX}:{sEX+1}], vcc")
    A("s_cbranch_execz L_noclr2")
    A(f"buffer_store_dwordx2 v[{vC}:{vC+1}], v{vO3}, s[{WSS}:{WSS+3}], 0 offen sc1")
    A.label("L_noclr2")
    A(f"s_mov_b64 exec, s[{sEX}:{sEX+1}]")
    A("s_waitcnt vmcnt(0) lgkmcnt(0)")
    A(f"s_lshl_b32 s{sT0}, s{sA}, 2")
    A(f"v_mov_b32 v{vC}, s{sT0}")
    A(f"v_mov_b32 v{vC+1}, 1")
    A(f"ds_write_b32 v{vC}, v{vC+1} offset:{FLG}")
    A(f"s_add_u32 s{sT0}, s{sX8}, 1")
    A(f"s_lshr_b32 s{sT0}, s{sT0}, 1")
    A(f"s_min_u32 s{sT0}, s{sT0}, 3")
    A(f"s_lshr_b32 s{sT1}, s{sSLOT}, 1")
    A(f"s_mul_i32 s{sT2}, s{sX8}, 12")
    A(f"s_lshl_b32 s{sT3}, s{sT0}, 2")
    A(f"s_add_u32 s{sT2}, s{sT2}, s{sT3}")
    A(f"s_add_u32 s{sT2}, s{sT2}, s{sT1}")
    A(f"s_cmp_eq_u32 s{sSPLIT}, 1")
    A(f"s_cselect_b32 s{sT2}, s{sT2}, 255")
    A(f"s_sub_u32 s{sT3}, s{sX8}, s{sT0}")
    A(f"s_lshl_b32 s{sT3}, s{sT3}, 3")
    A(f"s_add_u32 s{sT3}, s{sT3}, s{sSLOT}")
    A(f"s_add_u32 s{sT3}, s{sT3}, {128 - 24}")
    A(f"s_cmp_lt_u32 s{sT1}, s{sNU}")
    A(f"s_cselect_b32 s{sROLE}, s{sT2}, s{sT3}")
    def wo_load():
        A(f"s_mul_i32 s{sT0}, s{sH}, {128*1280}")
        A(f"s_mul_i32 s{sT1}, s{sA}, {RO*1280}")
        A(f"s_add_u32 s{sT0}, s{sT0}, s{sT1}")
        srd(WOS, pWO, f"s{sT0}", RO * 1280)
        A(f"v_mul_u32_u24 v{vO2}, {OT*1280}, v3")
        A(f"v_lshl_add_u32 v{vO2}, v2, 4, v{vO2}")
        A(f"s_mov_b32 s{sOFF}, 0")
        for t in range(OT):
            for seg in range(5):
                r = vW + 4 * (t * 5 + seg)
                if not nowo:
                    A(f"buffer_load_dwordx4 v[{r}:{r+3}], v{vO2}, s[{WOS}:{WOS+3}], s{sOFF} offen offset:{256*seg} {woflags}")
                    if wowin < NL:
                        A(f"s_waitcnt vmcnt({wowin - 1})")
            A(f"s_add_u32 s{sOFF}, s{sOFF}, 1280")
    vTR, vAO = 14, 15
    vFA, vFB, vFD = 20, 24, 28
    def round_bf16(regs):
        for v in regs:
            A(f"v_cvt_pk_bf16_f32 v{v}, v{v}, v{v}")
        for v in regs:
            A(f"v_and_b32 v{v}, 0xffff0000, v{v}")
    A(f"s_cmp_lg_u32 s{sA}, 0")
    A("s_cbranch_scc1 L_wo")
    A(f"v_mov_b32 v{vC+4}, 0")
    A.label("L_flg")
    A(f"ds_read_b128 v[{vFA}:{vFA+3}], v{vC+4} offset:{FLG}")
    A("s_waitcnt lgkmcnt(0)")
    A(f"v_add3_u32 v{vFA}, v{vFA}, v{vFA+1}, v{vFA+2}")
    A(f"v_add_u32 v{vFA}, v{vFA}, v{vFA+3}")
    A(f"v_cmp_ne_u32 vcc, 4, v{vFA}")
    A("s_nop 1")
    A("s_cbranch_vccnz L_flg")
    A(f"s_lshl_b32 s{sT3}, s2, 7")
    A(f"s_add_u32 s{sT3}, s{sT3}, {WS_H}")
    A(f"v_mov_b32 v{vC+4}, s{sT3}")
    A(f"v_mov_b32 v{vC+5}, s{sTAG}")
    A("s_mov_b64 exec, 1")
    A(f"buffer_store_dword v{vC+5}, v{vC+4}, s[{WSS}:{WSS+3}], 0 offen sc1")
    A("s_mov_b64 exec, -1")
    A.label("L_wo")
    wo_load()
    A(f"s_cmp_lg_u32 s{sA}, 0")
    A("s_cbranch_scc1 L_idle")
    if nosig:
        A("s_branch L_idle")
    A(f"s_cmp_eq_u32 s{sROLE}, 255")
    A("s_cbranch_scc1 L_idle")
    A(f"s_cmp_ge_u32 s{sROLE}, 128")
    A("s_cbranch_scc1 L_f2")
    A.c("F1 unit: 16 columns of gate/up for all 4 batches")
    vFU = 32
    A(f"s_lshl_b32 s{sT0}, s{sROLE}, 5")
    srd(F0S, pWG, None, 640 * 3456)
    srd(F1S, pWU, None, 640 * 3456)
    A(f"v_lshrrev_b32 v{vC}, 1, v1")
    A(f"v_mul_u32_u24 v{vC}, 3456, v{vC}")
    A(f"v_and_b32 v{vC+1}, 1, v1")
    A(f"v_lshl_add_u32 v{vC}, v{vC+1}, 4, v{vC}")
    A(f"v_add_u32 v{vC}, s{sT0}, v{vC}")
    A(f"s_mov_b32 s{sOFF}, 0")
    A(f"s_mov_b32 s{sT1}, {WT}")
    A(f"s_mov_b32 s{sCNT}, 20")
    A.label("L_f1_ld")
    A(f"s_mov_b32 m0, s{sT1}")
    A(f"s_add_u32 s{sT2}, s{sT1}, 20480")
    if not noffn:
        A(f"buffer_load_dwordx4 v{vC}, s[{F0S}:{F0S+3}], s{sOFF} offen {ffnflags} lds")
    A(f"s_waitcnt vmcnt({f1win - 1})")
    A(f"s_mov_b32 m0, s{sT2}")
    A(f"s_add_u32 s{sT1}, s{sT1}, 1024")
    if not noffn:
        A(f"buffer_load_dwordx4 v{vC}, s[{F1S}:{F1S+3}], s{sOFF} offen {ffnflags} lds")
    A(f"s_add_u32 s{sOFF}, s{sOFF}, {32*3456}")
    A(f"s_waitcnt vmcnt({f1win - 1})")
    A(f"s_sub_u32 s{sCNT}, s{sCNT}, 1")
    A(f"s_cmp_lg_u32 s{sCNT}, 0")
    A("s_cbranch_scc1 L_f1_ld")
    A(f"v_lshrrev_b32 v{vC+1}, 2, v2")
    A(f"v_lshl_add_u32 v{vC+1}, v3, 3, v{vC+1}")
    A(f"v_lshlrev_b32 v{vTR}, 5, v{vC+1}")
    A(f"v_and_b32 v{vC+1}, 3, v1")
    A(f"v_lshl_add_u32 v{vTR}, v{vC+1}, 3, v{vTR}")
    A(f"v_add_u32 v{vTR}, {WT}, v{vTR}")
    A(f"v_mul_u32_u24 v{vAO}, 1280, v{vC+1}")
    A(f"v_lshl_add_u32 v{vAO}, v3, 4, v{vAO}")
    A(f"v_add_u32 v{vAO}, {XNB}, v{vAO}")
    for i in range(4):
        A(f"v_mov_b32 v{vFD+i}, 0")
        A(f"v_mov_b32 v{vFU+i}, 0")
    A(f"s_mov_b32 s{sCNT}, 20")
    A("s_waitcnt vmcnt(0)")
    vFB2 = 36
    A.label("L_f1_mm")
    A(f"ds_read_b128 v[{vFA}:{vFA+3}], v{vAO}")
    A(f"ds_read_b64_tr_b16 v[{vFB}:{vFB+1}], v{vTR}")
    A(f"ds_read_b64_tr_b16 v[{vFB+2}:{vFB+3}], v{vTR} offset:128")
    A(f"ds_read_b64_tr_b16 v[{vFB2}:{vFB2+1}], v{vTR} offset:20480")
    A(f"ds_read_b64_tr_b16 v[{vFB2+2}:{vFB2+3}], v{vTR} offset:{20480+128}")
    A(f"v_add_u32 v{vAO}, 64, v{vAO}")
    A(f"v_add_u32 v{vTR}, 1024, v{vTR}")
    A("s_waitcnt lgkmcnt(0)")
    A(f"v_mfma_f32_16x16x32_bf16 v[{vFD}:{vFD+3}], v[{vFA}:{vFA+3}], v[{vFB}:{vFB+3}], v[{vFD}:{vFD+3}]")
    A(f"v_mfma_f32_16x16x32_bf16 v[{vFU}:{vFU+3}], v[{vFA}:{vFA+3}], v[{vFB2}:{vFB2+3}], v[{vFU}:{vFU+3}]")
    A(f"s_sub_u32 s{sCNT}, s{sCNT}, 1")
    A(f"s_cmp_lg_u32 s{sCNT}, 0")
    A("s_cbranch_scc1 L_f1_mm")
    A("s_nop 7")
    for i in range(1, 4):
        A(f"v_cmp_eq_u32 vcc, {i}, v3")
        A("s_nop 1")
        A(f"v_cndmask_b32 v{vFD}, v{vFD}, v{vFD+i}, vcc")
        A(f"v_cndmask_b32 v{vFU}, v{vFU}, v{vFU+i}, vcc")
    round_bf16([vFD, vFU])
    K0 = 0.7978845608028654
    A(f"s_mov_b32 s{sT0}, {f2u(0.044715):#x}")
    A(f"s_mov_b32 s{sT1}, {f2u(-2.0 * K0 * L2E):#x}")
    A(f"v_mul_f32 v{vFA}, v{vFD}, v{vFD}")
    A(f"v_fma_f32 v{vFA}, v{vFA}, s{sT0}, 1.0")
    A(f"v_mul_f32 v{vFA}, v{vFA}, v{vFD}")
    A(f"v_mul_f32 v{vFA}, s{sT1}, v{vFA}")
    A(f"v_exp_f32 v{vFA}, v{vFA}")
    A("s_nop 0")
    A(f"v_add_f32 v{vFA}, 1.0, v{vFA}")
    A(f"v_rcp_f32 v{vFA}, v{vFA}")
    A("s_nop 0")
    A(f"v_mul_f32 v{vFA}, v{vFA}, v{vFD}")
    round_bf16([vFA])
    A(f"v_mul_f32 v{vFA}, v{vFA}, v{vFU}")
    A(f"s_lshl_b32 s{sT0}, s{sROLE}, 8")
    A(f"s_add_u32 s{sT0}, s{sT0}, {WS_HL}")
    A(f"v_mov_b32_dpp v{vFB}, v{vFA} quad_perm:[1,0,3,2] row_mask:0xf bank_mask:0xf")
    A(f"v_cvt_pk_bf16_f32 v{vFA}, v{vFA}, v{vFB}")
    A(f"v_mov_b32 v{vFA+1}, s{sTAG}")
    A("s_mov_b32 exec_lo, 0x55555555")
    A("s_mov_b32 exec_hi, 0x55555555")
    A(f"buffer_store_dwordx2 v[{vFA}:{vFA+1}], v{vO1}, s[{WSS}:{WSS+3}], s{sT0} offen sc1")
    A("s_mov_b64 exec, -1")
    A("s_branch L_idle")

    A.label("L_f2")
    A.c("F2 job: 64 columns x one quarter of K of the down projection, then the gate of 16 columns")
    sC, sKQ, sST_, sN = sT3, sHS, sM, sSC
    A(f"s_sub_u32 s{sC}, s{sROLE}, 128")
    A(f"s_and_b32 s{sKQ}, s{sC}, 3")
    A(f"s_mul_i32 s{sST_}, s{sKQ}, 14")
    A(f"s_cmp_eq_u32 s{sKQ}, 3")
    A(f"s_cselect_b32 s{sST_}, 41, s{sST_}")
    A(f"s_lshr_b32 s{sN}, s{sKQ}, 1")
    A(f"s_sub_u32 s{sN}, 14, s{sN}")
    srd(F0S, pWD, None, 1728 * 1280)
    A(f"s_lshr_b32 s{sT0}, s{sC}, 2")
    A(f"s_lshl_b32 s{sT0}, s{sT0}, 7")
    A(f"v_lshrrev_b32 v{vC}, 3, v1")
    A(f"v_mul_u32_u24 v{vC}, 1280, v{vC}")
    A(f"v_and_b32 v{vC+1}, 7, v1")
    A(f"v_lshl_add_u32 v{vC}, v{vC+1}, 4, v{vC}")
    A(f"v_add_u32 v{vC}, s{sT0}, v{vC}")
    A(f"s_mul_i32 s{sOFF}, s{sST_}, {32*1280}")
    A(f"s_mov_b32 s{sT1}, {WT}")
    A(f"s_lshl_b32 s{sCNT}, s{sN}, 2")
    A.label("L_f2_ld")
    A(f"s_mov_b32 m0, s{sT1}")
    A(f"s_add_u32 s{sT1}, s{sT1}, 1024")
    if not noffn:
        A(f"buffer_load_dwordx4 v{vC}, s[{F0S}:{F0S+3}], s{sOFF} offen {ffnflags} lds")
    A(f"s_add_u32 s{sOFF}, s{sOFF}, {8*1280}")
    A(f"s_waitcnt vmcnt({f2win - 1})")
    A(f"s_sub_u32 s{sCNT}, s{sCNT}, 1")
    A(f"s_cmp_lg_u32 s{sCNT}, 0")
    A("s_cbranch_scc1 L_f2_ld")
    vH = 36
    A(f"s_lshl_b32 s{sT0}, s{sST_}, 1")
    A(f"s_min_u32 s{sT1}, s{sT0}, 80")
    A(f"s_sub_u32 s{sT2}, s{sT0}, s{sT1}")
    A(f"s_lshl_b32 s{sT2}, s{sT2}, 5")
    A(f"s_lshl_b32 s{sT1}, s{sT1}, 8")
    A(f"s_add_u32 s{sT1}, s{sT1}, {WS_HL}")
    A(f"s_lshl_b32 s{sT0}, s{sKQ}, 13")
    A(f"s_add_u32 s{sT0}, s{sT0}, {WS_H}")
    A(f"v_lshlrev_b32 v{vC}, 4, v1")
    A(f"v_lshlrev_b32 v{vC+1}, 7, v1")
    A(f"v_lshrrev_b32 v{vC+2}, 2, v2")
    A(f"v_mul_u32_u24 v{vC+2}, 896, v{vC+2}")
    A(f"v_lshl_add_u32 v{vC+2}, v3, 5, v{vC+2}")
    A(f"v_and_b32 v{vC+3}, 3, v1")
    A(f"v_lshl_add_u32 v{vC+2}, v{vC+3}, 3, v{vC+2}")
    A(f"s_add_u32 s{sOFF}, s{sT1}, 4096")
    A("s_branch L_g")
    A.label("L_gr")
    A(f"s_sleep {gsleep}")
    A.label("L_g")
    for i in range(7):
        A(f"buffer_load_dwordx4 v[{vH+4*i}:{vH+4*i+3}], v{vC}, s[{WSS}:{WSS+3}], s{sT1 if i < 4 else sOFF} offen offset:{1024*(i&3)} sc1")
    A(f"buffer_load_dword v{vH+28}, v{vC+1}, s[{WSS}:{WSS+3}], s{sT0} offen sc1")
    A("s_waitcnt vmcnt(0)")
    A(f"v_xor_b32 v{vH+28}, s{sTAG}, v{vH+28}")
    for i in range(7):
        A(f"v_xor_b32 v{vH+4*i+1}, s{sTAG}, v{vH+4*i+1}")
        A(f"v_xor_b32 v{vH+4*i+3}, s{sTAG}, v{vH+4*i+3}")
        A(f"v_or3_b32 v{vH+28}, v{vH+28}, v{vH+4*i+1}, v{vH+4*i+3}")
    A(f"v_cmp_ne_u32 vcc, 0, v{vH+28}")
    A("s_nop 1")
    A("s_cbranch_vccnz L_gr")
    for i in range(7):
        A(f"v_mov_b32 v{vH+4*i+1}, v{vH+4*i+2}")
        A(f"ds_write_b64 v{vC+2}, v[{vH+4*i}:{vH+4*i+1}] offset:{HB + 128*i}")
    A(f"v_lshrrev_b32 v{vC+4}, 2, v2")
    A(f"v_lshl_add_u32 v{vC+4}, v3, 3, v{vC+4}")
    A(f"v_lshlrev_b32 v{vTR}, 7, v{vC+4}")
    A(f"v_lshl_add_u32 v{vTR}, v{vC+3}, 3, v{vTR}")
    A(f"v_add_u32 v{vTR}, {WT}, v{vTR}")
    A(f"v_mul_u32_u24 v{vAO}, 896, v{vC+3}")
    A(f"v_lshl_add_u32 v{vAO}, v3, 4, v{vAO}")
    A(f"v_add_u32 v{vAO}, s{sT2}, v{vAO}")
    A("s_waitcnt lgkmcnt(0)")
    vB4, vD4 = 36, 52
    for i in range(16):
        A(f"v_mov_b32 v{vD4+i}, 0")
    A(f"s_mov_b32 s{sCNT}, s{sN}")
    A.label("L_f2_mm")
    A(f"ds_read_b128 v[{vFA}:{vFA+3}], v{vAO} offset:{HB}")
    for cb in range(4):
        A(f"ds_read_b64_tr_b16 v[{vB4+4*cb}:{vB4+4*cb+1}], v{vTR} offset:{32*cb}")
        A(f"ds_read_b64_tr_b16 v[{vB4+4*cb+2}:{vB4+4*cb+3}], v{vTR} offset:{32*cb+512}")
    A(f"v_add_u32 v{vAO}, 64, v{vAO}")
    A(f"v_add_u32 v{vTR}, 4096, v{vTR}")
    A("s_waitcnt lgkmcnt(0)")
    for cb in range(4):
        d = vD4 + 4 * cb
        A(f"v_mfma_f32_16x16x32_bf16 v[{d}:{d+3}], v[{vFA}:{vFA+3}], v[{vB4+4*cb}:{vB4+4*cb+3}], v[{d}:{d+3}]")
    A(f"s_sub_u32 s{sCNT}, s{sCNT}, 1")
    A(f"s_cmp_lg_u32 s{sCNT}, 0")
    A("s_cbranch_scc1 L_f2_mm")
    A("s_nop 7")
    for i in range(1, 4):
        A(f"v_cmp_eq_u32 vcc, {i}, v3")
        A("s_nop 1")
        for cb in range(4):
            A(f"v_cndmask_b32 v{vD4+4*cb}, v{vD4+4*cb}, v{vD4+4*cb+i}, vcc")
    for cb in range(4):
        A(f"v_mov_b32 v{vD4+4*cb+1}, s{sTAG}")
    A(f"v_lshlrev_b32 v{vC}, 3, v1")
    A(f"s_and_b32 s{sT0}, s{sC}, 0xfc")
    A(f"s_lshl_b32 s{sT0}, s{sT0}, 2")
    A(f"s_add_u32 s{sT0}, s{sT0}, s{sKQ}")
    A(f"s_lshl_b32 s{sT0}, s{sT0}, 9")
    A(f"s_add_u32 s{sT0}, s{sT0}, {WS_FQ}")
    for cb in range(4):
        A(f"buffer_store_dwordx2 v[{vD4+4*cb}:{vD4+4*cb+1}], v{vC}, s[{WSS}:{WSS+3}], s{sT0} offen sc1")
        A(f"s_add_u32 s{sT0}, s{sT0}, 2048")
    A(f"s_lshl_b32 s{sT0}, s{sC}, 11")
    A(f"s_add_u32 s{sT0}, s{sT0}, {WS_FQ}")
    A("s_waitcnt vmcnt(0)")
    A("s_branch L_p")
    A.label("L_pr")
    A(f"s_sleep {gsleep // 2}")
    A.label("L_p")
    for i in range(4):
        A(f"buffer_load_dwordx2 v[{vH+2*i}:{vH+2*i+1}], v{vC}, s[{WSS}:{WSS+3}], s{sT0} offen offset:{512*i} sc1")
    A("s_waitcnt vmcnt(0)")
    for i in range(4):
        A(f"v_xor_b32 v{vH+2*i+1}, s{sTAG}, v{vH+2*i+1}")
    A(f"v_or3_b32 v{vH+1}, v{vH+1}, v{vH+3}, v{vH+5}")
    A(f"v_or_b32 v{vH+1}, v{vH+1}, v{vH+7}")
    A(f"v_cmp_ne_u32 vcc, 0, v{vH+1}")
    A("s_nop 1")
    A("s_cbranch_vccnz L_pr")
    A(f"s_cmp_lg_u32 s{sROLE}, 128")
    A("s_cbranch_scc1 L_noep")
    A(f"v_mov_b32 v{vC+2}, {WS_EP:#x}")
    A(f"v_mov_b32 v{vC+3}, s{sTAG}")
    A("s_mov_b64 exec, 1")
    A(f"buffer_store_dword v{vC+3}, v{vC+2}, s[{WSS}:{WSS+3}], 0 offen sc1")
    A("s_mov_b64 exec, -1")
    A.label("L_noep")
    A(f"v_add_f32 v20, v{vH}, v{vH+2}")
    A(f"v_add_f32 v21, v{vH+4}, v{vH+6}")
    A("v_add_f32 v20, v20, v21")
    round_bf16([20])
    A(f"s_mov_b32 s{sT1}, {f2u(-L2E):#x}")
    A(f"v_mul_f32 v21, s{sT1}, v20")
    A("v_exp_f32 v21, v21")
    A("s_nop 0")
    A("v_add_f32 v21, 1.0, v21")
    A("v_rcp_f32 v21, v21")
    A("s_nop 0")
    A("v_mul_f32 v21, v21, v20")
    round_bf16([21])
    A(f"ds_write_b32 v{vO1}, v21 offset:{GB}")
    A("s_waitcnt lgkmcnt(0)")
    A.label("L_idle")
    A("s_waitcnt vmcnt(0)")
    stamp(3)
    A("s_barrier")
    stamp(4)
    if stamps: A("s_waitcnt lgkmcnt(0)")
    vML = 14
    vE = 30
    vOV = 64
    vOS = 88
    A(f"v_mov_b32 v{vE}, 0")
    for w in range(0, NS, 2):
        A(f"ds_read_b128 v[{vML+2*w}:{vML+2*w+3}], v{vE} offset:{ML + 8*w}")
    A(f"s_mul_i32 s{sT0}, s{sA}, {RO*4}")
    A(f"v_mul_u32_u24 v{vE+1}, {OT*4}, v3")
    A(f"v_add_u32 v{vE+1}, s{sT0}, v{vE+1}")
    nset = 24 // OT
    def oread(w):
        base = vOV + (w % nset) * OT
        for i in range(OT // 4):
            A(f"ds_read_b128 v[{base+4*i}:{base+4*i+3}], v{vE+1} offset:{OP + 512*w + 16*i}")
    npre = min(NS, nset)
    for w in range(npre):
        oread(w)
    A(f"s_waitcnt lgkmcnt({npre * OT // 4})")
    A(f"v_max_f32 v{vE+2}, v{vML}, v{vML+2}")
    for w in range(2, NS):
        A(f"v_max_f32 v{vE+2}, v{vE+2}, v{vML+2*w}")
    for w in range(NS):
        A(f"v_sub_f32 v{vML+2*w}, v{vML+2*w}, v{vE+2}")
    for w in range(NS):
        A(f"v_mul_f32 v{vML+2*w}, s{sL2E}, v{vML+2*w}")
    for w in range(NS):
        A(f"v_exp_f32 v{vML+2*w}, v{vML+2*w}")
    A("s_nop 0")
    A(f"v_mul_f32 v{vE+3}, v{vML}, v{vML+1}")
    for w in range(1, NS):
        A(f"v_fmac_f32 v{vE+3}, v{vML+2*w}, v{vML+2*w+1}")
    for w in range(NS):
        left = min(NS - 1 - w, npre - 1)
        A(f"s_waitcnt lgkmcnt({left * OT // 4})")
        base = vOV + (w % nset) * OT
        for t in range(OT):
            if w == 0:
                A(f"v_mul_f32 v{vOS+t}, v{base+t}, v{vML}")
            else:
                A(f"v_fmac_f32 v{vOS+t}, v{base+t}, v{vML+2*w}")
        if w + npre < NS:
            oread(w + npre)
    for t in range(OT):
        A(f"v_cvt_pk_bf16_f32 v{vOS+t}, v{vOS+t}, v{vOS+t}")
    vTA = 44
    for t in range(OT):
        aa = vAA + 4 * (t & 1)
        for rr in range(4):
            A(f"v_and_b32 v{aa+rr}, v{vOS+t}, v{MK+rr}")
        A("s_nop 1")
        for seg in range(5):
            r = vW + 4 * (t * 5 + seg)
            d = vTA + 4 * seg
            c = "0" if t == 0 else f"v[{d}:{d+3}]"
            A(f"v_mfma_f32_16x16x32_bf16 v[{d}:{d+3}], v[{aa}:{aa+3}], v[{r}:{r+3}], {c}")
    A(f"s_mul_i32 s{sT0}, s{sA}, 2560")
    A(f"v_lshlrev_b32 v{vE}, 5, v2")
    A(f"v_lshl_add_u32 v{vE}, v3, 4, v{vE}")
    A(f"v_add_u32 v{vE}, s{sT0}, v{vE}")
    A(f"v_lshlrev_b32 v{vE+1}, 4, v0")
    A("s_nop 3")
    A("s_mov_b64 exec, 0xffffffff")
    for seg in range(5):
        d = vTA + 4 * seg
        A(f"ds_write_b128 v{vE}, v[{d}:{d+3}] offset:{TP + 512*seg}")
    A("s_mov_b64 exec, -1")
    A("s_waitcnt lgkmcnt(0)")
    A("s_barrier")
    stamp(5)
    if stamps: A("s_waitcnt lgkmcnt(0)")
    A(f"v_cmp_gt_u32 vcc, 160, v0")
    A(f"s_and_saveexec_b64 s[{sEX}:{sEX+1}], vcc")
    A("s_cbranch_execz L_nopub")
    for a in range(NA):
        A(f"ds_read_b128 v[{64+4*a}:{64+4*a+3}], v{vE+1} offset:{TP + 2560*a}")
    for a in range(1, NA):
        A(f"s_waitcnt lgkmcnt({NA-1-a})")
        for i in range(4):
            A(f"v_add_f32 v{64+i}, v{64+i}, v{64+4*a+i}")
    for i in range(4):
        A(f"v_min_u32 v{64+i}, -2, v{64+i}")
    A(f"buffer_store_dwordx4 v[64:67], v{vTO}, s[{WSS}:{WSS+3}], 0 offen sc1")
    A.label("L_nopub")
    A(f"s_mov_b64 exec, s[{sEX}:{sEX+1}]")
    A(f"v_min_u32 v{vE+2}, -2, v{vE+2}")
    A(f"v_min_u32 v{vE+3}, -2, v{vE+3}")
    A(f"v_cmp_eq_u32 vcc, 192, v0")
    A(f"s_and_saveexec_b64 s[{sEX}:{sEX+1}], vcc")
    A("s_cbranch_execz L_nopub2")
    A(f"buffer_store_dwordx2 v[{vE+2}:{vE+3}], v{vO3}, s[{WSS}:{WSS+3}], 0 offen sc1")
    A.label("L_nopub2")
    A(f"s_mov_b64 exec, s[{sEX}:{sEX+1}]")
    stamp(6)
    if stamps: A("s_waitcnt lgkmcnt(0)")
    A(f"s_sub_u32 s{sT3}, s{sROLE}, 128")
    A(f"s_cmp_ge_u32 s{sT3}, 40")
    A("s_cbranch_scc1 L_fin")
    if nofinal:
        A("s_branch L_fin")
    A(f"s_lshl_b32 s{sT0}, s{sT3}, 2")
    A(f"s_add_u32 s{sT0}, s{sT0}, s{sA}")
    A(f"s_lshl_b32 s{sT0}, s{sT0}, 12")
    A(f"v_lshlrev_b32 v14, 4, v1")
    A(f"s_lshl_b32 s{sT1}, s{sA}, 12")
    A(f"s_add_u32 s{sT1}, s{sT1}, {WS_ML}")
    A(f"v_lshrrev_b32 v15, 3, v1")
    A(f"v_lshlrev_b32 v15, 7, v15")
    A("v_and_b32 v16, 3, v1")
    A("v_lshlrev_b32 v16, 2, v16")
    A("v_and_b32 v17, 1, v3")
    A("v_lshl_add_u32 v16, v17, 1, v16")
    A("v_lshrrev_b32 v17, 1, v3")
    A("v_add_u32 v16, v16, v17")
    A(f"s_mul_i32 s{sT2}, s{sA}, 1280")
    A(f"s_lshl_b32 s{sOFF}, s{sT3}, 5")
    A(f"s_add_u32 s{sT2}, s{sT2}, s{sOFF}")
    A(f"v_lshl_add_u32 v17, v16, 1, s{sT2}")
    A(f"buffer_load_ushort v18, v17, s[{XS}:{XS+3}], 0 offen")
    A(f"s_lshl_b32 s{sOFF}, s{sA}, 6")
    A(f"v_lshl_add_u32 v19, v16, 2, s{sOFF}")
    A(f"ds_read_b32 v19, v19 offset:{GB}")
    srd(OUTS, pOUT, None, 5120)
    vT, vMLp = 96, 112
    A.label("L_poll")
    for n in range(4):
        A(f"buffer_load_dwordx4 v[{vT+4*n}:{vT+4*n+3}], v14, s[{WSS}:{WSS+3}], s{sT0} offen offset:{1024*n} sc1")
    for n in range(4):
        A(f"buffer_load_dwordx4 v[{vMLp+4*n}:{vMLp+4*n+3}], v15, s[{WSS}:{WSS+3}], s{sT1} offen offset:{1024*n} sc1")
    A("s_waitcnt vmcnt(0)")
    A(f"v_max3_u32 v20, v{vT}, v{vT+1}, v{vT+2}")
    A(f"v_max3_u32 v21, v{vT+3}, v{vT+4}, v{vT+5}")
    for i in range(6, 30, 4):
        A(f"v_max3_u32 v20, v20, v{vT+i}, v{vT+i+1}")
        A(f"v_max3_u32 v21, v21, v{vT+i+2}, v{vT+i+3}")
    A(f"v_max3_u32 v20, v20, v{vT+30}, v{vT+31}")
    A("v_max_u32 v20, v20, v21")
    A("v_cmp_eq_u32 vcc, -1, v20")
    A("s_nop 1")
    A("s_cbranch_vccnz L_poll")
    A("v_bfe_u32 v20, v1, 2, 1")
    A("v_cmp_eq_u32 vcc, 1, v20")
    for n in range(4):
        m0, l0, m1, l1 = [vMLp + 4 * n + i for i in range(4)]
        A(f"v_max_f32 v21, v{m0}, v{m1}")
        A(f"v_sub_f32 v{m0}, v{m0}, v21")
        A(f"v_sub_f32 v{m1}, v{m1}, v21")
        A(f"v_mul_f32 v{m0}, s{sL2E}, v{m0}")
        A(f"v_mul_f32 v{m1}, s{sL2E}, v{m1}")
        A(f"v_exp_f32 v{m0}, v{m0}")
        A(f"v_exp_f32 v{m1}, v{m1}")
    A("s_nop 0")
    for n in range(4):
        m0, l0, m1, l1 = [vMLp + 4 * n + i for i in range(4)]
        A(f"v_mul_f32 v{l0}, v{l0}, v{m0}")
        A(f"v_fmac_f32 v{l0}, v{l1}, v{m1}")
        A(f"v_rcp_f32 v{l0}, v{l0}")
        A(f"v_cndmask_b32 v{m0}, v{m0}, v{m1}, vcc")
    A("s_nop 0")
    for n in range(4):
        m0, l0, m1, l1 = [vMLp + 4 * n + i for i in range(4)]
        A(f"v_mul_f32 v{m0}, v{m0}, v{l0}")
    for n in range(4):
        for i in range(4):
            if n == 0:
                A(f"v_mul_f32 v{24+i}, v{vT+i}, v{vMLp}")
            else:
                A(f"v_fmac_f32 v{24+i}, v{vT+4*n+i}, v{vMLp+4*n}")
    A("s_nop 1")
    A("v_permlane32_swap_b32 v24, v25")
    A("v_permlane32_swap_b32 v26, v27")
    A("v_add_f32 v24, v24, v25")
    A("v_add_f32 v26, v26, v27")
    A("s_nop 1")
    A("v_permlane16_swap_b32 v24, v26")
    A("v_add_f32 v24, v24, v26")
    A("s_nop 1")
    A("v_add_f32_dpp v24, v24, v24 row_ror:4 row_mask:0xf bank_mask:0xf")
    A("s_nop 1")
    A("v_add_f32_dpp v24, v24, v24 row_ror:8 row_mask:0xf bank_mask:0xf")
    A("s_waitcnt lgkmcnt(0)")
    round_bf16([24])
    A("v_mul_f32 v24, v24, v19")
    round_bf16([24])
    A("v_lshlrev_b32 v18, 16, v18")
    A("v_add_f32 v24, v24, v18")
    A("v_cvt_pk_bf16_f32 v24, v24, v24")
    A("s_mov_b32 exec_lo, 0x000f000f")
    A("s_mov_b32 exec_hi, 0x000f000f")
    A(f"buffer_store_short v24, v17, s[{OUTS}:{OUTS+3}], 0 offen")
    A("s_mov_b64 exec, -1")
    A.label("L_fin")
    if stamps:
        A("s_waitcnt vmcnt(0)")
        stamp(7)
        A(f"s_cmp_lg_u32 s{sA}, 0")
        A("s_cbranch_scc1 L_end")
        A("s_waitcnt lgkmcnt(0)")
        for i in range(NSTAMP):
            A(f"v_mov_b32 v{20+i}, s{sST+2*i}")
        if dbgst:
            A("s_cmp_eq_u32 s2, 0")
            A("s_cbranch_scc1 L_dbgw")
            A("s_cmp_lg_u32 s2, 255")
            A("s_cbranch_scc1 L_end")
            A.label("L_dbgw")
            for i in range(1, NSTAMP):
                A(f"v_sub_u32 v{20+i}, v{20+i}, v20")
            A("s_and_b32 s61, s2, 32")
            A("v_mov_b32 v30, s61")
            A("s_mov_b64 exec, 1")
            A(f"global_store_dwordx4 v30, v[20:23], s[{pDBG}:{pDBG+1}]")
            A(f"global_store_dwordx4 v30, v[24:27], s[{pDBG}:{pDBG+1}] offset:16")
            A("s_endpgm")
        A(f"s_getreg_b32 s{sT1}, hwreg(HW_REG_XCC_ID)")
        A(f"s_getreg_b32 s{sT2}, hwreg(HW_REG_HW_ID)")
        A(f"s_lshl_b32 s{sT0}, s2, 3")
        A(f"s_add_u32 s{sT0}, s{sT0}, {WS_STAMP + 0x10000}")
        A(f"v_mov_b32 v30, s{sT0}")
        A(f"v_mov_b32 v28, s{sT1}")
        A(f"v_mov_b32 v29, s{sT2}")
        A("s_mov_b64 exec, 1")
        A(f"global_store_dwordx2 v30, v[28:29], s[{pWS}:{pWS+1}]")
        A("s_mov_b64 exec, -1")
        A(f"s_lshl_b32 s{sT0}, s2, 5")
        A(f"s_add_u32 s{sT0}, s{sT0}, {WS_STAMP}")
        A(f"v_mov_b32 v30, s{sT0}")
        A("s_mov_b64 exec, 1")
        A(f"global_store_dwordx4 v30, v[20:23], s[{pWS}:{pWS+1}]")
        A(f"global_store_dwordx4 v30, v[24:27], s[{pWS}:{pWS+1}] offset:16")
    A.label("L_end")
    A("s_endpgm")
    out += A.text()
    nv = max(RING + 32 * DEPTH, vW + 4 * NL, 128)
    assert nv <= 256
    out += f"""
.section .rodata,"a"
.p2align 6
.amdhsa_kernel {NAME}
  .amdhsa_next_free_vgpr {nv}
  .amdhsa_next_free_sgpr 96
  .amdhsa_accum_offset {(nv + 3) // 4 * 4}
  .amdhsa_group_segment_fixed_size 0
  .amdhsa_kernarg_size 96
  .amdhsa_user_sgpr_count 2
  .amdhsa_user_sgpr_kernarg_segment_ptr 1
  .amdhsa_system_sgpr_workgroup_id_x 1
  .amdhsa_float_denorm_mode_32 3
.end_amdhsa_kernel
"""
    return out

if __name__ == "__main__":
    kw = eval("dict(" + (sys.argv[1] if len(sys.argv) > 1 else "") + ")")
    sys.stdout.write(gen(**kw))
```

```python
import sys, struct

NAME = "recurrent_scan__mha_block_cached__geglu_ffn__decode_kernel"

def f2u(x):
    return struct.unpack("<I", struct.pack("<f", x))[0]

HEADER = """; Kernarg layout for this problem (96 bytes, ptrs only, base s[0:1]):
"""

class Gen:
    def __init__(self):
        self.o = []
    def __call__(self, s):
        self.o.append("    " + s)
    def label(self, s):
        self.o.append(s + ":")
    def c(self, s):
        self.o.append("    ; " + s)
    def text(self):
        return "\n".join(self.o) + "\n"


def gen(dbgst=0, tl=0, NS=4, DEPTH=4, kvflags="nt", wqflags="nt", woflags="nt", ffnflags="nt", auxprio=1, stamps=0,
        wqwin=40, wowin=40, f1win=20, f2win=16, shift=0, gsleep=127,
        nowo=0, noffn=0, nowq=0, noaux=0, nosig=0, nofinal=0, bar0=0, badloc=0, cap=0, ffnfirst=0, fine=0, pcap=0, nowqn=0, endn=0, tlbpf=0, tlbflags="nt", evenc=0, hmap=0, rotq=0, pre0=0, bar0at=40, nofp=0, nogather=0, predelay=0, noflagpoll=0, nofpf=None, noclear=0, noclrf=None, boost=0, bcap=1, st4x=0, touchout=1, pb=None, pball=0, who="odd", capv=None):
    A = Gen()
    NA = 4
    NW = NS + NA
    XND = 0
    XNB = XND + 10240
    QP = XNB + 5120
    QB = QP + NA * 512
    OP = QB + NS * 256
    ML = OP + NS * 256
    FLG = ML + 64
    GB = FLG + 16
    TP = GB + 256
    HB = TP + NA * 10240
    WT = HB + 3584
    LDS = WT + 448 * 128
    assert WT % 16 == 0 and HB % 16 == 0 and TP % 16 == 0
    WS_T = 0
    WS_ML = 0xA0000
    WS_H = 0xA4000
    WS_EP = 0xAC000
    WS_HL = 0xB0000
    WS_FQ = 0xB8000
    WS_SIZE = WS_FQ + 160 * 512
    WS_STAMP = 0x200000
    L2E = 1.4426950408889634
    SCALE = 128 ** -0.5

    sWAVE, sX8, sSLOT, sSPLIT, sB, sH = 3, 4, 5, 6, 7, 60
    KS, VS = 8, 12
    WQS, WOS = 8, 12
    WSS = 16
    XS = 20
    F0S, F1S = 24, 28
    OUTS = 32
    P = 36
    pX, pK, pV, pWQ, pWO, pBX, pWG, pWU, pWD, pOUT, pDBG, pWS = [P + 2 * i for i in range(12)]
    sT0, sT1, sT2, sT3 = 61, 62, 63, 64
    sOFF, sCNT, sM, sL2E, sSC, sA, sHS = 65, 66, 67, 68, 69, 70, 71
    sEX = 72
    sTAG, sROLE = 74, 75
    sST = 76
    sNU = 95
    NSTAMP = 8
    def stamp(i):
        if stamps:
            A(f"s_memrealtime s[{sST+2*i}:{sST+2*i+1}]")

    def srd(dst, ptr, add_lo, nrec):
        if add_lo is None:
            A(f"s_mov_b32 s{dst}, s{ptr}")
            A(f"s_mov_b32 s{dst+1}, s{ptr+1}")
        else:
            A(f"s_add_u32 s{dst}, s{ptr}, {add_lo}")
            A(f"s_addc_u32 s{dst+1}, s{ptr+1}, 0")
        A(f"s_mov_b32 s{dst+2}, {nrec}")
        A(f"s_mov_b32 s{dst+3}, 0x20000")

    out = HEADER
    out += f"; @launch grid=(256,1,1) block=({NW*64},1,1) lds={LDS}\n"
    out += '.amdgcn_target "amdgcn-amd-amdhsa--gfx950"\n.text\n'
    out += f".globl {NAME}\n.p2align 8\n.type {NAME},@function\n{NAME}:\n"

    A("s_cmp_ge_u32 s2, 256")
    A("s_cbranch_scc1 L_end")
    stamp(0)
    A(f"s_load_dwordx16 s[{P}:{P+15}], s[0:1], 0")
    A(f"s_load_dwordx8 s[{P+16}:{P+23}], s[0:1], 64")
    A("v_lshrrev_b32 v4, 6, v0")
    A("v_and_b32 v1, 63, v0")
    A(f"v_readfirstlane_b32 s{sWAVE}, v4")
    A("v_and_b32 v2, 15, v1")
    A("v_lshrrev_b32 v3, 4, v1")
    if badloc:
        A(f"s_lshr_b32 s{sX8}, s2, 5")
        A(f"s_and_b32 s{sSLOT}, s2, 31")
    else:
        A(f"s_and_b32 s{sX8}, s2, 7")
        A(f"s_lshr_b32 s{sSLOT}, s2, 3")
    A(f"s_and_b32 s{sSPLIT}, s{sSLOT}, 1")
    A(f"s_lshr_b32 s{sB}, s{sSLOT}, 1")
    A(f"s_and_b32 s{sB}, s{sB}, 3")
    if hmap == "plan2":
        A(f"s_lshr_b32 s{sH}, s{sSLOT}, 3")
        A(f"s_lshl_b32 s{sT0}, s{sX8}, 2")
        A(f"s_add_u32 s{sH}, s{sH}, s{sT0}")
    else:
        A(f"s_lshr_b32 s{sH}, s{sSLOT}, 3")
        A(f"s_mul_i32 s{sT0}, s{sH}, {hmap}")
        A(f"s_add_u32 s{sT0}, s{sT0}, s{sX8}")
        A(f"s_and_b32 s{sT0}, s{sT0}, 7")
        A(f"s_lshl_b32 s{sH}, s{sH}, 3")
        A(f"s_add_u32 s{sH}, s{sH}, s{sT0}")
    A(f"s_mov_b32 s{sL2E}, {f2u(L2E):#x}")
    A(f"s_mov_b32 s{sSC}, {f2u(SCALE):#x}")
    MK = 4
    A("v_and_b32 v8, 1, v2")
    A("v_lshlrev_b32 v8, 4, v8")
    A("v_mov_b32 v9, 0xffff")
    A("v_lshlrev_b32 v8, v8, v9")
    A("v_lshrrev_b32 v9, 1, v2")
    A(f"s_lshr_b32 s{sT0}, 0x15, s{sX8}")
    A(f"s_and_b32 s{sT0}, s{sT0}, 1")
    A(f"s_lshl_b32 s{sT0}, s{sT0}, 2")
    A(f"s_add_u32 s{sNU}, s{sT0}, 12")
    A(f"s_cmp_lt_u32 s{sWAVE}, {NA}")
    A("s_cbranch_scc1 L_aux")

    vKO, vVO = 18, 19
    vM, vL, vNM, vAL, vTM, vT0, vT1 = 10, 11, 12, 13, 14, 15, 16
    vACC = 20
    vS = 24
    vP = 28
    vQ = 32
    vS2 = 40
    vA = 48
    RING = 64
    def kreg(slot, i): return RING + slot * 32 + i * 4
    def vreg(slot, i): return RING + slot * 32 + 16 + i * 4
    A.c("---- streaming wave ----")
    A(f"s_sub_u32 s{sWAVE}, s{sWAVE}, {NA}")
    A(f"v_lshlrev_b32 v{vKO}, 8, v9")
    A(f"v_and_b32 v{vVO}, 1, v2")
    A(f"v_lshl_add_u32 v{vKO}, v{vVO}, 6, v{vKO}")
    A(f"v_lshl_add_u32 v{vKO}, v3, 4, v{vKO}")
    A(f"v_lshlrev_b32 v{vVO}, 9, v3")
    A(f"v_lshl_add_u32 v{vVO}, v2, 4, v{vVO}")
    koff = [0, 128, 2048, 2176]
    voff = [0, 256, 2048, 2304]
    RB = 2 << 20
    STEP = NS * 4096
    A(f"s_lshr_b32 s{sT2}, s{sSLOT}, 1")
    A(f"s_cmp_lt_u32 s{sT2}, s{sNU}")
    A(f"s_cselect_b32 s{sT1}, {shift}, 0")
    A(f"s_add_u32 s{sT1}, s{sT1}, 256")
    A(f"s_sub_u32 s{sT2}, 512, s{sT1}")
    A(f"s_cmp_eq_u32 s{sSPLIT}, 0")
    A(f"s_cselect_b32 s{sCNT}, s{sT1}, s{sT2}")
    A(f"s_cselect_b32 s{sOFF}, 0, s{sT1}")
    A(f"s_add_u32 s{sOFF}, s{sOFF}, s{sWAVE}")
    A(f"s_lshl_b32 s{sOFF}, s{sOFF}, 12")
    A(f"s_sub_u32 s{sCNT}, s{sCNT}, s{sWAVE}")
    A(f"s_add_u32 s{sCNT}, s{sCNT}, {NS-1}")
    A(f"s_lshr_b32 s{sCNT}, s{sCNT}, {NS.bit_length()-1}")
    A(f"s_lshl_b32 s{sT0}, s{sB}, 5")
    A(f"s_add_u32 s{sT0}, s{sT0}, s{sH}")
    A(f"s_lshl_b32 s{sT0}, s{sT0}, 21")
    A("s_waitcnt lgkmcnt(0)")
    srd(KS, pK, f"s{sT0}", RB)
    srd(VS, pV, f"s{sT0}", RB)
    def issueK(slot, w=None):
        for i in range(4):
            r = kreg(slot, i)
            if w is not None and i % fine == 0: A(f"s_waitcnt vmcnt({w - fine})")
            A(f"buffer_load_dwordx4 v[{r}:{r+3}], v{vKO}, s[{KS}:{KS+3}], s{sOFF} offen offset:{koff[i]} {kvflags}")
    def issueV(slot, w=None):
        for i in range(4):
            r = vreg(slot, i)
            if w is not None and i % fine == 0: A(f"s_waitcnt vmcnt({w - fine})")
            A(f"buffer_load_dwordx4 v[{r}:{r+3}], v{vVO}, s[{VS}:{VS+3}], s{sOFF} offen offset:{voff[i]} {kvflags}")
        A(f"s_add_u32 s{sOFF}, s{sOFF}, {STEP}")
    if bar0 and pre0 == 0:
        A("s_barrier")
    def tlb_prefetch():
        n = (1 << 20) // tlbpf
        per = max(1, n // (NS * 64))
        A(f"s_lshl_b32 s{sT1}, s{sSPLIT}, 20")
        A(f"v_lshl_add_u32 v{vT0}, s{sWAVE}, 6, v1")
        A(f"v_cmp_gt_u32 vcc, {n}, v{vT0}")
        A(f"v_mul_u32_u24 v{vT0}, {tlbpf}, v{vT0}")
        A(f"v_mov_b32 v{vT1}, 0x7ffffff0")
        A(f"v_cndmask_b32 v{vT0}, v{vT1}, v{vT0}, vcc")
        for i in range(per):
            A(f"buffer_load_dword v{vP}, v{vT0}, s[{KS}:{KS+3}], s{sT1} offen {tlbflags}")
            A(f"buffer_load_dword v{vP+1}, v{vT0}, s[{VS}:{VS+3}], s{sT1} offen {tlbflags}")
            A(f"s_add_u32 s{sT1}, s{sT1}, {NS*64*tlbpf}")
    for s in range(DEPTH):
        issueK(s, pcap if pcap else None)
        if bar0 and pre0 == 8 * s + 4:
            A("s_barrier")
        issueV(s, pcap if pcap else None)
        if bar0 and pre0 == 8 * s + 8:
            A("s_barrier")
        if s == 0 and tlbpf:
            tlb_prefetch()
    for rr in range(4):
        A(f"v_cmp_eq_u32 vcc, {rr+4}, v9")
        A("s_nop 1")
        A(f"v_cndmask_b32 v{MK+rr}, 0, v8, vcc")
    A(f"v_mov_b32 v{vM}, 0xff7fffff")
    A(f"v_mov_b32 v{vL}, 0")
    for i in range(4):
        A(f"v_mov_b32 v{vACC+i}, 0")
    A(f"v_lshlrev_b32 v{vT0}, 3, v1")
    A(f"s_lshl_b32 s{sT0}, s{sWAVE}, 8")
    A(f"s_add_u32 s{sT0}, s{sT0}, {QB}")
    A(f"v_lshl_add_u32 v{vT1}, v1, 2, s{sT0}")
    A(f"v_lshl_add_u32 v{vTM}, v3, 4, s{sT0}")
    A(f"v_lshrrev_b32 v{vAL}, 3, v2")
    A(f"v_lshl_add_u32 v{vTM}, v{vAL}, 6, v{vTM}")
    vEA, vEB = 8, 9
    A(f"s_lshl_b32 s{sT1}, s{sWAVE}, 8")
    A(f"s_add_u32 s{sT1}, s{sT1}, {OP - 16}")
    A(f"v_lshlrev_b32 v{vEA}, 4, v2")
    A(f"v_lshl_add_u32 v{vEA}, v3, 3, v{vEA}")
    A(f"v_add_u32 v{vEA}, s{sT1}, v{vEA}")
    A(f"s_lshl_b32 s{sT1}, s{sWAVE}, 3")
    A(f"s_add_u32 s{sT1}, s{sT1}, {ML}")
    A(f"v_mov_b32 v{vEB}, s{sT1}")
    A("s_barrier")
    for a in range(NA):
        A(f"ds_read_b64 v[{vA+2*a}:{vA+2*a+1}], v{vT0} offset:{QP + a*512}")
    A("s_waitcnt lgkmcnt(0)")
    for a in range(1, NA):
        A(f"v_add_f32 v{vA}, v{vA}, v{vA+2*a}")
        A(f"v_add_f32 v{vA+1}, v{vA+1}, v{vA+2*a+1}")
    A(f"v_cvt_pk_bf16_f32 v{vA}, v{vA}, v{vA+1}")
    A(f"ds_write_b32 v{vT1}, v{vA}")
    A("s_waitcnt lgkmcnt(0)")
    for j in range(2):
        A(f"ds_read_b128 v[{vQ+4*j}:{vQ+4*j+3}], v{vTM} offset:{128*j}")
    A("s_waitcnt lgkmcnt(0)")
    if pb:
        if pball:
            A(f"s_mov_b32 s{sT3}, {pb[0]}")
        else:
            A(f"s_lshr_b32 s{sT2}, s{sSLOT}, 1")
            A(f"s_cmp_lt_u32 s{sT2}, s{sNU}")
            A(f"s_cselect_b32 s{sT3}, {pb[0]}, 0x1000")
            A(f"s_cmp_eq_u32 s{sSPLIT}, 0")
            A(f"s_cselect_b32 s{sT3}, s{sT3}, 0x1000")
    if boost:
        A(f"s_getreg_b32 s{sT3}, hwreg(HW_REG_XCC_ID)")
        A(f"s_and_b32 s{sT3}, s{sT3}, 1")
        if who == "odd":
            A(f"s_sub_u32 s{sT3}, s{sT3}, 1")
        elif who == "even":
            A(f"s_sub_u32 s{sT3}, 0, s{sT3}")
        else:
            A(f"s_mov_b32 s{sT3}, 0")
    A.label("L_loop")
    W = 8 * DEPTH - 4
    for s in range(DEPTH):
        A(f"s_cmp_le_u32 s{sCNT}, {DEPTH}")
        A(f"s_cselect_b32 s{KS+2}, 0, {RB}")
        A(f"s_cselect_b32 s{VS+2}, 0, {RB}")
        A(f"s_waitcnt vmcnt({W})")
        for (j, d, qj) in ((0, vS2, 0), (2, vS2 + 4, 0), (1, vS2, 1), (3, vS2 + 4, 1)):
            r = kreg(s, j)
            c = "0" if qj == 0 else f"v[{d}:{d+3}]"
            A(f"v_mfma_f32_16x16x32_bf16 v[{d}:{d+3}], v[{r}:{r+3}], v[{vQ+4*qj}:{vQ+4*qj+3}], {c}")
        if cap:
            A(f"s_cmp_le_u32 s{sCNT}, {max(DEPTH, endn)}")
            A(f"s_cbranch_scc1 L_ck{s}")
            if fine:
                if boost or pb:
                    if pb:
                        A(f"s_sub_u32 s{sT0}, s{sCNT}, s{sT3}")
                        A(f"s_cmp_lt_u32 s{sT0}, {pb[1] - pb[0]}")
                    else:
                        A(f"s_and_b32 s{sT0}, s{sCNT}, {boost - 1}")
                        A(f"s_cmp_eq_u32 s{sT0}, s{sT3}")
                    A(f"s_cbranch_scc0 L_ck3{s}")
                    issueK(s, cap + bcap)
                    A(f"s_branch L_ck2{s}")
                    A.label(f"L_ck3{s}")
                issueK(s, cap)
                A(f"s_branch L_ck2{s}")
            else:
                A(f"s_waitcnt vmcnt({cap - 4})")
            A.label(f"L_ck{s}")
        issueK(s)
        A.label(f"L_ck2{s}")
        A("s_nop 3")
        for i in range(4):
            A(f"v_add_f32_dpp v{vS+i}, v{vS2+2*i}, v{vS2+2*i+1} row_ror:8 row_mask:0xf bank_mask:0xf")
        A(f"v_cvt_pk_bf16_f32 v{vT0}, v{vS}, v{vS+1}")
        A(f"v_cvt_pk_bf16_f32 v{vT1}, v{vS+2}, v{vS+3}")
        A(f"v_lshlrev_b32 v{vP}, 16, v{vT0}")
        A(f"v_and_b32 v{vP+1}, 0xffff0000, v{vT0}")
        A(f"v_lshlrev_b32 v{vP+2}, 16, v{vT1}")
        A(f"v_and_b32 v{vP+3}, 0xffff0000, v{vT1}")
        for i in range(4):
            A(f"v_mul_f32 v{vP+i}, s{sSC}, v{vP+i}")
        A(f"v_cvt_pk_bf16_f32 v{vT0}, v{vP}, v{vP+1}")
        A(f"v_cvt_pk_bf16_f32 v{vT1}, v{vP+2}, v{vP+3}")
        A(f"v_lshlrev_b32 v{vP}, 16, v{vT0}")
        A(f"v_and_b32 v{vP+1}, 0xffff0000, v{vT0}")
        A(f"v_lshlrev_b32 v{vP+2}, 16, v{vT1}")
        A(f"v_and_b32 v{vP+3}, 0xffff0000, v{vT1}")
        A(f"v_max3_f32 v{vTM}, v{vP}, v{vP+1}, v{vM}")
        A(f"v_max3_f32 v{vTM}, v{vP+2}, v{vP+3}, v{vTM}")
        A("s_nop 1")
        A(f"v_max_f32_dpp v{vTM}, v{vTM}, v{vTM} row_bcast:15 row_mask:0xa bank_mask:0xf")
        A("s_nop 1")
        A(f"v_max_f32_dpp v{vTM}, v{vTM}, v{vTM} row_bcast:31 row_mask:0xc bank_mask:0xf")
        A("s_nop 0")
        A(f"v_readlane_b32 s{sM}, v{vTM}, 63")
        A(f"v_mov_b32 v{vNM}, s{sL2E}")
        A("s_nop 0")
        A(f"v_mul_f32 v{vNM}, s{sM}, v{vNM}")
        for i in range(4):
            A(f"v_fma_f32 v{vP+i}, v{vP+i}, s{sL2E}, -v{vNM}")
        A(f"v_fma_f32 v{vAL}, v{vM}, s{sL2E}, -v{vNM}")
        for i in range(4):
            A(f"v_exp_f32 v{vP+i}, v{vP+i}")
        A(f"v_exp_f32 v{vAL}, v{vAL}")
        A(f"v_mov_b32 v{vM}, s{sM}")
        A(f"v_add_f32 v{vT0}, v{vP}, v{vP+1}")
        A(f"v_add_f32 v{vT1}, v{vP+2}, v{vP+3}")
        for i in range(4):
            A(f"v_cvt_pk_bf16_f32 v{vP+i}, v{vP+i}, v{vP+i}")
        A(f"v_add_f32 v{vT0}, v{vT0}, v{vT1}")
        A(f"v_fma_f32 v{vL}, v{vL}, v{vAL}, v{vT0}")
        for i in range(4):
            A(f"v_mul_f32 v{vACC+i}, v{vACC+i}, v{vAL}")
        for i in range(4):
            for rr in range(4):
                A(f"v_and_b32 v{vA+4*i+rr}, v{vP+i}, v{MK+rr}")
        A(f"s_waitcnt vmcnt({W})")
        A("s_nop 0")
        for i in range(4):
            r = vreg(s, i)
            A(f"v_mfma_f32_16x16x32_bf16 v[{vACC}:{vACC+3}], v[{vA+4*i}:{vA+4*i+3}], v[{r}:{r+3}], v[{vACC}:{vACC+3}]")
        if not tl:
            A(f"s_cmp_eq_u32 s{sCNT}, 1")
            A("s_cbranch_scc1 L_sdone")
        if cap:
            A(f"s_cmp_le_u32 s{sCNT}, {max(DEPTH, endn)}")
            A(f"s_cbranch_scc1 L_cv{s}")
            if fine:
                if boost or pb:
                    if pb:
                        A(f"s_sub_u32 s{sT0}, s{sCNT}, s{sT3}")
                        A(f"s_cmp_lt_u32 s{sT0}, {pb[1] - pb[0]}")
                    else:
                        A(f"s_and_b32 s{sT0}, s{sCNT}, {boost - 1}")
                        A(f"s_cmp_eq_u32 s{sT0}, s{sT3}")
                    A(f"s_cbranch_scc0 L_cv3{s}")
                    issueV(s, cap + bcap)
                    A(f"s_branch L_cv2{s}")
                    A.label(f"L_cv3{s}")
                issueV(s, capv if capv else cap)
                A(f"s_branch L_cv2{s}")
            else:
                A(f"s_waitcnt vmcnt({cap - 4})")
            A.label(f"L_cv{s}")
        issueV(s)
        A.label(f"L_cv2{s}")
        if tl:
            A("s_memrealtime s[92:93]")
            A(f"s_and_b32 m0, s{sCNT}, 63")
            A("s_waitcnt lgkmcnt(0)")
            A("v_writelane_b32 v17, s92, m0")
        A(f"s_sub_u32 s{sCNT}, s{sCNT}, 1")
        A(f"s_cmp_eq_u32 s{sCNT}, 0")
        if s < DEPTH - 1:
            A("s_cbranch_scc1 L_sdone")
        else:
            A("s_cbranch_scc0 L_loop")
    A.label("L_sdone")
    A(f"v_add_f32_dpp v{vL}, v{vL}, v{vL} row_bcast:15 row_mask:0xa bank_mask:0xf")
    A("s_nop 1")
    A(f"v_add_f32_dpp v{vL}, v{vL}, v{vL} row_bcast:31 row_mask:0xc bank_mask:0xf")
    A("s_mov_b32 exec_lo, 0")
    A("s_mov_b32 exec_hi, 0x80000000")
    A(f"ds_write_b64 v{vEB}, v[{vM}:{vM+1}]")
    A("s_mov_b32 exec_hi, -1")
    A(f"v_cvt_pk_bf16_f32 v{vACC}, v{vACC}, v{vACC+1}")
    A(f"v_cvt_pk_bf16_f32 v{vACC+1}, v{vACC+2}, v{vACC+3}")
    A(f"ds_write_b64 v{vEA}, v[{vACC}:{vACC+1}]")
    A("s_mov_b64 exec, -1")
    A("s_waitcnt lgkmcnt(0)")
    A("s_barrier")
    if tl:
        A(f"s_lshl_b32 s{sT0}, s2, 2")
        A(f"s_add_u32 s{sT0}, s{sT0}, s{sWAVE}")
        A(f"s_lshl_b32 s{sT0}, s{sT0}, 8")
        A(f"s_add_u32 s{sT0}, s{sT0}, 0x300000")
        A(f"v_lshl_add_u32 v16, v1, 2, s{sT0}")
        A(f"global_store_dword v16, v17, s[{pWS}:{pWS+1}]")
    A("s_endpgm")

    A.label("L_aux")
    A.c("---- aux wave ----")
    NL = 160 // NA
    RW = 640 // NA
    RT = RW // 4
    RO = 128 // NA
    OT = RO // 4
    vTO = 13
    vO1, vO2, vO3 = 10, 11, 12
    vX = 14
    vF = 20
    vC = 30
    vAA = 36
    vQA = 44
    vX2 = 48
    vXD = 56
    vW = 96
    if auxprio:
        A(f"s_setprio {auxprio}")
    A(f"s_mov_b32 s{sA}, s{sWAVE}")
    if noaux:
        A("s_waitcnt lgkmcnt(0)")
        if bar0: A("s_barrier")
        stamp(1)
        A("s_barrier")
        stamp(2); stamp(3)
        A("s_barrier")
        stamp(4); stamp(5); stamp(6)
        A("s_branch L_fin")
    A(f"v_lshlrev_b32 v{vO1}, 2, v1")
    A(f"v_mul_u32_u24 v{vO2}, {RT*8192}, v3")
    A(f"v_lshl_add_u32 v{vO2}, v2, 4, v{vO2}")
    A(f"s_mul_i32 s{sT0}, s{sA}, 1280")
    A(f"s_mul_i32 s{sT3}, s{sB}, 1280")
    A(f"s_lshl_b32 s{sT1}, s{sH}, 8")
    A(f"s_mul_i32 s{sT2}, s{sA}, {RW*8192}")
    A(f"s_add_u32 s{sT1}, s{sT1}, s{sT2}")
    A(f"s_sub_u32 s{sT2}, {640*8192}, s{sT1}")
    A("s_waitcnt lgkmcnt(0)")
    srd(XS, pX, None, 5120)
    for i in range(5):
        A(f"buffer_load_dword v{vX+i}, v{vO1}, s[{XS}:{XS+3}], s{sT3} offen offset:{256*i}")
    for i in range(5):
        A(f"buffer_load_dword v{vX2+i}, v{vO1}, s[{XS}:{XS+3}], s{sT0} offen offset:{256*i}")
    A(f"s_load_dword s{sTAG}, s[{pWS}:{pWS+1}], {WS_EP:#x}")
    srd(WQS, pWQ, f"s{sT1}", 0 if nowq else f"s{sT2}")
    if rotq:
        A(f"s_and_b32 s{sHS}, s{sSLOT}, 7")
        A(f"s_mul_i32 s{sHS}, s{sHS}, 5")
        A(f"s_lshr_b32 s{sHS}, s{sHS}, 2")
        A(f"s_lshl_b32 s{sOFF}, s{sHS}, 15")
    else:
        A(f"s_mov_b32 s{sOFF}, 0")
    def wq_issue(t):
        r = vW + 4 * t
        A(f"buffer_load_dwordx4 v[{r}:{r+3}], v{vO2}, s[{WQS}:{WQS+3}], s{sOFF} offen {wqflags}")
        A(f"s_add_u32 s{sOFF}, s{sOFF}, 8192")
        if rotq and t % 4 == 3:
            A(f"s_cmp_eq_u32 s{sOFF}, {RT*8192}")
            A(f"s_cselect_b32 s{sOFF}, 0, s{sOFF}")
    NLQ = nowqn if nowqn else NL
    wqwin = min(wqwin, NLQ)
    for t in range(wqwin):
        wq_issue(t)
        if bar0 and t == min(wqwin, bar0at) - 1:
            A("s_barrier")
    A("v_and_b32 v9, 3, v9")
    for rr in range(4):
        A(f"v_cmp_eq_u32 vcc, {rr}, v9")
        A("s_nop 1")
        A(f"v_cndmask_b32 v{MK+rr}, 0, v8, vcc")
    def wave_sum(v, s):
        for sh in (1, 2, 4, 8):
            A("s_nop 1")
            A(f"v_add_f32_dpp v{v}, v{v}, v{v} row_shr:{sh} row_mask:0xf bank_mask:0xf bound_ctrl:0")
        A("s_nop 1")
        A(f"v_add_f32_dpp v{v}, v{v}, v{v} row_bcast:15 row_mask:0xa bank_mask:0xf")
        A("s_nop 1")
        A(f"v_add_f32_dpp v{v}, v{v}, v{v} row_bcast:31 row_mask:0xc bank_mask:0xf")
        A("s_nop 0")
        A(f"v_readlane_b32 s{s}, v{v}, 63")
        A("s_nop 1")
    def layernorm(vX, dup):
        for i in range(5):
            A(f"v_lshlrev_b32 v{vF+2*i}, 16, v{vX+i}")
            A(f"v_and_b32 v{vF+2*i+1}, 0xffff0000, v{vX+i}")
        A(f"v_add_f32 v{vC+4}, v{vF}, v{vF+1}")
        for i in range(2, 10):
            A(f"v_add_f32 v{vC+4}, v{vC+4}, v{vF+i}")
        wave_sum(vC + 4, sT0)
        A(f"v_mov_b32 v{vC+5}, {f2u(1.0/640):#x}")
        A(f"v_mul_f32 v{vC+4}, s{sT0}, v{vC+5}")
        A(f"v_sub_f32 v{vC}, v{vF}, v{vC+4}")
        A(f"v_mul_f32 v{vC+1}, v{vC}, v{vC}")
        for i in range(1, 10):
            A(f"v_sub_f32 v{vC}, v{vF+i}, v{vC+4}")
            A(f"v_fmac_f32 v{vC+1}, v{vC}, v{vC}")
        wave_sum(vC + 1, sT0)
        A(f"v_mul_f32 v{vC+1}, s{sT0}, v{vC+5}")
        A(f"v_cvt_pk_bf16_f32 v{vC}, v{vC+4}, v{vC+1}")
        A(f"v_lshlrev_b32 v{vC+4}, 16, v{vC}")
        A(f"v_and_b32 v{vC+1}, 0xffff0000, v{vC}")
        A(f"v_add_f32 v{vC+1}, {f2u(1e-5):#x}, v{vC+1}")
        A(f"v_cvt_pk_bf16_f32 v{vC+1}, v{vC+1}, v{vC+1}")
        A(f"v_and_b32 v{vC+1}, 0xffff0000, v{vC+1}")
        A(f"v_sqrt_f32 v{vC+1}, v{vC+1}")
        A("s_nop 0")
        A(f"v_cvt_pk_bf16_f32 v{vC+1}, v{vC+1}, v{vC+1}")
        A(f"v_and_b32 v{vC+1}, 0xffff0000, v{vC+1}")
        A(f"v_rcp_f32 v{vC+1}, v{vC+1}")
        for i in range(10):
            A(f"v_sub_f32 v{vF+i}, v{vF+i}, v{vC+4}")
        if dup:
            A(f"s_mul_i32 s{sT2}, s{sA}, 2560")
            A(f"v_lshl_add_u32 v{vC+3}, v1, 3, s{sT2}")
        else:
            A(f"s_mul_i32 s{sT1}, s{sA}, 1280")
            A(f"v_add_u32 v{vC+2}, s{sT1}, v{vO1}")
        for i in range(5):
            A(f"v_cvt_pk_bf16_f32 v{vX+i}, v{vF+2*i}, v{vF+2*i+1}")
            A(f"v_lshlrev_b32 v{vF+2*i}, 16, v{vX+i}")
            A(f"v_and_b32 v{vF+2*i+1}, 0xffff0000, v{vX+i}")
            A(f"v_mul_f32 v{vF+2*i}, v{vF+2*i}, v{vC+1}")
            A(f"v_mul_f32 v{vF+2*i+1}, v{vF+2*i+1}, v{vC+1}")
            if dup:
                A(f"v_cvt_pk_bf16_f32 v{vF+2*i}, v{vF+2*i}, v{vF+2*i}")
                A(f"v_cvt_pk_bf16_f32 v{vF+2*i+1}, v{vF+2*i+1}, v{vF+2*i+1}")
                A(f"ds_write_b64 v{vC+3}, v[{vF+2*i}:{vF+2*i+1}] offset:{XND + 512*i}")
            else:
                A(f"v_cvt_pk_bf16_f32 v{vX+i}, v{vF+2*i}, v{vF+2*i+1}")
                A(f"ds_write_b32 v{vC+2}, v{vX+i} offset:{XNB + 256*i}")
    A(f"s_waitcnt vmcnt({wqwin + 5})")
    layernorm(vX, True)
    stamp(1)
    A(f"s_mul_i32 s{sT1}, s{sA}, {RW*4}")
    A(f"s_add_u32 s{sT0}, s{sT2}, s{sT1}")
    A(f"v_mul_u32_u24 v{vX}, {RT*4}, v3")
    A(f"v_add_u32 v{vX}, s{sT0}, v{vX}")
    A("s_waitcnt lgkmcnt(0)")
    if rotq:
        A(f"s_lshl_b32 s{sT1}, s{sHS}, 4")
        for i in range(RT // 4):
            A(f"v_add_u32 v{vX+1+(i&1)}, s{sT1}, v{vX}")
            A(f"s_add_u32 s{sT1}, s{sT1}, 16")
            A(f"ds_read_b128 v[{vXD+4*i}:{vXD+4*i+3}], v{vX+1+(i&1)} offset:{XND}")
            A(f"s_cmp_eq_u32 s{sT1}, {RT*4}")
            A(f"s_cselect_b32 s{sT1}, 0, s{sT1}")
    else:
        for i in range(RT // 4):
            A(f"ds_read_b128 v[{vXD+4*i}:{vXD+4*i+3}], v{vX} offset:{XND + 16*i}")
    A("s_waitcnt lgkmcnt(0)")
    for t in range(NLQ):
        aa = vAA + 4 * (t & 1)
        for rr in range(4):
            A(f"v_and_b32 v{aa+rr}, v{vXD+t}, v{MK+rr}")
        issued = min(NLQ, wqwin + t)
        A(f"s_waitcnt vmcnt({issued - 1 - t})")
        if wqwin + t < NLQ:
            wq_issue(wqwin + t)
        else:
            A("s_nop 0")
        r = vW + 4 * t
        c = "0" if t == 0 else f"v[{vQA}:{vQA+3}]"
        A(f"v_mfma_f32_16x16x32_bf16 v[{vQA}:{vQA+3}], v[{aa}:{aa+3}], v[{r}:{r+3}], {c}")
    A(f"s_lshl_b32 s{sT0}, s{sA}, 9")
    A(f"s_add_u32 s{sT0}, s{sT0}, {QP}")
    A(f"v_lshlrev_b32 v{vC}, 5, v2")
    A(f"v_lshl_add_u32 v{vC}, v3, 4, v{vC}")
    A(f"v_add_u32 v{vC}, s{sT0}, v{vC}")
    A("s_nop 3")
    A("s_mov_b64 exec, 0xffffffff")
    A(f"ds_write_b128 v{vC}, v[{vQA}:{vQA+3}]")
    A("s_mov_b64 exec, -1")
    A(f"s_lshl_b32 s{sT0}, s{sA}, 2")
    A(f"v_mov_b32 v{vC+1}, s{sT0}")
    A(f"v_mov_b32 v{vC+2}, 0")
    A(f"ds_write_b32 v{vC+1}, v{vC+2} offset:{FLG}")
    A("s_waitcnt lgkmcnt(0)")
    A("s_barrier")
    stamp(2)
    layernorm(vX2, False)
    srd(WSS, pWS, None, WS_SIZE)
    A(f"s_mul_i32 s{sTAG}, s{sTAG}, 0x9e3779b1")
    A(f"s_add_u32 s{sTAG}, s{sTAG}, 0x7f4a7c15")
    A(f"s_lshl_b32 s{sHS}, s{sH}, 1")
    A(f"s_add_u32 s{sHS}, s{sHS}, s{sSPLIT}")
    A(f"s_lshl_b32 s{sT0}, s{sB}, 6")
    A(f"s_add_u32 s{sT0}, s{sT0}, s{sHS}")
    A(f"s_lshl_b32 s{sT1}, s{sT0}, 6")
    A(f"v_lshrrev_b32 v{vTO}, 2, v0")
    A(f"v_lshlrev_b32 v{vTO}, 14, v{vTO}")
    A(f"v_and_b32 v{vC}, 3, v0")
    A(f"v_lshl_add_u32 v{vTO}, v{vC}, 4, v{vTO}")
    A(f"v_add_u32 v{vTO}, s{sT1}, v{vTO}")
    A(f"s_lshr_b32 s{sT1}, s{sT0}, 1")
    A(f"s_lshl_b32 s{sT1}, s{sT1}, 7")
    A(f"s_lshl_b32 s{sT2}, s{sSPLIT}, 3")
    A(f"s_add_u32 s{sT1}, s{sT1}, s{sT2}")
    A(f"s_add_u32 s{sT1}, s{sT1}, {WS_ML}")
    A(f"v_mov_b32 v{vO3}, s{sT1}")
    for i in range(4):
        A(f"v_mov_b32 v{vC+i}, -1")
    A(f"v_cmp_gt_u32 vcc, 160, v0")
    A(f"s_and_saveexec_b64 s[{sEX}:{sEX+1}], vcc")
    A("s_cbranch_execz L_noclr")
    if not noclear:
        A(f"buffer_store_dwordx4 v[{vC}:{vC+3}], v{vTO}, s[{WSS}:{WSS+3}], 0 offen {'sc1' if noclrf is None else noclrf}")
    A.label("L_noclr")
    A(f"s_mov_b64 exec, s[{sEX}:{sEX+1}]")
    A(f"v_cmp_eq_u32 vcc, 192, v0")
    A(f"s_and_saveexec_b64 s[{sEX}:{sEX+1}], vcc")
    A("s_cbranch_execz L_noclr2")
    A(f"buffer_store_dwordx2 v[{vC}:{vC+1}], v{vO3}, s[{WSS}:{WSS+3}], 0 offen sc1")
    A.label("L_noclr2")
    A(f"s_mov_b64 exec, s[{sEX}:{sEX+1}]")
    A("s_waitcnt vmcnt(0) lgkmcnt(0)")
    A(f"s_lshl_b32 s{sT0}, s{sA}, 2")
    A(f"v_mov_b32 v{vC}, s{sT0}")
    A(f"v_mov_b32 v{vC+1}, 1")
    A(f"ds_write_b32 v{vC}, v{vC+1} offset:{FLG}")
    A(f"s_add_u32 s{sT0}, s{sX8}, 1")
    A(f"s_lshr_b32 s{sT0}, s{sT0}, 1")
    A(f"s_min_u32 s{sT0}, s{sT0}, 3")
    A(f"s_lshr_b32 s{sT1}, s{sSLOT}, 1")
    A(f"s_mul_i32 s{sT2}, s{sX8}, 12")
    A(f"s_lshl_b32 s{sT3}, s{sT0}, 2")
    A(f"s_add_u32 s{sT2}, s{sT2}, s{sT3}")
    A(f"s_add_u32 s{sT2}, s{sT2}, s{sT1}")
    A(f"s_cmp_eq_u32 s{sSPLIT}, 1")
    A(f"s_cselect_b32 s{sT2}, s{sT2}, 255")
    A(f"s_sub_u32 s{sT3}, s{sX8}, s{sT0}")
    A(f"s_lshl_b32 s{sT3}, s{sT3}, 3")
    A(f"s_add_u32 s{sT3}, s{sT3}, s{sSLOT}")
    A(f"s_add_u32 s{sT3}, s{sT3}, {128 - 24}")
    A(f"s_cmp_lt_u32 s{sT1}, s{sNU}")
    A(f"s_cselect_b32 s{sROLE}, s{sT2}, s{sT3}")
    def wo_load():
        vPH = 36
        A(f"s_mul_i32 s{sT0}, s{sH}, {128*1280}")
        srd(WOS, pWO, f"s{sT0}", 128 * 1280)
        A(f"s_mul_i32 s{sT1}, s{sA}, 320")
        A(f"s_mov_b32 s{sT2}, 52429")
        for p in range(5):
            A(f"v_add_u32 v{vPH+p}, {64*p}, v1")
            A(f"v_mul_u32_u24 v41, s{sT2}, v{vPH+p}")
            A("v_lshrrev_b32 v41, 20, v41")
            A(f"v_mul_u32_u24 v42, {1280 - 320}, v41")
            A(f"v_lshl_add_u32 v{vPH+p}, v{vPH+p}, 4, v42")
            A(f"v_add_u32 v{vPH+p}, s{sT1}, v{vPH+p}")
        A(f"s_mul_i32 s{sT1}, s{sA}, 10240")
        A(f"s_add_u32 s{sT1}, s{sT1}, {TP}")
        A("v_lshrrev_b32 v41, 2, v2")
        A("v_lshl_add_u32 v41, v3, 3, v41")
        A("v_mul_u32_u24 v41, 320, v41")
        A("v_and_b32 v42, 3, v1")
        A("v_lshl_add_u32 v41, v42, 3, v41")
        A(f"v_add_u32 v41, s{sT1}, v41")
        A(f"s_mov_b32 s{sOFF}, 0")
        for ks in range(4):
            for i in range(10):
                A(f"s_add_u32 m0, s{sT1}, {1024*i}")
                if i == 5:
                    A(f"s_add_u32 s{sOFF}, s{sOFF}, {16*1280}")
                else:
                    A("s_nop 0")
                if not nowo:
                    A(f"buffer_load_dwordx4 v{vPH+i%5}, s[{WOS}:{WOS+3}], s{sOFF} offen {woflags} lds")
                A(f"s_waitcnt vmcnt({wowin - 1})")
            A(f"s_add_u32 s{sOFF}, s{sOFF}, {16*1280}")
            A("s_waitcnt vmcnt(0)")
            for cb in range(10):
                r = vW + 4 * (cb * 4 + ks)
                A(f"ds_read_b64_tr_b16 v[{r}:{r+1}], v41 offset:{32*cb}")
                A(f"ds_read_b64_tr_b16 v[{r+2}:{r+3}], v41 offset:{32*cb + 1280}")
                if cb == 5:
                    A("s_waitcnt lgkmcnt(4)")
            A("s_waitcnt lgkmcnt(0)")
    vTR, vAO = 14, 15
    vFA, vFB, vFD = 20, 24, 28
    def round_bf16(regs):
        for v in regs:
            A(f"v_cvt_pk_bf16_f32 v{v}, v{v}, v{v}")
        for v in regs:
            A(f"v_and_b32 v{v}, 0xffff0000, v{v}")
    A(f"s_cmp_lg_u32 s{sA}, 0")
    A("s_cbranch_scc1 L_wo")
    A(f"v_mov_b32 v{vC+4}, 0")
    A.label("L_flg")
    A(f"ds_read_b128 v[{vFA}:{vFA+3}], v{vC+4} offset:{FLG}")
    A("s_waitcnt lgkmcnt(0)")
    A(f"v_add3_u32 v{vFA}, v{vFA}, v{vFA+1}, v{vFA+2}")
    A(f"v_add_u32 v{vFA}, v{vFA}, v{vFA+3}")
    A(f"v_cmp_ne_u32 vcc, 4, v{vFA}")
    A("s_nop 1")
    A("s_cbranch_vccnz L_flg")
    A(f"s_lshl_b32 s{sT3}, s2, 7")
    A(f"s_add_u32 s{sT3}, s{sT3}, {WS_H}")
    A(f"v_mov_b32 v{vC+4}, s{sT3}")
    A(f"v_mov_b32 v{vC+5}, s{sTAG}")
    A("s_mov_b64 exec, 1")
    A(f"buffer_store_dword v{vC+5}, v{vC+4}, s[{WSS}:{WSS+3}], 0 offen sc1")
    A("s_mov_b64 exec, -1")
    A.label("L_wo")
    wo_load()
    A(f"s_cmp_lg_u32 s{sA}, 0")
    A("s_cbranch_scc1 L_idle")
    if nosig:
        A("s_branch L_idle")
    A(f"s_cmp_eq_u32 s{sROLE}, 255")
    A("s_cbranch_scc1 L_idle")
    A(f"s_cmp_ge_u32 s{sROLE}, 128")
    A("s_cbranch_scc1 L_f2")
    A.c("F1 unit: 16 columns of gate/up for all 4 batches")
    vFU = 32
    A(f"s_lshl_b32 s{sT0}, s{sROLE}, 5")
    srd(F0S, pWG, None, 640 * 3456)
    srd(F1S, pWU, None, 640 * 3456)
    A(f"v_lshrrev_b32 v{vC}, 1, v1")
    A(f"v_mul_u32_u24 v{vC}, 3456, v{vC}")
    A(f"v_and_b32 v{vC+1}, 1, v1")
    A(f"v_lshl_add_u32 v{vC}, v{vC+1}, 4, v{vC}")
    A(f"v_add_u32 v{vC}, s{sT0}, v{vC}")
    A(f"s_mov_b32 s{sOFF}, 0")
    A(f"s_mov_b32 s{sT1}, {WT}")
    A(f"s_mov_b32 s{sCNT}, 20")
    A.label("L_f1_ld")
    A(f"s_mov_b32 m0, s{sT1}")
    A(f"s_add_u32 s{sT2}, s{sT1}, 20480")
    if not noffn:
        A(f"buffer_load_dwordx4 v{vC}, s[{F0S}:{F0S+3}], s{sOFF} offen {ffnflags} lds")
    A(f"s_waitcnt vmcnt({f1win - 1})")
    A(f"s_mov_b32 m0, s{sT2}")
    A(f"s_add_u32 s{sT1}, s{sT1}, 1024")
    if not noffn:
        A(f"buffer_load_dwordx4 v{vC}, s[{F1S}:{F1S+3}], s{sOFF} offen {ffnflags} lds")
    A(f"s_add_u32 s{sOFF}, s{sOFF}, {32*3456}")
    A(f"s_waitcnt vmcnt({f1win - 1})")
    A(f"s_sub_u32 s{sCNT}, s{sCNT}, 1")
    A(f"s_cmp_lg_u32 s{sCNT}, 0")
    A("s_cbranch_scc1 L_f1_ld")
    A(f"v_lshrrev_b32 v{vC+1}, 2, v2")
    A(f"v_lshl_add_u32 v{vC+1}, v3, 3, v{vC+1}")
    A(f"v_lshlrev_b32 v{vTR}, 5, v{vC+1}")
    A(f"v_and_b32 v{vC+1}, 3, v1")
    A(f"v_lshl_add_u32 v{vTR}, v{vC+1}, 3, v{vTR}")
    A(f"v_add_u32 v{vTR}, {WT}, v{vTR}")
    A(f"v_mul_u32_u24 v{vAO}, 1280, v{vC+1}")
    A(f"v_lshl_add_u32 v{vAO}, v3, 4, v{vAO}")
    A(f"v_add_u32 v{vAO}, {XNB}, v{vAO}")
    for i in range(4):
        A(f"v_mov_b32 v{vFD+i}, 0")
        A(f"v_mov_b32 v{vFU+i}, 0")
    A(f"s_mov_b32 s{sCNT}, 20")
    A("s_waitcnt vmcnt(0)")
    vFB2 = 36
    A.label("L_f1_mm")
    A(f"ds_read_b128 v[{vFA}:{vFA+3}], v{vAO}")
    A(f"ds_read_b64_tr_b16 v[{vFB}:{vFB+1}], v{vTR}")
    A(f"ds_read_b64_tr_b16 v[{vFB+2}:{vFB+3}], v{vTR} offset:128")
    A(f"ds_read_b64_tr_b16 v[{vFB2}:{vFB2+1}], v{vTR} offset:20480")
    A(f"ds_read_b64_tr_b16 v[{vFB2+2}:{vFB2+3}], v{vTR} offset:{20480+128}")
    A(f"v_add_u32 v{vAO}, 64, v{vAO}")
    A(f"v_add_u32 v{vTR}, 1024, v{vTR}")
    A("s_waitcnt lgkmcnt(0)")
    A(f"v_mfma_f32_16x16x32_bf16 v[{vFD}:{vFD+3}], v[{vFA}:{vFA+3}], v[{vFB}:{vFB+3}], v[{vFD}:{vFD+3}]")
    A(f"v_mfma_f32_16x16x32_bf16 v[{vFU}:{vFU+3}], v[{vFA}:{vFA+3}], v[{vFB2}:{vFB2+3}], v[{vFU}:{vFU+3}]")
    A(f"s_sub_u32 s{sCNT}, s{sCNT}, 1")
    A(f"s_cmp_lg_u32 s{sCNT}, 0")
    A("s_cbranch_scc1 L_f1_mm")
    A("s_nop 7")
    for i in range(1, 4):
        A(f"v_cmp_eq_u32 vcc, {i}, v3")
        A("s_nop 1")
        A(f"v_cndmask_b32 v{vFD}, v{vFD}, v{vFD+i}, vcc")
        A(f"v_cndmask_b32 v{vFU}, v{vFU}, v{vFU+i}, vcc")
    round_bf16([vFD, vFU])
    K0 = 0.7978845608028654
    A(f"s_mov_b32 s{sT0}, {f2u(0.044715):#x}")
    A(f"s_mov_b32 s{sT1}, {f2u(-2.0 * K0 * L2E):#x}")
    A(f"v_mul_f32 v{vFA}, v{vFD}, v{vFD}")
    A(f"v_fma_f32 v{vFA}, v{vFA}, s{sT0}, 1.0")
    A(f"v_mul_f32 v{vFA}, v{vFA}, v{vFD}")
    A(f"v_mul_f32 v{vFA}, s{sT1}, v{vFA}")
    A(f"v_exp_f32 v{vFA}, v{vFA}")
    A("s_nop 0")
    A(f"v_add_f32 v{vFA}, 1.0, v{vFA}")
    A(f"v_rcp_f32 v{vFA}, v{vFA}")
    A("s_nop 0")
    A(f"v_mul_f32 v{vFA}, v{vFA}, v{vFD}")
    round_bf16([vFA])
    A(f"v_mul_f32 v{vFA}, v{vFA}, v{vFU}")
    A(f"s_lshl_b32 s{sT0}, s{sROLE}, 8")
    A(f"s_add_u32 s{sT0}, s{sT0}, {WS_HL}")
    A(f"v_mov_b32_dpp v{vFB}, v{vFA} quad_perm:[1,0,3,2] row_mask:0xf bank_mask:0xf")
    A(f"v_cvt_pk_bf16_f32 v{vFA}, v{vFA}, v{vFB}")
    A(f"v_mov_b32 v{vFA+1}, s{sTAG}")
    A("s_mov_b32 exec_lo, 0x55555555")
    A("s_mov_b32 exec_hi, 0x55555555")
    A(f"buffer_store_dwordx2 v[{vFA}:{vFA+1}], v{vO1}, s[{WSS}:{WSS+3}], s{sT0} offen sc1")
    A("s_mov_b64 exec, -1")
    A("s_branch L_idle")

    A.label("L_f2")
    A.c("F2 job: 64 columns x one quarter of K of the down projection, then the gate of 16 columns")
    sC, sKQ, sST_, sN = sT3, sHS, sM, sSC
    A(f"s_sub_u32 s{sC}, s{sROLE}, 128")
    A(f"s_and_b32 s{sKQ}, s{sC}, 3")
    A(f"s_mul_i32 s{sST_}, s{sKQ}, 14")
    A(f"s_cmp_eq_u32 s{sKQ}, 3")
    A(f"s_cselect_b32 s{sST_}, 41, s{sST_}")
    A(f"s_lshr_b32 s{sN}, s{sKQ}, 1")
    A(f"s_sub_u32 s{sN}, 14, s{sN}")
    srd(F0S, pWD, None, 1728 * 1280)
    A(f"s_lshr_b32 s{sT0}, s{sC}, 2")
    A(f"s_lshl_b32 s{sT0}, s{sT0}, 7")
    A(f"v_lshrrev_b32 v{vC}, 3, v1")
    A(f"v_mul_u32_u24 v{vC}, 1280, v{vC}")
    A(f"v_and_b32 v{vC+1}, 7, v1")
    A(f"v_lshl_add_u32 v{vC}, v{vC+1}, 4, v{vC}")
    A(f"v_add_u32 v{vC}, s{sT0}, v{vC}")
    A(f"s_mul_i32 s{sOFF}, s{sST_}, {32*1280}")
    A(f"s_mov_b32 s{sT1}, {WT}")
    A(f"s_lshl_b32 s{sCNT}, s{sN}, 2")
    A.label("L_f2_ld")
    A(f"s_mov_b32 m0, s{sT1}")
    A(f"s_add_u32 s{sT1}, s{sT1}, 1024")
    if not noffn:
        A(f"buffer_load_dwordx4 v{vC}, s[{F0S}:{F0S+3}], s{sOFF} offen {ffnflags} lds")
    A(f"s_add_u32 s{sOFF}, s{sOFF}, {8*1280}")
    A(f"s_waitcnt vmcnt({f2win - 1})")
    A(f"s_sub_u32 s{sCNT}, s{sCNT}, 1")
    A(f"s_cmp_lg_u32 s{sCNT}, 0")
    A("s_cbranch_scc1 L_f2_ld")
    vH = 36
    A(f"s_lshl_b32 s{sT0}, s{sST_}, 1")
    A(f"s_min_u32 s{sT1}, s{sT0}, 80")
    A(f"s_sub_u32 s{sT2}, s{sT0}, s{sT1}")
    A(f"s_lshl_b32 s{sT2}, s{sT2}, 5")
    A(f"s_lshl_b32 s{sT1}, s{sT1}, 8")
    A(f"s_add_u32 s{sT1}, s{sT1}, {WS_HL}")
    A(f"s_lshl_b32 s{sT0}, s{sKQ}, 13")
    A(f"s_add_u32 s{sT0}, s{sT0}, {WS_H}")
    A(f"v_lshlrev_b32 v{vC}, 4, v1")
    A(f"v_lshlrev_b32 v{vC+1}, 7, v1")
    A(f"v_lshrrev_b32 v{vC+2}, 2, v2")
    A(f"v_mul_u32_u24 v{vC+2}, 896, v{vC+2}")
    A(f"v_lshl_add_u32 v{vC+2}, v3, 5, v{vC+2}")
    A(f"v_and_b32 v{vC+3}, 3, v1")
    A(f"v_lshl_add_u32 v{vC+2}, v{vC+3}, 3, v{vC+2}")
    A(f"s_add_u32 s{sOFF}, s{sT1}, 4096")
    A("s_branch L_g")
    A.label("L_gr")
    A(f"s_sleep {gsleep}")
    A.label("L_g")
    for i in range(7):
        A(f"buffer_load_dwordx4 v[{vH+4*i}:{vH+4*i+3}], v{vC}, s[{WSS}:{WSS+3}], s{sT1 if i < 4 else sOFF} offen offset:{1024*(i&3)} sc1")
    A(f"buffer_load_dword v{vH+28}, v{vC+1}, s[{WSS}:{WSS+3}], s{sT0} offen sc1")
    A("s_waitcnt vmcnt(0)")
    A(f"v_xor_b32 v{vH+28}, s{sTAG}, v{vH+28}")
    for i in range(7):
        A(f"v_xor_b32 v{vH+4*i+1}, s{sTAG}, v{vH+4*i+1}")
        A(f"v_xor_b32 v{vH+4*i+3}, s{sTAG}, v{vH+4*i+3}")
        A(f"v_or3_b32 v{vH+28}, v{vH+28}, v{vH+4*i+1}, v{vH+4*i+3}")
    A(f"v_cmp_ne_u32 vcc, 0, v{vH+28}")
    A("s_nop 1")
    A("s_cbranch_vccnz L_gr")
    for i in range(7):
        A(f"v_mov_b32 v{vH+4*i+1}, v{vH+4*i+2}")
        A(f"ds_write_b64 v{vC+2}, v[{vH+4*i}:{vH+4*i+1}] offset:{HB + 128*i}")
    A(f"v_lshrrev_b32 v{vC+4}, 2, v2")
    A(f"v_lshl_add_u32 v{vC+4}, v3, 3, v{vC+4}")
    A(f"v_lshlrev_b32 v{vTR}, 7, v{vC+4}")
    A(f"v_lshl_add_u32 v{vTR}, v{vC+3}, 3, v{vTR}")
    A(f"v_add_u32 v{vTR}, {WT}, v{vTR}")
    A(f"v_mul_u32_u24 v{vAO}, 896, v{vC+3}")
    A(f"v_lshl_add_u32 v{vAO}, v3, 4, v{vAO}")
    A(f"v_add_u32 v{vAO}, s{sT2}, v{vAO}")
    A("s_waitcnt lgkmcnt(0)")
    vB4, vD4 = 36, 52
    for i in range(16):
        A(f"v_mov_b32 v{vD4+i}, 0")
    A(f"s_mov_b32 s{sCNT}, s{sN}")
    A.label("L_f2_mm")
    A(f"ds_read_b128 v[{vFA}:{vFA+3}], v{vAO} offset:{HB}")
    for cb in range(4):
        A(f"ds_read_b64_tr_b16 v[{vB4+4*cb}:{vB4+4*cb+1}], v{vTR} offset:{32*cb}")
        A(f"ds_read_b64_tr_b16 v[{vB4+4*cb+2}:{vB4+4*cb+3}], v{vTR} offset:{32*cb+512}")
    A(f"v_add_u32 v{vAO}, 64, v{vAO}")
    A(f"v_add_u32 v{vTR}, 4096, v{vTR}")
    A("s_waitcnt lgkmcnt(0)")
    for cb in range(4):
        d = vD4 + 4 * cb
        A(f"v_mfma_f32_16x16x32_bf16 v[{d}:{d+3}], v[{vFA}:{vFA+3}], v[{vB4+4*cb}:{vB4+4*cb+3}], v[{d}:{d+3}]")
    A(f"s_sub_u32 s{sCNT}, s{sCNT}, 1")
    A(f"s_cmp_lg_u32 s{sCNT}, 0")
    A("s_cbranch_scc1 L_f2_mm")
    A("s_nop 7")
    for i in range(1, 4):
        A(f"v_cmp_eq_u32 vcc, {i}, v3")
        A("s_nop 1")
        for cb in range(4):
            A(f"v_cndmask_b32 v{vD4+4*cb}, v{vD4+4*cb}, v{vD4+4*cb+i}, vcc")
    for cb in range(4):
        A(f"v_mov_b32 v{vD4+4*cb+1}, s{sTAG}")
    A(f"v_lshlrev_b32 v{vC}, 3, v1")
    A(f"s_and_b32 s{sT0}, s{sC}, 0xfc")
    A(f"s_lshl_b32 s{sT0}, s{sT0}, 2")
    A(f"s_add_u32 s{sT0}, s{sT0}, s{sKQ}")
    A(f"s_lshl_b32 s{sT0}, s{sT0}, 9")
    A(f"s_add_u32 s{sT0}, s{sT0}, {WS_FQ}")
    for cb in range(4):
        A(f"buffer_store_dwordx2 v[{vD4+4*cb}:{vD4+4*cb+1}], v{vC}, s[{WSS}:{WSS+3}], s{sT0} offen sc1")
        A(f"s_add_u32 s{sT0}, s{sT0}, 2048")
    A(f"s_lshl_b32 s{sT0}, s{sC}, 11")
    A(f"s_add_u32 s{sT0}, s{sT0}, {WS_FQ}")
    A("s_waitcnt vmcnt(0)")
    A("s_branch L_p")
    A.label("L_pr")
    A(f"s_sleep {gsleep // 2}")
    A.label("L_p")
    for i in range(4):
        A(f"buffer_load_dwordx2 v[{vH+2*i}:{vH+2*i+1}], v{vC}, s[{WSS}:{WSS+3}], s{sT0} offen offset:{512*i} sc1")
    A("s_waitcnt vmcnt(0)")
    for i in range(4):
        A(f"v_xor_b32 v{vH+2*i+1}, s{sTAG}, v{vH+2*i+1}")
    A(f"v_or3_b32 v{vH+1}, v{vH+1}, v{vH+3}, v{vH+5}")
    A(f"v_or_b32 v{vH+1}, v{vH+1}, v{vH+7}")
    A(f"v_cmp_ne_u32 vcc, 0, v{vH+1}")
    A("s_nop 1")
    A("s_cbranch_vccnz L_pr")
    A(f"s_cmp_lg_u32 s{sROLE}, 128")
    A("s_cbranch_scc1 L_noep")
    A(f"v_mov_b32 v{vC+2}, {WS_EP:#x}")
    A(f"v_mov_b32 v{vC+3}, s{sTAG}")
    A("s_mov_b64 exec, 1")
    A(f"buffer_store_dword v{vC+3}, v{vC+2}, s[{WSS}:{WSS+3}], 0 offen sc1")
    A("s_mov_b64 exec, -1")
    A.label("L_noep")
    A(f"v_add_f32 v20, v{vH}, v{vH+2}")
    A(f"v_add_f32 v21, v{vH+4}, v{vH+6}")
    A("v_add_f32 v20, v20, v21")
    round_bf16([20])
    A(f"s_mov_b32 s{sT1}, {f2u(-L2E):#x}")
    A(f"v_mul_f32 v21, s{sT1}, v20")
    A("v_exp_f32 v21, v21")
    A("s_nop 0")
    A("v_add_f32 v21, 1.0, v21")
    A("v_rcp_f32 v21, v21")
    A("s_nop 0")
    A("v_mul_f32 v21, v21, v20")
    round_bf16([21])
    A(f"ds_write_b32 v{vO1}, v21 offset:{GB}")
    A("s_waitcnt lgkmcnt(0)")
    A.label("L_idle")
    vML = 20
    vE = 28
    vAd = 30
    vZ = 31
    vSO = 32
    vOUT = 33
    vOA = 36
    vTA = 52
    A(f"v_and_b32 v{vAd}, 3, v1")
    A(f"v_lshlrev_b32 v{vAd}, 8, v{vAd}")
    A(f"v_lshl_add_u32 v{vAd}, v3, 4, v{vAd}")
    A(f"v_mov_b32 v{vZ}, 0")
    A(f"s_lshl_b32 s{sT0}, s{sB}, 5")
    A(f"s_add_u32 s{sT0}, s{sT0}, s{sH}")
    A(f"s_lshl_b32 s{sT0}, s{sT0}, 1")
    A(f"s_add_u32 s{sT0}, s{sT0}, s{sSPLIT}")
    A(f"s_lshl_b32 s{sT0}, s{sT0}, 6")
    A(f"s_mul_i32 s{sT1}, s{sA}, {10*16384}")
    A(f"s_add_u32 s{sT0}, s{sT0}, s{sT1}")
    A(f"v_lshlrev_b32 v{vSO}, 14, v3")
    A(f"v_lshl_add_u32 v{vSO}, v2, 2, v{vSO}")
    A(f"v_add_u32 v{vSO}, s{sT0}, v{vSO}")
    A(f"s_mov_b32 s{sCNT}, {4*16384}")
    vSO2 = 92
    sGM = F0S
    A(f"v_add_u32 v{vSO2}, {8*16384}, v{vSO}")
    A("v_mov_b32 v93, 0x7ffffff0")
    A("v_cmp_gt_u32 vcc, 32, v1")
    A(f"s_mov_b32 s{sGM}, 0xffff0000")
    A(f"s_mov_b32 s{sGM+1}, 0")
    A(f"v_cndmask_b32 v{vSO2}, v93, v{vSO2}, vcc")
    A("v_cmp_eq_u32 vcc, 192, v0")
    A(f"s_mov_b32 s{sGM+2}, 0")
    A(f"s_mov_b32 s{sGM+3}, 0xffff")
    A(f"v_cndmask_b32 v{vO3}, v93, v{vO3}, vcc")
    A(f"s_mov_b32 s{sGM+4}, 0")
    A(f"s_mov_b32 s{sGM+5}, 0xffff0000")
    A(f"s_sub_u32 s{sT3}, s{sROLE}, 128")
    A(f"s_lshl_b32 s{sT0}, s{sT3}, 2")
    A(f"s_add_u32 s{sT0}, s{sT0}, s{sA}")
    A(f"s_lshl_b32 s{sT0}, s{sT0}, 12")
    A(f"v_lshlrev_b32 v14, 4, v1")
    A(f"s_lshl_b32 s{sT1}, s{sA}, 12")
    A(f"s_add_u32 s{sT1}, s{sT1}, {WS_ML}")
    A(f"v_lshrrev_b32 v15, 3, v1")
    A(f"v_lshlrev_b32 v15, 7, v15")
    A("v_and_b32 v16, 3, v1")
    A("v_lshlrev_b32 v16, 2, v16")
    A("v_and_b32 v17, 1, v3")
    A("v_lshl_add_u32 v16, v17, 1, v16")
    A("v_lshrrev_b32 v17, 1, v3")
    A("v_add_u32 v16, v16, v17")
    A(f"s_mul_i32 s{sT2}, s{sA}, 1280")
    A(f"s_lshl_b32 s{sOFF}, s{sT3}, 5")
    A(f"s_add_u32 s{sT2}, s{sT2}, s{sOFF}")
    A(f"v_lshl_add_u32 v17, v16, 1, s{sT2}")
    A(f"s_lshl_b32 s{sOFF}, s{sA}, 6")
    A(f"v_lshl_add_u32 v19, v16, 2, s{sOFF}")
    srd(OUTS, pOUT, None, 5120)
    A(f"s_cmp_ge_u32 s{sT3}, 40")
    A("s_cbranch_scc1 L_nopre")
    A(f"buffer_load_ushort v18, v17, s[{XS}:{XS+3}], 0 offen")
    if touchout:
        A(f"buffer_load_ushort v94, v17, s[{OUTS}:{OUTS+3}], 0 offen")
    A.label("L_nopre")
    A("s_waitcnt vmcnt(0)")
    stamp(3)
    A("s_barrier")
    stamp(4)
    if stamps: A("s_waitcnt lgkmcnt(0)")
    for ks in range(4):
        A(f"ds_read_b128 v[{vOA+4*ks}:{vOA+4*ks+3}], v{vAd} offset:{OP + 64*ks}")
    for w in range(0, NS, 2):
        A(f"ds_read_b128 v[{vML+2*w}:{vML+2*w+3}], v{vZ} offset:{ML + 8*w}")
    queue = []
    slot = [0]
    def emit(x):
        A(x); slot[0] += 1
    def drain(budget):
        while queue and budget > 0 and queue[0][0] <= slot[0]:
            _, x, wgt = queue.pop(0)
            emit(x); budget -= wgt
    def push(xs, earliest=0, wgt=1):
        for x in xs: queue.append((earliest, x, wgt))
    push(["s_waitcnt lgkmcnt(0)"], wgt=0)
    push([f"v_max3_f32 v{vE}, v{vML}, v{vML+2}, v{vML+4}", f"v_max_f32 v{vE}, v{vE}, v{vML+6}"])
    push([f"v_sub_f32 v{vML+2*w}, v{vML+2*w}, v{vE}" for w in range(4)])
    push([f"v_mul_f32 v{vML+2*w}, s{sL2E}, v{vML+2*w}" for w in range(4)])
    push([f"v_exp_f32 v{vML+2*w}, v{vML+2*w}" for w in range(4)], wgt=2)
    push([f"v_min_u32 v{vE}, -2, v{vE}", f"v_mul_f32 v{vE+1}, v{vML}, v{vML+1}"])
    push([f"v_fmac_f32 v{vE+1}, v{vML+2*w}, v{vML+2*w+1}" for w in range(1, 4)])
    push([f"v_min_u32 v{vE+1}, -2, v{vE+1}",
          f"buffer_store_dwordx2 v[{vE}:{vE+1}], v{vO3}, s[{WSS}:{WSS+3}], 0 offen sc1"])
    def comb(cb):
        q, g = divmod(cb, 4)
        d = vTA + 4 * cb
        tgt = vOUT + q if g == 0 else d
        r = [f"v_mul_f32 v{tgt}, v{d}, v{vML}"] + [f"v_fmac_f32 v{tgt}, v{d+w}, v{vML+2*w}" for w in range(1, 4)]
        if g:
            r.append(f"v_cndmask_b32 v{vOUT+q}, v{vOUT+q}, v{d}, s[{sGM+2*(g-1)}:{sGM+2*(g-1)+1}]")
        if g == 3 or cb == 9:
            so = ("0", f"s{sCNT}", "0")[q]
            vo = vSO if q < 2 else vSO2
            r += [f"v_min_u32 v{vOUT+q}, -2, v{vOUT+q}",
                  f"buffer_store_dword v{vOUT+q}, v{vo}, s[{WSS}:{WSS+3}], {so} offen sc1"]
        return r
    for cb in range(10):
        for ks in range(4):
            if cb == 0:
                emit(f"s_waitcnt lgkmcnt({5 - ks})")
            r = vW + 4 * (cb * 4 + ks)
            d = vTA + 4 * cb
            c = "0" if ks == 0 else f"v[{d}:{d+3}]"
            emit(f"v_mfma_f32_16x16x32_bf16 v[{d}:{d+3}], v[{vOA+4*ks}:{vOA+4*ks+3}], v[{r}:{r+3}], {c}")
            if ks == 3:
                push(comb(cb), earliest=slot[0] + 8)
            if cb > 0 or ks == 3:
                drain(2)
    while queue:
        gap = queue[0][0] - slot[0]
        if gap > 0:
            A(f"s_nop {gap - 1}"); slot[0] += gap
        drain(100)
    stamp(6)
    A(f"s_cmp_ge_u32 s{sT3}, 40")
    A("s_cbranch_scc1 L_fin")
    if nofinal:
        A("s_branch L_fin")
    A(f"ds_read_b32 v19, v19 offset:{GB}")
    vT, vMLp = 96, 112
    A.label("L_poll")
    for n in range(4):
        A(f"buffer_load_dwordx4 v[{vT+4*n}:{vT+4*n+3}], v14, s[{WSS}:{WSS+3}], s{sT0} offen offset:{1024*n} sc1")
    for n in range(4):
        A(f"buffer_load_dwordx4 v[{vMLp+4*n}:{vMLp+4*n+3}], v15, s[{WSS}:{WSS+3}], s{sT1} offen offset:{1024*n} sc1")
    A("s_waitcnt vmcnt(0)")
    A(f"v_max3_u32 v20, v{vT}, v{vT+1}, v{vT+2}")
    A(f"v_max3_u32 v21, v{vT+3}, v{vT+4}, v{vT+5}")
    for i in range(6, 30, 4):
        A(f"v_max3_u32 v20, v20, v{vT+i}, v{vT+i+1}")
        A(f"v_max3_u32 v21, v21, v{vT+i+2}, v{vT+i+3}")
    A(f"v_max3_u32 v20, v20, v{vT+30}, v{vT+31}")
    A("v_max_u32 v20, v20, v21")
    A("v_cmp_eq_u32 vcc, -1, v20")
    A("s_nop 1")
    A("s_cbranch_vccnz L_poll")
    stamp(5)
    A("v_bfe_u32 v20, v1, 2, 1")
    A("v_cmp_eq_u32 vcc, 1, v20")
    for n in range(4):
        m0, l0, m1, l1 = [vMLp + 4 * n + i for i in range(4)]
        A(f"v_max_f32 v21, v{m0}, v{m1}")
        A(f"v_sub_f32 v{m0}, v{m0}, v21")
        A(f"v_sub_f32 v{m1}, v{m1}, v21")
        A(f"v_mul_f32 v{m0}, s{sL2E}, v{m0}")
        A(f"v_mul_f32 v{m1}, s{sL2E}, v{m1}")
        A(f"v_exp_f32 v{m0}, v{m0}")
        A(f"v_exp_f32 v{m1}, v{m1}")
    A("s_nop 0")
    for n in range(4):
        m0, l0, m1, l1 = [vMLp + 4 * n + i for i in range(4)]
        A(f"v_mul_f32 v{l0}, v{l0}, v{m0}")
        A(f"v_fmac_f32 v{l0}, v{l1}, v{m1}")
        A(f"v_rcp_f32 v{l0}, v{l0}")
        A(f"v_cndmask_b32 v{m0}, v{m0}, v{m1}, vcc")
    A("s_nop 0")
    for n in range(4):
        m0, l0, m1, l1 = [vMLp + 4 * n + i for i in range(4)]
        A(f"v_mul_f32 v{m0}, v{m0}, v{l0}")
    for n in range(4):
        for i in range(4):
            if n == 0:
                A(f"v_mul_f32 v{24+i}, v{vT+i}, v{vMLp}")
            else:
                A(f"v_fmac_f32 v{24+i}, v{vT+4*n+i}, v{vMLp+4*n}")
    A("s_nop 1")
    A("v_permlane32_swap_b32 v24, v25")
    A("v_permlane32_swap_b32 v26, v27")
    A("v_add_f32 v24, v24, v25")
    A("v_add_f32 v26, v26, v27")
    A("s_nop 1")
    A("v_permlane16_swap_b32 v24, v26")
    A("v_add_f32 v24, v24, v26")
    A("s_nop 1")
    A("v_add_f32_dpp v24, v24, v24 row_ror:4 row_mask:0xf bank_mask:0xf")
    A("s_nop 1")
    A("v_add_f32_dpp v24, v24, v24 row_ror:8 row_mask:0xf bank_mask:0xf")
    A("s_waitcnt lgkmcnt(0)")
    round_bf16([24])
    A("v_mul_f32 v24, v24, v19")
    round_bf16([24])
    A("v_lshlrev_b32 v18, 16, v18")
    A("v_add_f32 v24, v24, v18")
    A("v_cvt_pk_bf16_f32 v24, v24, v24")
    A("s_mov_b32 exec_lo, 0x000f000f")
    A("s_mov_b32 exec_hi, 0x000f000f")
    A(f"buffer_store_short v24, v17, s[{OUTS}:{OUTS+3}], 0 offen")
    A("s_mov_b64 exec, -1")
    A.label("L_fin")
    if stamps:
        A("s_waitcnt vmcnt(0)")
        stamp(7)
        A(f"s_cmp_lg_u32 s{sA}, 0")
        A("s_cbranch_scc1 L_end")
        A("s_waitcnt lgkmcnt(0)")
        for i in range(NSTAMP):
            A(f"v_mov_b32 v{20+i}, s{sST+2*i}")
        if dbgst:
            A("s_cmp_eq_u32 s2, 0")
            A("s_cbranch_scc1 L_dbgw")
            A("s_cmp_lg_u32 s2, 255")
            A("s_cbranch_scc1 L_end")
            A.label("L_dbgw")
            for i in range(1, NSTAMP):
                A(f"v_sub_u32 v{20+i}, v{20+i}, v20")
            A("s_and_b32 s61, s2, 32")
            A("v_mov_b32 v30, s61")
            A("s_mov_b64 exec, 1")
            A(f"global_store_dwordx4 v30, v[20:23], s[{pDBG}:{pDBG+1}]")
            A(f"global_store_dwordx4 v30, v[24:27], s[{pDBG}:{pDBG+1}] offset:16")
            A("s_endpgm")
        A(f"s_getreg_b32 s{sT1}, hwreg(HW_REG_XCC_ID)")
        A(f"s_getreg_b32 s{sT2}, hwreg(HW_REG_HW_ID)")
        A(f"s_lshl_b32 s{sT0}, s2, 3")
        A(f"s_add_u32 s{sT0}, s{sT0}, {WS_STAMP + 0x10000}")
        A(f"v_mov_b32 v30, s{sT0}")
        A(f"v_mov_b32 v28, s{sT1}")
        A(f"v_mov_b32 v29, s{sT2}")
        A("s_mov_b64 exec, 1")
        A(f"global_store_dwordx2 v30, v[28:29], s[{pWS}:{pWS+1}]")
        A("s_mov_b64 exec, -1")
        A(f"s_lshl_b32 s{sT0}, s2, 5")
        A(f"s_add_u32 s{sT0}, s{sT0}, {WS_STAMP}")
        A(f"v_mov_b32 v30, s{sT0}")
        A("s_mov_b64 exec, 1")
        A(f"global_store_dwordx4 v30, v[20:23], s[{pWS}:{pWS+1}]")
        A(f"global_store_dwordx4 v30, v[24:27], s[{pWS}:{pWS+1}] offset:16")
    A.label("L_end")
    A("s_endpgm")
    out += A.text()
    nv = max(RING + 32 * DEPTH, vW + 4 * NL, 128)
    assert nv <= 256
    out += f"""
.section .rodata,"a"
.p2align 6
.amdhsa_kernel {NAME}
  .amdhsa_next_free_vgpr {nv}
  .amdhsa_next_free_sgpr 96
  .amdhsa_accum_offset {(nv + 3) // 4 * 4}
  .amdhsa_group_segment_fixed_size 0
  .amdhsa_kernarg_size 96
  .amdhsa_user_sgpr_count 2
  .amdhsa_user_sgpr_kernarg_segment_ptr 1
  .amdhsa_system_sgpr_workgroup_id_x 1
  .amdhsa_float_denorm_mode_32 3
.end_amdhsa_kernel
"""
    return out

if __name__ == "__main__":
    kw = eval("dict(" + (sys.argv[1] if len(sys.argv) > 1 else "") + ")")
    sys.stdout.write(gen(**kw))
```

```python
import sys, struct

NAME = "recurrent_scan__mha_block_cached__geglu_ffn__decode_kernel"

def f2u(x):
    return struct.unpack("<I", struct.pack("<f", x))[0]

HEADER = """; Kernarg layout for this problem (96 bytes, ptrs only, base s[0:1]):
"""

class Gen:
    def __init__(self):
        self.o = []
    def __call__(self, s):
        self.o.append("    " + s)
    def label(self, s):
        self.o.append(s + ":")
    def c(self, s):
        self.o.append("    ; " + s)
    def text(self):
        return "\n".join(self.o) + "\n"


def gen(dbgst=0, tl=0, NS=4, DEPTH=4, kvflags="nt", wqflags="nt", woflags="nt", ffnflags="nt", auxprio=1, stamps=0,
        wqwin=40, wowin=40, f1win=20, f2win=16, shift=0, gsleep=127,
        nowo=0, noffn=0, nowq=0, noaux=0, nosig=0, nofinal=0, bar0=0, badloc=0, cap=0, ffnfirst=0, fine=0, pcap=0, nowqn=0, endn=0, tlbpf=0, tlbflags="nt", evenc=0, hmap=0, rotq=0, pre0=0, bar0at=40, nofp=0, nogather=0, predelay=0, noflagpoll=0, nofpf=None, noclear=0, noclrf=None, boost=0, bcap=1, st4x=0, touchout=1, pb=None, pball=0, who="odd", capv=None, R=4):
    A = Gen()
    NA = 4
    NW = NS + NA
    XND = 0
    XNB = XND + 10240
    QP = XNB + 5120
    QB = QP + NA * 512
    OP = QB + NS * 256
    ML = OP + NS * 256
    FLG = ML + 64
    GB = FLG + 16
    HB = GB + 256
    SC = HB + 3584
    TP = SC + NS * 2304
    WT = TP + NA * 10240
    LDS = WT + 448 * 128
    assert WT % 16 == 0 and HB % 16 == 0 and TP % 16 == 0
    WS_T = 0
    WS_ML = 0xA0000
    WS_H = 0xA4000
    WS_EP = 0xAC000
    WS_HL = 0xB0000
    WS_FQ = 0xB8000
    WS_SIZE = WS_FQ + 160 * 512
    WS_STAMP = 0x200000
    L2E = 1.4426950408889634
    SCALE = 128 ** -0.5

    sWAVE, sX8, sSLOT, sSPLIT, sB, sH = 3, 4, 5, 6, 7, 60
    KS, VS = 8, 12
    WQS, WOS = 8, 12
    WSS = 16
    XS = 20
    F0S, F1S = 24, 28
    OUTS = 32
    P = 36
    pX, pK, pV, pWQ, pWO, pBX, pWG, pWU, pWD, pOUT, pDBG, pWS = [P + 2 * i for i in range(12)]
    sT0, sT1, sT2, sT3 = 61, 62, 63, 64
    sOFF, sCNT, sM, sL2E, sSC, sA, sHS = 65, 66, 67, 68, 69, 70, 71
    sEX = 72
    sTAG, sROLE = 74, 75
    sST = 76
    sNU = 95
    NSTAMP = 8
    def stamp(i):
        if stamps:
            A(f"s_memrealtime s[{sST+2*i}:{sST+2*i+1}]")

    def srd(dst, ptr, add_lo, nrec):
        if add_lo is None:
            A(f"s_mov_b32 s{dst}, s{ptr}")
            A(f"s_mov_b32 s{dst+1}, s{ptr+1}")
        else:
            A(f"s_add_u32 s{dst}, s{ptr}, {add_lo}")
            A(f"s_addc_u32 s{dst+1}, s{ptr+1}, 0")
        A(f"s_mov_b32 s{dst+2}, {nrec}")
        A(f"s_mov_b32 s{dst+3}, 0x20000")

    out = HEADER
    out += f"; @launch grid=(256,1,1) block=({NW*64},1,1) lds={LDS}\n"
    out += '.amdgcn_target "amdgcn-amd-amdhsa--gfx950"\n.text\n'
    out += f".globl {NAME}\n.p2align 8\n.type {NAME},@function\n{NAME}:\n"

    A("s_cmp_ge_u32 s2, 256")
    A("s_cbranch_scc1 L_end")
    stamp(0)
    A(f"s_load_dwordx16 s[{P}:{P+15}], s[0:1], 0")
    A(f"s_load_dwordx8 s[{P+16}:{P+23}], s[0:1], 64")
    A("v_lshrrev_b32 v4, 6, v0")
    A("v_and_b32 v1, 63, v0")
    A(f"v_readfirstlane_b32 s{sWAVE}, v4")
    A("v_and_b32 v2, 15, v1")
    A("v_lshrrev_b32 v3, 4, v1")
    if badloc:
        A(f"s_lshr_b32 s{sX8}, s2, 5")
        A(f"s_and_b32 s{sSLOT}, s2, 31")
    else:
        A(f"s_and_b32 s{sX8}, s2, 7")
        A(f"s_lshr_b32 s{sSLOT}, s2, 3")
    A(f"s_and_b32 s{sSPLIT}, s{sSLOT}, 1")
    A(f"s_lshr_b32 s{sB}, s{sSLOT}, 1")
    A(f"s_and_b32 s{sB}, s{sB}, 3")
    if hmap == "plan2":
        A(f"s_lshr_b32 s{sH}, s{sSLOT}, 3")
        A(f"s_lshl_b32 s{sT0}, s{sX8}, 2")
        A(f"s_add_u32 s{sH}, s{sH}, s{sT0}")
    else:
        A(f"s_lshr_b32 s{sH}, s{sSLOT}, 3")
        A(f"s_mul_i32 s{sT0}, s{sH}, {hmap}")
        A(f"s_add_u32 s{sT0}, s{sT0}, s{sX8}")
        A(f"s_and_b32 s{sT0}, s{sT0}, 7")
        A(f"s_lshl_b32 s{sH}, s{sH}, 3")
        A(f"s_add_u32 s{sH}, s{sH}, s{sT0}")
    A(f"s_mov_b32 s{sL2E}, {f2u(L2E):#x}")
    A(f"s_mov_b32 s{sSC}, {f2u(SCALE):#x}")
    MK = 4
    A("v_and_b32 v8, 1, v2")
    A("v_lshlrev_b32 v8, 4, v8")
    A("v_mov_b32 v9, 0xffff")
    A("v_lshlrev_b32 v8, v8, v9")
    A("v_lshrrev_b32 v9, 1, v2")
    A(f"s_lshr_b32 s{sT0}, 0x15, s{sX8}")
    A(f"s_and_b32 s{sT0}, s{sT0}, 1")
    A(f"s_lshl_b32 s{sT0}, s{sT0}, 2")
    A(f"s_add_u32 s{sNU}, s{sT0}, 12")
    A(f"s_cmp_lt_u32 s{sWAVE}, {NA}")
    A("s_cbranch_scc1 L_aux")

    vOA_, vOB_ = 18, 19
    vM, vL, vNM, vSA, vTM = 10, 11, 12, 13, 17
    vT0, vT1 = 14, 15
    vVA = 16
    vACC = 20
    vS = 24
    vP = 28
    vQ = 32
    vS2 = 40
    vA = 48
    RING = 64
    sN, sOFF0 = sHS, sA
    def reg(slot, i): return RING + slot * 16 + i * 4
    A.c("---- streaming wave ----")
    A(f"s_sub_u32 s{sWAVE}, s{sWAVE}, {NA}")
    A(f"v_lshlrev_b32 v{vOA_}, 8, v9")
    A(f"v_and_b32 v{vOB_}, 1, v2")
    A(f"v_lshl_add_u32 v{vOA_}, v{vOB_}, 6, v{vOA_}")
    A(f"v_lshl_add_u32 v{vOA_}, v3, 4, v{vOA_}")
    A(f"v_add_u32 v{vOB_}, 128, v{vOA_}")
    RB = 2 << 20
    STEP = NS * 4096
    A(f"s_lshr_b32 s{sT2}, s{sSLOT}, 1")
    A(f"s_cmp_lt_u32 s{sT2}, s{sNU}")
    A(f"s_cselect_b32 s{sT1}, {shift}, 0")
    A(f"s_add_u32 s{sT1}, s{sT1}, 256")
    A(f"s_sub_u32 s{sT2}, 512, s{sT1}")
    A(f"s_cmp_eq_u32 s{sSPLIT}, 0")
    A(f"s_cselect_b32 s{sCNT}, s{sT1}, s{sT2}")
    A(f"s_cselect_b32 s{sOFF}, 0, s{sT1}")
    A(f"s_add_u32 s{sOFF}, s{sOFF}, s{sWAVE}")
    A(f"s_lshl_b32 s{sOFF}, s{sOFF}, 12")
    A(f"s_mov_b32 s{sOFF0}, s{sOFF}")
    A(f"s_sub_u32 s{sCNT}, s{sCNT}, s{sWAVE}")
    A(f"s_add_u32 s{sCNT}, s{sCNT}, {NS-1}")
    A(f"s_lshr_b32 s{sCNT}, s{sCNT}, {NS.bit_length()-1}")
    A(f"s_mov_b32 s{sN}, s{sCNT}")
    A(f"s_lshl_b32 s{sT0}, s{sB}, 5")
    A(f"s_add_u32 s{sT0}, s{sT0}, s{sH}")
    A(f"s_lshl_b32 s{sT0}, s{sT0}, 21")
    A("s_waitcnt lgkmcnt(0)")
    srd(KS, pK, f"s{sT0}", RB)
    A(f"s_add_u32 s{VS}, s{pV}, s{sT0}")
    A(f"s_addc_u32 s{VS+1}, s{pV+1}, 0")
    def issue(slot, w=None):
        for i in range(4):
            r = reg(slot, i)
            if w is not None: A(f"s_waitcnt vmcnt({w - 1})")
            A(f"buffer_load_dwordx4 v[{r}:{r+3}], v{(vOA_, vOB_)[i & 1]}, s[{KS}:{KS+3}], s{sOFF} offen offset:{2048*(i >> 1)} {kvflags}")
        A(f"s_add_u32 s{sOFF}, s{sOFF}, {STEP}")
    def window(slot):
        return cap if (slot & 1) == 0 or not capv else capv
    for s in range(R):
        if bar0 and pre0 == 4 * s:
            A("s_barrier")
        issue(s, pcap if pcap else None)
    for rr in range(4):
        A(f"v_cmp_eq_u32 vcc, {rr+4}, v9")
        A("s_nop 1")
        A(f"v_cndmask_b32 v{MK+rr}, 0, v8, vcc")
    A(f"v_lshlrev_b32 v{vVA}, 9, v3")
    A(f"v_lshl_add_u32 v{vVA}, v2, 4, v{vVA}")
    A(f"v_mov_b32 v{vM}, 0xff7fffff")
    A(f"v_mov_b32 v{vL}, 0")
    for i in range(4):
        A(f"v_mov_b32 v{vACC+i}, 0")
    A(f"v_lshlrev_b32 v{vT0}, 3, v1")
    A(f"s_lshl_b32 s{sT0}, s{sWAVE}, 8")
    A(f"s_add_u32 s{sT0}, s{sT0}, {QB}")
    A(f"v_lshl_add_u32 v{vT1}, v1, 2, s{sT0}")
    A(f"v_lshl_add_u32 v{vTM}, v3, 4, s{sT0}")
    A(f"v_lshrrev_b32 v{vNM}, 3, v2")
    A(f"v_lshl_add_u32 v{vTM}, v{vNM}, 6, v{vTM}")
    vEA, vEB = 8, 9
    A(f"s_lshl_b32 s{sT1}, s{sWAVE}, 8")
    A(f"s_add_u32 s{sT1}, s{sT1}, {OP - 16}")
    A(f"v_lshlrev_b32 v{vEA}, 4, v2")
    A(f"v_lshl_add_u32 v{vEA}, v3, 3, v{vEA}")
    A(f"v_add_u32 v{vEA}, s{sT1}, v{vEA}")
    A(f"s_lshl_b32 s{sT1}, s{sWAVE}, 3")
    A(f"s_add_u32 s{sT1}, s{sT1}, {ML}")
    A(f"v_mov_b32 v{vEB}, s{sT1}")
    A(f"s_mul_i32 s{sT3}, s{sWAVE}, 2304")
    A(f"s_add_u32 s{sT3}, s{sT3}, {SC}")
    A(f"v_lshl_add_u32 v{vSA}, v3, 3, s{sT3}")
    A(f"s_mov_b32 s{sEX}, 0x80008000")
    A(f"s_mov_b32 s{sEX+1}, 0x80008000")
    A("s_barrier")
    for a in range(NA):
        A(f"ds_read_b64 v[{vA+2*a}:{vA+2*a+1}], v{vT0} offset:{QP + a*512}")
    A("s_waitcnt lgkmcnt(0)")
    for a in range(1, NA):
        A(f"v_add_f32 v{vA}, v{vA}, v{vA+2*a}")
        A(f"v_add_f32 v{vA+1}, v{vA+1}, v{vA+2*a+1}")
    A(f"v_cvt_pk_bf16_f32 v{vA}, v{vA}, v{vA+1}")
    A(f"ds_write_b32 v{vT1}, v{vA}")
    A("s_waitcnt lgkmcnt(0)")
    for j in range(2):
        A(f"ds_read_b128 v[{vQ+4*j}:{vQ+4*j+3}], v{vTM} offset:{128*j}")
    A("s_waitcnt lgkmcnt(0)")
    W = 4 * (R - 1)
    def tstamp(phase):
        if tl:
            A("s_memrealtime s[92:93]")
            A(f"s_lshr_b32 m0, s{sCNT}, 1")
            if phase == 0:
                A("s_add_u32 m0, m0, 32")
            A("s_and_b32 m0, m0, 63")
            A("s_waitcnt lgkmcnt(0)")
            A(f"v_writelane_b32 v{RING + 16*R}, s92, m0")
    for s in range(R):
        A.label(f"L_k{s}")
        A(f"s_cmp_lg_u32 s{sCNT}, {R}")
        A(f"s_cbranch_scc1 L_kk{s}")
        A(f"s_mov_b32 s{KS}, s{VS}")
        A(f"s_mov_b32 s{KS+1}, s{VS+1}")
        A(f"s_mov_b32 s{sOFF}, s{sOFF0}")
        A(f"v_mov_b32 v{vOA_}, v{vVA}")
        A(f"v_add_u32 v{vOB_}, 256, v{vVA}")
        A.label(f"L_kk{s}")
        A(f"s_waitcnt vmcnt({W})")
        for (j, d, qj) in ((0, vS2, 0), (2, vS2 + 4, 0), (1, vS2, 1), (3, vS2 + 4, 1)):
            r = reg(s, j)
            c = "0" if qj == 0 else f"v[{d}:{d+3}]"
            A(f"v_mfma_f32_16x16x32_bf16 v[{d}:{d+3}], v[{r}:{r+3}], v[{vQ+4*qj}:{vQ+4*qj+3}], {c}")
        issue(s, window(s))
        for i in range(4):
            A(f"v_add_f32_dpp v{vS+i}, v{vS2+2*i}, v{vS2+2*i+1} row_ror:8 row_mask:0xf bank_mask:0xf")
        A(f"v_cvt_pk_bf16_f32 v{vT0}, v{vS}, v{vS+1}")
        A(f"v_cvt_pk_bf16_f32 v{vT1}, v{vS+2}, v{vS+3}")
        A(f"v_max3_f32 v{vM}, v{vS}, v{vS+1}, v{vM}")
        A(f"v_lshlrev_b32 v{vP}, 16, v{vT0}")
        A(f"v_and_b32 v{vP+1}, 0xffff0000, v{vT0}")
        A(f"v_lshlrev_b32 v{vP+2}, 16, v{vT1}")
        A(f"v_and_b32 v{vP+3}, 0xffff0000, v{vT1}")
        A(f"v_max3_f32 v{vM}, v{vS+2}, v{vS+3}, v{vM}")
        for i in range(4):
            A(f"v_mul_f32 v{vP+i}, s{sSC}, v{vP+i}")
        A(f"v_cvt_pk_bf16_f32 v{vT0}, v{vP}, v{vP+1}")
        A(f"v_cvt_pk_bf16_f32 v{vT1}, v{vP+2}, v{vP+3}")
        A(f"s_mov_b64 exec, s[{sEX}:{sEX+1}]")
        A(f"ds_write_b64 v{vSA}, v[{vT0}:{vT1}]")
        A("s_mov_b64 exec, -1")
        A(f"v_add_u32 v{vSA}, 32, v{vSA}")
        tstamp(0)
        A(f"s_sub_u32 s{sCNT}, s{sCNT}, 1")
        A(f"s_cmp_eq_u32 s{sCNT}, 0")
        A(f"s_cbranch_scc1 L_t{(s + 1) % R}")
    A("s_branch L_k0")
    for s in range(R):
        A.label(f"L_t{s}")
        A(f"s_mov_b32 s{sT0}, {s}")
        if s < R - 1:
            A("s_branch L_tr")
    A.label("L_tr")
    A(f"v_lshl_add_u32 v{vSA}, v3, 3, s{sT3}")
    A("s_waitcnt lgkmcnt(0)")
    A(f"ds_read_b64 v[{vT0}:{vT1}], v{vSA}")
    A(f"v_max_f32_dpp v{vM}, v{vM}, v{vM} row_bcast:15 row_mask:0xa bank_mask:0xf")
    A("s_nop 1")
    A(f"v_max_f32_dpp v{vM}, v{vM}, v{vM} row_bcast:31 row_mask:0xc bank_mask:0xf")
    A("s_nop 0")
    A(f"v_readlane_b32 s{sM}, v{vM}, 63")
    A(f"s_mov_b32 s{sCNT}, s{sN}")
    A("s_nop 0")
    A(f"v_mov_b32 v{vM}, s{sM}")
    A(f"v_cvt_pk_bf16_f32 v{vM}, v{vM}, v{vM}")
    A(f"v_and_b32 v{vM}, 0xffff0000, v{vM}")
    A(f"v_mul_f32 v{vM}, s{sSC}, v{vM}")
    A(f"v_cvt_pk_bf16_f32 v{vM}, v{vM}, v{vM}")
    A(f"v_and_b32 v{vM}, 0xffff0000, v{vM}")
    A(f"v_mul_f32 v{vNM}, s{sL2E}, v{vM}")
    for s in range(1, R):
        A(f"s_cmp_eq_u32 s{sT0}, {s}")
        A(f"s_cbranch_scc1 L_v{s}")
    for s in range(R):
        A.label(f"L_v{s}")
        A(f"s_cmp_le_u32 s{sCNT}, {R}")
        A(f"s_cselect_b32 s{KS+2}, 0, {RB}")
        A("s_waitcnt lgkmcnt(0)")
        A(f"v_lshlrev_b32 v{vP}, 16, v{vT0}")
        A(f"v_and_b32 v{vP+1}, 0xffff0000, v{vT0}")
        A(f"v_lshlrev_b32 v{vP+2}, 16, v{vT1}")
        A(f"v_and_b32 v{vP+3}, 0xffff0000, v{vT1}")
        A(f"v_add_u32 v{vSA}, 32, v{vSA}")
        for i in range(4):
            A(f"v_fma_f32 v{vP+i}, v{vP+i}, s{sL2E}, -v{vNM}")
        A(f"ds_read_b64 v[{vT0}:{vT1}], v{vSA}")
        for i in range(4):
            A(f"v_exp_f32 v{vP+i}, v{vP+i}")
        A(f"v_add_f32 v{vS}, v{vP}, v{vP+1}")
        A(f"v_add_f32 v{vL}, v{vL}, v{vP+2}")
        A(f"v_add_f32 v{vS}, v{vS}, v{vP+3}")
        for i in range(4):
            A(f"v_cvt_pk_bf16_f32 v{vP+i}, v{vP+i}, v{vP+i}")
        A(f"v_add_f32 v{vL}, v{vL}, v{vS}")
        for i in range(4):
            for rr in range(4):
                A(f"v_and_b32 v{vA+4*i+rr}, v{vP+i}, v{MK+rr}")
        A(f"s_waitcnt vmcnt({W})")
        A("s_nop 0")
        for i in range(4):
            r = reg(s, i)
            A(f"v_mfma_f32_16x16x32_bf16 v[{vACC}:{vACC+3}], v[{vA+4*i}:{vA+4*i+3}], v[{r}:{r+3}], v[{vACC}:{vACC+3}]")
        tstamp(1)
        A(f"s_sub_u32 s{sCNT}, s{sCNT}, 1")
        A(f"s_cmp_eq_u32 s{sCNT}, 0")
        A("s_cbranch_scc1 L_sdone")
        A(f"s_cmp_lt_u32 s{sCNT}, {max(R, endn)}")
        A(f"s_cbranch_scc1 L_vf{s}")
        issue(s, window(s))
        A(f"s_branch L_v{(s + 1) % R}")
        A.label(f"L_vf{s}")
        issue(s)
    A("s_branch L_v0")
    A.label("L_sdone")
    A(f"v_add_f32_dpp v{vL}, v{vL}, v{vL} row_bcast:15 row_mask:0xa bank_mask:0xf")
    A("s_nop 1")
    A(f"v_add_f32_dpp v{vL}, v{vL}, v{vL} row_bcast:31 row_mask:0xc bank_mask:0xf")
    A("s_mov_b32 exec_lo, 0")
    A("s_mov_b32 exec_hi, 0x80000000")
    A(f"ds_write_b64 v{vEB}, v[{vM}:{vM+1}]")
    A("s_mov_b32 exec_hi, -1")
    A(f"v_cvt_pk_bf16_f32 v{vACC}, v{vACC}, v{vACC+1}")
    A(f"v_cvt_pk_bf16_f32 v{vACC+1}, v{vACC+2}, v{vACC+3}")
    A(f"ds_write_b64 v{vEA}, v[{vACC}:{vACC+1}]")
    A("s_mov_b64 exec, -1")
    A("s_waitcnt lgkmcnt(0)")
    A("s_barrier")
    if tl:
        A(f"s_lshl_b32 s{sT0}, s2, 2")
        A(f"s_add_u32 s{sT0}, s{sT0}, s{sWAVE}")
        A(f"s_lshl_b32 s{sT0}, s{sT0}, 8")
        A(f"s_add_u32 s{sT0}, s{sT0}, 0x300000")
        A(f"v_lshl_add_u32 v16, v1, 2, s{sT0}")
        A(f"global_store_dword v16, v{RING + 16*R}, s[{pWS}:{pWS+1}]")
    A("s_endpgm")

    A.label("L_aux")
    A.c("---- aux wave ----")
    NL = 160 // NA
    RW = 640 // NA
    RT = RW // 4
    RO = 128 // NA
    OT = RO // 4
    vTO = 13
    vO1, vO2, vO3 = 10, 11, 12
    vX = 14
    vF = 20
    vC = 30
    vAA = 36
    vQA = 44
    vX2 = 48
    vXD = 56
    vW = 96
    if auxprio:
        A(f"s_setprio {auxprio}")
    A(f"s_mov_b32 s{sA}, s{sWAVE}")
    if noaux:
        A("s_waitcnt lgkmcnt(0)")
        if bar0: A("s_barrier")
        stamp(1)
        A("s_barrier")
        stamp(2); stamp(3)
        A("s_barrier")
        stamp(4); stamp(5); stamp(6)
        A("s_branch L_fin")
    A(f"v_lshlrev_b32 v{vO1}, 2, v1")
    A(f"v_mul_u32_u24 v{vO2}, {RT*8192}, v3")
    A(f"v_lshl_add_u32 v{vO2}, v2, 4, v{vO2}")
    A(f"s_mul_i32 s{sT0}, s{sA}, 1280")
    A(f"s_mul_i32 s{sT3}, s{sB}, 1280")
    A(f"s_lshl_b32 s{sT1}, s{sH}, 8")
    A(f"s_mul_i32 s{sT2}, s{sA}, {RW*8192}")
    A(f"s_add_u32 s{sT1}, s{sT1}, s{sT2}")
    A(f"s_sub_u32 s{sT2}, {640*8192}, s{sT1}")
    A("s_waitcnt lgkmcnt(0)")
    srd(XS, pX, None, 5120)
    for i in range(5):
        A(f"buffer_load_dword v{vX+i}, v{vO1}, s[{XS}:{XS+3}], s{sT3} offen offset:{256*i}")
    for i in range(5):
        A(f"buffer_load_dword v{vX2+i}, v{vO1}, s[{XS}:{XS+3}], s{sT0} offen offset:{256*i}")
    A(f"s_load_dword s{sTAG}, s[{pWS}:{pWS+1}], {WS_EP:#x}")
    srd(WQS, pWQ, f"s{sT1}", 0 if nowq else f"s{sT2}")
    if rotq:
        A(f"s_and_b32 s{sHS}, s{sSLOT}, 7")
        A(f"s_mul_i32 s{sHS}, s{sHS}, 5")
        A(f"s_lshr_b32 s{sHS}, s{sHS}, 2")
        A(f"s_lshl_b32 s{sOFF}, s{sHS}, 15")
    else:
        A(f"s_mov_b32 s{sOFF}, 0")
    def wq_issue(t):
        r = vW + 4 * t
        A(f"buffer_load_dwordx4 v[{r}:{r+3}], v{vO2}, s[{WQS}:{WQS+3}], s{sOFF} offen {wqflags}")
        A(f"s_add_u32 s{sOFF}, s{sOFF}, 8192")
        if rotq and t % 4 == 3:
            A(f"s_cmp_eq_u32 s{sOFF}, {RT*8192}")
            A(f"s_cselect_b32 s{sOFF}, 0, s{sOFF}")
    NLQ = nowqn if nowqn else NL
    wqwin = min(wqwin, NLQ)
    for t in range(wqwin):
        wq_issue(t)
        if bar0 and t == min(wqwin, bar0at) - 1:
            A("s_barrier")
    A("v_and_b32 v9, 3, v9")
    for rr in range(4):
        A(f"v_cmp_eq_u32 vcc, {rr}, v9")
        A("s_nop 1")
        A(f"v_cndmask_b32 v{MK+rr}, 0, v8, vcc")
    def wave_sum(v, s):
        for sh in (1, 2, 4, 8):
            A("s_nop 1")
            A(f"v_add_f32_dpp v{v}, v{v}, v{v} row_shr:{sh} row_mask:0xf bank_mask:0xf bound_ctrl:0")
        A("s_nop 1")
        A(f"v_add_f32_dpp v{v}, v{v}, v{v} row_bcast:15 row_mask:0xa bank_mask:0xf")
        A("s_nop 1")
        A(f"v_add_f32_dpp v{v}, v{v}, v{v} row_bcast:31 row_mask:0xc bank_mask:0xf")
        A("s_nop 0")
        A(f"v_readlane_b32 s{s}, v{v}, 63")
        A("s_nop 1")
    def layernorm(vX, dup):
        for i in range(5):
            A(f"v_lshlrev_b32 v{vF+2*i}, 16, v{vX+i}")
            A(f"v_and_b32 v{vF+2*i+1}, 0xffff0000, v{vX+i}")
        A(f"v_add_f32 v{vC+4}, v{vF}, v{vF+1}")
        for i in range(2, 10):
            A(f"v_add_f32 v{vC+4}, v{vC+4}, v{vF+i}")
        wave_sum(vC + 4, sT0)
        A(f"v_mov_b32 v{vC+5}, {f2u(1.0/640):#x}")
        A(f"v_mul_f32 v{vC+4}, s{sT0}, v{vC+5}")
        A(f"v_sub_f32 v{vC}, v{vF}, v{vC+4}")
        A(f"v_mul_f32 v{vC+1}, v{vC}, v{vC}")
        for i in range(1, 10):
            A(f"v_sub_f32 v{vC}, v{vF+i}, v{vC+4}")
            A(f"v_fmac_f32 v{vC+1}, v{vC}, v{vC}")
        wave_sum(vC + 1, sT0)
        A(f"v_mul_f32 v{vC+1}, s{sT0}, v{vC+5}")
        A(f"v_cvt_pk_bf16_f32 v{vC}, v{vC+4}, v{vC+1}")
        A(f"v_lshlrev_b32 v{vC+4}, 16, v{vC}")
        A(f"v_and_b32 v{vC+1}, 0xffff0000, v{vC}")
        A(f"v_add_f32 v{vC+1}, {f2u(1e-5):#x}, v{vC+1}")
        A(f"v_cvt_pk_bf16_f32 v{vC+1}, v{vC+1}, v{vC+1}")
        A(f"v_and_b32 v{vC+1}, 0xffff0000, v{vC+1}")
        A(f"v_sqrt_f32 v{vC+1}, v{vC+1}")
        A("s_nop 0")
        A(f"v_cvt_pk_bf16_f32 v{vC+1}, v{vC+1}, v{vC+1}")
        A(f"v_and_b32 v{vC+1}, 0xffff0000, v{vC+1}")
        A(f"v_rcp_f32 v{vC+1}, v{vC+1}")
        for i in range(10):
            A(f"v_sub_f32 v{vF+i}, v{vF+i}, v{vC+4}")
        if dup:
            A(f"s_mul_i32 s{sT2}, s{sA}, 2560")
            A(f"v_lshl_add_u32 v{vC+3}, v1, 3, s{sT2}")
        else:
            A(f"s_mul_i32 s{sT1}, s{sA}, 1280")
            A(f"v_add_u32 v{vC+2}, s{sT1}, v{vO1}")
        for i in range(5):
            A(f"v_cvt_pk_bf16_f32 v{vX+i}, v{vF+2*i}, v{vF+2*i+1}")
            A(f"v_lshlrev_b32 v{vF+2*i}, 16, v{vX+i}")
            A(f"v_and_b32 v{vF+2*i+1}, 0xffff0000, v{vX+i}")
            A(f"v_mul_f32 v{vF+2*i}, v{vF+2*i}, v{vC+1}")
            A(f"v_mul_f32 v{vF+2*i+1}, v{vF+2*i+1}, v{vC+1}")
            if dup:
                A(f"v_cvt_pk_bf16_f32 v{vF+2*i}, v{vF+2*i}, v{vF+2*i}")
                A(f"v_cvt_pk_bf16_f32 v{vF+2*i+1}, v{vF+2*i+1}, v{vF+2*i+1}")
                A(f"ds_write_b64 v{vC+3}, v[{vF+2*i}:{vF+2*i+1}] offset:{XND + 512*i}")
            else:
                A(f"v_cvt_pk_bf16_f32 v{vX+i}, v{vF+2*i}, v{vF+2*i+1}")
                A(f"ds_write_b32 v{vC+2}, v{vX+i} offset:{XNB + 256*i}")
    A(f"s_waitcnt vmcnt({wqwin + 5})")
    layernorm(vX, True)
    stamp(1)
    A(f"s_mul_i32 s{sT1}, s{sA}, {RW*4}")
    A(f"s_add_u32 s{sT0}, s{sT2}, s{sT1}")
    A(f"v_mul_u32_u24 v{vX}, {RT*4}, v3")
    A(f"v_add_u32 v{vX}, s{sT0}, v{vX}")
    A("s_waitcnt lgkmcnt(0)")
    if rotq:
        A(f"s_lshl_b32 s{sT1}, s{sHS}, 4")
        for i in range(RT // 4):
            A(f"v_add_u32 v{vX+1+(i&1)}, s{sT1}, v{vX}")
            A(f"s_add_u32 s{sT1}, s{sT1}, 16")
            A(f"ds_read_b128 v[{vXD+4*i}:{vXD+4*i+3}], v{vX+1+(i&1)} offset:{XND}")
            A(f"s_cmp_eq_u32 s{sT1}, {RT*4}")
            A(f"s_cselect_b32 s{sT1}, 0, s{sT1}")
    else:
        for i in range(RT // 4):
            A(f"ds_read_b128 v[{vXD+4*i}:{vXD+4*i+3}], v{vX} offset:{XND + 16*i}")
    A("s_waitcnt lgkmcnt(0)")
    for t in range(NLQ):
        aa = vAA + 4 * (t & 1)
        for rr in range(4):
            A(f"v_and_b32 v{aa+rr}, v{vXD+t}, v{MK+rr}")
        issued = min(NLQ, wqwin + t)
        A(f"s_waitcnt vmcnt({issued - 1 - t})")
        if wqwin + t < NLQ:
            wq_issue(wqwin + t)
        else:
            A("s_nop 0")
        r = vW + 4 * t
        c = "0" if t == 0 else f"v[{vQA}:{vQA+3}]"
        A(f"v_mfma_f32_16x16x32_bf16 v[{vQA}:{vQA+3}], v[{aa}:{aa+3}], v[{r}:{r+3}], {c}")
    A(f"s_lshl_b32 s{sT0}, s{sA}, 9")
    A(f"s_add_u32 s{sT0}, s{sT0}, {QP}")
    A(f"v_lshlrev_b32 v{vC}, 5, v2")
    A(f"v_lshl_add_u32 v{vC}, v3, 4, v{vC}")
    A(f"v_add_u32 v{vC}, s{sT0}, v{vC}")
    A("s_nop 3")
    A("s_mov_b64 exec, 0xffffffff")
    A(f"ds_write_b128 v{vC}, v[{vQA}:{vQA+3}]")
    A("s_mov_b64 exec, -1")
    A(f"s_lshl_b32 s{sT0}, s{sA}, 2")
    A(f"v_mov_b32 v{vC+1}, s{sT0}")
    A(f"v_mov_b32 v{vC+2}, 0")
    A(f"ds_write_b32 v{vC+1}, v{vC+2} offset:{FLG}")
    A("s_waitcnt lgkmcnt(0)")
    A("s_barrier")
    stamp(2)
    layernorm(vX2, False)
    srd(WSS, pWS, None, WS_SIZE)
    A(f"s_mul_i32 s{sTAG}, s{sTAG}, 0x9e3779b1")
    A(f"s_add_u32 s{sTAG}, s{sTAG}, 0x7f4a7c15")
    A(f"s_lshl_b32 s{sHS}, s{sH}, 1")
    A(f"s_add_u32 s{sHS}, s{sHS}, s{sSPLIT}")
    A(f"s_lshl_b32 s{sT0}, s{sB}, 6")
    A(f"s_add_u32 s{sT0}, s{sT0}, s{sHS}")
    A(f"s_lshl_b32 s{sT1}, s{sT0}, 6")
    A(f"v_lshrrev_b32 v{vTO}, 2, v0")
    A(f"v_lshlrev_b32 v{vTO}, 14, v{vTO}")
    A(f"v_and_b32 v{vC}, 3, v0")
    A(f"v_lshl_add_u32 v{vTO}, v{vC}, 4, v{vTO}")
    A(f"v_add_u32 v{vTO}, s{sT1}, v{vTO}")
    A(f"s_lshr_b32 s{sT1}, s{sT0}, 1")
    A(f"s_lshl_b32 s{sT1}, s{sT1}, 7")
    A(f"s_lshl_b32 s{sT2}, s{sSPLIT}, 3")
    A(f"s_add_u32 s{sT1}, s{sT1}, s{sT2}")
    A(f"s_add_u32 s{sT1}, s{sT1}, {WS_ML}")
    A(f"v_mov_b32 v{vO3}, s{sT1}")
    for i in range(4):
        A(f"v_mov_b32 v{vC+i}, -1")
    A(f"v_cmp_gt_u32 vcc, 160, v0")
    A(f"s_and_saveexec_b64 s[{sEX}:{sEX+1}], vcc")
    A("s_cbranch_execz L_noclr")
    if not noclear:
        A(f"buffer_store_dwordx4 v[{vC}:{vC+3}], v{vTO}, s[{WSS}:{WSS+3}], 0 offen {'sc1' if noclrf is None else noclrf}")
    A.label("L_noclr")
    A(f"s_mov_b64 exec, s[{sEX}:{sEX+1}]")
    A(f"v_cmp_eq_u32 vcc, 192, v0")
    A(f"s_and_saveexec_b64 s[{sEX}:{sEX+1}], vcc")
    A("s_cbranch_execz L_noclr2")
    A(f"buffer_store_dwordx2 v[{vC}:{vC+1}], v{vO3}, s[{WSS}:{WSS+3}], 0 offen sc1")
    A.label("L_noclr2")
    A(f"s_mov_b64 exec, s[{sEX}:{sEX+1}]")
    A("s_waitcnt vmcnt(0) lgkmcnt(0)")
    A(f"s_lshl_b32 s{sT0}, s{sA}, 2")
    A(f"v_mov_b32 v{vC}, s{sT0}")
    A(f"v_mov_b32 v{vC+1}, 1")
    A(f"ds_write_b32 v{vC}, v{vC+1} offset:{FLG}")
    A(f"s_add_u32 s{sT0}, s{sX8}, 1")
    A(f"s_lshr_b32 s{sT0}, s{sT0}, 1")
    A(f"s_min_u32 s{sT0}, s{sT0}, 3")
    A(f"s_lshr_b32 s{sT1}, s{sSLOT}, 1")
    A(f"s_mul_i32 s{sT2}, s{sX8}, 12")
    A(f"s_lshl_b32 s{sT3}, s{sT0}, 2")
    A(f"s_add_u32 s{sT2}, s{sT2}, s{sT3}")
    A(f"s_add_u32 s{sT2}, s{sT2}, s{sT1}")
    A(f"s_cmp_eq_u32 s{sSPLIT}, 1")
    A(f"s_cselect_b32 s{sT2}, s{sT2}, 255")
    A(f"s_sub_u32 s{sT3}, s{sX8}, s{sT0}")
    A(f"s_lshl_b32 s{sT3}, s{sT3}, 3")
    A(f"s_add_u32 s{sT3}, s{sT3}, s{sSLOT}")
    A(f"s_add_u32 s{sT3}, s{sT3}, {128 - 24}")
    A(f"s_cmp_lt_u32 s{sT1}, s{sNU}")
    A(f"s_cselect_b32 s{sROLE}, s{sT2}, s{sT3}")
    def wo_load():
        vPH = 36
        A(f"s_mul_i32 s{sT0}, s{sH}, {128*1280}")
        srd(WOS, pWO, f"s{sT0}", 128 * 1280)
        A(f"s_mul_i32 s{sT1}, s{sA}, 320")
        A(f"s_mov_b32 s{sT2}, 52429")
        for p in range(5):
            A(f"v_add_u32 v{vPH+p}, {64*p}, v1")
            A(f"v_mul_u32_u24 v41, s{sT2}, v{vPH+p}")
            A("v_lshrrev_b32 v41, 20, v41")
            A(f"v_mul_u32_u24 v42, {1280 - 320}, v41")
            A(f"v_lshl_add_u32 v{vPH+p}, v{vPH+p}, 4, v42")
            A(f"v_add_u32 v{vPH+p}, s{sT1}, v{vPH+p}")
        A(f"s_mul_i32 s{sT1}, s{sA}, 10240")
        A(f"s_add_u32 s{sT1}, s{sT1}, {TP}")
        A("v_lshrrev_b32 v41, 2, v2")
        A("v_lshl_add_u32 v41, v3, 3, v41")
        A("v_mul_u32_u24 v41, 320, v41")
        A("v_and_b32 v42, 3, v1")
        A("v_lshl_add_u32 v41, v42, 3, v41")
        A(f"v_add_u32 v41, s{sT1}, v41")
        A(f"s_mov_b32 s{sOFF}, 0")
        for ks in range(4):
            for i in range(10):
                A(f"s_add_u32 m0, s{sT1}, {1024*i}")
                if i == 5:
                    A(f"s_add_u32 s{sOFF}, s{sOFF}, {16*1280}")
                else:
                    A("s_nop 0")
                if not nowo:
                    A(f"buffer_load_dwordx4 v{vPH+i%5}, s[{WOS}:{WOS+3}], s{sOFF} offen {woflags} lds")
                A(f"s_waitcnt vmcnt({wowin - 1})")
            A(f"s_add_u32 s{sOFF}, s{sOFF}, {16*1280}")
            A("s_waitcnt vmcnt(0)")
            for cb in range(10):
                r = vW + 4 * (cb * 4 + ks)
                A(f"ds_read_b64_tr_b16 v[{r}:{r+1}], v41 offset:{32*cb}")
                A(f"ds_read_b64_tr_b16 v[{r+2}:{r+3}], v41 offset:{32*cb + 1280}")
                if cb == 5:
                    A("s_waitcnt lgkmcnt(4)")
            A("s_waitcnt lgkmcnt(0)")
    vTR, vAO = 14, 15
    vFA, vFB, vFD = 20, 24, 28
    def round_bf16(regs):
        for v in regs:
            A(f"v_cvt_pk_bf16_f32 v{v}, v{v}, v{v}")
        for v in regs:
            A(f"v_and_b32 v{v}, 0xffff0000, v{v}")
    A(f"s_cmp_lg_u32 s{sA}, 0")
    A("s_cbranch_scc1 L_wo")
    A(f"v_mov_b32 v{vC+4}, 0")
    A.label("L_flg")
    A(f"ds_read_b128 v[{vFA}:{vFA+3}], v{vC+4} offset:{FLG}")
    A("s_waitcnt lgkmcnt(0)")
    A(f"v_add3_u32 v{vFA}, v{vFA}, v{vFA+1}, v{vFA+2}")
    A(f"v_add_u32 v{vFA}, v{vFA}, v{vFA+3}")
    A(f"v_cmp_ne_u32 vcc, 4, v{vFA}")
    A("s_nop 1")
    A("s_cbranch_vccnz L_flg")
    A(f"s_lshl_b32 s{sT3}, s2, 7")
    A(f"s_add_u32 s{sT3}, s{sT3}, {WS_H}")
    A(f"v_mov_b32 v{vC+4}, s{sT3}")
    A(f"v_mov_b32 v{vC+5}, s{sTAG}")
    A("s_mov_b64 exec, 1")
    A(f"buffer_store_dword v{vC+5}, v{vC+4}, s[{WSS}:{WSS+3}], 0 offen sc1")
    A("s_mov_b64 exec, -1")
    A.label("L_wo")
    wo_load()
    A(f"s_cmp_lg_u32 s{sA}, 0")
    A("s_cbranch_scc1 L_idle")
    if nosig:
        A("s_branch L_idle")
    A(f"s_cmp_eq_u32 s{sROLE}, 255")
    A("s_cbranch_scc1 L_idle")
    A(f"s_cmp_ge_u32 s{sROLE}, 128")
    A("s_cbranch_scc1 L_f2")
    A.c("F1 unit: 16 columns of gate/up for all 4 batches")
    vFU = 32
    A(f"s_lshl_b32 s{sT0}, s{sROLE}, 5")
    srd(F0S, pWG, None, 640 * 3456)
    srd(F1S, pWU, None, 640 * 3456)
    A(f"v_lshrrev_b32 v{vC}, 1, v1")
    A(f"v_mul_u32_u24 v{vC}, 3456, v{vC}")
    A(f"v_and_b32 v{vC+1}, 1, v1")
    A(f"v_lshl_add_u32 v{vC}, v{vC+1}, 4, v{vC}")
    A(f"v_add_u32 v{vC}, s{sT0}, v{vC}")
    A(f"s_mov_b32 s{sOFF}, 0")
    A(f"s_mov_b32 s{sT1}, {WT}")
    A(f"s_mov_b32 s{sCNT}, 20")
    A.label("L_f1_ld")
    A(f"s_mov_b32 m0, s{sT1}")
    A(f"s_add_u32 s{sT2}, s{sT1}, 20480")
    if not noffn:
        A(f"buffer_load_dwordx4 v{vC}, s[{F0S}:{F0S+3}], s{sOFF} offen {ffnflags} lds")
    A(f"s_waitcnt vmcnt({f1win - 1})")
    A(f"s_mov_b32 m0, s{sT2}")
    A(f"s_add_u32 s{sT1}, s{sT1}, 1024")
    if not noffn:
        A(f"buffer_load_dwordx4 v{vC}, s[{F1S}:{F1S+3}], s{sOFF} offen {ffnflags} lds")
    A(f"s_add_u32 s{sOFF}, s{sOFF}, {32*3456}")
    A(f"s_waitcnt vmcnt({f1win - 1})")
    A(f"s_sub_u32 s{sCNT}, s{sCNT}, 1")
    A(f"s_cmp_lg_u32 s{sCNT}, 0")
    A("s_cbranch_scc1 L_f1_ld")
    A(f"v_lshrrev_b32 v{vC+1}, 2, v2")
    A(f"v_lshl_add_u32 v{vC+1}, v3, 3, v{vC+1}")
    A(f"v_lshlrev_b32 v{vTR}, 5, v{vC+1}")
    A(f"v_and_b32 v{vC+1}, 3, v1")
    A(f"v_lshl_add_u32 v{vTR}, v{vC+1}, 3, v{vTR}")
    A(f"v_add_u32 v{vTR}, {WT}, v{vTR}")
    A(f"v_mul_u32_u24 v{vAO}, 1280, v{vC+1}")
    A(f"v_lshl_add_u32 v{vAO}, v3, 4, v{vAO}")
    A(f"v_add_u32 v{vAO}, {XNB}, v{vAO}")
    for i in range(4):
        A(f"v_mov_b32 v{vFD+i}, 0")
        A(f"v_mov_b32 v{vFU+i}, 0")
    A(f"s_mov_b32 s{sCNT}, 20")
    A("s_waitcnt vmcnt(0)")
    vFB2 = 36
    A.label("L_f1_mm")
    A(f"ds_read_b128 v[{vFA}:{vFA+3}], v{vAO}")
    A(f"ds_read_b64_tr_b16 v[{vFB}:{vFB+1}], v{vTR}")
    A(f"ds_read_b64_tr_b16 v[{vFB+2}:{vFB+3}], v{vTR} offset:128")
    A(f"ds_read_b64_tr_b16 v[{vFB2}:{vFB2+1}], v{vTR} offset:20480")
    A(f"ds_read_b64_tr_b16 v[{vFB2+2}:{vFB2+3}], v{vTR} offset:{20480+128}")
    A(f"v_add_u32 v{vAO}, 64, v{vAO}")
    A(f"v_add_u32 v{vTR}, 1024, v{vTR}")
    A("s_waitcnt lgkmcnt(0)")
    A(f"v_mfma_f32_16x16x32_bf16 v[{vFD}:{vFD+3}], v[{vFA}:{vFA+3}], v[{vFB}:{vFB+3}], v[{vFD}:{vFD+3}]")
    A(f"v_mfma_f32_16x16x32_bf16 v[{vFU}:{vFU+3}], v[{vFA}:{vFA+3}], v[{vFB2}:{vFB2+3}], v[{vFU}:{vFU+3}]")
    A(f"s_sub_u32 s{sCNT}, s{sCNT}, 1")
    A(f"s_cmp_lg_u32 s{sCNT}, 0")
    A("s_cbranch_scc1 L_f1_mm")
    A("s_nop 7")
    for i in range(1, 4):
        A(f"v_cmp_eq_u32 vcc, {i}, v3")
        A("s_nop 1")
        A(f"v_cndmask_b32 v{vFD}, v{vFD}, v{vFD+i}, vcc")
        A(f"v_cndmask_b32 v{vFU}, v{vFU}, v{vFU+i}, vcc")
    round_bf16([vFD, vFU])
    K0 = 0.7978845608028654
    A(f"s_mov_b32 s{sT0}, {f2u(0.044715):#x}")
    A(f"s_mov_b32 s{sT1}, {f2u(-2.0 * K0 * L2E):#x}")
    A(f"v_mul_f32 v{vFA}, v{vFD}, v{vFD}")
    A(f"v_fma_f32 v{vFA}, v{vFA}, s{sT0}, 1.0")
    A(f"v_mul_f32 v{vFA}, v{vFA}, v{vFD}")
    A(f"v_mul_f32 v{vFA}, s{sT1}, v{vFA}")
    A(f"v_exp_f32 v{vFA}, v{vFA}")
    A("s_nop 0")
    A(f"v_add_f32 v{vFA}, 1.0, v{vFA}")
    A(f"v_rcp_f32 v{vFA}, v{vFA}")
    A("s_nop 0")
    A(f"v_mul_f32 v{vFA}, v{vFA}, v{vFD}")
    round_bf16([vFA])
    A(f"v_mul_f32 v{vFA}, v{vFA}, v{vFU}")
    A(f"s_lshl_b32 s{sT0}, s{sROLE}, 8")
    A(f"s_add_u32 s{sT0}, s{sT0}, {WS_HL}")
    A(f"v_mov_b32_dpp v{vFB}, v{vFA} quad_perm:[1,0,3,2] row_mask:0xf bank_mask:0xf")
    A(f"v_cvt_pk_bf16_f32 v{vFA}, v{vFA}, v{vFB}")
    A(f"v_mov_b32 v{vFA+1}, s{sTAG}")
    A("s_mov_b32 exec_lo, 0x55555555")
    A("s_mov_b32 exec_hi, 0x55555555")
    A(f"buffer_store_dwordx2 v[{vFA}:{vFA+1}], v{vO1}, s[{WSS}:{WSS+3}], s{sT0} offen sc1")
    A("s_mov_b64 exec, -1")
    A("s_branch L_idle")

    A.label("L_f2")
    A.c("F2 job: 64 columns x one quarter of K of the down projection, then the gate of 16 columns")
    sC, sKQ, sST_, sN = sT3, sHS, sM, sSC
    A(f"s_sub_u32 s{sC}, s{sROLE}, 128")
    A(f"s_and_b32 s{sKQ}, s{sC}, 3")
    A(f"s_mul_i32 s{sST_}, s{sKQ}, 14")
    A(f"s_cmp_eq_u32 s{sKQ}, 3")
    A(f"s_cselect_b32 s{sST_}, 41, s{sST_}")
    A(f"s_lshr_b32 s{sN}, s{sKQ}, 1")
    A(f"s_sub_u32 s{sN}, 14, s{sN}")
    srd(F0S, pWD, None, 1728 * 1280)
    A(f"s_lshr_b32 s{sT0}, s{sC}, 2")
    A(f"s_lshl_b32 s{sT0}, s{sT0}, 7")
    A(f"v_lshrrev_b32 v{vC}, 3, v1")
    A(f"v_mul_u32_u24 v{vC}, 1280, v{vC}")
    A(f"v_and_b32 v{vC+1}, 7, v1")
    A(f"v_lshl_add_u32 v{vC}, v{vC+1}, 4, v{vC}")
    A(f"v_add_u32 v{vC}, s{sT0}, v{vC}")
    A(f"s_mul_i32 s{sOFF}, s{sST_}, {32*1280}")
    A(f"s_mov_b32 s{sT1}, {WT}")
    A(f"s_lshl_b32 s{sCNT}, s{sN}, 2")
    A.label("L_f2_ld")
    A(f"s_mov_b32 m0, s{sT1}")
    A(f"s_add_u32 s{sT1}, s{sT1}, 1024")
    if not noffn:
        A(f"buffer_load_dwordx4 v{vC}, s[{F0S}:{F0S+3}], s{sOFF} offen {ffnflags} lds")
    A(f"s_add_u32 s{sOFF}, s{sOFF}, {8*1280}")
    A(f"s_waitcnt vmcnt({f2win - 1})")
    A(f"s_sub_u32 s{sCNT}, s{sCNT}, 1")
    A(f"s_cmp_lg_u32 s{sCNT}, 0")
    A("s_cbranch_scc1 L_f2_ld")
    vH = 36
    A(f"s_lshl_b32 s{sT0}, s{sST_}, 1")
    A(f"s_min_u32 s{sT1}, s{sT0}, 80")
    A(f"s_sub_u32 s{sT2}, s{sT0}, s{sT1}")
    A(f"s_lshl_b32 s{sT2}, s{sT2}, 5")
    A(f"s_lshl_b32 s{sT1}, s{sT1}, 8")
    A(f"s_add_u32 s{sT1}, s{sT1}, {WS_HL}")
    A(f"s_lshl_b32 s{sT0}, s{sKQ}, 13")
    A(f"s_add_u32 s{sT0}, s{sT0}, {WS_H}")
    A(f"v_lshlrev_b32 v{vC}, 4, v1")
    A(f"v_lshlrev_b32 v{vC+1}, 7, v1")
    A(f"v_lshrrev_b32 v{vC+2}, 2, v2")
    A(f"v_mul_u32_u24 v{vC+2}, 896, v{vC+2}")
    A(f"v_lshl_add_u32 v{vC+2}, v3, 5, v{vC+2}")
    A(f"v_and_b32 v{vC+3}, 3, v1")
    A(f"v_lshl_add_u32 v{vC+2}, v{vC+3}, 3, v{vC+2}")
    A(f"s_add_u32 s{sOFF}, s{sT1}, 4096")
    A("s_branch L_g")
    A.label("L_gr")
    A(f"s_sleep {gsleep}")
    A.label("L_g")
    for i in range(7):
        A(f"buffer_load_dwordx4 v[{vH+4*i}:{vH+4*i+3}], v{vC}, s[{WSS}:{WSS+3}], s{sT1 if i < 4 else sOFF} offen offset:{1024*(i&3)} sc1")
    A(f"buffer_load_dword v{vH+28}, v{vC+1}, s[{WSS}:{WSS+3}], s{sT0} offen sc1")
    A("s_waitcnt vmcnt(0)")
    A(f"v_xor_b32 v{vH+28}, s{sTAG}, v{vH+28}")
    for i in range(7):
        A(f"v_xor_b32 v{vH+4*i+1}, s{sTAG}, v{vH+4*i+1}")
        A(f"v_xor_b32 v{vH+4*i+3}, s{sTAG}, v{vH+4*i+3}")
        A(f"v_or3_b32 v{vH+28}, v{vH+28}, v{vH+4*i+1}, v{vH+4*i+3}")
    A(f"v_cmp_ne_u32 vcc, 0, v{vH+28}")
    A("s_nop 1")
    A("s_cbranch_vccnz L_gr")
    for i in range(7):
        A(f"v_mov_b32 v{vH+4*i+1}, v{vH+4*i+2}")
        A(f"ds_write_b64 v{vC+2}, v[{vH+4*i}:{vH+4*i+1}] offset:{HB + 128*i}")
    A(f"v_lshrrev_b32 v{vC+4}, 2, v2")
    A(f"v_lshl_add_u32 v{vC+4}, v3, 3, v{vC+4}")
    A(f"v_lshlrev_b32 v{vTR}, 7, v{vC+4}")
    A(f"v_lshl_add_u32 v{vTR}, v{vC+3}, 3, v{vTR}")
    A(f"v_add_u32 v{vTR}, {WT}, v{vTR}")
    A(f"v_mul_u32_u24 v{vAO}, 896, v{vC+3}")
    A(f"v_lshl_add_u32 v{vAO}, v3, 4, v{vAO}")
    A(f"v_add_u32 v{vAO}, s{sT2}, v{vAO}")
    A("s_waitcnt lgkmcnt(0)")
    vB4, vD4 = 36, 52
    for i in range(16):
        A(f"v_mov_b32 v{vD4+i}, 0")
    A(f"s_mov_b32 s{sCNT}, s{sN}")
    A.label("L_f2_mm")
    A(f"ds_read_b128 v[{vFA}:{vFA+3}], v{vAO} offset:{HB}")
    for cb in range(4):
        A(f"ds_read_b64_tr_b16 v[{vB4+4*cb}:{vB4+4*cb+1}], v{vTR} offset:{32*cb}")
        A(f"ds_read_b64_tr_b16 v[{vB4+4*cb+2}:{vB4+4*cb+3}], v{vTR} offset:{32*cb+512}")
    A(f"v_add_u32 v{vAO}, 64, v{vAO}")
    A(f"v_add_u32 v{vTR}, 4096, v{vTR}")
    A("s_waitcnt lgkmcnt(0)")
    for cb in range(4):
        d = vD4 + 4 * cb
        A(f"v_mfma_f32_16x16x32_bf16 v[{d}:{d+3}], v[{vFA}:{vFA+3}], v[{vB4+4*cb}:{vB4+4*cb+3}], v[{d}:{d+3}]")
    A(f"s_sub_u32 s{sCNT}, s{sCNT}, 1")
    A(f"s_cmp_lg_u32 s{sCNT}, 0")
    A("s_cbranch_scc1 L_f2_mm")
    A("s_nop 7")
    for i in range(1, 4):
        A(f"v_cmp_eq_u32 vcc, {i}, v3")
        A("s_nop 1")
        for cb in range(4):
            A(f"v_cndmask_b32 v{vD4+4*cb}, v{vD4+4*cb}, v{vD4+4*cb+i}, vcc")
    for cb in range(4):
        A(f"v_mov_b32 v{vD4+4*cb+1}, s{sTAG}")
    A(f"v_lshlrev_b32 v{vC}, 3, v1")
    A(f"s_and_b32 s{sT0}, s{sC}, 0xfc")
    A(f"s_lshl_b32 s{sT0}, s{sT0}, 2")
    A(f"s_add_u32 s{sT0}, s{sT0}, s{sKQ}")
    A(f"s_lshl_b32 s{sT0}, s{sT0}, 9")
    A(f"s_add_u32 s{sT0}, s{sT0}, {WS_FQ}")
    for cb in range(4):
        A(f"buffer_store_dwordx2 v[{vD4+4*cb}:{vD4+4*cb+1}], v{vC}, s[{WSS}:{WSS+3}], s{sT0} offen sc1")
        A(f"s_add_u32 s{sT0}, s{sT0}, 2048")
    A(f"s_lshl_b32 s{sT0}, s{sC}, 11")
    A(f"s_add_u32 s{sT0}, s{sT0}, {WS_FQ}")
    A("s_waitcnt vmcnt(0)")
    A("s_branch L_p")
    A.label("L_pr")
    A(f"s_sleep {gsleep // 2}")
    A.label("L_p")
    for i in range(4):
        A(f"buffer_load_dwordx2 v[{vH+2*i}:{vH+2*i+1}], v{vC}, s[{WSS}:{WSS+3}], s{sT0} offen offset:{512*i} sc1")
    A("s_waitcnt vmcnt(0)")
    for i in range(4):
        A(f"v_xor_b32 v{vH+2*i+1}, s{sTAG}, v{vH+2*i+1}")
    A(f"v_or3_b32 v{vH+1}, v{vH+1}, v{vH+3}, v{vH+5}")
    A(f"v_or_b32 v{vH+1}, v{vH+1}, v{vH+7}")
    A(f"v_cmp_ne_u32 vcc, 0, v{vH+1}")
    A("s_nop 1")
    A("s_cbranch_vccnz L_pr")
    A(f"s_cmp_lg_u32 s{sROLE}, 128")
    A("s_cbranch_scc1 L_noep")
    A(f"v_mov_b32 v{vC+2}, {WS_EP:#x}")
    A(f"v_mov_b32 v{vC+3}, s{sTAG}")
    A("s_mov_b64 exec, 1")
    A(f"buffer_store_dword v{vC+3}, v{vC+2}, s[{WSS}:{WSS+3}], 0 offen sc1")
    A("s_mov_b64 exec, -1")
    A.label("L_noep")
    A(f"v_add_f32 v20, v{vH}, v{vH+2}")
    A(f"v_add_f32 v21, v{vH+4}, v{vH+6}")
    A("v_add_f32 v20, v20, v21")
    round_bf16([20])
    A(f"s_mov_b32 s{sT1}, {f2u(-L2E):#x}")
    A(f"v_mul_f32 v21, s{sT1}, v20")
    A("v_exp_f32 v21, v21")
    A("s_nop 0")
    A("v_add_f32 v21, 1.0, v21")
    A("v_rcp_f32 v21, v21")
    A("s_nop 0")
    A("v_mul_f32 v21, v21, v20")
    round_bf16([21])
    A(f"ds_write_b32 v{vO1}, v21 offset:{GB}")
    A("s_waitcnt lgkmcnt(0)")
    A.label("L_idle")
    vML = 20
    vE = 28
    vAd = 30
    vZ = 31
    vSO = 32
    vOUT = 33
    vOA = 36
    vTA = 52
    A(f"v_and_b32 v{vAd}, 3, v1")
    A(f"v_lshlrev_b32 v{vAd}, 8, v{vAd}")
    A(f"v_lshl_add_u32 v{vAd}, v3, 4, v{vAd}")
    A(f"v_mov_b32 v{vZ}, 0")
    A(f"s_lshl_b32 s{sT0}, s{sB}, 5")
    A(f"s_add_u32 s{sT0}, s{sT0}, s{sH}")
    A(f"s_lshl_b32 s{sT0}, s{sT0}, 1")
    A(f"s_add_u32 s{sT0}, s{sT0}, s{sSPLIT}")
    A(f"s_lshl_b32 s{sT0}, s{sT0}, 6")
    A(f"s_mul_i32 s{sT1}, s{sA}, {10*16384}")
    A(f"s_add_u32 s{sT0}, s{sT0}, s{sT1}")
    A(f"v_lshlrev_b32 v{vSO}, 14, v3")
    A(f"v_lshl_add_u32 v{vSO}, v2, 2, v{vSO}")
    A(f"v_add_u32 v{vSO}, s{sT0}, v{vSO}")
    A(f"s_mov_b32 s{sCNT}, {4*16384}")
    vSO2 = 92
    sGM = F0S
    A(f"v_add_u32 v{vSO2}, {8*16384}, v{vSO}")
    A("v_mov_b32 v93, 0x7ffffff0")
    A("v_cmp_gt_u32 vcc, 32, v1")
    A(f"s_mov_b32 s{sGM}, 0xffff0000")
    A(f"s_mov_b32 s{sGM+1}, 0")
    A(f"v_cndmask_b32 v{vSO2}, v93, v{vSO2}, vcc")
    A("v_cmp_eq_u32 vcc, 192, v0")
    A(f"s_mov_b32 s{sGM+2}, 0")
    A(f"s_mov_b32 s{sGM+3}, 0xffff")
    A(f"v_cndmask_b32 v{vO3}, v93, v{vO3}, vcc")
    A(f"s_mov_b32 s{sGM+4}, 0")
    A(f"s_mov_b32 s{sGM+5}, 0xffff0000")
    A(f"s_sub_u32 s{sT3}, s{sROLE}, 128")
    A(f"s_lshl_b32 s{sT0}, s{sT3}, 2")
    A(f"s_add_u32 s{sT0}, s{sT0}, s{sA}")
    A(f"s_lshl_b32 s{sT0}, s{sT0}, 12")
    A(f"v_lshlrev_b32 v14, 4, v1")
    A(f"s_lshl_b32 s{sT1}, s{sA}, 12")
    A(f"s_add_u32 s{sT1}, s{sT1}, {WS_ML}")
    A(f"v_lshrrev_b32 v15, 3, v1")
    A(f"v_lshlrev_b32 v15, 7, v15")
    A("v_and_b32 v16, 3, v1")
    A("v_lshlrev_b32 v16, 2, v16")
    A("v_and_b32 v17, 1, v3")
    A("v_lshl_add_u32 v16, v17, 1, v16")
    A("v_lshrrev_b32 v17, 1, v3")
    A("v_add_u32 v16, v16, v17")
    A(f"s_mul_i32 s{sT2}, s{sA}, 1280")
    A(f"s_lshl_b32 s{sOFF}, s{sT3}, 5")
    A(f"s_add_u32 s{sT2}, s{sT2}, s{sOFF}")
    A(f"v_lshl_add_u32 v17, v16, 1, s{sT2}")
    A(f"s_lshl_b32 s{sOFF}, s{sA}, 6")
    A(f"v_lshl_add_u32 v19, v16, 2, s{sOFF}")
    srd(OUTS, pOUT, None, 5120)
    A(f"s_cmp_ge_u32 s{sT3}, 40")
    A("s_cbranch_scc1 L_nopre")
    A(f"buffer_load_ushort v18, v17, s[{XS}:{XS+3}], 0 offen")
    if touchout:
        A(f"buffer_load_ushort v94, v17, s[{OUTS}:{OUTS+3}], 0 offen")
    A.label("L_nopre")
    A("s_waitcnt vmcnt(0)")
    stamp(3)
    A("s_barrier")
    stamp(4)
    if stamps: A("s_waitcnt lgkmcnt(0)")
    for ks in range(4):
        A(f"ds_read_b128 v[{vOA+4*ks}:{vOA+4*ks+3}], v{vAd} offset:{OP + 64*ks}")
    for w in range(0, NS, 2):
        A(f"ds_read_b128 v[{vML+2*w}:{vML+2*w+3}], v{vZ} offset:{ML + 8*w}")
    queue = []
    slot = [0]
    def emit(x):
        A(x); slot[0] += 1
    def drain(budget):
        while queue and budget > 0 and queue[0][0] <= slot[0]:
            _, x, wgt = queue.pop(0)
            emit(x); budget -= wgt
    def push(xs, earliest=0, wgt=1):
        for x in xs: queue.append((earliest, x, wgt))
    push(["s_waitcnt lgkmcnt(0)"], wgt=0)
    push([f"v_max3_f32 v{vE}, v{vML}, v{vML+2}, v{vML+4}", f"v_max_f32 v{vE}, v{vE}, v{vML+6}"])
    push([f"v_sub_f32 v{vML+2*w}, v{vML+2*w}, v{vE}" for w in range(4)])
    push([f"v_mul_f32 v{vML+2*w}, s{sL2E}, v{vML+2*w}" for w in range(4)])
    push([f"v_exp_f32 v{vML+2*w}, v{vML+2*w}" for w in range(4)], wgt=2)
    push([f"v_min_u32 v{vE}, -2, v{vE}", f"v_mul_f32 v{vE+1}, v{vML}, v{vML+1}"])
    push([f"v_fmac_f32 v{vE+1}, v{vML+2*w}, v{vML+2*w+1}" for w in range(1, 4)])
    push([f"v_min_u32 v{vE+1}, -2, v{vE+1}",
          f"buffer_store_dwordx2 v[{vE}:{vE+1}], v{vO3}, s[{WSS}:{WSS+3}], 0 offen sc1"])
    def comb(cb):
        q, g = divmod(cb, 4)
        d = vTA + 4 * cb
        tgt = vOUT + q if g == 0 else d
        r = [f"v_mul_f32 v{tgt}, v{d}, v{vML}"] + [f"v_fmac_f32 v{tgt}, v{d+w}, v{vML+2*w}" for w in range(1, 4)]
        if g:
            r.append(f"v_cndmask_b32 v{vOUT+q}, v{vOUT+q}, v{d}, s[{sGM+2*(g-1)}:{sGM+2*(g-1)+1}]")
        if g == 3 or cb == 9:
            so = ("0", f"s{sCNT}", "0")[q]
            vo = vSO if q < 2 else vSO2
            r += [f"v_min_u32 v{vOUT+q}, -2, v{vOUT+q}",
                  f"buffer_store_dword v{vOUT+q}, v{vo}, s[{WSS}:{WSS+3}], {so} offen sc1"]
        return r
    for cb in range(10):
        for ks in range(4):
            if cb == 0:
                emit(f"s_waitcnt lgkmcnt({5 - ks})")
            r = vW + 4 * (cb * 4 + ks)
            d = vTA + 4 * cb
            c = "0" if ks == 0 else f"v[{d}:{d+3}]"
            emit(f"v_mfma_f32_16x16x32_bf16 v[{d}:{d+3}], v[{vOA+4*ks}:{vOA+4*ks+3}], v[{r}:{r+3}], {c}")
            if ks == 3:
                push(comb(cb), earliest=slot[0] + 8)
            if cb > 0 or ks == 3:
                drain(2)
    while queue:
        gap = queue[0][0] - slot[0]
        if gap > 0:
            A(f"s_nop {gap - 1}"); slot[0] += gap
        drain(100)
    stamp(6)
    A(f"s_cmp_ge_u32 s{sT3}, 40")
    A("s_cbranch_scc1 L_fin")
    if nofinal:
        A("s_branch L_fin")
    A(f"ds_read_b32 v19, v19 offset:{GB}")
    vT, vMLp = 96, 112
    A.label("L_poll")
    for n in range(4):
        A(f"buffer_load_dwordx4 v[{vT+4*n}:{vT+4*n+3}], v14, s[{WSS}:{WSS+3}], s{sT0} offen offset:{1024*n} sc1")
    for n in range(4):
        A(f"buffer_load_dwordx4 v[{vMLp+4*n}:{vMLp+4*n+3}], v15, s[{WSS}:{WSS+3}], s{sT1} offen offset:{1024*n} sc1")
    A("s_waitcnt vmcnt(0)")
    A(f"v_max3_u32 v20, v{vT}, v{vT+1}, v{vT+2}")
    A(f"v_max3_u32 v21, v{vT+3}, v{vT+4}, v{vT+5}")
    for i in range(6, 30, 4):
        A(f"v_max3_u32 v20, v20, v{vT+i}, v{vT+i+1}")
        A(f"v_max3_u32 v21, v21, v{vT+i+2}, v{vT+i+3}")
    A(f"v_max3_u32 v20, v20, v{vT+30}, v{vT+31}")
    A("v_max_u32 v20, v20, v21")
    A("v_cmp_eq_u32 vcc, -1, v20")
    A("s_nop 1")
    A("s_cbranch_vccnz L_poll")
    stamp(5)
    A("v_bfe_u32 v20, v1, 2, 1")
    A("v_cmp_eq_u32 vcc, 1, v20")
    for n in range(4):
        m0, l0, m1, l1 = [vMLp + 4 * n + i for i in range(4)]
        A(f"v_max_f32 v21, v{m0}, v{m1}")
        A(f"v_sub_f32 v{m0}, v{m0}, v21")
        A(f"v_sub_f32 v{m1}, v{m1}, v21")
        A(f"v_mul_f32 v{m0}, s{sL2E}, v{m0}")
        A(f"v_mul_f32 v{m1}, s{sL2E}, v{m1}")
        A(f"v_exp_f32 v{m0}, v{m0}")
        A(f"v_exp_f32 v{m1}, v{m1}")
    A("s_nop 0")
    for n in range(4):
        m0, l0, m1, l1 = [vMLp + 4 * n + i for i in range(4)]
        A(f"v_mul_f32 v{l0}, v{l0}, v{m0}")
        A(f"v_fmac_f32 v{l0}, v{l1}, v{m1}")
        A(f"v_rcp_f32 v{l0}, v{l0}")
        A(f"v_cndmask_b32 v{m0}, v{m0}, v{m1}, vcc")
    A("s_nop 0")
    for n in range(4):
        m0, l0, m1, l1 = [vMLp + 4 * n + i for i in range(4)]
        A(f"v_mul_f32 v{m0}, v{m0}, v{l0}")
    for n in range(4):
        for i in range(4):
            if n == 0:
                A(f"v_mul_f32 v{24+i}, v{vT+i}, v{vMLp}")
            else:
                A(f"v_fmac_f32 v{24+i}, v{vT+4*n+i}, v{vMLp+4*n}")
    A("s_nop 1")
    A("v_permlane32_swap_b32 v24, v25")
    A("v_permlane32_swap_b32 v26, v27")
    A("v_add_f32 v24, v24, v25")
    A("v_add_f32 v26, v26, v27")
    A("s_nop 1")
    A("v_permlane16_swap_b32 v24, v26")
    A("v_add_f32 v24, v24, v26")
    A("s_nop 1")
    A("v_add_f32_dpp v24, v24, v24 row_ror:4 row_mask:0xf bank_mask:0xf")
    A("s_nop 1")
    A("v_add_f32_dpp v24, v24, v24 row_ror:8 row_mask:0xf bank_mask:0xf")
    A("s_waitcnt lgkmcnt(0)")
    round_bf16([24])
    A("v_mul_f32 v24, v24, v19")
    round_bf16([24])
    A("v_lshlrev_b32 v18, 16, v18")
    A("v_add_f32 v24, v24, v18")
    A("v_cvt_pk_bf16_f32 v24, v24, v24")
    A("s_mov_b32 exec_lo, 0x000f000f")
    A("s_mov_b32 exec_hi, 0x000f000f")
    A(f"buffer_store_short v24, v17, s[{OUTS}:{OUTS+3}], 0 offen")
    A("s_mov_b64 exec, -1")
    A.label("L_fin")
    if stamps:
        A("s_waitcnt vmcnt(0)")
        stamp(7)
        A(f"s_cmp_lg_u32 s{sA}, 0")
        A("s_cbranch_scc1 L_end")
        A("s_waitcnt lgkmcnt(0)")
        for i in range(NSTAMP):
            A(f"v_mov_b32 v{20+i}, s{sST+2*i}")
        if dbgst:
            A("s_cmp_eq_u32 s2, 0")
            A("s_cbranch_scc1 L_dbgw")
            A("s_cmp_lg_u32 s2, 255")
            A("s_cbranch_scc1 L_end")
            A.label("L_dbgw")
            for i in range(1, NSTAMP):
                A(f"v_sub_u32 v{20+i}, v{20+i}, v20")
            A("s_and_b32 s61, s2, 32")
            A("v_mov_b32 v30, s61")
            A("s_mov_b64 exec, 1")
            A(f"global_store_dwordx4 v30, v[20:23], s[{pDBG}:{pDBG+1}]")
            A(f"global_store_dwordx4 v30, v[24:27], s[{pDBG}:{pDBG+1}] offset:16")
            A("s_endpgm")
        A(f"s_getreg_b32 s{sT1}, hwreg(HW_REG_XCC_ID)")
        A(f"s_getreg_b32 s{sT2}, hwreg(HW_REG_HW_ID)")
        A(f"s_lshl_b32 s{sT0}, s2, 3")
        A(f"s_add_u32 s{sT0}, s{sT0}, {WS_STAMP + 0x10000}")
        A(f"v_mov_b32 v30, s{sT0}")
        A(f"v_mov_b32 v28, s{sT1}")
        A(f"v_mov_b32 v29, s{sT2}")
        A("s_mov_b64 exec, 1")
        A(f"global_store_dwordx2 v30, v[28:29], s[{pWS}:{pWS+1}]")
        A("s_mov_b64 exec, -1")
        A(f"s_lshl_b32 s{sT0}, s2, 5")
        A(f"s_add_u32 s{sT0}, s{sT0}, {WS_STAMP}")
        A(f"v_mov_b32 v30, s{sT0}")
        A("s_mov_b64 exec, 1")
        A(f"global_store_dwordx4 v30, v[20:23], s[{pWS}:{pWS+1}]")
        A(f"global_store_dwordx4 v30, v[24:27], s[{pWS}:{pWS+1}] offset:16")
    A.label("L_end")
    A("s_endpgm")
    out += A.text()
    nv = max(RING + 16 * R + 1, vW + 4 * NL, 128)
    assert nv <= 256
    out += f"""
.section .rodata,"a"
.p2align 6
.amdhsa_kernel {NAME}
  .amdhsa_next_free_vgpr {nv}
  .amdhsa_next_free_sgpr 96
  .amdhsa_accum_offset {(nv + 3) // 4 * 4}
  .amdhsa_group_segment_fixed_size 0
  .amdhsa_kernarg_size 96
  .amdhsa_user_sgpr_count 2
  .amdhsa_user_sgpr_kernarg_segment_ptr 1
  .amdhsa_system_sgpr_workgroup_id_x 1
  .amdhsa_float_denorm_mode_32 3
.end_amdhsa_kernel
"""
    return out

if __name__ == "__main__":
    kw = eval("dict(" + (sys.argv[1] if len(sys.argv) > 1 else "") + ")")
    sys.stdout.write(gen(**kw))
```

```python
import sys, struct

NAME = "recurrent_scan__mha_block_cached__geglu_ffn__decode_kernel"

def f2u(x):
    return struct.unpack("<I", struct.pack("<f", x))[0]

HEADER = """; Kernarg layout for this problem (96 bytes, ptrs only, base s[0:1]):
"""

class Gen:
    def __init__(self):
        self.o = []
    def __call__(self, s):
        self.o.append("    " + s)
    def label(self, s):
        self.o.append(s + ":")
    def c(self, s):
        self.o.append("    ; " + s)
    def text(self):
        return "\n".join(self.o) + "\n"


def gen(dbgst=0, tl=0, NS=4, DEPTH=4, kvflags="nt", wqflags="nt", woflags="nt", ffnflags="nt", auxprio=1, stamps=0,
        wqwin=40, wowin=40, f1win=20, f2win=16, shift=0, gsleep=127,
        nowo=0, noffn=0, nowq=0, noaux=0, nosig=0, nofinal=0, bar0=0, badloc=0, cap=0, ffnfirst=0, fine=0, pcap=0, nowqn=0, endn=0, tlbpf=0, tlbflags="nt", evenc=0, hmap=0, rotq=0, pre0=0, bar0at=40, nofp=0, nogather=0, predelay=0, noflagpoll=0, nofpf=None, noclear=0, noclrf=None, boost=0, bcap=1, st4x=0, touchout=1, pb=None, pball=0, who="odd", capv=None, R=4, nowoh=0, nowolin=0, wpf=0, pfflags="", stag=None, lnfirst=0, nowqd=0, psleep=0, nopub=0, E=0, ctl=None, modes=((5,5),(6,5),(7,6),(8,8)), thr=(4, 11, 14), npeer=16, ctltest=0, csleep=2, cloc=1, cst="", cld="sc1", xg=0):
    A = Gen()
    NA = 4
    NW = NS + NA
    XND = 0
    XNB = XND + 10240
    QP = XNB + 5120
    QB = QP + NA * 512
    OP = QB + NS * 256
    ML = OP + NS * 256
    FLG = ML + 64
    PM = FLG + 16
    GB = PM + 16
    HB = GB + 256
    SC = HB + 3584
    TP = SC + NS * 2304
    WT = TP + NA * 10240
    LDS = WT + 448 * 128
    assert WT % 16 == 0 and HB % 16 == 0 and TP % 16 == 0
    WS_T = 0
    WS_ML = 0xA0000
    WS_H = 0xA4000
    WS_EP = 0xAC000
    WS_HL = 0xB0000
    WS_FQ = 0xB8000
    WS_CP = 0xD0000
    WS_SIZE = WS_CP + 16 * 32768
    WS_STAMP = 0x200000
    L2E = 1.4426950408889634
    SCALE = 128 ** -0.5

    sWAVE, sX8, sSLOT, sSPLIT, sB, sH = 3, 4, 5, 6, 7, 60
    KS, VS = 8, 12
    WQS, WOS = 8, 12
    WSS = 16
    XS = 20
    F0S, F1S = 24, 28
    OUTS = 32
    P = 36
    pX, pK, pV, pWQ, pWO, pBX, pWG, pWU, pWD, pOUT, pDBG, pWS = [P + 2 * i for i in range(12)]
    sT0, sT1, sT2, sT3 = 61, 62, 63, 64
    sOFF, sCNT, sM, sL2E, sSC, sA, sHS = 65, 66, 67, 68, 69, 70, 71
    sEX = 72
    sTAG, sROLE = 74, 75
    sST = 76
    sNU = 95
    NSTAMP = 8
    def stamp(i):
        if stamps:
            A(f"s_memrealtime s[{sST+2*i}:{sST+2*i+1}]")

    def srd(dst, ptr, add_lo, nrec):
        if add_lo is None:
            A(f"s_mov_b32 s{dst}, s{ptr}")
            A(f"s_mov_b32 s{dst+1}, s{ptr+1}")
        else:
            A(f"s_add_u32 s{dst}, s{ptr}, {add_lo}")
            A(f"s_addc_u32 s{dst+1}, s{ptr+1}, 0")
        A(f"s_mov_b32 s{dst+2}, {nrec}")
        A(f"s_mov_b32 s{dst+3}, 0x20000")

    out = HEADER
    out += f"; @launch grid=(256,1,1) block=({NW*64},1,1) lds={LDS}\n"
    out += '.amdgcn_target "amdgcn-amd-amdhsa--gfx950"\n.text\n'
    out += f".globl {NAME}\n.p2align 8\n.type {NAME},@function\n{NAME}:\n"

    A("s_cmp_ge_u32 s2, 256")
    A("s_cbranch_scc1 L_end")
    stamp(0)
    A(f"s_load_dwordx16 s[{P}:{P+15}], s[0:1], 0")
    A(f"s_load_dwordx8 s[{P+16}:{P+23}], s[0:1], 64")
    A("v_lshrrev_b32 v4, 6, v0")
    A("v_and_b32 v1, 63, v0")
    A(f"v_readfirstlane_b32 s{sWAVE}, v4")
    A("v_and_b32 v2, 15, v1")
    A("v_lshrrev_b32 v3, 4, v1")
    if badloc:
        A(f"s_lshr_b32 s{sX8}, s2, 5")
        A(f"s_and_b32 s{sSLOT}, s2, 31")
    else:
        A(f"s_and_b32 s{sX8}, s2, 7")
        A(f"s_lshr_b32 s{sSLOT}, s2, 3")
    A(f"s_and_b32 s{sSPLIT}, s{sSLOT}, 1")
    A(f"s_lshr_b32 s{sB}, s{sSLOT}, 1")
    A(f"s_and_b32 s{sB}, s{sB}, 3")
    if hmap == "plan2":
        A(f"s_lshr_b32 s{sH}, s{sSLOT}, 3")
        A(f"s_lshl_b32 s{sT0}, s{sX8}, 2")
        A(f"s_add_u32 s{sH}, s{sH}, s{sT0}")
    else:
        A(f"s_lshr_b32 s{sH}, s{sSLOT}, 3")
        A(f"s_mul_i32 s{sT0}, s{sH}, {hmap}")
        A(f"s_add_u32 s{sT0}, s{sT0}, s{sX8}")
        A(f"s_and_b32 s{sT0}, s{sT0}, 7")
        A(f"s_lshl_b32 s{sH}, s{sH}, 3")
        A(f"s_add_u32 s{sH}, s{sH}, s{sT0}")
    A(f"s_mov_b32 s{sL2E}, {f2u(L2E):#x}")
    A(f"s_mov_b32 s{sSC}, {f2u(SCALE):#x}")
    MK = 4
    A("v_and_b32 v8, 1, v2")
    A("v_lshlrev_b32 v8, 4, v8")
    A("v_mov_b32 v9, 0xffff")
    A("v_lshlrev_b32 v8, v8, v9")
    A("v_lshrrev_b32 v9, 1, v2")
    A(f"s_lshr_b32 s{sT0}, 0x15, s{sX8}")
    A(f"s_and_b32 s{sT0}, s{sT0}, 1")
    A(f"s_lshl_b32 s{sT0}, s{sT0}, 2")
    A(f"s_add_u32 s{sNU}, s{sT0}, 12")
    A(f"s_cmp_lt_u32 s{sWAVE}, {NA}")
    A("s_cbranch_scc1 L_aux")

    vOA_, vOB_ = 18, 19
    vM, vL, vNM, vSA, vTM = 10, 11, 12, 13, 17
    vT0, vT1 = 14, 15
    vVA = 16
    vACC = 20
    vS = 24
    vP = 28
    vQ = 32
    vS2 = 40
    vA = 48
    RING = 64
    sN, sOFF0 = sHS, sA
    def reg(slot, i): return RING + slot * 16 + i * 4
    A.c("---- streaming wave ----")
    A(f"s_sub_u32 s{sWAVE}, s{sWAVE}, {NA}")
    A(f"v_lshlrev_b32 v{vOA_}, 8, v9")
    A(f"v_and_b32 v{vOB_}, 1, v2")
    A(f"v_lshl_add_u32 v{vOA_}, v{vOB_}, 6, v{vOA_}")
    A(f"v_lshl_add_u32 v{vOA_}, v3, 4, v{vOA_}")
    A(f"v_add_u32 v{vOB_}, 128, v{vOA_}")
    RB = 2 << 20
    STEP = NS * 4096
    A(f"s_lshr_b32 s{sT2}, s{sSLOT}, 1")
    A(f"s_cmp_lt_u32 s{sT2}, s{sNU}")
    A(f"s_cselect_b32 s{sT1}, {shift}, 0")
    A(f"s_add_u32 s{sT1}, s{sT1}, 256")
    A(f"s_sub_u32 s{sT2}, 512, s{sT1}")
    A(f"s_cmp_eq_u32 s{sSPLIT}, 0")
    A(f"s_cselect_b32 s{sCNT}, s{sT1}, s{sT2}")
    A(f"s_cselect_b32 s{sOFF}, 0, s{sT1}")
    A(f"s_add_u32 s{sOFF}, s{sOFF}, s{sWAVE}")
    A(f"s_lshl_b32 s{sOFF}, s{sOFF}, 12")
    A(f"s_mov_b32 s{sOFF0}, s{sOFF}")
    A(f"s_sub_u32 s{sCNT}, s{sCNT}, s{sWAVE}")
    A(f"s_add_u32 s{sCNT}, s{sCNT}, {NS-1}")
    A(f"s_lshr_b32 s{sCNT}, s{sCNT}, {NS.bit_length()-1}")
    A(f"s_mov_b32 s{sN}, s{sCNT}")
    A(f"s_lshl_b32 s{sT0}, s{sB}, 5")
    A(f"s_add_u32 s{sT0}, s{sT0}, s{sH}")
    A(f"s_lshl_b32 s{sT0}, s{sT0}, 21")
    A("s_waitcnt lgkmcnt(0)")
    srd(KS, pK, f"s{sT0}", RB)
    A(f"s_add_u32 s{VS}, s{pV}, s{sT0}")
    A(f"s_addc_u32 s{VS+1}, s{pV+1}, 0")
    def issue(slot, w=None):
        for i in range(4):
            r = reg(slot, i)
            if w is not None: A(f"s_waitcnt vmcnt({w - 1})")
            A(f"buffer_load_dwordx4 v[{r}:{r+3}], v{(vOA_, vOB_)[i & 1]}, s[{KS}:{KS+3}], s{sOFF} offen offset:{2048*(i >> 1)} {kvflags}")
        A(f"s_add_u32 s{sOFF}, s{sOFF}, {STEP}")
    def window(slot):
        return cap if (slot & 1) == 0 or not capv else capv
    def weight_prefetch():
        PS = F0S
        vPF, vD = 20, 24
        A(f"s_add_u32 s{sT0}, s{sX8}, 1")
        A(f"s_lshr_b32 s{sT0}, s{sT0}, 1")
        A(f"s_min_u32 s{sT0}, s{sT0}, 3")
        A(f"s_cmp_eq_u32 s{sWAVE}, 0")
        A("s_cbranch_scc1 L_pf_wo")
        A(f"s_cmp_eq_u32 s{sWAVE}, 3")
        A("s_cbranch_scc1 L_pf_wd")
        A(f"s_cmp_eq_u32 s{sWAVE}, 1")
        A(f"s_cselect_b32 s{PS}, s{pWG}, s{pWU}")
        A(f"s_cselect_b32 s{PS+1}, s{pWG+1}, s{pWU+1}")
        A(f"s_mov_b32 s{PS+2}, {640*3456}")
        A(f"s_mov_b32 s{PS+3}, 0x20000")
        A(f"s_mul_i32 s{sT1}, s{sX8}, {12*32}")
        A(f"s_lshl_b32 s{sT2}, s{sT0}, 7")
        A(f"s_add_u32 s{sT1}, s{sT1}, s{sT2}")
        A(f"s_mul_i32 s{sT2}, s{sSLOT}, {20*3456}")
        A(f"s_add_u32 s{sT1}, s{sT1}, s{sT2}")
        A(f"v_lshrrev_b32 v{vPF}, 3, v1")
        A(f"v_mul_u32_u24 v{vPF}, 3456, v{vPF}")
        A(f"v_and_b32 v{vPF+1}, 7, v1")
        A(f"v_lshl_add_u32 v{vPF}, v{vPF+1}, 6, v{vPF}")
        A(f"s_lshr_b32 s{sT2}, s{sNU}, 1")
        A(f"v_cmp_gt_u32 vcc, s{sT2}, v{vPF+1}")
        A(f"v_mov_b32 v{vPF+2}, 0x7ffffff0")
        A("s_nop 0")
        A(f"v_cndmask_b32 v{vPF}, v{vPF+2}, v{vPF}, vcc")
        A(f"v_cmp_gt_u32 vcc, 32, v1")
        A(f"buffer_load_dword v{vD}, v{vPF}, s[{PS}:{PS+3}], s{sT1} offen {pfflags}")
        A(f"s_add_u32 s{sT1}, s{sT1}, {8*3456}")
        A(f"buffer_load_dword v{vD+1}, v{vPF}, s[{PS}:{PS+3}], s{sT1} offen {pfflags}")
        A(f"s_add_u32 s{sT1}, s{sT1}, {8*3456}")
        A(f"v_cndmask_b32 v{vPF+3}, v{vPF+2}, v{vPF}, vcc")
        A(f"buffer_load_dword v{vD+2}, v{vPF+3}, s[{PS}:{PS+3}], s{sT1} offen {pfflags}")
        A("s_branch L_pf_done")
        A.label("L_pf_wo")
        A(f"s_mul_i32 s{sT1}, s{sH}, {128*1280}")
        A(f"s_and_b32 s{sT2}, s{sSLOT}, 7")
        A(f"s_mul_i32 s{sT2}, s{sT2}, 20480")
        A(f"s_add_u32 s{sT1}, s{sT1}, s{sT2}")
        srd(PS, pWO, None, 4096 * 1280)
        A(f"v_lshlrev_b32 v{vPF}, 6, v1")
        for i in range(5):
            A(f"buffer_load_dword v{vD+i}, v{vPF}, s[{PS}:{PS+3}], s{sT1} offen {pfflags}")
            A(f"s_add_u32 s{sT1}, s{sT1}, 4096")
        A("s_branch L_pf_done")
        A.label("L_pf_wd")
        A(f"s_cmp_eq_u32 s{sNU}, 16")
        A("s_cbranch_scc1 L_pf_done")
        A(f"s_sub_u32 s{sT1}, s{sX8}, s{sT0}")
        A(f"s_lshl_b32 s{sT1}, s{sT1}, 8")
        A(f"s_mul_i32 s{sT2}, s{sSLOT}, {54*1280}")
        A(f"s_add_u32 s{sT1}, s{sT1}, s{sT2}")
        srd(PS, pWD, None, 1728 * 1280)
        A(f"v_lshrrev_b32 v{vPF}, 2, v1")
        A(f"v_mul_u32_u24 v{vPF}, 1280, v{vPF}")
        A(f"v_and_b32 v{vPF+1}, 3, v1")
        A(f"v_lshl_add_u32 v{vPF}, v{vPF+1}, 6, v{vPF}")
        A(f"v_cmp_gt_u32 vcc, 24, v1")
        A(f"v_mov_b32 v{vPF+2}, 0x7ffffff0")
        for i in range(3):
            A(f"buffer_load_dword v{vD+i}, v{vPF}, s[{PS}:{PS+3}], s{sT1} offen {pfflags}")
            A(f"s_add_u32 s{sT1}, s{sT1}, {16*1280}")
        A(f"v_cndmask_b32 v{vPF+3}, v{vPF+2}, v{vPF}, vcc")
        A(f"buffer_load_dword v{vD+3}, v{vPF+3}, s[{PS}:{PS+3}], s{sT1} offen {pfflags}")
        A.label("L_pf_done")
    if wpf == 1:
        weight_prefetch()
    for s in range(E + R):
        if stag:
            if s == 1 and wpf == 2:
                weight_prefetch()
            for grp in range(2):
                if stag[grp] == s:
                    A(f"s_cmp_lg_u32 s{sSPLIT}, {grp}")
                    A(f"s_cbranch_scc1 L_sg{grp}")
                    A("s_barrier")
                    A("s_barrier")
                    A.label(f"L_sg{grp}")
        elif pre0 == 4 * s:
            if wpf == 2:
                weight_prefetch()
            if bar0:
                A("s_barrier")
            if wpf == 3:
                weight_prefetch()
        issue(R + s if s < E else s - E, pcap if pcap else None)
    if wpf:
        A(f"s_waitcnt vmcnt({4 * (R + E) - pre0 if wpf != 1 else 4 * (R + E)})")
    for rr in range(4):
        A(f"v_cmp_eq_u32 vcc, {rr+4}, v9")
        A("s_nop 1")
        A(f"v_cndmask_b32 v{MK+rr}, 0, v8, vcc")
    A(f"v_lshlrev_b32 v{vVA}, 9, v3")
    A(f"v_lshl_add_u32 v{vVA}, v2, 4, v{vVA}")
    A(f"v_mov_b32 v{vM}, 0xff7fffff")
    A(f"v_mov_b32 v{vL}, 0")
    for i in range(4):
        A(f"v_mov_b32 v{vACC+i}, 0")
    A(f"v_lshlrev_b32 v{vT0}, 3, v1")
    A(f"s_lshl_b32 s{sT0}, s{sWAVE}, 8")
    A(f"s_add_u32 s{sT0}, s{sT0}, {QB}")
    A(f"v_lshl_add_u32 v{vT1}, v1, 2, s{sT0}")
    A(f"v_lshl_add_u32 v{vTM}, v3, 4, s{sT0}")
    A(f"v_lshrrev_b32 v{vNM}, 3, v2")
    A(f"v_lshl_add_u32 v{vTM}, v{vNM}, 6, v{vTM}")
    vEA, vEB = 8, 9
    A(f"s_lshl_b32 s{sT1}, s{sWAVE}, 8")
    A(f"s_add_u32 s{sT1}, s{sT1}, {OP - 16}")
    A(f"v_lshlrev_b32 v{vEA}, 4, v2")
    A(f"v_lshl_add_u32 v{vEA}, v3, 3, v{vEA}")
    A(f"v_add_u32 v{vEA}, s{sT1}, v{vEA}")
    A(f"s_lshl_b32 s{sT1}, s{sWAVE}, 3")
    A(f"s_add_u32 s{sT1}, s{sT1}, {ML}")
    A(f"v_mov_b32 v{vEB}, s{sT1}")
    A(f"s_mul_i32 s{sT3}, s{sWAVE}, 2304")
    A(f"s_add_u32 s{sT3}, s{sT3}, {SC}")
    A(f"v_lshl_add_u32 v{vSA}, v3, 3, s{sT3}")
    A(f"s_mov_b32 s{sEX}, 0x80008000")
    A(f"s_mov_b32 s{sEX+1}, 0x80008000")
    A("s_barrier")
    for a in range(NA):
        A(f"ds_read_b64 v[{vA+2*a}:{vA+2*a+1}], v{vT0} offset:{QP + a*512}")
    A("s_waitcnt lgkmcnt(0)")
    for a in range(1, NA):
        A(f"v_add_f32 v{vA}, v{vA}, v{vA+2*a}")
        A(f"v_add_f32 v{vA+1}, v{vA+1}, v{vA+2*a+1}")
    A(f"v_cvt_pk_bf16_f32 v{vA}, v{vA}, v{vA+1}")
    A(f"ds_write_b32 v{vT1}, v{vA}")
    A("s_waitcnt lgkmcnt(0)")
    for j in range(2):
        A(f"ds_read_b128 v[{vQ+4*j}:{vQ+4*j+3}], v{vTM} offset:{128*j}")
    A("s_waitcnt lgkmcnt(0)")
    W = 4 * (R - 1)
    def tstamp(phase):
        if tl:
            A("s_memrealtime s[92:93]")
            A(f"s_lshr_b32 m0, s{sCNT}, 1")
            if phase == 0:
                A("s_add_u32 m0, m0, 32")
            A("s_and_b32 m0, m0, 63")
            A("s_waitcnt lgkmcnt(0)")
            A(f"v_writelane_b32 v{RING + 16*(R+E)}, s92, m0")
    def kbody(s, refill, vaddr, off):
        for (j, d, qj) in ((0, vS2, 0), (2, vS2 + 4, 0), (1, vS2, 1), (3, vS2 + 4, 1)):
            r = reg(s, j)
            c = "0" if qj == 0 else f"v[{d}:{d+3}]"
            A(f"v_mfma_f32_16x16x32_bf16 v[{d}:{d+3}], v[{r}:{r+3}], v[{vQ+4*qj}:{vQ+4*qj+3}], {c}")
        if refill:
            issue(s, window(s))
        else:
            A("s_nop 7")
        for i in range(4):
            A(f"v_add_f32_dpp v{vS+i}, v{vS2+2*i}, v{vS2+2*i+1} row_ror:8 row_mask:0xf bank_mask:0xf")
        A(f"v_cvt_pk_bf16_f32 v{vT0}, v{vS}, v{vS+1}")
        A(f"v_cvt_pk_bf16_f32 v{vT1}, v{vS+2}, v{vS+3}")
        A(f"v_max3_f32 v{vM}, v{vS}, v{vS+1}, v{vM}")
        A(f"v_lshlrev_b32 v{vP}, 16, v{vT0}")
        A(f"v_and_b32 v{vP+1}, 0xffff0000, v{vT0}")
        A(f"v_lshlrev_b32 v{vP+2}, 16, v{vT1}")
        A(f"v_and_b32 v{vP+3}, 0xffff0000, v{vT1}")
        A(f"v_max3_f32 v{vM}, v{vS+2}, v{vS+3}, v{vM}")
        for i in range(4):
            A(f"v_mul_f32 v{vP+i}, s{sSC}, v{vP+i}")
        A(f"v_cvt_pk_bf16_f32 v{vT0}, v{vP}, v{vP+1}")
        A(f"v_cvt_pk_bf16_f32 v{vT1}, v{vP+2}, v{vP+3}")
        A(f"s_mov_b64 exec, s[{sEX}:{sEX+1}]")
        A(f"ds_write_b64 v{vaddr}, v[{vT0}:{vT1}] offset:{off}")
        A("s_mov_b64 exec, -1")
    if E:
        ex = list(range(E))
        for s in range(R):
            A(f"s_waitcnt vmcnt({W})")
            kbody(s, True, vSA, 32 * (E + s))
            for _ in range((E + R - 1) // R):
                if ex:
                    e = ex.pop(0)
                    kbody(R + e, False, vSA, 32 * e)
        A(f"v_add_u32 v{vSA}, {32 * (E + R)}, v{vSA}")
        A(f"s_sub_u32 s{sCNT}, s{sCNT}, {E + R}")
    for s in range(R):
        A.label(f"L_k{s}")
        A(f"s_cmp_lg_u32 s{sCNT}, {R}")
        A(f"s_cbranch_scc1 L_kk{s}")
        A(f"s_mov_b32 s{KS}, s{VS}")
        A(f"s_mov_b32 s{KS+1}, s{VS+1}")
        A(f"s_mov_b32 s{sOFF}, s{sOFF0}")
        A(f"v_mov_b32 v{vOA_}, v{vVA}")
        A(f"v_add_u32 v{vOB_}, 256, v{vVA}")
        A.label(f"L_kk{s}")
        A(f"s_waitcnt vmcnt({W})")
        kbody(s, True, vSA, 0)
        A(f"v_add_u32 v{vSA}, 32, v{vSA}")
        tstamp(0)
        A(f"s_sub_u32 s{sCNT}, s{sCNT}, 1")
        A(f"s_cmp_eq_u32 s{sCNT}, 0")
        A(f"s_cbranch_scc1 L_t{(s + 1) % R}")
    A("s_branch L_k0")
    for s in range(R):
        A.label(f"L_t{s}")
        A(f"s_mov_b32 s{sT0}, {s}")
        if s < R - 1:
            A("s_branch L_tr")
    A.label("L_tr")
    vMD, vPA, vPW = vQ, vQ + 1, vQ + 2
    if ctl:
        A(f"v_mov_b32 v{vMD}, 1")
        A(f"v_mov_b32 v{vPA}, 0")
        A(f"s_cmp_eq_u32 s{sWAVE}, 0")
        A(f"s_cselect_b32 s{sT1}, 0, 8")
        A(f"v_mov_b32 v{vPW}, s{sT1}")
    A(f"v_lshl_add_u32 v{vSA}, v3, 3, s{sT3}")
    A("s_waitcnt lgkmcnt(0)")
    A(f"ds_read_b64 v[{vT0}:{vT1}], v{vSA}")
    A(f"v_max_f32_dpp v{vM}, v{vM}, v{vM} row_bcast:15 row_mask:0xa bank_mask:0xf")
    A("s_nop 1")
    A(f"v_max_f32_dpp v{vM}, v{vM}, v{vM} row_bcast:31 row_mask:0xc bank_mask:0xf")
    A("s_nop 0")
    A(f"v_readlane_b32 s{sM}, v{vM}, 63")
    A(f"s_mov_b32 s{sCNT}, s{sN}")
    A("s_nop 0")
    A(f"v_mov_b32 v{vM}, s{sM}")
    A(f"v_cvt_pk_bf16_f32 v{vM}, v{vM}, v{vM}")
    A(f"v_and_b32 v{vM}, 0xffff0000, v{vM}")
    A(f"v_mul_f32 v{vM}, s{sSC}, v{vM}")
    A(f"v_cvt_pk_bf16_f32 v{vM}, v{vM}, v{vM}")
    A(f"v_and_b32 v{vM}, 0xffff0000, v{vM}")
    A(f"v_mul_f32 v{vNM}, s{sL2E}, v{vM}")
    for s in range(1, R):
        A(f"s_cmp_eq_u32 s{sT0}, {s}")
        A(f"s_cbranch_scc1 L_v{s}")
    for s in range(R):
        A.label(f"L_v{s}")
        A(f"s_cmp_le_u32 s{sCNT}, {R}")
        A(f"s_cselect_b32 s{KS+2}, 0, {RB}")
        A("s_waitcnt lgkmcnt(0)")
        A(f"v_lshlrev_b32 v{vP}, 16, v{vT0}")
        A(f"v_and_b32 v{vP+1}, 0xffff0000, v{vT0}")
        A(f"v_lshlrev_b32 v{vP+2}, 16, v{vT1}")
        A(f"v_and_b32 v{vP+3}, 0xffff0000, v{vT1}")
        A(f"v_add_u32 v{vSA}, 32, v{vSA}")
        for i in range(4):
            A(f"v_fma_f32 v{vP+i}, v{vP+i}, s{sL2E}, -v{vNM}")
        A(f"ds_read_b64 v[{vT0}:{vT1}], v{vSA}")
        if ctl:
            A(f"v_readfirstlane_b32 s{sT2}, v{vMD}")
            A(f"v_mov_b32 v{vS+1}, s{sCNT}")
            A(f"ds_read_b32 v{vMD}, v{vPA} offset:{PM + 4}")
            A(f"ds_write_b32 v{vPW}, v{vS+1} offset:{PM}")
        for i in range(4):
            A(f"v_exp_f32 v{vP+i}, v{vP+i}")
        A(f"v_add_f32 v{vS}, v{vP}, v{vP+1}")
        A(f"v_add_f32 v{vL}, v{vL}, v{vP+2}")
        A(f"v_add_f32 v{vS}, v{vS}, v{vP+3}")
        for i in range(4):
            A(f"v_cvt_pk_bf16_f32 v{vP+i}, v{vP+i}, v{vP+i}")
        A(f"v_add_f32 v{vL}, v{vL}, v{vS}")
        for i in range(4):
            for rr in range(4):
                A(f"v_and_b32 v{vA+4*i+rr}, v{vP+i}, v{MK+rr}")
        A(f"s_waitcnt vmcnt({W})")
        A("s_nop 0")
        for i in range(4):
            r = reg(s, i)
            A(f"v_mfma_f32_16x16x32_bf16 v[{vACC}:{vACC+3}], v[{vA+4*i}:{vA+4*i+3}], v[{r}:{r+3}], v[{vACC}:{vACC+3}]")
        tstamp(1)
        A(f"s_sub_u32 s{sCNT}, s{sCNT}, 1")
        A(f"s_cmp_eq_u32 s{sCNT}, 0")
        A("s_cbranch_scc1 L_sdone")
        A(f"s_cmp_lt_u32 s{sCNT}, {max(R, endn)}")
        A(f"s_cbranch_scc1 L_vf{s}")
        if ctl:
            for m in range(len(modes)):
                if m < len(modes) - 1:
                    A(f"s_cmp_lg_u32 s{sT2}, {m}")
                    A(f"s_cbranch_scc1 L_vm{s}_{m}")
                issue(s, modes[m][s & 1])
                A(f"s_branch L_v{(s + 1) % R}")
                if m < len(modes) - 1:
                    A.label(f"L_vm{s}_{m}")
        else:
            issue(s, window(s))
            A(f"s_branch L_v{(s + 1) % R}")
        A.label(f"L_vf{s}")
        issue(s)
    A("s_branch L_v0")
    A.label("L_sdone")
    A(f"v_add_f32_dpp v{vL}, v{vL}, v{vL} row_bcast:15 row_mask:0xa bank_mask:0xf")
    A("s_nop 1")
    A(f"v_add_f32_dpp v{vL}, v{vL}, v{vL} row_bcast:31 row_mask:0xc bank_mask:0xf")
    A("s_mov_b32 exec_lo, 0")
    A("s_mov_b32 exec_hi, 0x80000000")
    A(f"ds_write_b64 v{vEB}, v[{vM}:{vM+1}]")
    A("s_mov_b32 exec_hi, -1")
    A(f"v_cvt_pk_bf16_f32 v{vACC}, v{vACC}, v{vACC+1}")
    A(f"v_cvt_pk_bf16_f32 v{vACC+1}, v{vACC+2}, v{vACC+3}")
    A(f"ds_write_b64 v{vEA}, v[{vACC}:{vACC+1}]")
    A("s_mov_b64 exec, -1")
    A("s_waitcnt lgkmcnt(0)")
    A("s_barrier")
    if tl:
        A(f"s_lshl_b32 s{sT0}, s2, 2")
        A(f"s_add_u32 s{sT0}, s{sT0}, s{sWAVE}")
        A(f"s_lshl_b32 s{sT0}, s{sT0}, 8")
        A(f"s_add_u32 s{sT0}, s{sT0}, 0x300000")
        A(f"v_lshl_add_u32 v16, v1, 2, s{sT0}")
        A(f"global_store_dword v16, v{RING + 16*(R+E)}, s[{pWS}:{pWS+1}]")
    A("s_endpgm")

    A.label("L_aux")
    A.c("---- aux wave ----")
    NL = 160 // NA
    RW = 640 // NA
    RT = RW // 4
    RO = 128 // NA
    OT = RO // 4
    vTO = 13
    vO1, vO2, vO3 = 10, 11, 12
    vX = 14
    vF = 20
    vC = 30
    vAA = 36
    vQA = 44
    vX2 = 48
    vXD = 56
    vW = 96
    if auxprio:
        A(f"s_setprio {auxprio}")
    A(f"s_mov_b32 s{sA}, s{sWAVE}")
    if noaux:
        A("s_waitcnt lgkmcnt(0)")
        if bar0: A("s_barrier")
        if stag: A("s_barrier")
        stamp(1)
        A("s_barrier")
        stamp(2); stamp(3)
        A("s_barrier")
        stamp(4); stamp(5); stamp(6)
        A("s_branch L_fin")
    A(f"v_lshlrev_b32 v{vO1}, 2, v1")
    WQR = 256 if nowqd == 2 else 8192
    A(f"v_mul_u32_u24 v{vO2}, {RT*WQR}, v3")
    A(f"v_lshl_add_u32 v{vO2}, v2, 4, v{vO2}")
    A(f"s_mul_i32 s{sT0}, s{sA}, 1280")
    A(f"s_mul_i32 s{sT3}, s{sB}, 1280")
    A(f"s_mul_i32 s{sT1}, s{sH}, {(256, 0, 163840)[nowqd]}")
    A(f"s_mul_i32 s{sT2}, s{sA}, {RW*WQR}")
    A(f"s_add_u32 s{sT1}, s{sT1}, s{sT2}")
    A(f"s_sub_u32 s{sT2}, {640*8192}, s{sT1}")
    A("s_waitcnt lgkmcnt(0)")
    srd(XS, pX, None, 5120)
    for i in range(5):
        A(f"buffer_load_dword v{vX+i}, v{vO1}, s[{XS}:{XS+3}], s{sT3} offen offset:{256*i}")
    for i in range(5):
        A(f"buffer_load_dword v{vX2+i}, v{vO1}, s[{XS}:{XS+3}], s{sT0} offen offset:{256*i}")
    A(f"s_load_dword s{sTAG}, s[{pWS}:{pWS+1}], {WS_EP:#x}")
    srd(WQS, pWQ, f"s{sT1}", 0 if nowq else f"s{sT2}")
    if rotq:
        A(f"s_and_b32 s{sHS}, s{sSLOT}, 7")
        A(f"s_mul_i32 s{sHS}, s{sHS}, 5")
        A(f"s_lshr_b32 s{sHS}, s{sHS}, 2")
        A(f"s_mul_i32 s{sOFF}, s{sHS}, {4*WQR}")
    else:
        A(f"s_mov_b32 s{sOFF}, 0")
    def wq_issue(t):
        r = vW + 4 * t
        A(f"buffer_load_dwordx4 v[{r}:{r+3}], v{vO2}, s[{WQS}:{WQS+3}], s{sOFF} offen {wqflags}")
        A(f"s_add_u32 s{sOFF}, s{sOFF}, {WQR}")
        if rotq and t % 4 == 3:
            A(f"s_cmp_eq_u32 s{sOFF}, {RT*WQR}")
            A(f"s_cselect_b32 s{sOFF}, 0, s{sOFF}")
    NLQ = nowqn if nowqn else NL
    wqwin = min(wqwin, NLQ)
    def aux_masks():
        A("v_and_b32 v9, 3, v9")
        for rr in range(4):
            A(f"v_cmp_eq_u32 vcc, {rr}, v9")
            A("s_nop 1")
            A(f"v_cndmask_b32 v{MK+rr}, 0, v8, vcc")
    if not lnfirst:
        for t in range(wqwin):
            wq_issue(t)
            if stag and t == 4:
                A("s_barrier")
            if bar0 and t == min(wqwin, bar0at) - 1:
                A("s_barrier")
        aux_masks()
    def wave_sum(v, s):
        for sh in (1, 2, 4, 8):
            A("s_nop 1")
            A(f"v_add_f32_dpp v{v}, v{v}, v{v} row_shr:{sh} row_mask:0xf bank_mask:0xf bound_ctrl:0")
        A("s_nop 1")
        A(f"v_add_f32_dpp v{v}, v{v}, v{v} row_bcast:15 row_mask:0xa bank_mask:0xf")
        A("s_nop 1")
        A(f"v_add_f32_dpp v{v}, v{v}, v{v} row_bcast:31 row_mask:0xc bank_mask:0xf")
        A("s_nop 0")
        A(f"v_readlane_b32 s{s}, v{v}, 63")
        A("s_nop 1")
    def layernorm(vX, dup):
        for i in range(5):
            A(f"v_lshlrev_b32 v{vF+2*i}, 16, v{vX+i}")
            A(f"v_and_b32 v{vF+2*i+1}, 0xffff0000, v{vX+i}")
        A(f"v_add_f32 v{vC+4}, v{vF}, v{vF+1}")
        for i in range(2, 10):
            A(f"v_add_f32 v{vC+4}, v{vC+4}, v{vF+i}")
        wave_sum(vC + 4, sT0)
        A(f"v_mov_b32 v{vC+5}, {f2u(1.0/640):#x}")
        A(f"v_mul_f32 v{vC+4}, s{sT0}, v{vC+5}")
        A(f"v_sub_f32 v{vC}, v{vF}, v{vC+4}")
        A(f"v_mul_f32 v{vC+1}, v{vC}, v{vC}")
        for i in range(1, 10):
            A(f"v_sub_f32 v{vC}, v{vF+i}, v{vC+4}")
            A(f"v_fmac_f32 v{vC+1}, v{vC}, v{vC}")
        wave_sum(vC + 1, sT0)
        A(f"v_mul_f32 v{vC+1}, s{sT0}, v{vC+5}")
        A(f"v_cvt_pk_bf16_f32 v{vC}, v{vC+4}, v{vC+1}")
        A(f"v_lshlrev_b32 v{vC+4}, 16, v{vC}")
        A(f"v_and_b32 v{vC+1}, 0xffff0000, v{vC}")
        A(f"v_add_f32 v{vC+1}, {f2u(1e-5):#x}, v{vC+1}")
        A(f"v_cvt_pk_bf16_f32 v{vC+1}, v{vC+1}, v{vC+1}")
        A(f"v_and_b32 v{vC+1}, 0xffff0000, v{vC+1}")
        A(f"v_sqrt_f32 v{vC+1}, v{vC+1}")
        A("s_nop 0")
        A(f"v_cvt_pk_bf16_f32 v{vC+1}, v{vC+1}, v{vC+1}")
        A(f"v_and_b32 v{vC+1}, 0xffff0000, v{vC+1}")
        A(f"v_rcp_f32 v{vC+1}, v{vC+1}")
        for i in range(10):
            A(f"v_sub_f32 v{vF+i}, v{vF+i}, v{vC+4}")
        if dup:
            A(f"s_mul_i32 s{sT2}, s{sA}, 2560")
            A(f"v_lshl_add_u32 v{vC+3}, v1, 3, s{sT2}")
        else:
            A(f"s_mul_i32 s{sT1}, s{sA}, 1280")
            A(f"v_add_u32 v{vC+2}, s{sT1}, v{vO1}")
        for i in range(5):
            A(f"v_cvt_pk_bf16_f32 v{vX+i}, v{vF+2*i}, v{vF+2*i+1}")
            A(f"v_lshlrev_b32 v{vF+2*i}, 16, v{vX+i}")
            A(f"v_and_b32 v{vF+2*i+1}, 0xffff0000, v{vX+i}")
            A(f"v_mul_f32 v{vF+2*i}, v{vF+2*i}, v{vC+1}")
            A(f"v_mul_f32 v{vF+2*i+1}, v{vF+2*i+1}, v{vC+1}")
            if dup:
                A(f"v_cvt_pk_bf16_f32 v{vF+2*i}, v{vF+2*i}, v{vF+2*i}")
                A(f"v_cvt_pk_bf16_f32 v{vF+2*i+1}, v{vF+2*i+1}, v{vF+2*i+1}")
                A(f"ds_write_b64 v{vC+3}, v[{vF+2*i}:{vF+2*i+1}] offset:{XND + 512*i}")
            else:
                A(f"v_cvt_pk_bf16_f32 v{vX+i}, v{vF+2*i}, v{vF+2*i+1}")
                A(f"ds_write_b32 v{vC+2}, v{vX+i} offset:{XNB + 256*i}")
    if lnfirst:
        for t in range(lnfirst):
            wq_issue(t)
        aux_masks()
        A(f"s_waitcnt vmcnt({lnfirst + 5})")
    else:
        A(f"s_waitcnt vmcnt({wqwin + 5})")
    layernorm(vX, True)
    stamp(1)
    A(f"s_mul_i32 s{sT1}, s{sA}, {RW*4}")
    A(f"s_add_u32 s{sT0}, s{sT2}, s{sT1}")
    A(f"v_mul_u32_u24 v{vX}, {RT*4}, v3")
    A(f"v_add_u32 v{vX}, s{sT0}, v{vX}")
    A("s_waitcnt lgkmcnt(0)")
    if rotq:
        A(f"s_lshl_b32 s{sT1}, s{sHS}, 4")
        for i in range(RT // 4):
            A(f"v_add_u32 v{vX+1+(i&1)}, s{sT1}, v{vX}")
            A(f"s_add_u32 s{sT1}, s{sT1}, 16")
            A(f"ds_read_b128 v[{vXD+4*i}:{vXD+4*i+3}], v{vX+1+(i&1)} offset:{XND}")
            A(f"s_cmp_eq_u32 s{sT1}, {RT*4}")
            A(f"s_cselect_b32 s{sT1}, 0, s{sT1}")
    else:
        for i in range(RT // 4):
            A(f"ds_read_b128 v[{vXD+4*i}:{vXD+4*i+3}], v{vX} offset:{XND + 16*i}")
    A("s_waitcnt lgkmcnt(0)")
    if lnfirst:
        if stag:
            A("s_barrier")
        for t in range(lnfirst, NL):
            wq_issue(t)
            if bar0 and t == bar0at - 1:
                A("s_barrier")
        def ands(t):
            aa = vAA + 4 * (t & 1)
            for rr in range(4):
                A(f"v_and_b32 v{aa+rr}, v{vXD+t}, v{MK+rr}")
        ands(0)
        for t in range(NL):
            if t + 1 < NL:
                ands(t + 1)
            else:
                A("s_nop 1")
            if t % 4 == 0 or t >= NL - 12:
                last = t if t >= NL - 12 else t + 3
                A(f"s_waitcnt vmcnt({NL - 1 - last})")
            aa = vAA + 4 * (t & 1)
            r = vW + 4 * t
            c = "0" if t == 0 else f"v[{vQA}:{vQA+3}]"
            A(f"v_mfma_f32_16x16x32_bf16 v[{vQA}:{vQA+3}], v[{aa}:{aa+3}], v[{r}:{r+3}], {c}")
    else:
        for t in range(NLQ):
            aa = vAA + 4 * (t & 1)
            for rr in range(4):
                A(f"v_and_b32 v{aa+rr}, v{vXD+t}, v{MK+rr}")
            issued = min(NLQ, wqwin + t)
            A(f"s_waitcnt vmcnt({issued - 1 - t})")
            if wqwin + t < NLQ:
                wq_issue(wqwin + t)
            else:
                A("s_nop 0")
            r = vW + 4 * t
            c = "0" if t == 0 else f"v[{vQA}:{vQA+3}]"
            A(f"v_mfma_f32_16x16x32_bf16 v[{vQA}:{vQA+3}], v[{aa}:{aa+3}], v[{r}:{r+3}], {c}")
    A(f"s_lshl_b32 s{sT0}, s{sA}, 9")
    A(f"s_add_u32 s{sT0}, s{sT0}, {QP}")
    A(f"v_lshlrev_b32 v{vC}, 5, v2")
    A(f"v_lshl_add_u32 v{vC}, v3, 4, v{vC}")
    A(f"v_add_u32 v{vC}, s{sT0}, v{vC}")
    A("s_nop 3")
    A("s_mov_b64 exec, 0xffffffff")
    A(f"ds_write_b128 v{vC}, v[{vQA}:{vQA+3}]")
    A("s_mov_b64 exec, -1")
    A(f"s_lshl_b32 s{sT0}, s{sA}, 2")
    A(f"v_mov_b32 v{vC+1}, s{sT0}")
    A(f"v_mov_b32 v{vC+2}, 0")
    A(f"ds_write_b32 v{vC+1}, v{vC+2} offset:{FLG}")
    if ctl:
        A(f"v_mov_b32 v{vC+4}, 1000")
        if ctltest:
            A(f"s_cmp_eq_u32 s{sSLOT}, 5")
            A(f"s_cselect_b32 s{sT0}, {ctltest - 1}, 1")
            A(f"v_mov_b32 v{vC+5}, s{sT0}")
        else:
            A(f"v_mov_b32 v{vC+5}, 1")
        A(f"ds_write_b64 v{vC+2}, v[{vC+4}:{vC+5}] offset:{PM}")
    A("s_waitcnt lgkmcnt(0)")
    A("s_barrier")
    stamp(2)
    layernorm(vX2, False)
    srd(WSS, pWS, None, WS_SIZE)
    A(f"s_mul_i32 s{sTAG}, s{sTAG}, 0x9e3779b1")
    A(f"s_add_u32 s{sTAG}, s{sTAG}, 0x7f4a7c15")
    A(f"s_lshl_b32 s{sHS}, s{sH}, 1")
    A(f"s_add_u32 s{sHS}, s{sHS}, s{sSPLIT}")
    A(f"s_lshl_b32 s{sT0}, s{sB}, 6")
    A(f"s_add_u32 s{sT0}, s{sT0}, s{sHS}")
    A(f"s_lshl_b32 s{sT1}, s{sT0}, 6")
    A(f"v_lshrrev_b32 v{vTO}, 2, v0")
    A(f"v_lshlrev_b32 v{vTO}, 14, v{vTO}")
    A(f"v_and_b32 v{vC}, 3, v0")
    A(f"v_lshl_add_u32 v{vTO}, v{vC}, 4, v{vTO}")
    A(f"v_add_u32 v{vTO}, s{sT1}, v{vTO}")
    A(f"s_lshr_b32 s{sT1}, s{sT0}, 1")
    A(f"s_lshl_b32 s{sT1}, s{sT1}, 7")
    A(f"s_lshl_b32 s{sT2}, s{sSPLIT}, 3")
    A(f"s_add_u32 s{sT1}, s{sT1}, s{sT2}")
    A(f"s_add_u32 s{sT1}, s{sT1}, {WS_ML}")
    A(f"v_mov_b32 v{vO3}, s{sT1}")
    for i in range(4):
        A(f"v_mov_b32 v{vC+i}, -1")
    A(f"v_cmp_gt_u32 vcc, 160, v0")
    A(f"s_and_saveexec_b64 s[{sEX}:{sEX+1}], vcc")
    A("s_cbranch_execz L_noclr")
    if not noclear:
        A(f"buffer_store_dwordx4 v[{vC}:{vC+3}], v{vTO}, s[{WSS}:{WSS+3}], 0 offen {'sc1' if noclrf is None else noclrf}")
    A.label("L_noclr")
    A(f"s_mov_b64 exec, s[{sEX}:{sEX+1}]")
    A(f"v_cmp_eq_u32 vcc, 192, v0")
    A(f"s_and_saveexec_b64 s[{sEX}:{sEX+1}], vcc")
    A("s_cbranch_execz L_noclr2")
    A(f"buffer_store_dwordx2 v[{vC}:{vC+1}], v{vO3}, s[{WSS}:{WSS+3}], 0 offen sc1")
    A.label("L_noclr2")
    A(f"s_mov_b64 exec, s[{sEX}:{sEX+1}]")
    A("s_waitcnt vmcnt(0) lgkmcnt(0)")
    A(f"s_lshl_b32 s{sT0}, s{sA}, 2")
    A(f"v_mov_b32 v{vC}, s{sT0}")
    A(f"v_mov_b32 v{vC+1}, 1")
    A(f"ds_write_b32 v{vC}, v{vC+1} offset:{FLG}")
    A(f"s_add_u32 s{sT0}, s{sX8}, 1")
    A(f"s_lshr_b32 s{sT0}, s{sT0}, 1")
    A(f"s_min_u32 s{sT0}, s{sT0}, 3")
    A(f"s_lshr_b32 s{sT1}, s{sSLOT}, 1")
    A(f"s_mul_i32 s{sT2}, s{sX8}, 12")
    A(f"s_lshl_b32 s{sT3}, s{sT0}, 2")
    A(f"s_add_u32 s{sT2}, s{sT2}, s{sT3}")
    A(f"s_add_u32 s{sT2}, s{sT2}, s{sT1}")
    A(f"s_cmp_eq_u32 s{sSPLIT}, 1")
    A(f"s_cselect_b32 s{sT2}, s{sT2}, 255")
    A(f"s_sub_u32 s{sT3}, s{sX8}, s{sT0}")
    A(f"s_lshl_b32 s{sT3}, s{sT3}, 3")
    A(f"s_add_u32 s{sT3}, s{sT3}, s{sSLOT}")
    A(f"s_add_u32 s{sT3}, s{sT3}, {128 - 24}")
    A(f"s_cmp_lt_u32 s{sT1}, s{sNU}")
    A(f"s_cselect_b32 s{sROLE}, s{sT2}, s{sT3}")
    def wo_load():
        vPH = 36
        A(f"s_mul_i32 s{sT0}, s{sH}, {0 if nowoh else 128*1280}")
        srd(WOS, pWO, f"s{sT0}", 128 * 1280)
        if nowolin:
            A(f"s_and_b32 s{sT1}, s{sSLOT}, 7")
            A(f"s_lshl_b32 s{sT1}, s{sT1}, 2")
            A(f"s_add_u32 s{sT1}, s{sT1}, s{sA}")
            A(f"s_mul_i32 s{sT1}, s{sT1}, 5120")
            A("v_lshlrev_b32 v41, 4, v1")
            for i in range(5):
                A(f"buffer_load_dwordx4 v[{vW+4*i}:{vW+4*i+3}], v41, s[{WOS}:{WOS+3}], s{sT1} offen {woflags}")
                A(f"s_add_u32 s{sT1}, s{sT1}, 1024")
            A("s_waitcnt vmcnt(0)")
            if nowolin == 1:
                return
        A(f"s_mul_i32 s{sT1}, s{sA}, 320")
        A(f"s_mov_b32 s{sT2}, 52429")
        for p in range(5):
            A(f"v_add_u32 v{vPH+p}, {64*p}, v1")
            A(f"v_mul_u32_u24 v41, s{sT2}, v{vPH+p}")
            A("v_lshrrev_b32 v41, 20, v41")
            A(f"v_mul_u32_u24 v42, {1280 - 320}, v41")
            A(f"v_lshl_add_u32 v{vPH+p}, v{vPH+p}, 4, v42")
            A(f"v_add_u32 v{vPH+p}, s{sT1}, v{vPH+p}")
        A(f"s_mul_i32 s{sT1}, s{sA}, 10240")
        A(f"s_add_u32 s{sT1}, s{sT1}, {TP}")
        A("v_lshrrev_b32 v41, 2, v2")
        A("v_lshl_add_u32 v41, v3, 3, v41")
        A("v_mul_u32_u24 v41, 320, v41")
        A("v_and_b32 v42, 3, v1")
        A("v_lshl_add_u32 v41, v42, 3, v41")
        A(f"v_add_u32 v41, s{sT1}, v41")
        A(f"s_mov_b32 s{sOFF}, 0")
        for ks in range(4):
            for i in range(10):
                A(f"s_add_u32 m0, s{sT1}, {1024*i}")
                if i == 5:
                    A(f"s_add_u32 s{sOFF}, s{sOFF}, {16*1280}")
                else:
                    A("s_nop 0")
                if not nowo:
                    A(f"buffer_load_dwordx4 v{vPH+i%5}, s[{WOS}:{WOS+3}], s{sOFF} offen {woflags} lds")
                A(f"s_waitcnt vmcnt({wowin - 1})")
            A(f"s_add_u32 s{sOFF}, s{sOFF}, {16*1280}")
            A("s_waitcnt vmcnt(0)")
            for cb in range(10):
                r = vW + 4 * (cb * 4 + ks)
                A(f"ds_read_b64_tr_b16 v[{r}:{r+1}], v41 offset:{32*cb}")
                A(f"ds_read_b64_tr_b16 v[{r+2}:{r+3}], v41 offset:{32*cb + 1280}")
                if cb == 5:
                    A("s_waitcnt lgkmcnt(4)")
            A("s_waitcnt lgkmcnt(0)")
    vTR, vAO = 14, 15
    vFA, vFB, vFD = 20, 24, 28
    def round_bf16(regs):
        for v in regs:
            A(f"v_cvt_pk_bf16_f32 v{v}, v{v}, v{v}")
        for v in regs:
            A(f"v_and_b32 v{v}, 0xffff0000, v{v}")
    A(f"s_cmp_lg_u32 s{sA}, 0")
    A("s_cbranch_scc1 L_wo")
    A(f"v_mov_b32 v{vC+4}, 0")
    A.label("L_flg")
    A(f"ds_read_b128 v[{vFA}:{vFA+3}], v{vC+4} offset:{FLG}")
    A("s_waitcnt lgkmcnt(0)")
    A(f"v_add3_u32 v{vFA}, v{vFA}, v{vFA+1}, v{vFA+2}")
    A(f"v_add_u32 v{vFA}, v{vFA}, v{vFA+3}")
    A(f"v_cmp_ne_u32 vcc, 4, v{vFA}")
    A("s_nop 1")
    A("s_cbranch_vccnz L_flg")
    A(f"s_lshl_b32 s{sT3}, s2, 7")
    A(f"s_add_u32 s{sT3}, s{sT3}, {WS_H}")
    A(f"v_mov_b32 v{vC+4}, s{sT3}")
    A(f"v_mov_b32 v{vC+5}, s{sTAG}")
    A("s_mov_b64 exec, 1")
    A(f"buffer_store_dword v{vC+5}, v{vC+4}, s[{WSS}:{WSS+3}], 0 offen sc1")
    A("s_mov_b64 exec, -1")
    A.label("L_wo")
    wo_load()
    if ctl and not ctltest:
        A(f"s_cmp_lg_u32 s{sA}, 1")
        A("s_cbranch_scc1 L_noctl")
        A.c("rank of this workgroup among its peers at each checkpoint -> load window of the value stream")
        if cloc:
            npeer = 32
            A(f"s_lshl_b32 s{sT0}, s{sX8}, 7")
            A(f"v_lshl_add_u32 v{vC}, v1, 2, s{sT0}")
            A(f"s_lshl_b32 s{sT1}, s{sSLOT}, 2")
            A(f"s_add_u32 s{sT0}, s{sT0}, s{sT1}")
            A(f"v_mov_b32 v{vC+1}, s{sT0}")
        else:
            A(f"v_mul_u32_u24 v{vC}, {256 // npeer + 1}, v1")
            A(f"v_add3_u32 v{vC}, v{vC}, s2, 9")
            A(f"v_and_b32 v{vC}, 255, v{vC}")
            A(f"v_lshlrev_b32 v{vC}, 7, v{vC}")
            A(f"s_lshl_b32 s{sT0}, s2, 7")
            A(f"v_mov_b32 v{vC+1}, s{sT0}")
        A(f"v_mov_b32 v{vC+2}, s{sTAG}")
        A(f"v_mov_b32 v{vC+3}, 0")
        if xg:
            A(f"s_lshl_b32 s{sT0}, s{sX8}, 7")
            A(f"s_add_u32 s{sT1}, s{sT0}, 1024")
            A(f"v_writelane_b32 v{vC}, s{sT1}, 32")
            A(f"v_mov_b32 v20, s{sT0}")
            A(f"v_lshlrev_b32 v21, 7, v1")
        A(f"s_mov_b32 s{sOFF}, {WS_CP}")
        A(f"s_mov_b32 s{sCNT}, {ctl[0]}")
        A.label("L_cw")
        A(f"s_sleep {csleep}")
        A(f"ds_read_b32 v{vC+4}, v{vC+3} offset:{PM}")
        A("s_waitcnt lgkmcnt(0)")
        A(f"v_readfirstlane_b32 s{sT1}, v{vC+4}")
        A("s_nop 0")
        A(f"s_cmp_gt_u32 s{sT1}, s{sCNT}")
        A("s_cbranch_scc1 L_cw")
        A("s_mov_b64 exec, 1")
        A(f"buffer_store_dword v{vC+2}, v{vC+1}, s[{WSS}:{WSS+3}], s{sOFF} offen {cst}")
        A("s_mov_b32 exec_lo, -1")
        A(f"s_mov_b32 exec_hi, {1 if xg else 0}")
        A(f"buffer_load_dword v{vC+4}, v{vC}, s[{WSS}:{WSS+3}], s{sOFF} offen {cld}")
        A("s_waitcnt vmcnt(0)")
        A(f"v_cmp_eq_u32 vcc, s{sTAG}, v{vC+4}")
        A("s_mov_b64 exec, -1")
        if xg:
            A(f"v_readlane_b32 s{sT0}, v{vC+4}, 32")
        else:
            A("s_nop 0")
        A(f"s_bcnt1_i32_b32 s{sT1}, vcc_lo")
        if xg:
            A(f"s_mov_b32 s{sM}, s{sT1}")
            A(f"s_sub_u32 s{sT0}, s{sT0}, s{sTAG}")
            A(f"s_sub_u32 s{sT0}, s{sT0}, 1")
            A(f"s_cmp_lt_u32 s{sT0}, 8")
            A(f"s_mul_i32 s{sT0}, s{sT0}, {xg}")
            A(f"s_cselect_b32 s{sT0}, s{sT0}, {7 * xg // 2}")
            A(f"s_add_u32 s{sT1}, s{sT1}, s{sT0}")
            thr = [t + 7 * xg // 2 if t else 0 for t in thr]
        A(f"s_mov_b32 s{sT2}, 0")
        for m, t in enumerate(thr):
            A(f"s_cmp_ge_u32 s{sT1}, {t}")
            A(f"s_cselect_b32 s{sT2}, {m + 1}, s{sT2}")
        A(f"v_mov_b32 v{vC+4}, s{sT2}")
        A(f"ds_write_b32 v{vC+3}, v{vC+4} offset:{PM + 4}")
        if xg:
            A(f"s_lshr_b32 s{sT0}, s{sM}, 1")
            A(f"s_cmp_lg_u32 s{sT0}, 8")
            A("s_cbranch_scc1 L_cnx")
            A("s_mov_b64 exec, 1")
            A(f"buffer_store_dword v{vC+2}, v20, s[{WSS}:{WSS+3}], s{sOFF} offen offset:2048 sc1")
            A("s_mov_b64 exec, 0xff")
            A(f"buffer_load_dword v22, v21, s[{WSS}:{WSS+3}], s{sOFF} offen offset:2048 sc1")
            A("s_waitcnt vmcnt(0)")
            A(f"v_cmp_eq_u32 vcc, s{sTAG}, v22")
            A("s_mov_b64 exec, 1")
            A(f"s_lshl_b32 s{sT1}, 1, s{sX8}")
            A(f"s_or_b32 s{sT1}, s{sT1}, vcc_lo")
            A(f"s_bcnt1_i32_b32 s{sT1}, s{sT1}")
            A(f"s_add_u32 s{sT1}, s{sT1}, s{sTAG}")
            A(f"v_mov_b32 v22, s{sT1}")
            A(f"s_add_u32 s{sT0}, s{sOFF}, 32768")
            A(f"buffer_store_dword v22, v20, s[{WSS}:{WSS+3}], s{sT0} offen offset:1024 {cst}")
            A("s_mov_b64 exec, -1")
            A.label("L_cnx")
        A(f"s_add_u32 s{sOFF}, s{sOFF}, 32768")
        A(f"s_sub_u32 s{sCNT}, s{sCNT}, {ctl[1]}")
        A(f"s_cmp_ge_i32 s{sCNT}, {ctl[2]}")
        A("s_cbranch_scc1 L_cw")
        A("s_waitcnt lgkmcnt(0)")
        A.label("L_noctl")
    A(f"s_cmp_lg_u32 s{sA}, 0")
    A("s_cbranch_scc1 L_idle")
    if nosig:
        A("s_branch L_idle")
    A(f"s_cmp_eq_u32 s{sROLE}, 255")
    A("s_cbranch_scc1 L_idle")
    A(f"s_cmp_ge_u32 s{sROLE}, 128")
    A("s_cbranch_scc1 L_f2")
    A.c("F1 unit: 16 columns of gate/up for all 4 batches")
    vFU = 32
    A(f"s_lshl_b32 s{sT0}, s{sROLE}, 5")
    srd(F0S, pWG, None, 640 * 3456)
    srd(F1S, pWU, None, 640 * 3456)
    A(f"v_lshrrev_b32 v{vC}, 1, v1")
    A(f"v_mul_u32_u24 v{vC}, 3456, v{vC}")
    A(f"v_and_b32 v{vC+1}, 1, v1")
    A(f"v_lshl_add_u32 v{vC}, v{vC+1}, 4, v{vC}")
    A(f"v_add_u32 v{vC}, s{sT0}, v{vC}")
    A(f"s_mov_b32 s{sOFF}, 0")
    A(f"s_mov_b32 s{sT1}, {WT}")
    A(f"s_mov_b32 s{sCNT}, 20")
    A.label("L_f1_ld")
    A(f"s_mov_b32 m0, s{sT1}")
    A(f"s_add_u32 s{sT2}, s{sT1}, 20480")
    if not noffn:
        A(f"buffer_load_dwordx4 v{vC}, s[{F0S}:{F0S+3}], s{sOFF} offen {ffnflags} lds")
    A(f"s_waitcnt vmcnt({f1win - 1})")
    A(f"s_mov_b32 m0, s{sT2}")
    A(f"s_add_u32 s{sT1}, s{sT1}, 1024")
    if not noffn:
        A(f"buffer_load_dwordx4 v{vC}, s[{F1S}:{F1S+3}], s{sOFF} offen {ffnflags} lds")
    A(f"s_add_u32 s{sOFF}, s{sOFF}, {32*3456}")
    A(f"s_waitcnt vmcnt({f1win - 1})")
    A(f"s_sub_u32 s{sCNT}, s{sCNT}, 1")
    A(f"s_cmp_lg_u32 s{sCNT}, 0")
    A("s_cbranch_scc1 L_f1_ld")
    A(f"v_lshrrev_b32 v{vC+1}, 2, v2")
    A(f"v_lshl_add_u32 v{vC+1}, v3, 3, v{vC+1}")
    A(f"v_lshlrev_b32 v{vTR}, 5, v{vC+1}")
    A(f"v_and_b32 v{vC+1}, 3, v1")
    A(f"v_lshl_add_u32 v{vTR}, v{vC+1}, 3, v{vTR}")
    A(f"v_add_u32 v{vTR}, {WT}, v{vTR}")
    A(f"v_mul_u32_u24 v{vAO}, 1280, v{vC+1}")
    A(f"v_lshl_add_u32 v{vAO}, v3, 4, v{vAO}")
    A(f"v_add_u32 v{vAO}, {XNB}, v{vAO}")
    for i in range(4):
        A(f"v_mov_b32 v{vFD+i}, 0")
        A(f"v_mov_b32 v{vFU+i}, 0")
    A(f"s_mov_b32 s{sCNT}, 20")
    A("s_waitcnt vmcnt(0)")
    vFB2 = 36
    A.label("L_f1_mm")
    A(f"ds_read_b128 v[{vFA}:{vFA+3}], v{vAO}")
    A(f"ds_read_b64_tr_b16 v[{vFB}:{vFB+1}], v{vTR}")
    A(f"ds_read_b64_tr_b16 v[{vFB+2}:{vFB+3}], v{vTR} offset:128")
    A(f"ds_read_b64_tr_b16 v[{vFB2}:{vFB2+1}], v{vTR} offset:20480")
    A(f"ds_read_b64_tr_b16 v[{vFB2+2}:{vFB2+3}], v{vTR} offset:{20480+128}")
    A(f"v_add_u32 v{vAO}, 64, v{vAO}")
    A(f"v_add_u32 v{vTR}, 1024, v{vTR}")
    A("s_waitcnt lgkmcnt(0)")
    A(f"v_mfma_f32_16x16x32_bf16 v[{vFD}:{vFD+3}], v[{vFA}:{vFA+3}], v[{vFB}:{vFB+3}], v[{vFD}:{vFD+3}]")
    A(f"v_mfma_f32_16x16x32_bf16 v[{vFU}:{vFU+3}], v[{vFA}:{vFA+3}], v[{vFB2}:{vFB2+3}], v[{vFU}:{vFU+3}]")
    A(f"s_sub_u32 s{sCNT}, s{sCNT}, 1")
    A(f"s_cmp_lg_u32 s{sCNT}, 0")
    A("s_cbranch_scc1 L_f1_mm")
    A("s_nop 7")
    for i in range(1, 4):
        A(f"v_cmp_eq_u32 vcc, {i}, v3")
        A("s_nop 1")
        A(f"v_cndmask_b32 v{vFD}, v{vFD}, v{vFD+i}, vcc")
        A(f"v_cndmask_b32 v{vFU}, v{vFU}, v{vFU+i}, vcc")
    round_bf16([vFD, vFU])
    K0 = 0.7978845608028654
    A(f"s_mov_b32 s{sT0}, {f2u(0.044715):#x}")
    A(f"s_mov_b32 s{sT1}, {f2u(-2.0 * K0 * L2E):#x}")
    A(f"v_mul_f32 v{vFA}, v{vFD}, v{vFD}")
    A(f"v_fma_f32 v{vFA}, v{vFA}, s{sT0}, 1.0")
    A(f"v_mul_f32 v{vFA}, v{vFA}, v{vFD}")
    A(f"v_mul_f32 v{vFA}, s{sT1}, v{vFA}")
    A(f"v_exp_f32 v{vFA}, v{vFA}")
    A("s_nop 0")
    A(f"v_add_f32 v{vFA}, 1.0, v{vFA}")
    A(f"v_rcp_f32 v{vFA}, v{vFA}")
    A("s_nop 0")
    A(f"v_mul_f32 v{vFA}, v{vFA}, v{vFD}")
    round_bf16([vFA])
    A(f"v_mul_f32 v{vFA}, v{vFA}, v{vFU}")
    A(f"s_lshl_b32 s{sT0}, s{sROLE}, 8")
    A(f"s_add_u32 s{sT0}, s{sT0}, {WS_HL}")
    A(f"v_mov_b32_dpp v{vFB}, v{vFA} quad_perm:[1,0,3,2] row_mask:0xf bank_mask:0xf")
    A(f"v_cvt_pk_bf16_f32 v{vFA}, v{vFA}, v{vFB}")
    A(f"v_mov_b32 v{vFA+1}, s{sTAG}")
    A("s_mov_b32 exec_lo, 0x55555555")
    A("s_mov_b32 exec_hi, 0x55555555")
    A(f"buffer_store_dwordx2 v[{vFA}:{vFA+1}], v{vO1}, s[{WSS}:{WSS+3}], s{sT0} offen sc1")
    A("s_mov_b64 exec, -1")
    A("s_branch L_idle")

    A.label("L_f2")
    A.c("F2 job: 64 columns x one quarter of K of the down projection, then the gate of 16 columns")
    sC, sKQ, sST_, sN = sT3, sHS, sM, sSC
    A(f"s_sub_u32 s{sC}, s{sROLE}, 128")
    A(f"s_and_b32 s{sKQ}, s{sC}, 3")
    A(f"s_mul_i32 s{sST_}, s{sKQ}, 14")
    A(f"s_cmp_eq_u32 s{sKQ}, 3")
    A(f"s_cselect_b32 s{sST_}, 41, s{sST_}")
    A(f"s_lshr_b32 s{sN}, s{sKQ}, 1")
    A(f"s_sub_u32 s{sN}, 14, s{sN}")
    srd(F0S, pWD, None, 1728 * 1280)
    A(f"s_lshr_b32 s{sT0}, s{sC}, 2")
    A(f"s_lshl_b32 s{sT0}, s{sT0}, 7")
    A(f"v_lshrrev_b32 v{vC}, 3, v1")
    A(f"v_mul_u32_u24 v{vC}, 1280, v{vC}")
    A(f"v_and_b32 v{vC+1}, 7, v1")
    A(f"v_lshl_add_u32 v{vC}, v{vC+1}, 4, v{vC}")
    A(f"v_add_u32 v{vC}, s{sT0}, v{vC}")
    A(f"s_mul_i32 s{sOFF}, s{sST_}, {32*1280}")
    A(f"s_mov_b32 s{sT1}, {WT}")
    A(f"s_lshl_b32 s{sCNT}, s{sN}, 2")
    A.label("L_f2_ld")
    A(f"s_mov_b32 m0, s{sT1}")
    A(f"s_add_u32 s{sT1}, s{sT1}, 1024")
    if not noffn:
        A(f"buffer_load_dwordx4 v{vC}, s[{F0S}:{F0S+3}], s{sOFF} offen {ffnflags} lds")
    A(f"s_add_u32 s{sOFF}, s{sOFF}, {8*1280}")
    A(f"s_waitcnt vmcnt({f2win - 1})")
    A(f"s_sub_u32 s{sCNT}, s{sCNT}, 1")
    A(f"s_cmp_lg_u32 s{sCNT}, 0")
    A("s_cbranch_scc1 L_f2_ld")
    vH = 36
    A(f"s_lshl_b32 s{sT0}, s{sST_}, 1")
    A(f"s_min_u32 s{sT1}, s{sT0}, 80")
    A(f"s_sub_u32 s{sT2}, s{sT0}, s{sT1}")
    A(f"s_lshl_b32 s{sT2}, s{sT2}, 5")
    A(f"s_lshl_b32 s{sT1}, s{sT1}, 8")
    A(f"s_add_u32 s{sT1}, s{sT1}, {WS_HL}")
    A(f"s_lshl_b32 s{sT0}, s{sKQ}, 13")
    A(f"s_add_u32 s{sT0}, s{sT0}, {WS_H}")
    A(f"v_lshlrev_b32 v{vC}, 4, v1")
    A(f"v_lshlrev_b32 v{vC+1}, 7, v1")
    A(f"v_lshrrev_b32 v{vC+2}, 2, v2")
    A(f"v_mul_u32_u24 v{vC+2}, 896, v{vC+2}")
    A(f"v_lshl_add_u32 v{vC+2}, v3, 5, v{vC+2}")
    A(f"v_and_b32 v{vC+3}, 3, v1")
    A(f"v_lshl_add_u32 v{vC+2}, v{vC+3}, 3, v{vC+2}")
    A(f"s_add_u32 s{sOFF}, s{sT1}, 4096")
    A("s_branch L_g")
    A.label("L_gr")
    A(f"s_sleep {gsleep}")
    A.label("L_g")
    for i in range(7):
        A(f"buffer_load_dwordx4 v[{vH+4*i}:{vH+4*i+3}], v{vC}, s[{WSS}:{WSS+3}], s{sT1 if i < 4 else sOFF} offen offset:{1024*(i&3)} sc1")
    A(f"buffer_load_dword v{vH+28}, v{vC+1}, s[{WSS}:{WSS+3}], s{sT0} offen sc1")
    A("s_waitcnt vmcnt(0)")
    A(f"v_xor_b32 v{vH+28}, s{sTAG}, v{vH+28}")
    for i in range(7):
        A(f"v_xor_b32 v{vH+4*i+1}, s{sTAG}, v{vH+4*i+1}")
        A(f"v_xor_b32 v{vH+4*i+3}, s{sTAG}, v{vH+4*i+3}")
        A(f"v_or3_b32 v{vH+28}, v{vH+28}, v{vH+4*i+1}, v{vH+4*i+3}")
    A(f"v_cmp_ne_u32 vcc, 0, v{vH+28}")
    A("s_nop 1")
    A("s_cbranch_vccnz L_gr")
    for i in range(7):
        A(f"v_mov_b32 v{vH+4*i+1}, v{vH+4*i+2}")
        A(f"ds_write_b64 v{vC+2}, v[{vH+4*i}:{vH+4*i+1}] offset:{HB + 128*i}")
    A(f"v_lshrrev_b32 v{vC+4}, 2, v2")
    A(f"v_lshl_add_u32 v{vC+4}, v3, 3, v{vC+4}")
    A(f"v_lshlrev_b32 v{vTR}, 7, v{vC+4}")
    A(f"v_lshl_add_u32 v{vTR}, v{vC+3}, 3, v{vTR}")
    A(f"v_add_u32 v{vTR}, {WT}, v{vTR}")
    A(f"v_mul_u32_u24 v{vAO}, 896, v{vC+3}")
    A(f"v_lshl_add_u32 v{vAO}, v3, 4, v{vAO}")
    A(f"v_add_u32 v{vAO}, s{sT2}, v{vAO}")
    A("s_waitcnt lgkmcnt(0)")
    vB4, vD4 = 36, 52
    for i in range(16):
        A(f"v_mov_b32 v{vD4+i}, 0")
    A(f"s_mov_b32 s{sCNT}, s{sN}")
    A.label("L_f2_mm")
    A(f"ds_read_b128 v[{vFA}:{vFA+3}], v{vAO} offset:{HB}")
    for cb in range(4):
        A(f"ds_read_b64_tr_b16 v[{vB4+4*cb}:{vB4+4*cb+1}], v{vTR} offset:{32*cb}")
        A(f"ds_read_b64_tr_b16 v[{vB4+4*cb+2}:{vB4+4*cb+3}], v{vTR} offset:{32*cb+512}")
    A(f"v_add_u32 v{vAO}, 64, v{vAO}")
    A(f"v_add_u32 v{vTR}, 4096, v{vTR}")
    A("s_waitcnt lgkmcnt(0)")
    for cb in range(4):
        d = vD4 + 4 * cb
        A(f"v_mfma_f32_16x16x32_bf16 v[{d}:{d+3}], v[{vFA}:{vFA+3}], v[{vB4+4*cb}:{vB4+4*cb+3}], v[{d}:{d+3}]")
    A(f"s_sub_u32 s{sCNT}, s{sCNT}, 1")
    A(f"s_cmp_lg_u32 s{sCNT}, 0")
    A("s_cbranch_scc1 L_f2_mm")
    A("s_nop 7")
    for i in range(1, 4):
        A(f"v_cmp_eq_u32 vcc, {i}, v3")
        A("s_nop 1")
        for cb in range(4):
            A(f"v_cndmask_b32 v{vD4+4*cb}, v{vD4+4*cb}, v{vD4+4*cb+i}, vcc")
    for cb in range(4):
        A(f"v_mov_b32 v{vD4+4*cb+1}, s{sTAG}")
    A(f"v_lshlrev_b32 v{vC}, 3, v1")
    A(f"s_and_b32 s{sT0}, s{sC}, 0xfc")
    A(f"s_lshl_b32 s{sT0}, s{sT0}, 2")
    A(f"s_add_u32 s{sT0}, s{sT0}, s{sKQ}")
    A(f"s_lshl_b32 s{sT0}, s{sT0}, 9")
    A(f"s_add_u32 s{sT0}, s{sT0}, {WS_FQ}")
    for cb in range(4):
        A(f"buffer_store_dwordx2 v[{vD4+4*cb}:{vD4+4*cb+1}], v{vC}, s[{WSS}:{WSS+3}], s{sT0} offen sc1")
        A(f"s_add_u32 s{sT0}, s{sT0}, 2048")
    A(f"s_lshl_b32 s{sT0}, s{sC}, 11")
    A(f"s_add_u32 s{sT0}, s{sT0}, {WS_FQ}")
    A("s_waitcnt vmcnt(0)")
    A("s_branch L_p")
    A.label("L_pr")
    A(f"s_sleep {gsleep // 2}")
    A.label("L_p")
    for i in range(4):
        A(f"buffer_load_dwordx2 v[{vH+2*i}:{vH+2*i+1}], v{vC}, s[{WSS}:{WSS+3}], s{sT0} offen offset:{512*i} sc1")
    A("s_waitcnt vmcnt(0)")
    for i in range(4):
        A(f"v_xor_b32 v{vH+2*i+1}, s{sTAG}, v{vH+2*i+1}")
    A(f"v_or3_b32 v{vH+1}, v{vH+1}, v{vH+3}, v{vH+5}")
    A(f"v_or_b32 v{vH+1}, v{vH+1}, v{vH+7}")
    A(f"v_cmp_ne_u32 vcc, 0, v{vH+1}")
    A("s_nop 1")
    A("s_cbranch_vccnz L_pr")
    A(f"s_cmp_lg_u32 s{sROLE}, 128")
    A("s_cbranch_scc1 L_noep")
    A(f"v_mov_b32 v{vC+2}, {WS_EP:#x}")
    A(f"v_mov_b32 v{vC+3}, s{sTAG}")
    A("s_mov_b64 exec, 1")
    A(f"buffer_store_dword v{vC+3}, v{vC+2}, s[{WSS}:{WSS+3}], 0 offen sc1")
    A("s_mov_b64 exec, -1")
    A.label("L_noep")
    A(f"v_add_f32 v20, v{vH}, v{vH+2}")
    A(f"v_add_f32 v21, v{vH+4}, v{vH+6}")
    A("v_add_f32 v20, v20, v21")
    round_bf16([20])
    A(f"s_mov_b32 s{sT1}, {f2u(-L2E):#x}")
    A(f"v_mul_f32 v21, s{sT1}, v20")
    A("v_exp_f32 v21, v21")
    A("s_nop 0")
    A("v_add_f32 v21, 1.0, v21")
    A("v_rcp_f32 v21, v21")
    A("s_nop 0")
    A("v_mul_f32 v21, v21, v20")
    round_bf16([21])
    A(f"ds_write_b32 v{vO1}, v21 offset:{GB}")
    A("s_waitcnt lgkmcnt(0)")
    A.label("L_idle")
    vML = 20
    vE = 28
    vAd = 30
    vZ = 31
    vSO = 32
    vOUT = 33
    vOA = 36
    vTA = 52
    A(f"v_and_b32 v{vAd}, 3, v1")
    A(f"v_lshlrev_b32 v{vAd}, 8, v{vAd}")
    A(f"v_lshl_add_u32 v{vAd}, v3, 4, v{vAd}")
    A(f"v_mov_b32 v{vZ}, 0")
    A(f"s_lshl_b32 s{sT0}, s{sB}, 5")
    A(f"s_add_u32 s{sT0}, s{sT0}, s{sH}")
    A(f"s_lshl_b32 s{sT0}, s{sT0}, 1")
    A(f"s_add_u32 s{sT0}, s{sT0}, s{sSPLIT}")
    A(f"s_lshl_b32 s{sT0}, s{sT0}, 6")
    A(f"s_mul_i32 s{sT1}, s{sA}, {10*16384}")
    A(f"s_add_u32 s{sT0}, s{sT0}, s{sT1}")
    A(f"v_lshlrev_b32 v{vSO}, 14, v3")
    A(f"v_lshl_add_u32 v{vSO}, v2, 2, v{vSO}")
    A(f"v_add_u32 v{vSO}, s{sT0}, v{vSO}")
    A(f"s_mov_b32 s{sCNT}, {4*16384}")
    vSO2 = 92
    sGM = F0S
    A(f"v_add_u32 v{vSO2}, {8*16384}, v{vSO}")
    A("v_mov_b32 v93, 0x7ffffff0")
    A("v_cmp_gt_u32 vcc, 32, v1")
    A(f"s_mov_b32 s{sGM}, 0xffff0000")
    A(f"s_mov_b32 s{sGM+1}, 0")
    A(f"v_cndmask_b32 v{vSO2}, v93, v{vSO2}, vcc")
    A("v_cmp_eq_u32 vcc, 192, v0")
    A(f"s_mov_b32 s{sGM+2}, 0")
    A(f"s_mov_b32 s{sGM+3}, 0xffff")
    A(f"v_cndmask_b32 v{vO3}, v93, v{vO3}, vcc")
    A(f"s_mov_b32 s{sGM+4}, 0")
    A(f"s_mov_b32 s{sGM+5}, 0xffff0000")
    A(f"s_sub_u32 s{sT3}, s{sROLE}, 128")
    A(f"s_lshl_b32 s{sT0}, s{sT3}, 2")
    A(f"s_add_u32 s{sT0}, s{sT0}, s{sA}")
    A(f"s_lshl_b32 s{sT0}, s{sT0}, 12")
    A(f"v_lshlrev_b32 v14, 4, v1")
    A(f"s_lshl_b32 s{sT1}, s{sA}, 12")
    A(f"s_add_u32 s{sT1}, s{sT1}, {WS_ML}")
    A(f"v_lshrrev_b32 v15, 3, v1")
    A(f"v_lshlrev_b32 v15, 7, v15")
    A("v_and_b32 v16, 3, v1")
    A("v_lshlrev_b32 v16, 2, v16")
    A("v_and_b32 v17, 1, v3")
    A("v_lshl_add_u32 v16, v17, 1, v16")
    A("v_lshrrev_b32 v17, 1, v3")
    A("v_add_u32 v16, v16, v17")
    A(f"s_mul_i32 s{sT2}, s{sA}, 1280")
    A(f"s_lshl_b32 s{sOFF}, s{sT3}, 5")
    A(f"s_add_u32 s{sT2}, s{sT2}, s{sOFF}")
    A(f"v_lshl_add_u32 v17, v16, 1, s{sT2}")
    A(f"s_lshl_b32 s{sOFF}, s{sA}, 6")
    A(f"v_lshl_add_u32 v19, v16, 2, s{sOFF}")
    srd(OUTS, pOUT, None, 5120)
    A(f"s_cmp_ge_u32 s{sT3}, 40")
    A("s_cbranch_scc1 L_nopre")
    A(f"buffer_load_ushort v18, v17, s[{XS}:{XS+3}], 0 offen")
    if touchout:
        A(f"buffer_load_ushort v94, v17, s[{OUTS}:{OUTS+3}], 0 offen")
    A.label("L_nopre")
    A("s_waitcnt vmcnt(0)")
    stamp(3)
    A("s_barrier")
    stamp(4)
    if stamps: A("s_waitcnt lgkmcnt(0)")
    for ks in range(4):
        A(f"ds_read_b128 v[{vOA+4*ks}:{vOA+4*ks+3}], v{vAd} offset:{OP + 64*ks}")
    for w in range(0, NS, 2):
        A(f"ds_read_b128 v[{vML+2*w}:{vML+2*w+3}], v{vZ} offset:{ML + 8*w}")
    queue = []
    slot = [0]
    def emit(x):
        A(x); slot[0] += 1
    def drain(budget):
        while queue and budget > 0 and queue[0][0] <= slot[0]:
            _, x, wgt = queue.pop(0)
            emit(x); budget -= wgt
    def push(xs, earliest=0, wgt=1):
        for x in xs: queue.append((earliest, x, wgt))
    push(["s_waitcnt lgkmcnt(0)"], wgt=0)
    push([f"v_max3_f32 v{vE}, v{vML}, v{vML+2}, v{vML+4}", f"v_max_f32 v{vE}, v{vE}, v{vML+6}"])
    push([f"v_sub_f32 v{vML+2*w}, v{vML+2*w}, v{vE}" for w in range(4)])
    push([f"v_mul_f32 v{vML+2*w}, s{sL2E}, v{vML+2*w}" for w in range(4)])
    push([f"v_exp_f32 v{vML+2*w}, v{vML+2*w}" for w in range(4)], wgt=2)
    push([f"v_min_u32 v{vE}, -2, v{vE}", f"v_mul_f32 v{vE+1}, v{vML}, v{vML+1}"])
    push([f"v_fmac_f32 v{vE+1}, v{vML+2*w}, v{vML+2*w+1}" for w in range(1, 4)])
    push([f"v_min_u32 v{vE+1}, -2, v{vE+1}",
          f"buffer_store_dwordx2 v[{vE}:{vE+1}], v{vO3}, s[{WSS}:{WSS+3}], 0 offen sc1"])
    def comb(cb):
        q, g = divmod(cb, 4)
        d = vTA + 4 * cb
        tgt = vOUT + q if g == 0 else d
        r = [f"v_mul_f32 v{tgt}, v{d}, v{vML}"] + [f"v_fmac_f32 v{tgt}, v{d+w}, v{vML+2*w}" for w in range(1, 4)]
        if g:
            r.append(f"v_cndmask_b32 v{vOUT+q}, v{vOUT+q}, v{d}, s[{sGM+2*(g-1)}:{sGM+2*(g-1)+1}]")
        if g == 3 or cb == 9:
            so = ("0", f"s{sCNT}", "0")[q]
            vo = vSO if q < 2 else vSO2
            r += [f"v_min_u32 v{vOUT+q}, -2, v{vOUT+q}",
                  f"buffer_store_dword v{vOUT+q}, v{vo}, s[{WSS}:{WSS+3}], {so} offen sc1" if not nopub else "s_nop 0"]
        return r
    for cb in range(10):
        for ks in range(4):
            if cb == 0:
                emit(f"s_waitcnt lgkmcnt({5 - ks})")
            r = vW + 4 * (cb * 4 + ks)
            d = vTA + 4 * cb
            c = "0" if ks == 0 else f"v[{d}:{d+3}]"
            emit(f"v_mfma_f32_16x16x32_bf16 v[{d}:{d+3}], v[{vOA+4*ks}:{vOA+4*ks+3}], v[{r}:{r+3}], {c}")
            if ks == 3:
                push(comb(cb), earliest=slot[0] + 8)
            if cb > 0 or ks == 3:
                drain(2)
    while queue:
        gap = queue[0][0] - slot[0]
        if gap > 0:
            A(f"s_nop {gap - 1}"); slot[0] += gap
        drain(100)
    stamp(6)
    A(f"s_cmp_ge_u32 s{sT3}, 40")
    A("s_cbranch_scc1 L_fin")
    if nofinal:
        A("s_branch L_fin")
    A(f"ds_read_b32 v19, v19 offset:{GB}")
    vT, vMLp = 96, 112
    if psleep:
        A("s_branch L_poll1")
    A.label("L_poll")
    if psleep:
        A(f"s_sleep {psleep}")
        A.label("L_poll1")
    for n in range(4):
        A(f"buffer_load_dwordx4 v[{vT+4*n}:{vT+4*n+3}], v14, s[{WSS}:{WSS+3}], s{sT0} offen offset:{1024*n} sc1")
    for n in range(4):
        A(f"buffer_load_dwordx4 v[{vMLp+4*n}:{vMLp+4*n+3}], v15, s[{WSS}:{WSS+3}], s{sT1} offen offset:{1024*n} sc1")
    A("s_waitcnt vmcnt(0)")
    A(f"v_max3_u32 v20, v{vT}, v{vT+1}, v{vT+2}")
    A(f"v_max3_u32 v21, v{vT+3}, v{vT+4}, v{vT+5}")
    for i in range(6, 30, 4):
        A(f"v_max3_u32 v20, v20, v{vT+i}, v{vT+i+1}")
        A(f"v_max3_u32 v21, v21, v{vT+i+2}, v{vT+i+3}")
    A(f"v_max3_u32 v20, v20, v{vT+30}, v{vT+31}")
    A("v_max_u32 v20, v20, v21")
    A("v_cmp_eq_u32 vcc, -1, v20")
    A("s_nop 1")
    A("s_cbranch_vccnz L_poll")
    stamp(5)
    A("v_bfe_u32 v20, v1, 2, 1")
    A("v_cmp_eq_u32 vcc, 1, v20")
    for n in range(4):
        m0, l0, m1, l1 = [vMLp + 4 * n + i for i in range(4)]
        A(f"v_max_f32 v21, v{m0}, v{m1}")
        A(f"v_sub_f32 v{m0}, v{m0}, v21")
        A(f"v_sub_f32 v{m1}, v{m1}, v21")
        A(f"v_mul_f32 v{m0}, s{sL2E}, v{m0}")
        A(f"v_mul_f32 v{m1}, s{sL2E}, v{m1}")
        A(f"v_exp_f32 v{m0}, v{m0}")
        A(f"v_exp_f32 v{m1}, v{m1}")
    A("s_nop 0")
    for n in range(4):
        m0, l0, m1, l1 = [vMLp + 4 * n + i for i in range(4)]
        A(f"v_mul_f32 v{l0}, v{l0}, v{m0}")
        A(f"v_fmac_f32 v{l0}, v{l1}, v{m1}")
        A(f"v_rcp_f32 v{l0}, v{l0}")
        A(f"v_cndmask_b32 v{m0}, v{m0}, v{m1}, vcc")
    A("s_nop 0")
    for n in range(4):
        m0, l0, m1, l1 = [vMLp + 4 * n + i for i in range(4)]
        A(f"v_mul_f32 v{m0}, v{m0}, v{l0}")
    for n in range(4):
        for i in range(4):
            if n == 0:
                A(f"v_mul_f32 v{24+i}, v{vT+i}, v{vMLp}")
            else:
                A(f"v_fmac_f32 v{24+i}, v{vT+4*n+i}, v{vMLp+4*n}")
    A("s_nop 1")
    A("v_permlane32_swap_b32 v24, v25")
    A("v_permlane32_swap_b32 v26, v27")
    A("v_add_f32 v24, v24, v25")
    A("v_add_f32 v26, v26, v27")
    A("s_nop 1")
    A("v_permlane16_swap_b32 v24, v26")
    A("v_add_f32 v24, v24, v26")
    A("s_nop 1")
    A("v_add_f32_dpp v24, v24, v24 row_ror:4 row_mask:0xf bank_mask:0xf")
    A("s_nop 1")
    A("v_add_f32_dpp v24, v24, v24 row_ror:8 row_mask:0xf bank_mask:0xf")
    A("s_waitcnt lgkmcnt(0)")
    round_bf16([24])
    A("v_mul_f32 v24, v24, v19")
    round_bf16([24])
    A("v_lshlrev_b32 v18, 16, v18")
    A("v_add_f32 v24, v24, v18")
    A("v_cvt_pk_bf16_f32 v24, v24, v24")
    A("s_mov_b32 exec_lo, 0x000f000f")
    A("s_mov_b32 exec_hi, 0x000f000f")
    A(f"buffer_store_short v24, v17, s[{OUTS}:{OUTS+3}], 0 offen")
    A("s_mov_b64 exec, -1")
    A.label("L_fin")
    if stamps:
        A("s_waitcnt vmcnt(0)")
        stamp(7)
        A(f"s_cmp_lg_u32 s{sA}, 0")
        A("s_cbranch_scc1 L_end")
        A("s_waitcnt lgkmcnt(0)")
        for i in range(NSTAMP):
            A(f"v_mov_b32 v{20+i}, s{sST+2*i}")
        if dbgst:
            A("s_cmp_eq_u32 s2, 0")
            A("s_cbranch_scc1 L_dbgw")
            A("s_cmp_lg_u32 s2, 255")
            A("s_cbranch_scc1 L_end")
            A.label("L_dbgw")
            for i in range(1, NSTAMP):
                A(f"v_sub_u32 v{20+i}, v{20+i}, v20")
            A("s_and_b32 s61, s2, 32")
            A("v_mov_b32 v30, s61")
            A("s_mov_b64 exec, 1")
            A(f"global_store_dwordx4 v30, v[20:23], s[{pDBG}:{pDBG+1}]")
            A(f"global_store_dwordx4 v30, v[24:27], s[{pDBG}:{pDBG+1}] offset:16")
            A("s_endpgm")
        A(f"s_getreg_b32 s{sT1}, hwreg(HW_REG_XCC_ID)")
        A(f"s_getreg_b32 s{sT2}, hwreg(HW_REG_HW_ID)")
        A(f"s_lshl_b32 s{sT0}, s2, 3")
        A(f"s_add_u32 s{sT0}, s{sT0}, {WS_STAMP + 0x10000}")
        A(f"v_mov_b32 v30, s{sT0}")
        A(f"v_mov_b32 v28, s{sT1}")
        A(f"v_mov_b32 v29, s{sT2}")
        A("s_mov_b64 exec, 1")
        A(f"global_store_dwordx2 v30, v[28:29], s[{pWS}:{pWS+1}]")
        A("s_mov_b64 exec, -1")
        A(f"s_lshl_b32 s{sT0}, s2, 5")
        A(f"s_add_u32 s{sT0}, s{sT0}, {WS_STAMP}")
        A(f"v_mov_b32 v30, s{sT0}")
        A("s_mov_b64 exec, 1")
        A(f"global_store_dwordx4 v30, v[20:23], s[{pWS}:{pWS+1}]")
        A(f"global_store_dwordx4 v30, v[24:27], s[{pWS}:{pWS+1}] offset:16")
    A.label("L_end")
    A("s_endpgm")
    out += A.text()
    nv = max(RING + 16 * (R + E) + 1, vW + 4 * NL, 128)
    assert nv <= 256
    out += f"""
.section .rodata,"a"
.p2align 6
.amdhsa_kernel {NAME}
  .amdhsa_next_free_vgpr {nv}
  .amdhsa_next_free_sgpr 96
  .amdhsa_accum_offset {(nv + 3) // 4 * 4}
  .amdhsa_group_segment_fixed_size 0
  .amdhsa_kernarg_size 96
  .amdhsa_user_sgpr_count 2
  .amdhsa_user_sgpr_kernarg_segment_ptr 1
  .amdhsa_system_sgpr_workgroup_id_x 1
  .amdhsa_float_denorm_mode_32 3
.end_amdhsa_kernel
"""
    return out

if __name__ == "__main__":
    kw = eval("dict(" + (sys.argv[1] if len(sys.argv) > 1 else "") + ")")
    sys.stdout.write(gen(**kw))
```

```python
import sys, struct

NAME = "recurrent_scan__mha_block_cached__geglu_ffn__decode_kernel"

def f2u(x):
    return struct.unpack("<I", struct.pack("<f", x))[0]

HEADER = """; Kernarg layout for this problem (96 bytes, ptrs only, base s[0:1]):
"""

class Gen:
    def __init__(self):
        self.o = []
    def __call__(self, s):
        self.o.append("    " + s)
    def label(self, s):
        self.o.append(s + ":")
    def c(self, s):
        self.o.append("    ; " + s)
    def text(self):
        return "\n".join(self.o) + "\n"


def gen(dbgst=0, tl=0, NS=4, DEPTH=4, kvflags="nt", wqflags="nt", woflags="nt", ffnflags="nt", auxprio=1, stamps=0,
        wqwin=40, wowin=40, f1win=20, f2win=16, shift=0, gsleep=127,
        nowo=0, noffn=0, nowq=0, noaux=0, nosig=0, nofinal=0, bar0=0, badloc=0, cap=0, ffnfirst=0, fine=0, pcap=0, nowqn=0, endn=0, tlbpf=0, tlbflags="nt", evenc=0, hmap=0, rotq=0, pre0=0, bar0at=40, nofp=0, nogather=0, predelay=0, noflagpoll=0, nofpf=None, noclear=0, noclrf=None, boost=0, bcap=1, st4x=0, touchout=1, pb=None, pball=0, who="odd", capv=None, R=4, nowoh=0, nowolin=0, wpf=0, pfflags="", stag=None, lnfirst=0, nowqd=0, psleep=0, nopub=0, E=0, ctl=None, modes=((5,5),(6,5),(7,6),(8,8)), thr=(4, 11, 14), npeer=16, ctltest=0, csleep=2, cloc=1, cst="", cld="sc1", xg=0, ffn1=0, poll2=0):
    A = Gen()
    NA = 4
    NW = NS + NA
    XND = 0
    XNB = XND + 10240
    QP = XNB + 5120
    QB = QP + NA * 512
    OP = QB + NS * 256
    ML = OP + NS * 256
    FLG = ML + 64
    PM = FLG + 16
    GB = PM + 16
    HB = GB + 256
    SC = HB + 3584
    TP = SC + NS * 2304
    WT = TP + NA * 10240
    LDS = WT + 448 * 128
    assert WT % 16 == 0 and HB % 16 == 0 and TP % 16 == 0
    WS_T = 0
    WS_ML = 0xA0000
    WS_H = 0xA4000
    WS_EP = 0xAC000
    WS_HL = 0xB0000
    WS_FQ = 0xB8000
    WS_CP = 0xD0000
    WS_SIZE = WS_CP + 16 * 32768
    WS_STAMP = 0x200000
    L2E = 1.4426950408889634
    SCALE = 128 ** -0.5

    sWAVE, sX8, sSLOT, sSPLIT, sB, sH = 3, 4, 5, 6, 7, 60
    KS, VS = 8, 12
    WQS, WOS = 8, 12
    WSS = 16
    XS = 20
    F0S, F1S = 24, 28
    OUTS = 32
    P = 36
    pX, pK, pV, pWQ, pWO, pBX, pWG, pWU, pWD, pOUT, pDBG, pWS = [P + 2 * i for i in range(12)]
    sT0, sT1, sT2, sT3 = 61, 62, 63, 64
    sOFF, sCNT, sM, sL2E, sSC, sA, sHS = 65, 66, 67, 68, 69, 70, 71
    sEX = 72
    sTAG, sROLE = 74, 75
    sST = 76
    sNU = 95
    NSTAMP = 8
    def stamp(i):
        if stamps:
            A(f"s_memrealtime s[{sST+2*i}:{sST+2*i+1}]")

    def srd(dst, ptr, add_lo, nrec):
        if add_lo is None:
            A(f"s_mov_b32 s{dst}, s{ptr}")
            A(f"s_mov_b32 s{dst+1}, s{ptr+1}")
        else:
            A(f"s_add_u32 s{dst}, s{ptr}, {add_lo}")
            A(f"s_addc_u32 s{dst+1}, s{ptr+1}, 0")
        A(f"s_mov_b32 s{dst+2}, {nrec}")
        A(f"s_mov_b32 s{dst+3}, 0x20000")

    out = HEADER
    out += f"; @launch grid=(256,1,1) block=({NW*64},1,1) lds={LDS}\n"
    out += '.amdgcn_target "amdgcn-amd-amdhsa--gfx950"\n.text\n'
    out += f".globl {NAME}\n.p2align 8\n.type {NAME},@function\n{NAME}:\n"

    A("s_cmp_ge_u32 s2, 256")
    A("s_cbranch_scc1 L_end")
    stamp(0)
    A(f"s_load_dwordx16 s[{P}:{P+15}], s[0:1], 0")
    A(f"s_load_dwordx8 s[{P+16}:{P+23}], s[0:1], 64")
    A("v_lshrrev_b32 v4, 6, v0")
    A("v_and_b32 v1, 63, v0")
    A(f"v_readfirstlane_b32 s{sWAVE}, v4")
    A("v_and_b32 v2, 15, v1")
    A("v_lshrrev_b32 v3, 4, v1")
    if badloc:
        A(f"s_lshr_b32 s{sX8}, s2, 5")
        A(f"s_and_b32 s{sSLOT}, s2, 31")
    else:
        A(f"s_and_b32 s{sX8}, s2, 7")
        A(f"s_lshr_b32 s{sSLOT}, s2, 3")
    A(f"s_and_b32 s{sSPLIT}, s{sSLOT}, 1")
    A(f"s_lshr_b32 s{sB}, s{sSLOT}, 1")
    A(f"s_and_b32 s{sB}, s{sB}, 3")
    if hmap == "plan2":
        A(f"s_lshr_b32 s{sH}, s{sSLOT}, 3")
        A(f"s_lshl_b32 s{sT0}, s{sX8}, 2")
        A(f"s_add_u32 s{sH}, s{sH}, s{sT0}")
    else:
        A(f"s_lshr_b32 s{sH}, s{sSLOT}, 3")
        A(f"s_mul_i32 s{sT0}, s{sH}, {hmap}")
        A(f"s_add_u32 s{sT0}, s{sT0}, s{sX8}")
        A(f"s_and_b32 s{sT0}, s{sT0}, 7")
        A(f"s_lshl_b32 s{sH}, s{sH}, 3")
        A(f"s_add_u32 s{sH}, s{sH}, s{sT0}")
    A(f"s_mov_b32 s{sL2E}, {f2u(L2E):#x}")
    A(f"s_mov_b32 s{sSC}, {f2u(SCALE):#x}")
    MK = 4
    A("v_and_b32 v8, 1, v2")
    A("v_lshlrev_b32 v8, 4, v8")
    A("v_mov_b32 v9, 0xffff")
    A("v_lshlrev_b32 v8, v8, v9")
    A("v_lshrrev_b32 v9, 1, v2")
    A(f"s_lshr_b32 s{sT0}, 0x15, s{sX8}")
    A(f"s_and_b32 s{sT0}, s{sT0}, 1")
    A(f"s_lshl_b32 s{sT0}, s{sT0}, 2")
    A(f"s_add_u32 s{sNU}, s{sT0}, 12")
    A(f"s_cmp_lt_u32 s{sWAVE}, {NA}")
    A("s_cbranch_scc1 L_aux")

    vOA_, vOB_ = 18, 19
    vM, vL, vNM, vSA, vTM = 10, 11, 12, 13, 17
    vT0, vT1 = 14, 15
    vVA = 16
    vACC = 20
    vS = 24
    vP = 28
    vQ = 32
    vS2 = 40
    vA = 48
    RING = 64
    sN, sOFF0 = sHS, sA
    def reg(slot, i): return RING + slot * 16 + i * 4
    A.c("---- streaming wave ----")
    A(f"s_sub_u32 s{sWAVE}, s{sWAVE}, {NA}")
    A(f"v_lshlrev_b32 v{vOA_}, 8, v9")
    A(f"v_and_b32 v{vOB_}, 1, v2")
    A(f"v_lshl_add_u32 v{vOA_}, v{vOB_}, 6, v{vOA_}")
    A(f"v_lshl_add_u32 v{vOA_}, v3, 4, v{vOA_}")
    A(f"v_add_u32 v{vOB_}, 128, v{vOA_}")
    RB = 2 << 20
    STEP = NS * 4096
    A(f"s_lshr_b32 s{sT2}, s{sSLOT}, 1")
    A(f"s_cmp_lt_u32 s{sT2}, s{sNU}")
    A(f"s_cselect_b32 s{sT1}, {shift}, 0")
    A(f"s_add_u32 s{sT1}, s{sT1}, 256")
    A(f"s_sub_u32 s{sT2}, 512, s{sT1}")
    A(f"s_cmp_eq_u32 s{sSPLIT}, 0")
    A(f"s_cselect_b32 s{sCNT}, s{sT1}, s{sT2}")
    A(f"s_cselect_b32 s{sOFF}, 0, s{sT1}")
    A(f"s_add_u32 s{sOFF}, s{sOFF}, s{sWAVE}")
    A(f"s_lshl_b32 s{sOFF}, s{sOFF}, 12")
    A(f"s_mov_b32 s{sOFF0}, s{sOFF}")
    A(f"s_sub_u32 s{sCNT}, s{sCNT}, s{sWAVE}")
    A(f"s_add_u32 s{sCNT}, s{sCNT}, {NS-1}")
    A(f"s_lshr_b32 s{sCNT}, s{sCNT}, {NS.bit_length()-1}")
    A(f"s_mov_b32 s{sN}, s{sCNT}")
    A(f"s_lshl_b32 s{sT0}, s{sB}, 5")
    A(f"s_add_u32 s{sT0}, s{sT0}, s{sH}")
    A(f"s_lshl_b32 s{sT0}, s{sT0}, 21")
    A("s_waitcnt lgkmcnt(0)")
    srd(KS, pK, f"s{sT0}", RB)
    A(f"s_add_u32 s{VS}, s{pV}, s{sT0}")
    A(f"s_addc_u32 s{VS+1}, s{pV+1}, 0")
    def issue(slot, w=None):
        for i in range(4):
            r = reg(slot, i)
            if w is not None: A(f"s_waitcnt vmcnt({w - 1})")
            A(f"buffer_load_dwordx4 v[{r}:{r+3}], v{(vOA_, vOB_)[i & 1]}, s[{KS}:{KS+3}], s{sOFF} offen offset:{2048*(i >> 1)} {kvflags}")
        A(f"s_add_u32 s{sOFF}, s{sOFF}, {STEP}")
    def window(slot):
        return cap if (slot & 1) == 0 or not capv else capv
    def weight_prefetch():
        PS = F0S
        vPF, vD = 20, 24
        A(f"s_add_u32 s{sT0}, s{sX8}, 1")
        A(f"s_lshr_b32 s{sT0}, s{sT0}, 1")
        A(f"s_min_u32 s{sT0}, s{sT0}, 3")
        A(f"s_cmp_eq_u32 s{sWAVE}, 0")
        A("s_cbranch_scc1 L_pf_wo")
        A(f"s_cmp_eq_u32 s{sWAVE}, 3")
        A("s_cbranch_scc1 L_pf_wd")
        A(f"s_cmp_eq_u32 s{sWAVE}, 1")
        A(f"s_cselect_b32 s{PS}, s{pWG}, s{pWU}")
        A(f"s_cselect_b32 s{PS+1}, s{pWG+1}, s{pWU+1}")
        A(f"s_mov_b32 s{PS+2}, {640*3456}")
        A(f"s_mov_b32 s{PS+3}, 0x20000")
        A(f"s_mul_i32 s{sT1}, s{sX8}, {12*32}")
        A(f"s_lshl_b32 s{sT2}, s{sT0}, 7")
        A(f"s_add_u32 s{sT1}, s{sT1}, s{sT2}")
        A(f"s_mul_i32 s{sT2}, s{sSLOT}, {20*3456}")
        A(f"s_add_u32 s{sT1}, s{sT1}, s{sT2}")
        A(f"v_lshrrev_b32 v{vPF}, 3, v1")
        A(f"v_mul_u32_u24 v{vPF}, 3456, v{vPF}")
        A(f"v_and_b32 v{vPF+1}, 7, v1")
        A(f"v_lshl_add_u32 v{vPF}, v{vPF+1}, 6, v{vPF}")
        A(f"s_lshr_b32 s{sT2}, s{sNU}, 1")
        A(f"v_cmp_gt_u32 vcc, s{sT2}, v{vPF+1}")
        A(f"v_mov_b32 v{vPF+2}, 0x7ffffff0")
        A("s_nop 0")
        A(f"v_cndmask_b32 v{vPF}, v{vPF+2}, v{vPF}, vcc")
        A(f"v_cmp_gt_u32 vcc, 32, v1")
        A(f"buffer_load_dword v{vD}, v{vPF}, s[{PS}:{PS+3}], s{sT1} offen {pfflags}")
        A(f"s_add_u32 s{sT1}, s{sT1}, {8*3456}")
        A(f"buffer_load_dword v{vD+1}, v{vPF}, s[{PS}:{PS+3}], s{sT1} offen {pfflags}")
        A(f"s_add_u32 s{sT1}, s{sT1}, {8*3456}")
        A(f"v_cndmask_b32 v{vPF+3}, v{vPF+2}, v{vPF}, vcc")
        A(f"buffer_load_dword v{vD+2}, v{vPF+3}, s[{PS}:{PS+3}], s{sT1} offen {pfflags}")
        A("s_branch L_pf_done")
        A.label("L_pf_wo")
        A(f"s_mul_i32 s{sT1}, s{sH}, {128*1280}")
        A(f"s_and_b32 s{sT2}, s{sSLOT}, 7")
        A(f"s_mul_i32 s{sT2}, s{sT2}, 20480")
        A(f"s_add_u32 s{sT1}, s{sT1}, s{sT2}")
        srd(PS, pWO, None, 4096 * 1280)
        A(f"v_lshlrev_b32 v{vPF}, 6, v1")
        for i in range(5):
            A(f"buffer_load_dword v{vD+i}, v{vPF}, s[{PS}:{PS+3}], s{sT1} offen {pfflags}")
            A(f"s_add_u32 s{sT1}, s{sT1}, 4096")
        A("s_branch L_pf_done")
        A.label("L_pf_wd")
        A(f"s_cmp_eq_u32 s{sNU}, 16")
        A("s_cbranch_scc1 L_pf_done")
        A(f"s_sub_u32 s{sT1}, s{sX8}, s{sT0}")
        A(f"s_lshl_b32 s{sT1}, s{sT1}, 8")
        A(f"s_mul_i32 s{sT2}, s{sSLOT}, {54*1280}")
        A(f"s_add_u32 s{sT1}, s{sT1}, s{sT2}")
        srd(PS, pWD, None, 1728 * 1280)
        A(f"v_lshrrev_b32 v{vPF}, 2, v1")
        A(f"v_mul_u32_u24 v{vPF}, 1280, v{vPF}")
        A(f"v_and_b32 v{vPF+1}, 3, v1")
        A(f"v_lshl_add_u32 v{vPF}, v{vPF+1}, 6, v{vPF}")
        A(f"v_cmp_gt_u32 vcc, 24, v1")
        A(f"v_mov_b32 v{vPF+2}, 0x7ffffff0")
        for i in range(3):
            A(f"buffer_load_dword v{vD+i}, v{vPF}, s[{PS}:{PS+3}], s{sT1} offen {pfflags}")
            A(f"s_add_u32 s{sT1}, s{sT1}, {16*1280}")
        A(f"v_cndmask_b32 v{vPF+3}, v{vPF+2}, v{vPF}, vcc")
        A(f"buffer_load_dword v{vD+3}, v{vPF+3}, s[{PS}:{PS+3}], s{sT1} offen {pfflags}")
        A.label("L_pf_done")
    if wpf == 1:
        weight_prefetch()
    for s in range(E + R):
        if stag:
            if s == 1 and wpf == 2:
                weight_prefetch()
            for grp in range(2):
                if stag[grp] == s:
                    A(f"s_cmp_lg_u32 s{sSPLIT}, {grp}")
                    A(f"s_cbranch_scc1 L_sg{grp}")
                    A("s_barrier")
                    A("s_barrier")
                    A.label(f"L_sg{grp}")
        elif pre0 == 4 * s:
            if wpf == 2:
                weight_prefetch()
            if bar0:
                A("s_barrier")
            if wpf == 3:
                weight_prefetch()
        issue(R + s if s < E else s - E, pcap if pcap else None)
    if wpf:
        A(f"s_waitcnt vmcnt({4 * (R + E) - pre0 if wpf != 1 else 4 * (R + E)})")
    for rr in range(4):
        A(f"v_cmp_eq_u32 vcc, {rr+4}, v9")
        A("s_nop 1")
        A(f"v_cndmask_b32 v{MK+rr}, 0, v8, vcc")
    A(f"v_lshlrev_b32 v{vVA}, 9, v3")
    A(f"v_lshl_add_u32 v{vVA}, v2, 4, v{vVA}")
    A(f"v_mov_b32 v{vM}, 0xff7fffff")
    A(f"v_mov_b32 v{vL}, 0")
    for i in range(4):
        A(f"v_mov_b32 v{vACC+i}, 0")
    A(f"v_lshlrev_b32 v{vT0}, 3, v1")
    A(f"s_lshl_b32 s{sT0}, s{sWAVE}, 8")
    A(f"s_add_u32 s{sT0}, s{sT0}, {QB}")
    A(f"v_lshl_add_u32 v{vT1}, v1, 2, s{sT0}")
    A(f"v_lshl_add_u32 v{vTM}, v3, 4, s{sT0}")
    A(f"v_lshrrev_b32 v{vNM}, 3, v2")
    A(f"v_lshl_add_u32 v{vTM}, v{vNM}, 6, v{vTM}")
    vEA, vEB = 8, 9
    A(f"s_lshl_b32 s{sT1}, s{sWAVE}, 8")
    A(f"s_add_u32 s{sT1}, s{sT1}, {OP - 16}")
    A(f"v_lshlrev_b32 v{vEA}, 4, v2")
    A(f"v_lshl_add_u32 v{vEA}, v3, 3, v{vEA}")
    A(f"v_add_u32 v{vEA}, s{sT1}, v{vEA}")
    A(f"s_lshl_b32 s{sT1}, s{sWAVE}, 3")
    A(f"s_add_u32 s{sT1}, s{sT1}, {ML}")
    A(f"v_mov_b32 v{vEB}, s{sT1}")
    A(f"s_mul_i32 s{sT3}, s{sWAVE}, 2304")
    A(f"s_add_u32 s{sT3}, s{sT3}, {SC}")
    A(f"v_lshl_add_u32 v{vSA}, v3, 3, s{sT3}")
    A(f"s_mov_b32 s{sEX}, 0x80008000")
    A(f"s_mov_b32 s{sEX+1}, 0x80008000")
    A("s_barrier")
    for a in range(NA):
        A(f"ds_read_b64 v[{vA+2*a}:{vA+2*a+1}], v{vT0} offset:{QP + a*512}")
    A("s_waitcnt lgkmcnt(0)")
    for a in range(1, NA):
        A(f"v_add_f32 v{vA}, v{vA}, v{vA+2*a}")
        A(f"v_add_f32 v{vA+1}, v{vA+1}, v{vA+2*a+1}")
    A(f"v_cvt_pk_bf16_f32 v{vA}, v{vA}, v{vA+1}")
    A(f"ds_write_b32 v{vT1}, v{vA}")
    A("s_waitcnt lgkmcnt(0)")
    for j in range(2):
        A(f"ds_read_b128 v[{vQ+4*j}:{vQ+4*j+3}], v{vTM} offset:{128*j}")
    A("s_waitcnt lgkmcnt(0)")
    W = 4 * (R - 1)
    def tstamp(phase):
        if tl:
            A("s_memrealtime s[92:93]")
            A(f"s_lshr_b32 m0, s{sCNT}, 1")
            if phase == 0:
                A("s_add_u32 m0, m0, 32")
            A("s_and_b32 m0, m0, 63")
            A("s_waitcnt lgkmcnt(0)")
            A(f"v_writelane_b32 v{RING + 16*(R+E)}, s92, m0")
    def kbody(s, refill, vaddr, off):
        for (j, d, qj) in ((0, vS2, 0), (2, vS2 + 4, 0), (1, vS2, 1), (3, vS2 + 4, 1)):
            r = reg(s, j)
            c = "0" if qj == 0 else f"v[{d}:{d+3}]"
            A(f"v_mfma_f32_16x16x32_bf16 v[{d}:{d+3}], v[{r}:{r+3}], v[{vQ+4*qj}:{vQ+4*qj+3}], {c}")
        if refill:
            issue(s, window(s))
        else:
            A("s_nop 7")
        for i in range(4):
            A(f"v_add_f32_dpp v{vS+i}, v{vS2+2*i}, v{vS2+2*i+1} row_ror:8 row_mask:0xf bank_mask:0xf")
        A(f"v_cvt_pk_bf16_f32 v{vT0}, v{vS}, v{vS+1}")
        A(f"v_cvt_pk_bf16_f32 v{vT1}, v{vS+2}, v{vS+3}")
        A(f"v_max3_f32 v{vM}, v{vS}, v{vS+1}, v{vM}")
        A(f"v_lshlrev_b32 v{vP}, 16, v{vT0}")
        A(f"v_and_b32 v{vP+1}, 0xffff0000, v{vT0}")
        A(f"v_lshlrev_b32 v{vP+2}, 16, v{vT1}")
        A(f"v_and_b32 v{vP+3}, 0xffff0000, v{vT1}")
        A(f"v_max3_f32 v{vM}, v{vS+2}, v{vS+3}, v{vM}")
        for i in range(4):
            A(f"v_mul_f32 v{vP+i}, s{sSC}, v{vP+i}")
        A(f"v_cvt_pk_bf16_f32 v{vT0}, v{vP}, v{vP+1}")
        A(f"v_cvt_pk_bf16_f32 v{vT1}, v{vP+2}, v{vP+3}")
        A(f"s_mov_b64 exec, s[{sEX}:{sEX+1}]")
        A(f"ds_write_b64 v{vaddr}, v[{vT0}:{vT1}] offset:{off}")
        A("s_mov_b64 exec, -1")
    if E:
        ex = list(range(E))
        for s in range(R):
            A(f"s_waitcnt vmcnt({W})")
            kbody(s, True, vSA, 32 * (E + s))
            for _ in range((E + R - 1) // R):
                if ex:
                    e = ex.pop(0)
                    kbody(R + e, False, vSA, 32 * e)
        A(f"v_add_u32 v{vSA}, {32 * (E + R)}, v{vSA}")
        A(f"s_sub_u32 s{sCNT}, s{sCNT}, {E + R}")
    for s in range(R):
        A.label(f"L_k{s}")
        A(f"s_cmp_lg_u32 s{sCNT}, {R}")
        A(f"s_cbranch_scc1 L_kk{s}")
        A(f"s_mov_b32 s{KS}, s{VS}")
        A(f"s_mov_b32 s{KS+1}, s{VS+1}")
        A(f"s_mov_b32 s{sOFF}, s{sOFF0}")
        A(f"v_mov_b32 v{vOA_}, v{vVA}")
        A(f"v_add_u32 v{vOB_}, 256, v{vVA}")
        A.label(f"L_kk{s}")
        A(f"s_waitcnt vmcnt({W})")
        kbody(s, True, vSA, 0)
        A(f"v_add_u32 v{vSA}, 32, v{vSA}")
        tstamp(0)
        A(f"s_sub_u32 s{sCNT}, s{sCNT}, 1")
        A(f"s_cmp_eq_u32 s{sCNT}, 0")
        A(f"s_cbranch_scc1 L_t{(s + 1) % R}")
    A("s_branch L_k0")
    for s in range(R):
        A.label(f"L_t{s}")
        A(f"s_mov_b32 s{sT0}, {s}")
        if s < R - 1:
            A("s_branch L_tr")
    A.label("L_tr")
    vMD, vPA, vPW = vQ, vQ + 1, vQ + 2
    if ctl:
        A(f"v_mov_b32 v{vMD}, 1")
        A(f"v_mov_b32 v{vPA}, 0")
        A(f"s_cmp_eq_u32 s{sWAVE}, 0")
        A(f"s_cselect_b32 s{sT1}, 0, 8")
        A(f"v_mov_b32 v{vPW}, s{sT1}")
    A(f"v_lshl_add_u32 v{vSA}, v3, 3, s{sT3}")
    A("s_waitcnt lgkmcnt(0)")
    A(f"ds_read_b64 v[{vT0}:{vT1}], v{vSA}")
    A(f"v_max_f32_dpp v{vM}, v{vM}, v{vM} row_bcast:15 row_mask:0xa bank_mask:0xf")
    A("s_nop 1")
    A(f"v_max_f32_dpp v{vM}, v{vM}, v{vM} row_bcast:31 row_mask:0xc bank_mask:0xf")
    A("s_nop 0")
    A(f"v_readlane_b32 s{sM}, v{vM}, 63")
    A(f"s_mov_b32 s{sCNT}, s{sN}")
    A("s_nop 0")
    A(f"v_mov_b32 v{vM}, s{sM}")
    A(f"v_cvt_pk_bf16_f32 v{vM}, v{vM}, v{vM}")
    A(f"v_and_b32 v{vM}, 0xffff0000, v{vM}")
    A(f"v_mul_f32 v{vM}, s{sSC}, v{vM}")
    A(f"v_cvt_pk_bf16_f32 v{vM}, v{vM}, v{vM}")
    A(f"v_and_b32 v{vM}, 0xffff0000, v{vM}")
    A(f"v_mul_f32 v{vNM}, s{sL2E}, v{vM}")
    for s in range(1, R):
        A(f"s_cmp_eq_u32 s{sT0}, {s}")
        A(f"s_cbranch_scc1 L_v{s}")
    for s in range(R):
        A.label(f"L_v{s}")
        A(f"s_cmp_le_u32 s{sCNT}, {R}")
        A(f"s_cselect_b32 s{KS+2}, 0, {RB}")
        A("s_waitcnt lgkmcnt(0)")
        A(f"v_lshlrev_b32 v{vP}, 16, v{vT0}")
        A(f"v_and_b32 v{vP+1}, 0xffff0000, v{vT0}")
        A(f"v_lshlrev_b32 v{vP+2}, 16, v{vT1}")
        A(f"v_and_b32 v{vP+3}, 0xffff0000, v{vT1}")
        A(f"v_add_u32 v{vSA}, 32, v{vSA}")
        for i in range(4):
            A(f"v_fma_f32 v{vP+i}, v{vP+i}, s{sL2E}, -v{vNM}")
        A(f"ds_read_b64 v[{vT0}:{vT1}], v{vSA}")
        if ctl:
            A(f"v_readfirstlane_b32 s{sT2}, v{vMD}")
            A(f"v_mov_b32 v{vS+1}, s{sCNT}")
            A(f"ds_read_b32 v{vMD}, v{vPA} offset:{PM + 4}")
            A(f"ds_write_b32 v{vPW}, v{vS+1} offset:{PM}")
        for i in range(4):
            A(f"v_exp_f32 v{vP+i}, v{vP+i}")
        A(f"v_add_f32 v{vS}, v{vP}, v{vP+1}")
        A(f"v_add_f32 v{vL}, v{vL}, v{vP+2}")
        A(f"v_add_f32 v{vS}, v{vS}, v{vP+3}")
        for i in range(4):
            A(f"v_cvt_pk_bf16_f32 v{vP+i}, v{vP+i}, v{vP+i}")
        A(f"v_add_f32 v{vL}, v{vL}, v{vS}")
        for i in range(4):
            for rr in range(4):
                A(f"v_and_b32 v{vA+4*i+rr}, v{vP+i}, v{MK+rr}")
        A(f"s_waitcnt vmcnt({W})")
        A("s_nop 0")
        for i in range(4):
            r = reg(s, i)
            A(f"v_mfma_f32_16x16x32_bf16 v[{vACC}:{vACC+3}], v[{vA+4*i}:{vA+4*i+3}], v[{r}:{r+3}], v[{vACC}:{vACC+3}]")
        tstamp(1)
        A(f"s_sub_u32 s{sCNT}, s{sCNT}, 1")
        A(f"s_cmp_eq_u32 s{sCNT}, 0")
        A("s_cbranch_scc1 L_sdone")
        A(f"s_cmp_lt_u32 s{sCNT}, {max(R, endn)}")
        A(f"s_cbranch_scc1 L_vf{s}")
        if ctl:
            for m in range(len(modes)):
                if m < len(modes) - 1:
                    A(f"s_cmp_lg_u32 s{sT2}, {m}")
                    A(f"s_cbranch_scc1 L_vm{s}_{m}")
                issue(s, modes[m][s & 1])
                A(f"s_branch L_v{(s + 1) % R}")
                if m < len(modes) - 1:
                    A.label(f"L_vm{s}_{m}")
        else:
            issue(s, window(s))
            A(f"s_branch L_v{(s + 1) % R}")
        A.label(f"L_vf{s}")
        issue(s)
    A("s_branch L_v0")
    A.label("L_sdone")
    A(f"v_add_f32_dpp v{vL}, v{vL}, v{vL} row_bcast:15 row_mask:0xa bank_mask:0xf")
    A("s_nop 1")
    A(f"v_add_f32_dpp v{vL}, v{vL}, v{vL} row_bcast:31 row_mask:0xc bank_mask:0xf")
    A("s_mov_b32 exec_lo, 0")
    A("s_mov_b32 exec_hi, 0x80000000")
    A(f"ds_write_b64 v{vEB}, v[{vM}:{vM+1}]")
    A("s_mov_b32 exec_hi, -1")
    A(f"v_cvt_pk_bf16_f32 v{vACC}, v{vACC}, v{vACC+1}")
    A(f"v_cvt_pk_bf16_f32 v{vACC+1}, v{vACC+2}, v{vACC+3}")
    A(f"ds_write_b64 v{vEA}, v[{vACC}:{vACC+1}]")
    A("s_mov_b64 exec, -1")
    A("s_waitcnt lgkmcnt(0)")
    A("s_barrier")
    if tl:
        A(f"s_lshl_b32 s{sT0}, s2, 2")
        A(f"s_add_u32 s{sT0}, s{sT0}, s{sWAVE}")
        A(f"s_lshl_b32 s{sT0}, s{sT0}, 8")
        A(f"s_add_u32 s{sT0}, s{sT0}, 0x300000")
        A(f"v_lshl_add_u32 v16, v1, 2, s{sT0}")
        A(f"global_store_dword v16, v{RING + 16*(R+E)}, s[{pWS}:{pWS+1}]")
    A("s_endpgm")

    A.label("L_aux")
    A.c("---- aux wave ----")
    NL = 160 // NA
    RW = 640 // NA
    RT = RW // 4
    RO = 128 // NA
    OT = RO // 4
    vTO = 13
    vO1, vO2, vO3 = 10, 11, 12
    vX = 14
    vF = 20
    vC = 30
    vAA = 36
    vQA = 44
    vX2 = 48
    vXD = 56
    vW = 96
    if auxprio:
        A(f"s_setprio {auxprio}")
    A(f"s_mov_b32 s{sA}, s{sWAVE}")
    if noaux:
        A("s_waitcnt lgkmcnt(0)")
        if bar0: A("s_barrier")
        if stag: A("s_barrier")
        stamp(1)
        A("s_barrier")
        stamp(2); stamp(3)
        A("s_barrier")
        stamp(4); stamp(5); stamp(6)
        A("s_branch L_fin")
    A(f"v_lshlrev_b32 v{vO1}, 2, v1")
    WQR = 256 if nowqd == 2 else 8192
    A(f"v_mul_u32_u24 v{vO2}, {RT*WQR}, v3")
    A(f"v_lshl_add_u32 v{vO2}, v2, 4, v{vO2}")
    A(f"s_mul_i32 s{sT0}, s{sA}, 1280")
    A(f"s_mul_i32 s{sT3}, s{sB}, 1280")
    A(f"s_mul_i32 s{sT1}, s{sH}, {(256, 0, 163840)[nowqd]}")
    A(f"s_mul_i32 s{sT2}, s{sA}, {RW*WQR}")
    A(f"s_add_u32 s{sT1}, s{sT1}, s{sT2}")
    A(f"s_sub_u32 s{sT2}, {640*8192}, s{sT1}")
    A("s_waitcnt lgkmcnt(0)")
    srd(XS, pX, None, 5120)
    for i in range(5):
        A(f"buffer_load_dword v{vX+i}, v{vO1}, s[{XS}:{XS+3}], s{sT3} offen offset:{256*i}")
    for i in range(5):
        A(f"buffer_load_dword v{vX2+i}, v{vO1}, s[{XS}:{XS+3}], s{sT0} offen offset:{256*i}")
    A(f"s_load_dword s{sTAG}, s[{pWS}:{pWS+1}], {WS_EP:#x}")
    srd(WQS, pWQ, f"s{sT1}", 0 if nowq else f"s{sT2}")
    if rotq:
        A(f"s_and_b32 s{sHS}, s{sSLOT}, 7")
        A(f"s_mul_i32 s{sHS}, s{sHS}, 5")
        A(f"s_lshr_b32 s{sHS}, s{sHS}, 2")
        A(f"s_mul_i32 s{sOFF}, s{sHS}, {4*WQR}")
    else:
        A(f"s_mov_b32 s{sOFF}, 0")
    def wq_issue(t):
        r = vW + 4 * t
        A(f"buffer_load_dwordx4 v[{r}:{r+3}], v{vO2}, s[{WQS}:{WQS+3}], s{sOFF} offen {wqflags}")
        A(f"s_add_u32 s{sOFF}, s{sOFF}, {WQR}")
        if rotq and t % 4 == 3:
            A(f"s_cmp_eq_u32 s{sOFF}, {RT*WQR}")
            A(f"s_cselect_b32 s{sOFF}, 0, s{sOFF}")
    NLQ = nowqn if nowqn else NL
    wqwin = min(wqwin, NLQ)
    def aux_masks():
        A("v_and_b32 v9, 3, v9")
        for rr in range(4):
            A(f"v_cmp_eq_u32 vcc, {rr}, v9")
            A("s_nop 1")
            A(f"v_cndmask_b32 v{MK+rr}, 0, v8, vcc")
    if not lnfirst:
        for t in range(wqwin):
            wq_issue(t)
            if stag and t == 4:
                A("s_barrier")
            if bar0 and t == min(wqwin, bar0at) - 1:
                A("s_barrier")
        aux_masks()
    def wave_sum(v, s):
        for sh in (1, 2, 4, 8):
            A("s_nop 1")
            A(f"v_add_f32_dpp v{v}, v{v}, v{v} row_shr:{sh} row_mask:0xf bank_mask:0xf bound_ctrl:0")
        A("s_nop 1")
        A(f"v_add_f32_dpp v{v}, v{v}, v{v} row_bcast:15 row_mask:0xa bank_mask:0xf")
        A("s_nop 1")
        A(f"v_add_f32_dpp v{v}, v{v}, v{v} row_bcast:31 row_mask:0xc bank_mask:0xf")
        A("s_nop 0")
        A(f"v_readlane_b32 s{s}, v{v}, 63")
        A("s_nop 1")
    def layernorm(vX, dup):
        for i in range(5):
            A(f"v_lshlrev_b32 v{vF+2*i}, 16, v{vX+i}")
            A(f"v_and_b32 v{vF+2*i+1}, 0xffff0000, v{vX+i}")
        A(f"v_add_f32 v{vC+4}, v{vF}, v{vF+1}")
        for i in range(2, 10):
            A(f"v_add_f32 v{vC+4}, v{vC+4}, v{vF+i}")
        wave_sum(vC + 4, sT0)
        A(f"v_mov_b32 v{vC+5}, {f2u(1.0/640):#x}")
        A(f"v_mul_f32 v{vC+4}, s{sT0}, v{vC+5}")
        A(f"v_sub_f32 v{vC}, v{vF}, v{vC+4}")
        A(f"v_mul_f32 v{vC+1}, v{vC}, v{vC}")
        for i in range(1, 10):
            A(f"v_sub_f32 v{vC}, v{vF+i}, v{vC+4}")
            A(f"v_fmac_f32 v{vC+1}, v{vC}, v{vC}")
        wave_sum(vC + 1, sT0)
        A(f"v_mul_f32 v{vC+1}, s{sT0}, v{vC+5}")
        A(f"v_cvt_pk_bf16_f32 v{vC}, v{vC+4}, v{vC+1}")
        A(f"v_lshlrev_b32 v{vC+4}, 16, v{vC}")
        A(f"v_and_b32 v{vC+1}, 0xffff0000, v{vC}")
        A(f"v_add_f32 v{vC+1}, {f2u(1e-5):#x}, v{vC+1}")
        A(f"v_cvt_pk_bf16_f32 v{vC+1}, v{vC+1}, v{vC+1}")
        A(f"v_and_b32 v{vC+1}, 0xffff0000, v{vC+1}")
        A(f"v_sqrt_f32 v{vC+1}, v{vC+1}")
        A("s_nop 0")
        A(f"v_cvt_pk_bf16_f32 v{vC+1}, v{vC+1}, v{vC+1}")
        A(f"v_and_b32 v{vC+1}, 0xffff0000, v{vC+1}")
        A(f"v_rcp_f32 v{vC+1}, v{vC+1}")
        for i in range(10):
            A(f"v_sub_f32 v{vF+i}, v{vF+i}, v{vC+4}")
        if dup:
            A(f"s_mul_i32 s{sT2}, s{sA}, 2560")
            A(f"v_lshl_add_u32 v{vC+3}, v1, 3, s{sT2}")
        else:
            A(f"s_mul_i32 s{sT1}, s{sA}, 1280")
            A(f"v_add_u32 v{vC+2}, s{sT1}, v{vO1}")
        for i in range(5):
            A(f"v_cvt_pk_bf16_f32 v{vX+i}, v{vF+2*i}, v{vF+2*i+1}")
            A(f"v_lshlrev_b32 v{vF+2*i}, 16, v{vX+i}")
            A(f"v_and_b32 v{vF+2*i+1}, 0xffff0000, v{vX+i}")
            A(f"v_mul_f32 v{vF+2*i}, v{vF+2*i}, v{vC+1}")
            A(f"v_mul_f32 v{vF+2*i+1}, v{vF+2*i+1}, v{vC+1}")
            if dup:
                A(f"v_cvt_pk_bf16_f32 v{vF+2*i}, v{vF+2*i}, v{vF+2*i}")
                A(f"v_cvt_pk_bf16_f32 v{vF+2*i+1}, v{vF+2*i+1}, v{vF+2*i+1}")
                A(f"ds_write_b64 v{vC+3}, v[{vF+2*i}:{vF+2*i+1}] offset:{XND + 512*i}")
            else:
                A(f"v_cvt_pk_bf16_f32 v{vX+i}, v{vF+2*i}, v{vF+2*i+1}")
                A(f"ds_write_b32 v{vC+2}, v{vX+i} offset:{XNB + 256*i}")
    if lnfirst:
        for t in range(lnfirst):
            wq_issue(t)
        aux_masks()
        A(f"s_waitcnt vmcnt({lnfirst + 5})")
    else:
        A(f"s_waitcnt vmcnt({wqwin + 5})")
    layernorm(vX, True)
    stamp(1)
    A(f"s_mul_i32 s{sT1}, s{sA}, {RW*4}")
    A(f"s_add_u32 s{sT0}, s{sT2}, s{sT1}")
    A(f"v_mul_u32_u24 v{vX}, {RT*4}, v3")
    A(f"v_add_u32 v{vX}, s{sT0}, v{vX}")
    A("s_waitcnt lgkmcnt(0)")
    if rotq:
        A(f"s_lshl_b32 s{sT1}, s{sHS}, 4")
        for i in range(RT // 4):
            A(f"v_add_u32 v{vX+1+(i&1)}, s{sT1}, v{vX}")
            A(f"s_add_u32 s{sT1}, s{sT1}, 16")
            A(f"ds_read_b128 v[{vXD+4*i}:{vXD+4*i+3}], v{vX+1+(i&1)} offset:{XND}")
            A(f"s_cmp_eq_u32 s{sT1}, {RT*4}")
            A(f"s_cselect_b32 s{sT1}, 0, s{sT1}")
    else:
        for i in range(RT // 4):
            A(f"ds_read_b128 v[{vXD+4*i}:{vXD+4*i+3}], v{vX} offset:{XND + 16*i}")
    A("s_waitcnt lgkmcnt(0)")
    if lnfirst:
        if stag:
            A("s_barrier")
        for t in range(lnfirst, NL):
            wq_issue(t)
            if bar0 and t == bar0at - 1:
                A("s_barrier")
        def ands(t):
            aa = vAA + 4 * (t & 1)
            for rr in range(4):
                A(f"v_and_b32 v{aa+rr}, v{vXD+t}, v{MK+rr}")
        ands(0)
        for t in range(NL):
            if t + 1 < NL:
                ands(t + 1)
            else:
                A("s_nop 1")
            if t % 4 == 0 or t >= NL - 12:
                last = t if t >= NL - 12 else t + 3
                A(f"s_waitcnt vmcnt({NL - 1 - last})")
            aa = vAA + 4 * (t & 1)
            r = vW + 4 * t
            c = "0" if t == 0 else f"v[{vQA}:{vQA+3}]"
            A(f"v_mfma_f32_16x16x32_bf16 v[{vQA}:{vQA+3}], v[{aa}:{aa+3}], v[{r}:{r+3}], {c}")
    else:
        for t in range(NLQ):
            aa = vAA + 4 * (t & 1)
            for rr in range(4):
                A(f"v_and_b32 v{aa+rr}, v{vXD+t}, v{MK+rr}")
            issued = min(NLQ, wqwin + t)
            A(f"s_waitcnt vmcnt({issued - 1 - t})")
            if wqwin + t < NLQ:
                wq_issue(wqwin + t)
            else:
                A("s_nop 0")
            r = vW + 4 * t
            c = "0" if t == 0 else f"v[{vQA}:{vQA+3}]"
            A(f"v_mfma_f32_16x16x32_bf16 v[{vQA}:{vQA+3}], v[{aa}:{aa+3}], v[{r}:{r+3}], {c}")
    A(f"s_lshl_b32 s{sT0}, s{sA}, 9")
    A(f"s_add_u32 s{sT0}, s{sT0}, {QP}")
    A(f"v_lshlrev_b32 v{vC}, 5, v2")
    A(f"v_lshl_add_u32 v{vC}, v3, 4, v{vC}")
    A(f"v_add_u32 v{vC}, s{sT0}, v{vC}")
    A("s_nop 3")
    A("s_mov_b64 exec, 0xffffffff")
    A(f"ds_write_b128 v{vC}, v[{vQA}:{vQA+3}]")
    A("s_mov_b64 exec, -1")
    A(f"s_lshl_b32 s{sT0}, s{sA}, 2")
    A(f"v_mov_b32 v{vC+1}, s{sT0}")
    A(f"v_mov_b32 v{vC+2}, 0")
    A(f"ds_write_b32 v{vC+1}, v{vC+2} offset:{FLG}")
    if ctl:
        A(f"v_mov_b32 v{vC+4}, 1000")
        if ctltest:
            A(f"s_cmp_eq_u32 s{sSLOT}, 5")
            A(f"s_cselect_b32 s{sT0}, {ctltest - 1}, 1")
            A(f"v_mov_b32 v{vC+5}, s{sT0}")
        else:
            A(f"v_mov_b32 v{vC+5}, 1")
        A(f"ds_write_b64 v{vC+2}, v[{vC+4}:{vC+5}] offset:{PM}")
    A("s_waitcnt lgkmcnt(0)")
    A("s_barrier")
    stamp(2)
    layernorm(vX2, False)
    srd(WSS, pWS, None, WS_SIZE)
    A(f"s_mul_i32 s{sTAG}, s{sTAG}, 0x9e3779b1")
    A(f"s_add_u32 s{sTAG}, s{sTAG}, 0x7f4a7c15")
    A(f"s_lshl_b32 s{sHS}, s{sH}, 1")
    A(f"s_add_u32 s{sHS}, s{sHS}, s{sSPLIT}")
    A(f"s_lshl_b32 s{sT0}, s{sB}, 6")
    A(f"s_add_u32 s{sT0}, s{sT0}, s{sHS}")
    A(f"s_lshl_b32 s{sT1}, s{sT0}, 6")
    A(f"v_lshrrev_b32 v{vTO}, 2, v0")
    A(f"v_lshlrev_b32 v{vTO}, 14, v{vTO}")
    A(f"v_and_b32 v{vC}, 3, v0")
    A(f"v_lshl_add_u32 v{vTO}, v{vC}, 4, v{vTO}")
    A(f"v_add_u32 v{vTO}, s{sT1}, v{vTO}")
    A(f"s_lshr_b32 s{sT1}, s{sT0}, 1")
    A(f"s_lshl_b32 s{sT1}, s{sT1}, 7")
    A(f"s_lshl_b32 s{sT2}, s{sSPLIT}, 3")
    A(f"s_add_u32 s{sT1}, s{sT1}, s{sT2}")
    A(f"s_add_u32 s{sT1}, s{sT1}, {WS_ML}")
    A(f"v_mov_b32 v{vO3}, s{sT1}")
    for i in range(4):
        A(f"v_mov_b32 v{vC+i}, -1")
    A(f"v_cmp_gt_u32 vcc, 160, v0")
    A(f"s_and_saveexec_b64 s[{sEX}:{sEX+1}], vcc")
    A("s_cbranch_execz L_noclr")
    if not noclear:
        A(f"buffer_store_dwordx4 v[{vC}:{vC+3}], v{vTO}, s[{WSS}:{WSS+3}], 0 offen {'sc1' if noclrf is None else noclrf}")
    A.label("L_noclr")
    A(f"s_mov_b64 exec, s[{sEX}:{sEX+1}]")
    A(f"v_cmp_eq_u32 vcc, 192, v0")
    A(f"s_and_saveexec_b64 s[{sEX}:{sEX+1}], vcc")
    A("s_cbranch_execz L_noclr2")
    A(f"buffer_store_dwordx2 v[{vC}:{vC+1}], v{vO3}, s[{WSS}:{WSS+3}], 0 offen sc1")
    A.label("L_noclr2")
    A(f"s_mov_b64 exec, s[{sEX}:{sEX+1}]")
    A("s_waitcnt vmcnt(0) lgkmcnt(0)")
    A(f"s_lshl_b32 s{sT0}, s{sA}, 2")
    A(f"v_mov_b32 v{vC}, s{sT0}")
    A(f"v_mov_b32 v{vC+1}, 1")
    A(f"ds_write_b32 v{vC}, v{vC+1} offset:{FLG}")
    A(f"s_add_u32 s{sT0}, s{sX8}, 1")
    A(f"s_lshr_b32 s{sT0}, s{sT0}, 1")
    A(f"s_min_u32 s{sT0}, s{sT0}, 3")
    A(f"s_lshr_b32 s{sT1}, s{sSLOT}, 1")
    A(f"s_mul_i32 s{sT2}, s{sX8}, 12")
    A(f"s_lshl_b32 s{sT3}, s{sT0}, 2")
    A(f"s_add_u32 s{sT2}, s{sT2}, s{sT3}")
    A(f"s_add_u32 s{sT2}, s{sT2}, s{sT1}")
    A(f"s_cmp_eq_u32 s{sSPLIT}, 1")
    A(f"s_cselect_b32 s{sT2}, s{sT2}, 255")
    A(f"s_sub_u32 s{sT3}, s{sX8}, s{sT0}")
    A(f"s_lshl_b32 s{sT3}, s{sT3}, 3")
    A(f"s_add_u32 s{sT3}, s{sT3}, s{sSLOT}")
    A(f"s_add_u32 s{sT3}, s{sT3}, {128 - 24}")
    A(f"s_cmp_lt_u32 s{sT1}, s{sNU}")
    A(f"s_cselect_b32 s{sROLE}, s{sT2}, s{sT3}")
    def wo_load():
        vPH = 36
        A(f"s_mul_i32 s{sT0}, s{sH}, {0 if nowoh else 128*1280}")
        srd(WOS, pWO, f"s{sT0}", 128 * 1280)
        if nowolin:
            A(f"s_and_b32 s{sT1}, s{sSLOT}, 7")
            A(f"s_lshl_b32 s{sT1}, s{sT1}, 2")
            A(f"s_add_u32 s{sT1}, s{sT1}, s{sA}")
            A(f"s_mul_i32 s{sT1}, s{sT1}, 5120")
            A("v_lshlrev_b32 v41, 4, v1")
            for i in range(5):
                A(f"buffer_load_dwordx4 v[{vW+4*i}:{vW+4*i+3}], v41, s[{WOS}:{WOS+3}], s{sT1} offen {woflags}")
                A(f"s_add_u32 s{sT1}, s{sT1}, 1024")
            A("s_waitcnt vmcnt(0)")
            if nowolin == 1:
                return
        A(f"s_mul_i32 s{sT1}, s{sA}, 320")
        A(f"s_mov_b32 s{sT2}, 52429")
        for p in range(5):
            A(f"v_add_u32 v{vPH+p}, {64*p}, v1")
            A(f"v_mul_u32_u24 v41, s{sT2}, v{vPH+p}")
            A("v_lshrrev_b32 v41, 20, v41")
            A(f"v_mul_u32_u24 v42, {1280 - 320}, v41")
            A(f"v_lshl_add_u32 v{vPH+p}, v{vPH+p}, 4, v42")
            A(f"v_add_u32 v{vPH+p}, s{sT1}, v{vPH+p}")
        A(f"s_mul_i32 s{sT1}, s{sA}, 10240")
        A(f"s_add_u32 s{sT1}, s{sT1}, {TP}")
        A("v_lshrrev_b32 v41, 2, v2")
        A("v_lshl_add_u32 v41, v3, 3, v41")
        A("v_mul_u32_u24 v41, 320, v41")
        A("v_and_b32 v42, 3, v1")
        A("v_lshl_add_u32 v41, v42, 3, v41")
        A(f"v_add_u32 v41, s{sT1}, v41")
        A(f"s_mov_b32 s{sOFF}, 0")
        for ks in range(4):
            for i in range(10):
                A(f"s_add_u32 m0, s{sT1}, {1024*i}")
                if i == 5:
                    A(f"s_add_u32 s{sOFF}, s{sOFF}, {16*1280}")
                else:
                    A("s_nop 0")
                if not nowo:
                    A(f"buffer_load_dwordx4 v{vPH+i%5}, s[{WOS}:{WOS+3}], s{sOFF} offen {woflags} lds")
                A(f"s_waitcnt vmcnt({wowin - 1})")
            A(f"s_add_u32 s{sOFF}, s{sOFF}, {16*1280}")
            A("s_waitcnt vmcnt(0)")
            for cb in range(10):
                r = vW + 4 * (cb * 4 + ks)
                A(f"ds_read_b64_tr_b16 v[{r}:{r+1}], v41 offset:{32*cb}")
                A(f"ds_read_b64_tr_b16 v[{r+2}:{r+3}], v41 offset:{32*cb + 1280}")
                if cb == 5:
                    A("s_waitcnt lgkmcnt(4)")
            A("s_waitcnt lgkmcnt(0)")
    vTR, vAO = 14, 15
    vFA, vFB, vFD = 20, 24, 28
    def round_bf16(regs):
        for v in regs:
            A(f"v_cvt_pk_bf16_f32 v{v}, v{v}, v{v}")
        for v in regs:
            A(f"v_and_b32 v{v}, 0xffff0000, v{v}")
    A(f"s_cmp_lg_u32 s{sA}, 0")
    A("s_cbranch_scc1 L_wo")
    A(f"v_mov_b32 v{vC+4}, 0")
    A.label("L_flg")
    A(f"ds_read_b128 v[{vFA}:{vFA+3}], v{vC+4} offset:{FLG}")
    A("s_waitcnt lgkmcnt(0)")
    A(f"v_add3_u32 v{vFA}, v{vFA}, v{vFA+1}, v{vFA+2}")
    A(f"v_add_u32 v{vFA}, v{vFA}, v{vFA+3}")
    A(f"v_cmp_ne_u32 vcc, 4, v{vFA}")
    A("s_nop 1")
    A("s_cbranch_vccnz L_flg")
    A(f"s_lshl_b32 s{sT3}, s2, 7")
    A(f"s_add_u32 s{sT3}, s{sT3}, {WS_H}")
    A(f"v_mov_b32 v{vC+4}, s{sT3}")
    A(f"v_mov_b32 v{vC+5}, s{sTAG}")
    A("s_mov_b64 exec, 1")
    A(f"buffer_store_dword v{vC+5}, v{vC+4}, s[{WSS}:{WSS+3}], 0 offen sc1")
    A("s_mov_b64 exec, -1")
    if not ffn1:
        A.label("L_wo")
        wo_load()
        if ctl and not ctltest:
            A(f"s_cmp_lg_u32 s{sA}, 1")
            A("s_cbranch_scc1 L_noctl")
            A.c("rank of this workgroup among its peers at each checkpoint -> load window of the value stream")
            if cloc:
                npeer = 32
                A(f"s_lshl_b32 s{sT0}, s{sX8}, 7")
                A(f"v_lshl_add_u32 v{vC}, v1, 2, s{sT0}")
                A(f"s_lshl_b32 s{sT1}, s{sSLOT}, 2")
                A(f"s_add_u32 s{sT0}, s{sT0}, s{sT1}")
                A(f"v_mov_b32 v{vC+1}, s{sT0}")
            else:
                A(f"v_mul_u32_u24 v{vC}, {256 // npeer + 1}, v1")
                A(f"v_add3_u32 v{vC}, v{vC}, s2, 9")
                A(f"v_and_b32 v{vC}, 255, v{vC}")
                A(f"v_lshlrev_b32 v{vC}, 7, v{vC}")
                A(f"s_lshl_b32 s{sT0}, s2, 7")
                A(f"v_mov_b32 v{vC+1}, s{sT0}")
            A(f"v_mov_b32 v{vC+2}, s{sTAG}")
            A(f"v_mov_b32 v{vC+3}, 0")
            if xg:
                A(f"s_lshl_b32 s{sT0}, s{sX8}, 7")
                A(f"s_add_u32 s{sT1}, s{sT0}, 1024")
                A(f"v_writelane_b32 v{vC}, s{sT1}, 32")
                A(f"v_mov_b32 v20, s{sT0}")
                A(f"v_lshlrev_b32 v21, 7, v1")
            A(f"s_mov_b32 s{sOFF}, {WS_CP}")
            A(f"s_mov_b32 s{sCNT}, {ctl[0]}")
            A.label("L_cw")
            A(f"s_sleep {csleep}")
            A(f"ds_read_b32 v{vC+4}, v{vC+3} offset:{PM}")
            A("s_waitcnt lgkmcnt(0)")
            A(f"v_readfirstlane_b32 s{sT1}, v{vC+4}")
            A("s_nop 0")
            A(f"s_cmp_gt_u32 s{sT1}, s{sCNT}")
            A("s_cbranch_scc1 L_cw")
            A("s_mov_b64 exec, 1")
            A(f"buffer_store_dword v{vC+2}, v{vC+1}, s[{WSS}:{WSS+3}], s{sOFF} offen {cst}")
            A("s_mov_b32 exec_lo, -1")
            A(f"s_mov_b32 exec_hi, {1 if xg else 0}")
            A(f"buffer_load_dword v{vC+4}, v{vC}, s[{WSS}:{WSS+3}], s{sOFF} offen {cld}")
            A("s_waitcnt vmcnt(0)")
            A(f"v_cmp_eq_u32 vcc, s{sTAG}, v{vC+4}")
            A("s_mov_b64 exec, -1")
            if xg:
                A(f"v_readlane_b32 s{sT0}, v{vC+4}, 32")
            else:
                A("s_nop 0")
            A(f"s_bcnt1_i32_b32 s{sT1}, vcc_lo")
            if xg:
                A(f"s_mov_b32 s{sM}, s{sT1}")
                A(f"s_sub_u32 s{sT0}, s{sT0}, s{sTAG}")
                A(f"s_sub_u32 s{sT0}, s{sT0}, 1")
                A(f"s_cmp_lt_u32 s{sT0}, 8")
                A(f"s_mul_i32 s{sT0}, s{sT0}, {xg}")
                A(f"s_cselect_b32 s{sT0}, s{sT0}, {7 * xg // 2}")
                A(f"s_add_u32 s{sT1}, s{sT1}, s{sT0}")
                thr = [t + 7 * xg // 2 if t else 0 for t in thr]
            A(f"s_mov_b32 s{sT2}, 0")
            for m, t in enumerate(thr):
                A(f"s_cmp_ge_u32 s{sT1}, {t}")
                A(f"s_cselect_b32 s{sT2}, {m + 1}, s{sT2}")
            A(f"v_mov_b32 v{vC+4}, s{sT2}")
            A(f"ds_write_b32 v{vC+3}, v{vC+4} offset:{PM + 4}")
            if xg:
                A(f"s_lshr_b32 s{sT0}, s{sM}, 1")
                A(f"s_cmp_lg_u32 s{sT0}, 8")
                A("s_cbranch_scc1 L_cnx")
                A("s_mov_b64 exec, 1")
                A(f"buffer_store_dword v{vC+2}, v20, s[{WSS}:{WSS+3}], s{sOFF} offen offset:2048 sc1")
                A("s_mov_b64 exec, 0xff")
                A(f"buffer_load_dword v22, v21, s[{WSS}:{WSS+3}], s{sOFF} offen offset:2048 sc1")
                A("s_waitcnt vmcnt(0)")
                A(f"v_cmp_eq_u32 vcc, s{sTAG}, v22")
                A("s_mov_b64 exec, 1")
                A(f"s_lshl_b32 s{sT1}, 1, s{sX8}")
                A(f"s_or_b32 s{sT1}, s{sT1}, vcc_lo")
                A(f"s_bcnt1_i32_b32 s{sT1}, s{sT1}")
                A(f"s_add_u32 s{sT1}, s{sT1}, s{sTAG}")
                A(f"v_mov_b32 v22, s{sT1}")
                A(f"s_add_u32 s{sT0}, s{sOFF}, 32768")
                A(f"buffer_store_dword v22, v20, s[{WSS}:{WSS+3}], s{sT0} offen offset:1024 {cst}")
                A("s_mov_b64 exec, -1")
                A.label("L_cnx")
            A(f"s_add_u32 s{sOFF}, s{sOFF}, 32768")
            A(f"s_sub_u32 s{sCNT}, s{sCNT}, {ctl[1]}")
            A(f"s_cmp_ge_i32 s{sCNT}, {ctl[2]}")
            A("s_cbranch_scc1 L_cw")
            A("s_waitcnt lgkmcnt(0)")
            A.label("L_noctl")
        A(f"s_cmp_lg_u32 s{sA}, 0")
        A("s_cbranch_scc1 L_idle")
        if nosig:
            A("s_branch L_idle")
        A(f"s_cmp_eq_u32 s{sROLE}, 255")
        A("s_cbranch_scc1 L_idle")
        A(f"s_cmp_ge_u32 s{sROLE}, 128")
        A("s_cbranch_scc1 L_f2")
        A.c("F1 unit: 16 columns of gate/up for all 4 batches")
        vFU = 32
        A(f"s_lshl_b32 s{sT0}, s{sROLE}, 5")
        srd(F0S, pWG, None, 640 * 3456)
        srd(F1S, pWU, None, 640 * 3456)
        A(f"v_lshrrev_b32 v{vC}, 1, v1")
        A(f"v_mul_u32_u24 v{vC}, 3456, v{vC}")
        A(f"v_and_b32 v{vC+1}, 1, v1")
        A(f"v_lshl_add_u32 v{vC}, v{vC+1}, 4, v{vC}")
        A(f"v_add_u32 v{vC}, s{sT0}, v{vC}")
        A(f"s_mov_b32 s{sOFF}, 0")
        A(f"s_mov_b32 s{sT1}, {WT}")
        A(f"s_mov_b32 s{sCNT}, 20")
        A.label("L_f1_ld")
        A(f"s_mov_b32 m0, s{sT1}")
        A(f"s_add_u32 s{sT2}, s{sT1}, 20480")
        if not noffn:
            A(f"buffer_load_dwordx4 v{vC}, s[{F0S}:{F0S+3}], s{sOFF} offen {ffnflags} lds")
        A(f"s_waitcnt vmcnt({f1win - 1})")
        A(f"s_mov_b32 m0, s{sT2}")
        A(f"s_add_u32 s{sT1}, s{sT1}, 1024")
        if not noffn:
            A(f"buffer_load_dwordx4 v{vC}, s[{F1S}:{F1S+3}], s{sOFF} offen {ffnflags} lds")
        A(f"s_add_u32 s{sOFF}, s{sOFF}, {32*3456}")
        A(f"s_waitcnt vmcnt({f1win - 1})")
        A(f"s_sub_u32 s{sCNT}, s{sCNT}, 1")
        A(f"s_cmp_lg_u32 s{sCNT}, 0")
        A("s_cbranch_scc1 L_f1_ld")
        A(f"v_lshrrev_b32 v{vC+1}, 2, v2")
        A(f"v_lshl_add_u32 v{vC+1}, v3, 3, v{vC+1}")
        A(f"v_lshlrev_b32 v{vTR}, 5, v{vC+1}")
        A(f"v_and_b32 v{vC+1}, 3, v1")
        A(f"v_lshl_add_u32 v{vTR}, v{vC+1}, 3, v{vTR}")
        A(f"v_add_u32 v{vTR}, {WT}, v{vTR}")
        A(f"v_mul_u32_u24 v{vAO}, 1280, v{vC+1}")
        A(f"v_lshl_add_u32 v{vAO}, v3, 4, v{vAO}")
        A(f"v_add_u32 v{vAO}, {XNB}, v{vAO}")
        for i in range(4):
            A(f"v_mov_b32 v{vFD+i}, 0")
            A(f"v_mov_b32 v{vFU+i}, 0")
        A(f"s_mov_b32 s{sCNT}, 20")
        A("s_waitcnt vmcnt(0)")
        vFB2 = 36
        A.label("L_f1_mm")
        A(f"ds_read_b128 v[{vFA}:{vFA+3}], v{vAO}")
        A(f"ds_read_b64_tr_b16 v[{vFB}:{vFB+1}], v{vTR}")
        A(f"ds_read_b64_tr_b16 v[{vFB+2}:{vFB+3}], v{vTR} offset:128")
        A(f"ds_read_b64_tr_b16 v[{vFB2}:{vFB2+1}], v{vTR} offset:20480")
        A(f"ds_read_b64_tr_b16 v[{vFB2+2}:{vFB2+3}], v{vTR} offset:{20480+128}")
        A(f"v_add_u32 v{vAO}, 64, v{vAO}")
        A(f"v_add_u32 v{vTR}, 1024, v{vTR}")
        A("s_waitcnt lgkmcnt(0)")
        A(f"v_mfma_f32_16x16x32_bf16 v[{vFD}:{vFD+3}], v[{vFA}:{vFA+3}], v[{vFB}:{vFB+3}], v[{vFD}:{vFD+3}]")
        A(f"v_mfma_f32_16x16x32_bf16 v[{vFU}:{vFU+3}], v[{vFA}:{vFA+3}], v[{vFB2}:{vFB2+3}], v[{vFU}:{vFU+3}]")
        A(f"s_sub_u32 s{sCNT}, s{sCNT}, 1")
        A(f"s_cmp_lg_u32 s{sCNT}, 0")
        A("s_cbranch_scc1 L_f1_mm")
        A("s_nop 7")
        for i in range(1, 4):
            A(f"v_cmp_eq_u32 vcc, {i}, v3")
            A("s_nop 1")
            A(f"v_cndmask_b32 v{vFD}, v{vFD}, v{vFD+i}, vcc")
            A(f"v_cndmask_b32 v{vFU}, v{vFU}, v{vFU+i}, vcc")
        round_bf16([vFD, vFU])
        K0 = 0.7978845608028654
        A(f"s_mov_b32 s{sT0}, {f2u(0.044715):#x}")
        A(f"s_mov_b32 s{sT1}, {f2u(-2.0 * K0 * L2E):#x}")
        A(f"v_mul_f32 v{vFA}, v{vFD}, v{vFD}")
        A(f"v_fma_f32 v{vFA}, v{vFA}, s{sT0}, 1.0")
        A(f"v_mul_f32 v{vFA}, v{vFA}, v{vFD}")
        A(f"v_mul_f32 v{vFA}, s{sT1}, v{vFA}")
        A(f"v_exp_f32 v{vFA}, v{vFA}")
        A("s_nop 0")
        A(f"v_add_f32 v{vFA}, 1.0, v{vFA}")
        A(f"v_rcp_f32 v{vFA}, v{vFA}")
        A("s_nop 0")
        A(f"v_mul_f32 v{vFA}, v{vFA}, v{vFD}")
        round_bf16([vFA])
        A(f"v_mul_f32 v{vFA}, v{vFA}, v{vFU}")
        A(f"s_lshl_b32 s{sT0}, s{sROLE}, 8")
        A(f"s_add_u32 s{sT0}, s{sT0}, {WS_HL}")
        A(f"v_mov_b32_dpp v{vFB}, v{vFA} quad_perm:[1,0,3,2] row_mask:0xf bank_mask:0xf")
        A(f"v_cvt_pk_bf16_f32 v{vFA}, v{vFA}, v{vFB}")
        A(f"v_mov_b32 v{vFA+1}, s{sTAG}")
        A("s_mov_b32 exec_lo, 0x55555555")
        A("s_mov_b32 exec_hi, 0x55555555")
        A(f"buffer_store_dwordx2 v[{vFA}:{vFA+1}], v{vO1}, s[{WSS}:{WSS+3}], s{sT0} offen sc1")
        A("s_mov_b64 exec, -1")
        A("s_branch L_idle")

        A.label("L_f2")
        A.c("F2 job: 64 columns x one quarter of K of the down projection, then the gate of 16 columns")
        sC, sKQ, sST_, sN = sT3, sHS, sM, sSC
        A(f"s_sub_u32 s{sC}, s{sROLE}, 128")
        A(f"s_and_b32 s{sKQ}, s{sC}, 3")
        A(f"s_mul_i32 s{sST_}, s{sKQ}, 14")
        A(f"s_cmp_eq_u32 s{sKQ}, 3")
        A(f"s_cselect_b32 s{sST_}, 41, s{sST_}")
        A(f"s_lshr_b32 s{sN}, s{sKQ}, 1")
        A(f"s_sub_u32 s{sN}, 14, s{sN}")
        srd(F0S, pWD, None, 1728 * 1280)
        A(f"s_lshr_b32 s{sT0}, s{sC}, 2")
        A(f"s_lshl_b32 s{sT0}, s{sT0}, 7")
        A(f"v_lshrrev_b32 v{vC}, 3, v1")
        A(f"v_mul_u32_u24 v{vC}, 1280, v{vC}")
        A(f"v_and_b32 v{vC+1}, 7, v1")
        A(f"v_lshl_add_u32 v{vC}, v{vC+1}, 4, v{vC}")
        A(f"v_add_u32 v{vC}, s{sT0}, v{vC}")
        A(f"s_mul_i32 s{sOFF}, s{sST_}, {32*1280}")
        A(f"s_mov_b32 s{sT1}, {WT}")
        A(f"s_lshl_b32 s{sCNT}, s{sN}, 2")
        A.label("L_f2_ld")
        A(f"s_mov_b32 m0, s{sT1}")
        A(f"s_add_u32 s{sT1}, s{sT1}, 1024")
        if not noffn:
            A(f"buffer_load_dwordx4 v{vC}, s[{F0S}:{F0S+3}], s{sOFF} offen {ffnflags} lds")
        A(f"s_add_u32 s{sOFF}, s{sOFF}, {8*1280}")
        A(f"s_waitcnt vmcnt({f2win - 1})")
        A(f"s_sub_u32 s{sCNT}, s{sCNT}, 1")
        A(f"s_cmp_lg_u32 s{sCNT}, 0")
        A("s_cbranch_scc1 L_f2_ld")
        vH = 36
        A(f"s_lshl_b32 s{sT0}, s{sST_}, 1")
        A(f"s_min_u32 s{sT1}, s{sT0}, 80")
        A(f"s_sub_u32 s{sT2}, s{sT0}, s{sT1}")
        A(f"s_lshl_b32 s{sT2}, s{sT2}, 5")
        A(f"s_lshl_b32 s{sT1}, s{sT1}, 8")
        A(f"s_add_u32 s{sT1}, s{sT1}, {WS_HL}")
        A(f"s_lshl_b32 s{sT0}, s{sKQ}, 13")
        A(f"s_add_u32 s{sT0}, s{sT0}, {WS_H}")
        A(f"v_lshlrev_b32 v{vC}, 4, v1")
        A(f"v_lshlrev_b32 v{vC+1}, 7, v1")
        A(f"v_lshrrev_b32 v{vC+2}, 2, v2")
        A(f"v_mul_u32_u24 v{vC+2}, 896, v{vC+2}")
        A(f"v_lshl_add_u32 v{vC+2}, v3, 5, v{vC+2}")
        A(f"v_and_b32 v{vC+3}, 3, v1")
        A(f"v_lshl_add_u32 v{vC+2}, v{vC+3}, 3, v{vC+2}")
        A(f"s_add_u32 s{sOFF}, s{sT1}, 4096")
        A("s_branch L_g")
        A.label("L_gr")
        A(f"s_sleep {gsleep}")
        A.label("L_g")
        for i in range(7):
            A(f"buffer_load_dwordx4 v[{vH+4*i}:{vH+4*i+3}], v{vC}, s[{WSS}:{WSS+3}], s{sT1 if i < 4 else sOFF} offen offset:{1024*(i&3)} sc1")
        A(f"buffer_load_dword v{vH+28}, v{vC+1}, s[{WSS}:{WSS+3}], s{sT0} offen sc1")
        A("s_waitcnt vmcnt(0)")
        A(f"v_xor_b32 v{vH+28}, s{sTAG}, v{vH+28}")
        for i in range(7):
            A(f"v_xor_b32 v{vH+4*i+1}, s{sTAG}, v{vH+4*i+1}")
            A(f"v_xor_b32 v{vH+4*i+3}, s{sTAG}, v{vH+4*i+3}")
            A(f"v_or3_b32 v{vH+28}, v{vH+28}, v{vH+4*i+1}, v{vH+4*i+3}")
        A(f"v_cmp_ne_u32 vcc, 0, v{vH+28}")
        A("s_nop 1")
        A("s_cbranch_vccnz L_gr")
        for i in range(7):
            A(f"v_mov_b32 v{vH+4*i+1}, v{vH+4*i+2}")
            A(f"ds_write_b64 v{vC+2}, v[{vH+4*i}:{vH+4*i+1}] offset:{HB + 128*i}")
        A(f"v_lshrrev_b32 v{vC+4}, 2, v2")
        A(f"v_lshl_add_u32 v{vC+4}, v3, 3, v{vC+4}")
        A(f"v_lshlrev_b32 v{vTR}, 7, v{vC+4}")
        A(f"v_lshl_add_u32 v{vTR}, v{vC+3}, 3, v{vTR}")
        A(f"v_add_u32 v{vTR}, {WT}, v{vTR}")
        A(f"v_mul_u32_u24 v{vAO}, 896, v{vC+3}")
        A(f"v_lshl_add_u32 v{vAO}, v3, 4, v{vAO}")
        A(f"v_add_u32 v{vAO}, s{sT2}, v{vAO}")
        A("s_waitcnt lgkmcnt(0)")
        vB4, vD4 = 36, 52
        for i in range(16):
            A(f"v_mov_b32 v{vD4+i}, 0")
        A(f"s_mov_b32 s{sCNT}, s{sN}")
        A.label("L_f2_mm")
        A(f"ds_read_b128 v[{vFA}:{vFA+3}], v{vAO} offset:{HB}")
        for cb in range(4):
            A(f"ds_read_b64_tr_b16 v[{vB4+4*cb}:{vB4+4*cb+1}], v{vTR} offset:{32*cb}")
            A(f"ds_read_b64_tr_b16 v[{vB4+4*cb+2}:{vB4+4*cb+3}], v{vTR} offset:{32*cb+512}")
        A(f"v_add_u32 v{vAO}, 64, v{vAO}")
        A(f"v_add_u32 v{vTR}, 4096, v{vTR}")
        A("s_waitcnt lgkmcnt(0)")
        for cb in range(4):
            d = vD4 + 4 * cb
            A(f"v_mfma_f32_16x16x32_bf16 v[{d}:{d+3}], v[{vFA}:{vFA+3}], v[{vB4+4*cb}:{vB4+4*cb+3}], v[{d}:{d+3}]")
        A(f"s_sub_u32 s{sCNT}, s{sCNT}, 1")
        A(f"s_cmp_lg_u32 s{sCNT}, 0")
        A("s_cbranch_scc1 L_f2_mm")
        A("s_nop 7")
        for i in range(1, 4):
            A(f"v_cmp_eq_u32 vcc, {i}, v3")
            A("s_nop 1")
            for cb in range(4):
                A(f"v_cndmask_b32 v{vD4+4*cb}, v{vD4+4*cb}, v{vD4+4*cb+i}, vcc")
        for cb in range(4):
            A(f"v_mov_b32 v{vD4+4*cb+1}, s{sTAG}")
        A(f"v_lshlrev_b32 v{vC}, 3, v1")
        A(f"s_and_b32 s{sT0}, s{sC}, 0xfc")
        A(f"s_lshl_b32 s{sT0}, s{sT0}, 2")
        A(f"s_add_u32 s{sT0}, s{sT0}, s{sKQ}")
        A(f"s_lshl_b32 s{sT0}, s{sT0}, 9")
        A(f"s_add_u32 s{sT0}, s{sT0}, {WS_FQ}")
        for cb in range(4):
            A(f"buffer_store_dwordx2 v[{vD4+4*cb}:{vD4+4*cb+1}], v{vC}, s[{WSS}:{WSS+3}], s{sT0} offen sc1")
            A(f"s_add_u32 s{sT0}, s{sT0}, 2048")
        A(f"s_lshl_b32 s{sT0}, s{sC}, 11")
        A(f"s_add_u32 s{sT0}, s{sT0}, {WS_FQ}")
        A("s_waitcnt vmcnt(0)")
        A("s_branch L_p")
        A.label("L_pr")
        A(f"s_sleep {gsleep // 2}")
        A.label("L_p")
        for i in range(4):
            A(f"buffer_load_dwordx2 v[{vH+2*i}:{vH+2*i+1}], v{vC}, s[{WSS}:{WSS+3}], s{sT0} offen offset:{512*i} sc1")
        A("s_waitcnt vmcnt(0)")
        for i in range(4):
            A(f"v_xor_b32 v{vH+2*i+1}, s{sTAG}, v{vH+2*i+1}")
        A(f"v_or3_b32 v{vH+1}, v{vH+1}, v{vH+3}, v{vH+5}")
        A(f"v_or_b32 v{vH+1}, v{vH+1}, v{vH+7}")
        A(f"v_cmp_ne_u32 vcc, 0, v{vH+1}")
        A("s_nop 1")
        A("s_cbranch_vccnz L_pr")
        A(f"s_cmp_lg_u32 s{sROLE}, 128")
        A("s_cbranch_scc1 L_noep")
        A(f"v_mov_b32 v{vC+2}, {WS_EP:#x}")
        A(f"v_mov_b32 v{vC+3}, s{sTAG}")
        A("s_mov_b64 exec, 1")
        A(f"buffer_store_dword v{vC+3}, v{vC+2}, s[{WSS}:{WSS+3}], 0 offen sc1")
        A("s_mov_b64 exec, -1")
        A.label("L_noep")
        A(f"v_add_f32 v20, v{vH}, v{vH+2}")
        A(f"v_add_f32 v21, v{vH+4}, v{vH+6}")
        A("v_add_f32 v20, v20, v21")
        round_bf16([20])
        A(f"s_mov_b32 s{sT1}, {f2u(-L2E):#x}")
        A(f"v_mul_f32 v21, s{sT1}, v20")
        A("v_exp_f32 v21, v21")
        A("s_nop 0")
        A("v_add_f32 v21, 1.0, v21")
        A("v_rcp_f32 v21, v21")
        A("s_nop 0")
        A("v_mul_f32 v21, v21, v20")
        round_bf16([21])
        A(f"ds_write_b32 v{vO1}, v21 offset:{GB}")
        A("s_waitcnt lgkmcnt(0)")
    else:
        A(f"s_cmp_eq_u32 s{sROLE}, 255")
        A("s_cbranch_scc1 L_wo")
        A(f"s_cmp_ge_u32 s{sROLE}, 128")
        A("s_cbranch_scc1 L_f2")
        A.c("F1 unit: 16 columns of gate/up for all 4 batches")
        vFU = 32
        A(f"s_lshl_b32 s{sT0}, s{sROLE}, 5")
        srd(F0S, pWG, None, 640 * 3456)
        srd(F1S, pWU, None, 640 * 3456)
        A(f"v_lshrrev_b32 v{vC}, 1, v1")
        A(f"v_mul_u32_u24 v{vC}, 3456, v{vC}")
        A(f"v_and_b32 v{vC+1}, 1, v1")
        A(f"v_lshl_add_u32 v{vC}, v{vC+1}, 4, v{vC}")
        A(f"v_add_u32 v{vC}, s{sT0}, v{vC}")
        A(f"s_mov_b32 s{sOFF}, 0")
        A(f"s_mov_b32 s{sT1}, {WT}")
        A(f"s_mov_b32 s{sCNT}, 20")
        A.label("L_f1_ld")
        A(f"s_mov_b32 m0, s{sT1}")
        A(f"s_add_u32 s{sT2}, s{sT1}, 20480")
        if not noffn:
            A(f"buffer_load_dwordx4 v{vC}, s[{F0S}:{F0S+3}], s{sOFF} offen {ffnflags} lds")
        A(f"s_waitcnt vmcnt({f1win - 1})")
        A(f"s_mov_b32 m0, s{sT2}")
        A(f"s_add_u32 s{sT1}, s{sT1}, 1024")
        if not noffn:
            A(f"buffer_load_dwordx4 v{vC}, s[{F1S}:{F1S+3}], s{sOFF} offen {ffnflags} lds")
        A(f"s_add_u32 s{sOFF}, s{sOFF}, {32*3456}")
        A(f"s_waitcnt vmcnt({f1win - 1})")
        A(f"s_sub_u32 s{sCNT}, s{sCNT}, 1")
        A(f"s_cmp_lg_u32 s{sCNT}, 0")
        A("s_cbranch_scc1 L_f1_ld")
        A(f"v_lshrrev_b32 v{vC+1}, 2, v2")
        A(f"v_lshl_add_u32 v{vC+1}, v3, 3, v{vC+1}")
        A(f"v_lshlrev_b32 v{vTR}, 5, v{vC+1}")
        A(f"v_and_b32 v{vC+1}, 3, v1")
        A(f"v_lshl_add_u32 v{vTR}, v{vC+1}, 3, v{vTR}")
        A(f"v_add_u32 v{vTR}, {WT}, v{vTR}")
        A(f"v_mul_u32_u24 v{vAO}, 1280, v{vC+1}")
        A(f"v_lshl_add_u32 v{vAO}, v3, 4, v{vAO}")
        A(f"v_add_u32 v{vAO}, {XNB}, v{vAO}")
        for i in range(4):
            A(f"v_mov_b32 v{vFD+i}, 0")
            A(f"v_mov_b32 v{vFU+i}, 0")
        A(f"s_mov_b32 s{sCNT}, 20")
        A("s_waitcnt vmcnt(0)")
        vFB2 = 36
        A.label("L_f1_mm")
        A(f"ds_read_b128 v[{vFA}:{vFA+3}], v{vAO}")
        A(f"ds_read_b64_tr_b16 v[{vFB}:{vFB+1}], v{vTR}")
        A(f"ds_read_b64_tr_b16 v[{vFB+2}:{vFB+3}], v{vTR} offset:128")
        A(f"ds_read_b64_tr_b16 v[{vFB2}:{vFB2+1}], v{vTR} offset:20480")
        A(f"ds_read_b64_tr_b16 v[{vFB2+2}:{vFB2+3}], v{vTR} offset:{20480+128}")
        A(f"v_add_u32 v{vAO}, 64, v{vAO}")
        A(f"v_add_u32 v{vTR}, 1024, v{vTR}")
        A("s_waitcnt lgkmcnt(0)")
        A(f"v_mfma_f32_16x16x32_bf16 v[{vFD}:{vFD+3}], v[{vFA}:{vFA+3}], v[{vFB}:{vFB+3}], v[{vFD}:{vFD+3}]")
        A(f"v_mfma_f32_16x16x32_bf16 v[{vFU}:{vFU+3}], v[{vFA}:{vFA+3}], v[{vFB2}:{vFB2+3}], v[{vFU}:{vFU+3}]")
        A(f"s_sub_u32 s{sCNT}, s{sCNT}, 1")
        A(f"s_cmp_lg_u32 s{sCNT}, 0")
        A("s_cbranch_scc1 L_f1_mm")
        A("s_nop 7")
        for i in range(1, 4):
            A(f"v_cmp_eq_u32 vcc, {i}, v3")
            A("s_nop 1")
            A(f"v_cndmask_b32 v{vFD}, v{vFD}, v{vFD+i}, vcc")
            A(f"v_cndmask_b32 v{vFU}, v{vFU}, v{vFU+i}, vcc")
        round_bf16([vFD, vFU])
        K0 = 0.7978845608028654
        A(f"s_mov_b32 s{sT0}, {f2u(0.044715):#x}")
        A(f"s_mov_b32 s{sT1}, {f2u(-2.0 * K0 * L2E):#x}")
        A(f"v_mul_f32 v{vFA}, v{vFD}, v{vFD}")
        A(f"v_fma_f32 v{vFA}, v{vFA}, s{sT0}, 1.0")
        A(f"v_mul_f32 v{vFA}, v{vFA}, v{vFD}")
        A(f"v_mul_f32 v{vFA}, s{sT1}, v{vFA}")
        A(f"v_exp_f32 v{vFA}, v{vFA}")
        A("s_nop 0")
        A(f"v_add_f32 v{vFA}, 1.0, v{vFA}")
        A(f"v_rcp_f32 v{vFA}, v{vFA}")
        A("s_nop 0")
        A(f"v_mul_f32 v{vFA}, v{vFA}, v{vFD}")
        round_bf16([vFA])
        A(f"v_mul_f32 v{vFA}, v{vFA}, v{vFU}")
        A(f"s_lshl_b32 s{sT0}, s{sROLE}, 8")
        A(f"s_add_u32 s{sT0}, s{sT0}, {WS_HL}")
        A(f"v_mov_b32_dpp v{vFB}, v{vFA} quad_perm:[1,0,3,2] row_mask:0xf bank_mask:0xf")
        A(f"v_cvt_pk_bf16_f32 v{vFA}, v{vFA}, v{vFB}")
        A(f"v_mov_b32 v{vFA+1}, s{sTAG}")
        A("s_mov_b32 exec_lo, 0x55555555")
        A("s_mov_b32 exec_hi, 0x55555555")
        A(f"buffer_store_dwordx2 v[{vFA}:{vFA+1}], v{vO1}, s[{WSS}:{WSS+3}], s{sT0} offen sc1")
        A("s_mov_b64 exec, -1")
        A("s_branch L_wo")

        A.label("L_f2")
        A.c("F2 job: 64 columns x one quarter of K of the down projection, then the gate of 16 columns")
        sC, sKQ, sST_, sN = sT3, sHS, sM, sSC
        A(f"s_sub_u32 s{sC}, s{sROLE}, 128")
        A(f"s_and_b32 s{sKQ}, s{sC}, 3")
        A(f"s_mul_i32 s{sST_}, s{sKQ}, 14")
        A(f"s_cmp_eq_u32 s{sKQ}, 3")
        A(f"s_cselect_b32 s{sST_}, 41, s{sST_}")
        A(f"s_lshr_b32 s{sN}, s{sKQ}, 1")
        A(f"s_sub_u32 s{sN}, 14, s{sN}")
        srd(F0S, pWD, None, 1728 * 1280)
        A(f"s_lshr_b32 s{sT0}, s{sC}, 2")
        A(f"s_lshl_b32 s{sT0}, s{sT0}, 7")
        A(f"v_lshrrev_b32 v{vC}, 3, v1")
        A(f"v_mul_u32_u24 v{vC}, 1280, v{vC}")
        A(f"v_and_b32 v{vC+1}, 7, v1")
        A(f"v_lshl_add_u32 v{vC}, v{vC+1}, 4, v{vC}")
        A(f"v_add_u32 v{vC}, s{sT0}, v{vC}")
        A(f"s_mul_i32 s{sOFF}, s{sST_}, {32*1280}")
        A(f"s_mov_b32 s{sT1}, {WT}")
        A(f"s_lshl_b32 s{sCNT}, s{sN}, 2")
        A.label("L_f2_ld")
        A(f"s_mov_b32 m0, s{sT1}")
        A(f"s_add_u32 s{sT1}, s{sT1}, 1024")
        if not noffn:
            A(f"buffer_load_dwordx4 v{vC}, s[{F0S}:{F0S+3}], s{sOFF} offen {ffnflags} lds")
        A(f"s_add_u32 s{sOFF}, s{sOFF}, {8*1280}")
        A(f"s_waitcnt vmcnt({f2win - 1})")
        A(f"s_sub_u32 s{sCNT}, s{sCNT}, 1")
        A(f"s_cmp_lg_u32 s{sCNT}, 0")
        A("s_cbranch_scc1 L_f2_ld")
        A.label("L_wo")
        wo_load()
        if ctl and not ctltest:
            A(f"s_cmp_lg_u32 s{sA}, 1")
            A("s_cbranch_scc1 L_noctl")
            A.c("rank of this workgroup among its peers at each checkpoint -> load window of the value stream")
            if cloc:
                npeer = 32
                A(f"s_lshl_b32 s{sT0}, s{sX8}, 7")
                A(f"v_lshl_add_u32 v{vC}, v1, 2, s{sT0}")
                A(f"s_lshl_b32 s{sT1}, s{sSLOT}, 2")
                A(f"s_add_u32 s{sT0}, s{sT0}, s{sT1}")
                A(f"v_mov_b32 v{vC+1}, s{sT0}")
            else:
                A(f"v_mul_u32_u24 v{vC}, {256 // npeer + 1}, v1")
                A(f"v_add3_u32 v{vC}, v{vC}, s2, 9")
                A(f"v_and_b32 v{vC}, 255, v{vC}")
                A(f"v_lshlrev_b32 v{vC}, 7, v{vC}")
                A(f"s_lshl_b32 s{sT0}, s2, 7")
                A(f"v_mov_b32 v{vC+1}, s{sT0}")
            A(f"v_mov_b32 v{vC+2}, s{sTAG}")
            A(f"v_mov_b32 v{vC+3}, 0")
            if xg:
                A(f"s_lshl_b32 s{sT0}, s{sX8}, 7")
                A(f"s_add_u32 s{sT1}, s{sT0}, 1024")
                A(f"v_writelane_b32 v{vC}, s{sT1}, 32")
                A(f"v_mov_b32 v20, s{sT0}")
                A(f"v_lshlrev_b32 v21, 7, v1")
            A(f"s_mov_b32 s{sOFF}, {WS_CP}")
            A(f"s_mov_b32 s{sCNT}, {ctl[0]}")
            A.label("L_cw")
            A(f"s_sleep {csleep}")
            A(f"ds_read_b32 v{vC+4}, v{vC+3} offset:{PM}")
            A("s_waitcnt lgkmcnt(0)")
            A(f"v_readfirstlane_b32 s{sT1}, v{vC+4}")
            A("s_nop 0")
            A(f"s_cmp_gt_u32 s{sT1}, s{sCNT}")
            A("s_cbranch_scc1 L_cw")
            A("s_mov_b64 exec, 1")
            A(f"buffer_store_dword v{vC+2}, v{vC+1}, s[{WSS}:{WSS+3}], s{sOFF} offen {cst}")
            A("s_mov_b32 exec_lo, -1")
            A(f"s_mov_b32 exec_hi, {1 if xg else 0}")
            A(f"buffer_load_dword v{vC+4}, v{vC}, s[{WSS}:{WSS+3}], s{sOFF} offen {cld}")
            A("s_waitcnt vmcnt(0)")
            A(f"v_cmp_eq_u32 vcc, s{sTAG}, v{vC+4}")
            A("s_mov_b64 exec, -1")
            if xg:
                A(f"v_readlane_b32 s{sT0}, v{vC+4}, 32")
            else:
                A("s_nop 0")
            A(f"s_bcnt1_i32_b32 s{sT1}, vcc_lo")
            if xg:
                A(f"s_mov_b32 s{sM}, s{sT1}")
                A(f"s_sub_u32 s{sT0}, s{sT0}, s{sTAG}")
                A(f"s_sub_u32 s{sT0}, s{sT0}, 1")
                A(f"s_cmp_lt_u32 s{sT0}, 8")
                A(f"s_mul_i32 s{sT0}, s{sT0}, {xg}")
                A(f"s_cselect_b32 s{sT0}, s{sT0}, {7 * xg // 2}")
                A(f"s_add_u32 s{sT1}, s{sT1}, s{sT0}")
                thr = [t + 7 * xg // 2 if t else 0 for t in thr]
            A(f"s_mov_b32 s{sT2}, 0")
            for m, t in enumerate(thr):
                A(f"s_cmp_ge_u32 s{sT1}, {t}")
                A(f"s_cselect_b32 s{sT2}, {m + 1}, s{sT2}")
            A(f"v_mov_b32 v{vC+4}, s{sT2}")
            A(f"ds_write_b32 v{vC+3}, v{vC+4} offset:{PM + 4}")
            if xg:
                A(f"s_lshr_b32 s{sT0}, s{sM}, 1")
                A(f"s_cmp_lg_u32 s{sT0}, 8")
                A("s_cbranch_scc1 L_cnx")
                A("s_mov_b64 exec, 1")
                A(f"buffer_store_dword v{vC+2}, v20, s[{WSS}:{WSS+3}], s{sOFF} offen offset:2048 sc1")
                A("s_mov_b64 exec, 0xff")
                A(f"buffer_load_dword v22, v21, s[{WSS}:{WSS+3}], s{sOFF} offen offset:2048 sc1")
                A("s_waitcnt vmcnt(0)")
                A(f"v_cmp_eq_u32 vcc, s{sTAG}, v22")
                A("s_mov_b64 exec, 1")
                A(f"s_lshl_b32 s{sT1}, 1, s{sX8}")
                A(f"s_or_b32 s{sT1}, s{sT1}, vcc_lo")
                A(f"s_bcnt1_i32_b32 s{sT1}, s{sT1}")
                A(f"s_add_u32 s{sT1}, s{sT1}, s{sTAG}")
                A(f"v_mov_b32 v22, s{sT1}")
                A(f"s_add_u32 s{sT0}, s{sOFF}, 32768")
                A(f"buffer_store_dword v22, v20, s[{WSS}:{WSS+3}], s{sT0} offen offset:1024 {cst}")
                A("s_mov_b64 exec, -1")
                A.label("L_cnx")
            A(f"s_add_u32 s{sOFF}, s{sOFF}, 32768")
            A(f"s_sub_u32 s{sCNT}, s{sCNT}, {ctl[1]}")
            A(f"s_cmp_ge_i32 s{sCNT}, {ctl[2]}")
            A("s_cbranch_scc1 L_cw")
            A("s_waitcnt lgkmcnt(0)")
            A.label("L_noctl")
        A(f"s_cmp_lg_u32 s{sA}, 0")
        A("s_cbranch_scc1 L_idle")
        A(f"s_sub_u32 s{sT0}, s{sROLE}, 128")
        A(f"s_cmp_ge_u32 s{sT0}, 40")
        A("s_cbranch_scc1 L_idle")
        vH = 36
        A(f"s_lshl_b32 s{sT0}, s{sST_}, 1")
        A(f"s_min_u32 s{sT1}, s{sT0}, 80")
        A(f"s_sub_u32 s{sT2}, s{sT0}, s{sT1}")
        A(f"s_lshl_b32 s{sT2}, s{sT2}, 5")
        A(f"s_lshl_b32 s{sT1}, s{sT1}, 8")
        A(f"s_add_u32 s{sT1}, s{sT1}, {WS_HL}")
        A(f"s_lshl_b32 s{sT0}, s{sKQ}, 13")
        A(f"s_add_u32 s{sT0}, s{sT0}, {WS_H}")
        A(f"v_lshlrev_b32 v{vC}, 4, v1")
        A(f"v_lshlrev_b32 v{vC+1}, 7, v1")
        A(f"v_lshrrev_b32 v{vC+2}, 2, v2")
        A(f"v_mul_u32_u24 v{vC+2}, 896, v{vC+2}")
        A(f"v_lshl_add_u32 v{vC+2}, v3, 5, v{vC+2}")
        A(f"v_and_b32 v{vC+3}, 3, v1")
        A(f"v_lshl_add_u32 v{vC+2}, v{vC+3}, 3, v{vC+2}")
        A(f"s_add_u32 s{sOFF}, s{sT1}, 4096")
        A("s_branch L_g")
        A.label("L_gr")
        A(f"s_sleep {gsleep}")
        A.label("L_g")
        for i in range(7):
            A(f"buffer_load_dwordx4 v[{vH+4*i}:{vH+4*i+3}], v{vC}, s[{WSS}:{WSS+3}], s{sT1 if i < 4 else sOFF} offen offset:{1024*(i&3)} sc1")
        A(f"buffer_load_dword v{vH+28}, v{vC+1}, s[{WSS}:{WSS+3}], s{sT0} offen sc1")
        A("s_waitcnt vmcnt(0)")
        A(f"v_xor_b32 v{vH+28}, s{sTAG}, v{vH+28}")
        for i in range(7):
            A(f"v_xor_b32 v{vH+4*i+1}, s{sTAG}, v{vH+4*i+1}")
            A(f"v_xor_b32 v{vH+4*i+3}, s{sTAG}, v{vH+4*i+3}")
            A(f"v_or3_b32 v{vH+28}, v{vH+28}, v{vH+4*i+1}, v{vH+4*i+3}")
        A(f"v_cmp_ne_u32 vcc, 0, v{vH+28}")
        A("s_nop 1")
        A("s_cbranch_vccnz L_gr")
        for i in range(7):
            A(f"v_mov_b32 v{vH+4*i+1}, v{vH+4*i+2}")
            A(f"ds_write_b64 v{vC+2}, v[{vH+4*i}:{vH+4*i+1}] offset:{HB + 128*i}")
        A(f"v_lshrrev_b32 v{vC+4}, 2, v2")
        A(f"v_lshl_add_u32 v{vC+4}, v3, 3, v{vC+4}")
        A(f"v_lshlrev_b32 v{vTR}, 7, v{vC+4}")
        A(f"v_lshl_add_u32 v{vTR}, v{vC+3}, 3, v{vTR}")
        A(f"v_add_u32 v{vTR}, {WT}, v{vTR}")
        A(f"v_mul_u32_u24 v{vAO}, 896, v{vC+3}")
        A(f"v_lshl_add_u32 v{vAO}, v3, 4, v{vAO}")
        A(f"v_add_u32 v{vAO}, s{sT2}, v{vAO}")
        A("s_waitcnt lgkmcnt(0)")
        vB4, vD4 = 36, 52
        for i in range(16):
            A(f"v_mov_b32 v{vD4+i}, 0")
        A(f"s_mov_b32 s{sCNT}, s{sN}")
        A.label("L_f2_mm")
        A(f"ds_read_b128 v[{vFA}:{vFA+3}], v{vAO} offset:{HB}")
        for cb in range(4):
            A(f"ds_read_b64_tr_b16 v[{vB4+4*cb}:{vB4+4*cb+1}], v{vTR} offset:{32*cb}")
            A(f"ds_read_b64_tr_b16 v[{vB4+4*cb+2}:{vB4+4*cb+3}], v{vTR} offset:{32*cb+512}")
        A(f"v_add_u32 v{vAO}, 64, v{vAO}")
        A(f"v_add_u32 v{vTR}, 4096, v{vTR}")
        A("s_waitcnt lgkmcnt(0)")
        for cb in range(4):
            d = vD4 + 4 * cb
            A(f"v_mfma_f32_16x16x32_bf16 v[{d}:{d+3}], v[{vFA}:{vFA+3}], v[{vB4+4*cb}:{vB4+4*cb+3}], v[{d}:{d+3}]")
        A(f"s_sub_u32 s{sCNT}, s{sCNT}, 1")
        A(f"s_cmp_lg_u32 s{sCNT}, 0")
        A("s_cbranch_scc1 L_f2_mm")
        A("s_nop 7")
        for i in range(1, 4):
            A(f"v_cmp_eq_u32 vcc, {i}, v3")
            A("s_nop 1")
            for cb in range(4):
                A(f"v_cndmask_b32 v{vD4+4*cb}, v{vD4+4*cb}, v{vD4+4*cb+i}, vcc")
        for cb in range(4):
            A(f"v_mov_b32 v{vD4+4*cb+1}, s{sTAG}")
        A(f"v_lshlrev_b32 v{vC}, 3, v1")
        A(f"s_and_b32 s{sT0}, s{sC}, 0xfc")
        A(f"s_lshl_b32 s{sT0}, s{sT0}, 2")
        A(f"s_add_u32 s{sT0}, s{sT0}, s{sKQ}")
        A(f"s_lshl_b32 s{sT0}, s{sT0}, 9")
        A(f"s_add_u32 s{sT0}, s{sT0}, {WS_FQ}")
        for cb in range(4):
            A(f"buffer_store_dwordx2 v[{vD4+4*cb}:{vD4+4*cb+1}], v{vC}, s[{WSS}:{WSS+3}], s{sT0} offen sc1")
            A(f"s_add_u32 s{sT0}, s{sT0}, 2048")
        A(f"s_lshl_b32 s{sT0}, s{sC}, 11")
        A(f"s_add_u32 s{sT0}, s{sT0}, {WS_FQ}")
        A("s_waitcnt vmcnt(0)")
        A("s_branch L_p")
        A.label("L_pr")
        A(f"s_sleep {gsleep // 2}")
        A.label("L_p")
        for i in range(4):
            A(f"buffer_load_dwordx2 v[{vH+2*i}:{vH+2*i+1}], v{vC}, s[{WSS}:{WSS+3}], s{sT0} offen offset:{512*i} sc1")
        A("s_waitcnt vmcnt(0)")
        for i in range(4):
            A(f"v_xor_b32 v{vH+2*i+1}, s{sTAG}, v{vH+2*i+1}")
        A(f"v_or3_b32 v{vH+1}, v{vH+1}, v{vH+3}, v{vH+5}")
        A(f"v_or_b32 v{vH+1}, v{vH+1}, v{vH+7}")
        A(f"v_cmp_ne_u32 vcc, 0, v{vH+1}")
        A("s_nop 1")
        A("s_cbranch_vccnz L_pr")
        A(f"s_cmp_lg_u32 s{sROLE}, 128")
        A("s_cbranch_scc1 L_noep")
        A(f"v_mov_b32 v{vC+2}, {WS_EP:#x}")
        A(f"v_mov_b32 v{vC+3}, s{sTAG}")
        A("s_mov_b64 exec, 1")
        A(f"buffer_store_dword v{vC+3}, v{vC+2}, s[{WSS}:{WSS+3}], 0 offen sc1")
        A("s_mov_b64 exec, -1")
        A.label("L_noep")
        A(f"v_add_f32 v20, v{vH}, v{vH+2}")
        A(f"v_add_f32 v21, v{vH+4}, v{vH+6}")
        A("v_add_f32 v20, v20, v21")
        round_bf16([20])
        A(f"s_mov_b32 s{sT1}, {f2u(-L2E):#x}")
        A(f"v_mul_f32 v21, s{sT1}, v20")
        A("v_exp_f32 v21, v21")
        A("s_nop 0")
        A("v_add_f32 v21, 1.0, v21")
        A("v_rcp_f32 v21, v21")
        A("s_nop 0")
        A("v_mul_f32 v21, v21, v20")
        round_bf16([21])
        A(f"ds_write_b32 v{vO1}, v21 offset:{GB}")
        A("s_waitcnt lgkmcnt(0)")
    A.label("L_idle")
    vML = 20
    vE = 28
    vAd = 30
    vZ = 31
    vSO = 32
    vOUT = 33
    vOA = 36
    vTA = 52
    A(f"v_and_b32 v{vAd}, 3, v1")
    A(f"v_lshlrev_b32 v{vAd}, 8, v{vAd}")
    A(f"v_lshl_add_u32 v{vAd}, v3, 4, v{vAd}")
    A(f"v_mov_b32 v{vZ}, 0")
    A(f"s_lshl_b32 s{sT0}, s{sB}, 5")
    A(f"s_add_u32 s{sT0}, s{sT0}, s{sH}")
    A(f"s_lshl_b32 s{sT0}, s{sT0}, 1")
    A(f"s_add_u32 s{sT0}, s{sT0}, s{sSPLIT}")
    A(f"s_lshl_b32 s{sT0}, s{sT0}, 6")
    A(f"s_mul_i32 s{sT1}, s{sA}, {10*16384}")
    A(f"s_add_u32 s{sT0}, s{sT0}, s{sT1}")
    A(f"v_lshlrev_b32 v{vSO}, 14, v3")
    A(f"v_lshl_add_u32 v{vSO}, v2, 2, v{vSO}")
    A(f"v_add_u32 v{vSO}, s{sT0}, v{vSO}")
    A(f"s_mov_b32 s{sCNT}, {4*16384}")
    vSO2 = 92
    sGM = F0S
    A(f"v_add_u32 v{vSO2}, {8*16384}, v{vSO}")
    A("v_mov_b32 v93, 0x7ffffff0")
    A("v_cmp_gt_u32 vcc, 32, v1")
    A(f"s_mov_b32 s{sGM}, 0xffff0000")
    A(f"s_mov_b32 s{sGM+1}, 0")
    A(f"v_cndmask_b32 v{vSO2}, v93, v{vSO2}, vcc")
    A("v_cmp_eq_u32 vcc, 192, v0")
    A(f"s_mov_b32 s{sGM+2}, 0")
    A(f"s_mov_b32 s{sGM+3}, 0xffff")
    A(f"v_cndmask_b32 v{vO3}, v93, v{vO3}, vcc")
    A(f"s_mov_b32 s{sGM+4}, 0")
    A(f"s_mov_b32 s{sGM+5}, 0xffff0000")
    A(f"s_sub_u32 s{sT3}, s{sROLE}, 128")
    A(f"s_lshl_b32 s{sT0}, s{sT3}, 2")
    A(f"s_add_u32 s{sT0}, s{sT0}, s{sA}")
    A(f"s_lshl_b32 s{sT0}, s{sT0}, 12")
    A(f"v_lshlrev_b32 v14, 4, v1")
    A(f"s_lshl_b32 s{sT1}, s{sA}, 12")
    A(f"s_add_u32 s{sT1}, s{sT1}, {WS_ML}")
    A(f"v_lshrrev_b32 v15, 3, v1")
    A(f"v_lshlrev_b32 v15, 7, v15")
    A("v_and_b32 v16, 3, v1")
    A("v_lshlrev_b32 v16, 2, v16")
    A("v_and_b32 v17, 1, v3")
    A("v_lshl_add_u32 v16, v17, 1, v16")
    A("v_lshrrev_b32 v17, 1, v3")
    A("v_add_u32 v16, v16, v17")
    A(f"s_mul_i32 s{sT2}, s{sA}, 1280")
    A(f"s_lshl_b32 s{sOFF}, s{sT3}, 5")
    A(f"s_add_u32 s{sT2}, s{sT2}, s{sOFF}")
    A(f"v_lshl_add_u32 v17, v16, 1, s{sT2}")
    A(f"s_lshl_b32 s{sOFF}, s{sA}, 6")
    A(f"v_lshl_add_u32 v19, v16, 2, s{sOFF}")
    srd(OUTS, pOUT, None, 5120)
    A(f"s_cmp_ge_u32 s{sT3}, 40")
    A("s_cbranch_scc1 L_nopre")
    A(f"buffer_load_ushort v18, v17, s[{XS}:{XS+3}], 0 offen")
    if touchout:
        A(f"buffer_load_ushort v94, v17, s[{OUTS}:{OUTS+3}], 0 offen")
    A.label("L_nopre")
    A("s_waitcnt vmcnt(0)")
    stamp(3)
    A("s_barrier")
    stamp(4)
    if stamps: A("s_waitcnt lgkmcnt(0)")
    for ks in range(4):
        A(f"ds_read_b128 v[{vOA+4*ks}:{vOA+4*ks+3}], v{vAd} offset:{OP + 64*ks}")
    for w in range(0, NS, 2):
        A(f"ds_read_b128 v[{vML+2*w}:{vML+2*w+3}], v{vZ} offset:{ML + 8*w}")
    queue = []
    slot = [0]
    def emit(x):
        A(x); slot[0] += 1
    def drain(budget):
        while queue and budget > 0 and queue[0][0] <= slot[0]:
            _, x, wgt = queue.pop(0)
            emit(x); budget -= wgt
    def push(xs, earliest=0, wgt=1):
        for x in xs: queue.append((earliest, x, wgt))
    push(["s_waitcnt lgkmcnt(0)"], wgt=0)
    push([f"v_max3_f32 v{vE}, v{vML}, v{vML+2}, v{vML+4}", f"v_max_f32 v{vE}, v{vE}, v{vML+6}"])
    push([f"v_sub_f32 v{vML+2*w}, v{vML+2*w}, v{vE}" for w in range(4)])
    push([f"v_mul_f32 v{vML+2*w}, s{sL2E}, v{vML+2*w}" for w in range(4)])
    push([f"v_exp_f32 v{vML+2*w}, v{vML+2*w}" for w in range(4)], wgt=2)
    push([f"v_min_u32 v{vE}, -2, v{vE}", f"v_mul_f32 v{vE+1}, v{vML}, v{vML+1}"])
    push([f"v_fmac_f32 v{vE+1}, v{vML+2*w}, v{vML+2*w+1}" for w in range(1, 4)])
    push([f"v_min_u32 v{vE+1}, -2, v{vE+1}",
          f"buffer_store_dwordx2 v[{vE}:{vE+1}], v{vO3}, s[{WSS}:{WSS+3}], 0 offen sc1"])
    def comb(cb):
        q, g = divmod(cb, 4)
        d = vTA + 4 * cb
        tgt = vOUT + q if g == 0 else d
        r = [f"v_mul_f32 v{tgt}, v{d}, v{vML}"] + [f"v_fmac_f32 v{tgt}, v{d+w}, v{vML+2*w}" for w in range(1, 4)]
        if g:
            r.append(f"v_cndmask_b32 v{vOUT+q}, v{vOUT+q}, v{d}, s[{sGM+2*(g-1)}:{sGM+2*(g-1)+1}]")
        if g == 3 or cb == 9:
            so = ("0", f"s{sCNT}", "0")[q]
            vo = vSO if q < 2 else vSO2
            r += [f"v_min_u32 v{vOUT+q}, -2, v{vOUT+q}",
                  f"buffer_store_dword v{vOUT+q}, v{vo}, s[{WSS}:{WSS+3}], {so} offen sc1" if not nopub else "s_nop 0"]
        return r
    for cb in range(10):
        for ks in range(4):
            if cb == 0:
                emit(f"s_waitcnt lgkmcnt({5 - ks})")
            r = vW + 4 * (cb * 4 + ks)
            d = vTA + 4 * cb
            c = "0" if ks == 0 else f"v[{d}:{d+3}]"
            emit(f"v_mfma_f32_16x16x32_bf16 v[{d}:{d+3}], v[{vOA+4*ks}:{vOA+4*ks+3}], v[{r}:{r+3}], {c}")
            if ks == 3:
                push(comb(cb), earliest=slot[0] + 8)
            if cb > 0 or ks == 3:
                drain(2)
    while queue:
        gap = queue[0][0] - slot[0]
        if gap > 0:
            A(f"s_nop {gap - 1}"); slot[0] += gap
        drain(100)
    stamp(6)
    A(f"s_cmp_ge_u32 s{sT3}, 40")
    A("s_cbranch_scc1 L_fin")
    if nofinal:
        A("s_branch L_fin")
    A(f"ds_read_b32 v19, v19 offset:{GB}")
    vT, vMLp = 96, 112
    if poll2:
        def tload():
            for n in range(4):
                A(f"buffer_load_dwordx4 v[{vT+4*n}:{vT+4*n+3}], v14, s[{WSS}:{WSS+3}], s{sT0} offen offset:{1024*n} sc1")
        def anymark(v):
            A(f"v_max3_u32 v20, v{v}, v{v+1}, v{v+2}")
            A(f"v_max3_u32 v21, v{v+3}, v{v+4}, v{v+5}")
            for i in range(6, 14, 4):
                A(f"v_max3_u32 v20, v20, v{v+i}, v{v+i+1}")
                A(f"v_max3_u32 v21, v21, v{v+i+2}, v{v+i+3}")
            A(f"v_max3_u32 v20, v20, v{v+14}, v{v+15}")
            A("v_max_u32 v20, v20, v21")
            A("v_cmp_eq_u32 vcc, -1, v20")
        A.label("L_poll")
        for n in range(4):
            A(f"buffer_load_dwordx4 v[{vMLp+4*n}:{vMLp+4*n+3}], v15, s[{WSS}:{WSS+3}], s{sT1} offen offset:{1024*n} sc1")
        A("s_waitcnt vmcnt(0)")
        anymark(vMLp)
        A("s_nop 1")
        A("s_cbranch_vccnz L_poll")
        tload()
        A("v_bfe_u32 v20, v1, 2, 1")
        A("v_cmp_eq_u32 vcc, 1, v20")
        for n in range(4):
            m0, l0, m1, l1 = [vMLp + 4 * n + i for i in range(4)]
            A(f"v_max_f32 v21, v{m0}, v{m1}")
            A(f"v_sub_f32 v{m0}, v{m0}, v21")
            A(f"v_sub_f32 v{m1}, v{m1}, v21")
            A(f"v_mul_f32 v{m0}, s{sL2E}, v{m0}")
            A(f"v_mul_f32 v{m1}, s{sL2E}, v{m1}")
            A(f"v_exp_f32 v{m0}, v{m0}")
            A(f"v_exp_f32 v{m1}, v{m1}")
        A("s_nop 0")
        for n in range(4):
            m0, l0, m1, l1 = [vMLp + 4 * n + i for i in range(4)]
            A(f"v_mul_f32 v{l0}, v{l0}, v{m0}")
            A(f"v_fmac_f32 v{l0}, v{l1}, v{m1}")
            A(f"v_rcp_f32 v{l0}, v{l0}")
            A(f"v_cndmask_b32 v{m0}, v{m0}, v{m1}, vcc")
        A("s_nop 0")
        for n in range(4):
            m0, l0, m1, l1 = [vMLp + 4 * n + i for i in range(4)]
            A(f"v_mul_f32 v{m0}, v{m0}, v{l0}")
        A("s_branch L_pt1")
        A.label("L_pt")
        tload()
        A.label("L_pt1")
        A("s_waitcnt vmcnt(0)")
        anymark(vT)
    else:
        if psleep:
            A("s_branch L_poll1")
        A.label("L_poll")
        if psleep:
            A(f"s_sleep {psleep}")
            A.label("L_poll1")
        for n in range(4):
            A(f"buffer_load_dwordx4 v[{vT+4*n}:{vT+4*n+3}], v14, s[{WSS}:{WSS+3}], s{sT0} offen offset:{1024*n} sc1")
        for n in range(4):
            A(f"buffer_load_dwordx4 v[{vMLp+4*n}:{vMLp+4*n+3}], v15, s[{WSS}:{WSS+3}], s{sT1} offen offset:{1024*n} sc1")
        A("s_waitcnt vmcnt(0)")
        A(f"v_max3_u32 v20, v{vT}, v{vT+1}, v{vT+2}")
        A(f"v_max3_u32 v21, v{vT+3}, v{vT+4}, v{vT+5}")
        for i in range(6, 30, 4):
            A(f"v_max3_u32 v20, v20, v{vT+i}, v{vT+i+1}")
            A(f"v_max3_u32 v21, v21, v{vT+i+2}, v{vT+i+3}")
        A(f"v_max3_u32 v20, v20, v{vT+30}, v{vT+31}")
        A("v_max_u32 v20, v20, v21")
        A("v_cmp_eq_u32 vcc, -1, v20")
        A("s_nop 1")
        A("s_cbranch_vccnz L_poll")
        stamp(5)
        A("v_bfe_u32 v20, v1, 2, 1")
        A("v_cmp_eq_u32 vcc, 1, v20")
        for n in range(4):
            m0, l0, m1, l1 = [vMLp + 4 * n + i for i in range(4)]
            A(f"v_max_f32 v21, v{m0}, v{m1}")
            A(f"v_sub_f32 v{m0}, v{m0}, v21")
            A(f"v_sub_f32 v{m1}, v{m1}, v21")
            A(f"v_mul_f32 v{m0}, s{sL2E}, v{m0}")
            A(f"v_mul_f32 v{m1}, s{sL2E}, v{m1}")
            A(f"v_exp_f32 v{m0}, v{m0}")
            A(f"v_exp_f32 v{m1}, v{m1}")
        A("s_nop 0")
        for n in range(4):
            m0, l0, m1, l1 = [vMLp + 4 * n + i for i in range(4)]
            A(f"v_mul_f32 v{l0}, v{l0}, v{m0}")
            A(f"v_fmac_f32 v{l0}, v{l1}, v{m1}")
            A(f"v_rcp_f32 v{l0}, v{l0}")
            A(f"v_cndmask_b32 v{m0}, v{m0}, v{m1}, vcc")
        A("s_nop 0")
        for n in range(4):
            m0, l0, m1, l1 = [vMLp + 4 * n + i for i in range(4)]
            A(f"v_mul_f32 v{m0}, v{m0}, v{l0}")
    for n in range(4):
        for i in range(4):
            if n == 0:
                A(f"v_mul_f32 v{24+i}, v{vT+i}, v{vMLp}")
            else:
                A(f"v_fmac_f32 v{24+i}, v{vT+4*n+i}, v{vMLp+4*n}")
    if poll2:
        A("s_cbranch_vccnz L_pt")
        stamp(5)
        A("s_nop 0")
    else:
        A("s_nop 1")
    A("v_permlane32_swap_b32 v24, v25")
    A("v_permlane32_swap_b32 v26, v27")
    A("v_add_f32 v24, v24, v25")
    A("v_add_f32 v26, v26, v27")
    A("s_nop 1")
    A("v_permlane16_swap_b32 v24, v26")
    A("v_add_f32 v24, v24, v26")
    A("s_nop 1")
    A("v_add_f32_dpp v24, v24, v24 row_ror:4 row_mask:0xf bank_mask:0xf")
    A("s_nop 1")
    A("v_add_f32_dpp v24, v24, v24 row_ror:8 row_mask:0xf bank_mask:0xf")
    A("s_waitcnt lgkmcnt(0)")
    round_bf16([24])
    A("v_mul_f32 v24, v24, v19")
    round_bf16([24])
    A("v_lshlrev_b32 v18, 16, v18")
    A("v_add_f32 v24, v24, v18")
    A("v_cvt_pk_bf16_f32 v24, v24, v24")
    A("s_mov_b32 exec_lo, 0x000f000f")
    A("s_mov_b32 exec_hi, 0x000f000f")
    A(f"buffer_store_short v24, v17, s[{OUTS}:{OUTS+3}], 0 offen")
    A("s_mov_b64 exec, -1")
    A.label("L_fin")
    if stamps:
        A("s_waitcnt vmcnt(0)")
        stamp(7)
        A(f"s_cmp_lg_u32 s{sA}, 0")
        A("s_cbranch_scc1 L_end")
        A("s_waitcnt lgkmcnt(0)")
        for i in range(NSTAMP):
            A(f"v_mov_b32 v{20+i}, s{sST+2*i}")
        if dbgst:
            A("s_cmp_eq_u32 s2, 0")
            A("s_cbranch_scc1 L_dbgw")
            A("s_cmp_lg_u32 s2, 255")
            A("s_cbranch_scc1 L_end")
            A.label("L_dbgw")
            for i in range(1, NSTAMP):
                A(f"v_sub_u32 v{20+i}, v{20+i}, v20")
            A("s_and_b32 s61, s2, 32")
            A("v_mov_b32 v30, s61")
            A("s_mov_b64 exec, 1")
            A(f"global_store_dwordx4 v30, v[20:23], s[{pDBG}:{pDBG+1}]")
            A(f"global_store_dwordx4 v30, v[24:27], s[{pDBG}:{pDBG+1}] offset:16")
            A("s_endpgm")
        A(f"s_getreg_b32 s{sT1}, hwreg(HW_REG_XCC_ID)")
        A(f"s_getreg_b32 s{sT2}, hwreg(HW_REG_HW_ID)")
        A(f"s_lshl_b32 s{sT0}, s2, 3")
        A(f"s_add_u32 s{sT0}, s{sT0}, {WS_STAMP + 0x10000}")
        A(f"v_mov_b32 v30, s{sT0}")
        A(f"v_mov_b32 v28, s{sT1}")
        A(f"v_mov_b32 v29, s{sT2}")
        A("s_mov_b64 exec, 1")
        A(f"global_store_dwordx2 v30, v[28:29], s[{pWS}:{pWS+1}]")
        A("s_mov_b64 exec, -1")
        A(f"s_lshl_b32 s{sT0}, s2, 5")
        A(f"s_add_u32 s{sT0}, s{sT0}, {WS_STAMP}")
        A(f"v_mov_b32 v30, s{sT0}")
        A("s_mov_b64 exec, 1")
        A(f"global_store_dwordx4 v30, v[20:23], s[{pWS}:{pWS+1}]")
        A(f"global_store_dwordx4 v30, v[24:27], s[{pWS}:{pWS+1}] offset:16")
    A.label("L_end")
    A("s_endpgm")
    out += A.text()
    nv = max(RING + 16 * (R + E) + (1 if tl else 0), vW + 4 * NL, 128)
    assert nv <= 256
    out += f"""
.section .rodata,"a"
.p2align 6
.amdhsa_kernel {NAME}
  .amdhsa_next_free_vgpr {nv}
  .amdhsa_next_free_sgpr 96
  .amdhsa_accum_offset {(nv + 3) // 4 * 4}
  .amdhsa_group_segment_fixed_size 0
  .amdhsa_kernarg_size 96
  .amdhsa_user_sgpr_count 2
  .amdhsa_user_sgpr_kernarg_segment_ptr 1
  .amdhsa_system_sgpr_workgroup_id_x 1
  .amdhsa_float_denorm_mode_32 3
.end_amdhsa_kernel
"""
    return out

if __name__ == "__main__":
    kw = eval("dict(" + (sys.argv[1] if len(sys.argv) > 1 else "") + ")")
    sys.stdout.write(gen(**kw))
```

```python
import sys, struct

NAME = "recurrent_scan__mha_block_cached__geglu_ffn__decode_kernel"

def f2u(x):
    return struct.unpack("<I", struct.pack("<f", x))[0]

HEADER = """; Kernarg layout for this problem (96 bytes, ptrs only, base s[0:1]):
;
"""

class Gen:
    def __init__(self):
        self.o = []
    def __call__(self, s):
        self.o.append("    " + s)
    def label(self, s):
        self.o.append(s + ":")
    def c(self, s):
        self.o.append("    ; " + s)
    def text(self):
        return "\n".join(self.o) + "\n"


def gen(dbgst=0, tl=0, NS=4, DEPTH=4, kvflags="nt", wqflags="nt", woflags="nt", ffnflags="nt", auxprio=1, stamps=0,
        wqwin=40, wowin=40, f1win=20, f2win=16, shift=0, gsleep=127,
        nowo=0, noffn=0, nowq=0, noaux=0, nosig=0, nofinal=0, bar0=0, badloc=0, cap=0, ffnfirst=0, fine=0, pcap=0, nowqn=0, endn=0, tlbpf=0, tlbflags="nt", evenc=0, hmap=0, rotq=0, pre0=0, bar0at=40, nofp=0, nogather=0, predelay=0, noflagpoll=0, nofpf=None, noclear=0, noclrf=None, boost=0, bcap=1, st4x=0, touchout=1, pb=None, pball=0, who="odd", capv=None, R=4, nowoh=0, nowolin=0, wpf=0, pfflags="", stag=None, lnfirst=0, nowqd=0, psleep=0, nopub=0, E=0, ctl=None, modes=((5,5),(6,5),(7,6),(8,8)), thr=(4, 11, 14), npeer=16, ctltest=0, csleep=2, cloc=1, cst="", cld="sc1", xg=0, ffn1=0, poll2=0, kctl=1, sthr=(4, 16), kthr=(0, 40, 40), emodes=((9, 9), (16, 16)), fast1=1):
    A = Gen()
    modes = tuple(modes) + tuple(emodes)
    NA = 4
    NW = NS + NA
    XND = 0
    XNB = XND + 10240
    QP = XNB + 5120
    QB = QP + NA * 512
    OP = QB + NS * 256
    ML = OP + NS * 256
    FLG = ML + 64
    PM = FLG + 16
    GB = PM + 16
    HB = GB + 256
    SC = HB + 3584
    TP = SC + NS * 2304
    WT = TP + NA * 10240
    LDS = WT + 448 * 128
    assert WT % 16 == 0 and HB % 16 == 0 and TP % 16 == 0
    WS_T = 0
    WS_ML = 0xA0000
    WS_H = 0xA4000
    WS_EP = 0xAC000
    WS_HL = 0xB0000
    WS_FQ = 0xB8000
    WS_CP = 0xD0000
    WS_SIZE = WS_CP + 64 * 4096
    WS_STAMP = 0x200000
    L2E = 1.4426950408889634
    SCALE = 128 ** -0.5

    sWAVE, sX8, sSLOT, sSPLIT, sB, sH = 3, 4, 5, 6, 7, 60
    KS, VS = 8, 12
    WQS, WOS = 8, 12
    WSS = 16
    XS = 20
    F0S, F1S = 24, 28
    OUTS = 32
    P = 36
    pX, pK, pV, pWQ, pWO, pBX, pWG, pWU, pWD, pOUT, pDBG, pWS = [P + 2 * i for i in range(12)]
    sT0, sT1, sT2, sT3 = 61, 62, 63, 64
    sOFF, sCNT, sM, sL2E, sSC, sA, sHS = 65, 66, 67, 68, 69, 70, 71
    sEX = 72
    sTAG, sROLE = 74, 75
    sST = 76
    sNU = 95
    NSTAMP = 8
    def stamp(i):
        if stamps:
            A(f"s_memrealtime s[{sST+2*i}:{sST+2*i+1}]")

    def srd(dst, ptr, add_lo, nrec):
        if add_lo is None:
            A(f"s_mov_b32 s{dst}, s{ptr}")
            A(f"s_mov_b32 s{dst+1}, s{ptr+1}")
        else:
            A(f"s_add_u32 s{dst}, s{ptr}, {add_lo}")
            A(f"s_addc_u32 s{dst+1}, s{ptr+1}, 0")
        A(f"s_mov_b32 s{dst+2}, {nrec}")
        A(f"s_mov_b32 s{dst+3}, 0x20000")

    out = HEADER
    out += f"; @launch grid=(256,1,1) block=({NW*64},1,1) lds={LDS}\n"
    out += '.amdgcn_target "amdgcn-amd-amdhsa--gfx950"\n.text\n'
    out += f".globl {NAME}\n.p2align 8\n.type {NAME},@function\n{NAME}:\n"

    A("s_cmp_ge_u32 s2, 256")
    A("s_cbranch_scc1 L_end")
    stamp(0)
    A(f"s_load_dwordx16 s[{P}:{P+15}], s[0:1], 0")
    A(f"s_load_dwordx8 s[{P+16}:{P+23}], s[0:1], 64")
    A("v_lshrrev_b32 v4, 6, v0")
    A("v_and_b32 v1, 63, v0")
    A(f"v_readfirstlane_b32 s{sWAVE}, v4")
    A("v_and_b32 v2, 15, v1")
    A("v_lshrrev_b32 v3, 4, v1")
    if badloc:
        A(f"s_lshr_b32 s{sX8}, s2, 5")
        A(f"s_and_b32 s{sSLOT}, s2, 31")
    else:
        A(f"s_and_b32 s{sX8}, s2, 7")
        A(f"s_lshr_b32 s{sSLOT}, s2, 3")
    A(f"s_and_b32 s{sSPLIT}, s{sSLOT}, 1")
    A(f"s_lshr_b32 s{sB}, s{sSLOT}, 1")
    A(f"s_and_b32 s{sB}, s{sB}, 3")
    if hmap == "plan2":
        A(f"s_lshr_b32 s{sH}, s{sSLOT}, 3")
        A(f"s_lshl_b32 s{sT0}, s{sX8}, 2")
        A(f"s_add_u32 s{sH}, s{sH}, s{sT0}")
    else:
        A(f"s_lshr_b32 s{sH}, s{sSLOT}, 3")
        A(f"s_mul_i32 s{sT0}, s{sH}, {hmap}")
        A(f"s_add_u32 s{sT0}, s{sT0}, s{sX8}")
        A(f"s_and_b32 s{sT0}, s{sT0}, 7")
        A(f"s_lshl_b32 s{sH}, s{sH}, 3")
        A(f"s_add_u32 s{sH}, s{sH}, s{sT0}")
    A(f"s_mov_b32 s{sL2E}, {f2u(L2E):#x}")
    A(f"s_mov_b32 s{sSC}, {f2u(SCALE):#x}")
    MK = 4
    A("v_and_b32 v8, 1, v2")
    A("v_lshlrev_b32 v8, 4, v8")
    A("v_mov_b32 v9, 0xffff")
    A("v_lshlrev_b32 v8, v8, v9")
    A("v_lshrrev_b32 v9, 1, v2")
    A(f"s_lshr_b32 s{sT0}, 0x15, s{sX8}")
    A(f"s_and_b32 s{sT0}, s{sT0}, 1")
    A(f"s_lshl_b32 s{sT0}, s{sT0}, 2")
    A(f"s_add_u32 s{sNU}, s{sT0}, 12")
    A(f"s_cmp_lt_u32 s{sWAVE}, {NA}")
    A("s_cbranch_scc1 L_aux")

    vOA_, vOB_ = 18, 19
    vM, vL, vNM, vSA, vTM = 10, 11, 12, 13, 17
    vT0, vT1 = 14, 15
    vVA = 16
    vACC = 20
    vS = 24
    vP = 28
    vQ = 32
    vS2 = 40
    vA = 48
    RING = 64
    sN, sOFF0 = sHS, sA
    def reg(slot, i): return RING + slot * 16 + i * 4
    A.c("---- streaming wave ----")
    A(f"s_sub_u32 s{sWAVE}, s{sWAVE}, {NA}")
    A(f"v_lshlrev_b32 v{vOA_}, 8, v9")
    A(f"v_and_b32 v{vOB_}, 1, v2")
    A(f"v_lshl_add_u32 v{vOA_}, v{vOB_}, 6, v{vOA_}")
    A(f"v_lshl_add_u32 v{vOA_}, v3, 4, v{vOA_}")
    A(f"v_add_u32 v{vOB_}, 128, v{vOA_}")
    RB = 2 << 20
    STEP = NS * 4096
    A(f"s_lshr_b32 s{sT2}, s{sSLOT}, 1")
    A(f"s_cmp_lt_u32 s{sT2}, s{sNU}")
    A(f"s_cselect_b32 s{sT1}, {shift}, 0")
    A(f"s_add_u32 s{sT1}, s{sT1}, 256")
    A(f"s_sub_u32 s{sT2}, 512, s{sT1}")
    A(f"s_cmp_eq_u32 s{sSPLIT}, 0")
    A(f"s_cselect_b32 s{sCNT}, s{sT1}, s{sT2}")
    A(f"s_cselect_b32 s{sOFF}, 0, s{sT1}")
    A(f"s_add_u32 s{sOFF}, s{sOFF}, s{sWAVE}")
    A(f"s_lshl_b32 s{sOFF}, s{sOFF}, 12")
    A(f"s_mov_b32 s{sOFF0}, s{sOFF}")
    A(f"s_sub_u32 s{sCNT}, s{sCNT}, s{sWAVE}")
    A(f"s_add_u32 s{sCNT}, s{sCNT}, {NS-1}")
    A(f"s_lshr_b32 s{sCNT}, s{sCNT}, {NS.bit_length()-1}")
    A(f"s_mov_b32 s{sN}, s{sCNT}")
    A(f"s_lshl_b32 s{sT0}, s{sB}, 5")
    A(f"s_add_u32 s{sT0}, s{sT0}, s{sH}")
    A(f"s_lshl_b32 s{sT0}, s{sT0}, 21")
    A("s_waitcnt lgkmcnt(0)")
    srd(KS, pK, f"s{sT0}", RB)
    A(f"s_add_u32 s{VS}, s{pV}, s{sT0}")
    A(f"s_addc_u32 s{VS+1}, s{pV+1}, 0")
    def issue(slot, w=None):
        for i in range(4):
            r = reg(slot, i)
            if w is not None: A(f"s_waitcnt vmcnt({w - 1})")
            A(f"buffer_load_dwordx4 v[{r}:{r+3}], v{(vOA_, vOB_)[i & 1]}, s[{KS}:{KS+3}], s{sOFF} offen offset:{2048*(i >> 1)} {kvflags}")
        A(f"s_add_u32 s{sOFF}, s{sOFF}, {STEP}")
    def window(slot):
        return cap if (slot & 1) == 0 or not capv else capv
    def weight_prefetch():
        PS = F0S
        vPF, vD = 20, 24
        A(f"s_add_u32 s{sT0}, s{sX8}, 1")
        A(f"s_lshr_b32 s{sT0}, s{sT0}, 1")
        A(f"s_min_u32 s{sT0}, s{sT0}, 3")
        A(f"s_cmp_eq_u32 s{sWAVE}, 0")
        A("s_cbranch_scc1 L_pf_wo")
        A(f"s_cmp_eq_u32 s{sWAVE}, 3")
        A("s_cbranch_scc1 L_pf_wd")
        A(f"s_cmp_eq_u32 s{sWAVE}, 1")
        A(f"s_cselect_b32 s{PS}, s{pWG}, s{pWU}")
        A(f"s_cselect_b32 s{PS+1}, s{pWG+1}, s{pWU+1}")
        A(f"s_mov_b32 s{PS+2}, {640*3456}")
        A(f"s_mov_b32 s{PS+3}, 0x20000")
        A(f"s_mul_i32 s{sT1}, s{sX8}, {12*32}")
        A(f"s_lshl_b32 s{sT2}, s{sT0}, 7")
        A(f"s_add_u32 s{sT1}, s{sT1}, s{sT2}")
        A(f"s_mul_i32 s{sT2}, s{sSLOT}, {20*3456}")
        A(f"s_add_u32 s{sT1}, s{sT1}, s{sT2}")
        A(f"v_lshrrev_b32 v{vPF}, 3, v1")
        A(f"v_mul_u32_u24 v{vPF}, 3456, v{vPF}")
        A(f"v_and_b32 v{vPF+1}, 7, v1")
        A(f"v_lshl_add_u32 v{vPF}, v{vPF+1}, 6, v{vPF}")
        A(f"s_lshr_b32 s{sT2}, s{sNU}, 1")
        A(f"v_cmp_gt_u32 vcc, s{sT2}, v{vPF+1}")
        A(f"v_mov_b32 v{vPF+2}, 0x7ffffff0")
        A("s_nop 0")
        A(f"v_cndmask_b32 v{vPF}, v{vPF+2}, v{vPF}, vcc")
        A(f"v_cmp_gt_u32 vcc, 32, v1")
        A(f"buffer_load_dword v{vD}, v{vPF}, s[{PS}:{PS+3}], s{sT1} offen {pfflags}")
        A(f"s_add_u32 s{sT1}, s{sT1}, {8*3456}")
        A(f"buffer_load_dword v{vD+1}, v{vPF}, s[{PS}:{PS+3}], s{sT1} offen {pfflags}")
        A(f"s_add_u32 s{sT1}, s{sT1}, {8*3456}")
        A(f"v_cndmask_b32 v{vPF+3}, v{vPF+2}, v{vPF}, vcc")
        A(f"buffer_load_dword v{vD+2}, v{vPF+3}, s[{PS}:{PS+3}], s{sT1} offen {pfflags}")
        A("s_branch L_pf_done")
        A.label("L_pf_wo")
        A(f"s_mul_i32 s{sT1}, s{sH}, {128*1280}")
        A(f"s_and_b32 s{sT2}, s{sSLOT}, 7")
        A(f"s_mul_i32 s{sT2}, s{sT2}, 20480")
        A(f"s_add_u32 s{sT1}, s{sT1}, s{sT2}")
        srd(PS, pWO, None, 4096 * 1280)
        A(f"v_lshlrev_b32 v{vPF}, 6, v1")
        for i in range(5):
            A(f"buffer_load_dword v{vD+i}, v{vPF}, s[{PS}:{PS+3}], s{sT1} offen {pfflags}")
            A(f"s_add_u32 s{sT1}, s{sT1}, 4096")
        A("s_branch L_pf_done")
        A.label("L_pf_wd")
        A(f"s_cmp_eq_u32 s{sNU}, 16")
        A("s_cbranch_scc1 L_pf_done")
        A(f"s_sub_u32 s{sT1}, s{sX8}, s{sT0}")
        A(f"s_lshl_b32 s{sT1}, s{sT1}, 8")
        A(f"s_mul_i32 s{sT2}, s{sSLOT}, {54*1280}")
        A(f"s_add_u32 s{sT1}, s{sT1}, s{sT2}")
        srd(PS, pWD, None, 1728 * 1280)
        A(f"v_lshrrev_b32 v{vPF}, 2, v1")
        A(f"v_mul_u32_u24 v{vPF}, 1280, v{vPF}")
        A(f"v_and_b32 v{vPF+1}, 3, v1")
        A(f"v_lshl_add_u32 v{vPF}, v{vPF+1}, 6, v{vPF}")
        A(f"v_cmp_gt_u32 vcc, 24, v1")
        A(f"v_mov_b32 v{vPF+2}, 0x7ffffff0")
        for i in range(3):
            A(f"buffer_load_dword v{vD+i}, v{vPF}, s[{PS}:{PS+3}], s{sT1} offen {pfflags}")
            A(f"s_add_u32 s{sT1}, s{sT1}, {16*1280}")
        A(f"v_cndmask_b32 v{vPF+3}, v{vPF+2}, v{vPF}, vcc")
        A(f"buffer_load_dword v{vD+3}, v{vPF+3}, s[{PS}:{PS+3}], s{sT1} offen {pfflags}")
        A.label("L_pf_done")
    if wpf == 1:
        weight_prefetch()
    for s in range(E + R):
        if stag:
            if s == 1 and wpf == 2:
                weight_prefetch()
            for grp in range(2):
                if stag[grp] == s:
                    A(f"s_cmp_lg_u32 s{sSPLIT}, {grp}")
                    A(f"s_cbranch_scc1 L_sg{grp}")
                    A("s_barrier")
                    A("s_barrier")
                    A.label(f"L_sg{grp}")
        elif pre0 == 4 * s:
            if wpf == 2:
                weight_prefetch()
            if bar0:
                A("s_barrier")
            if wpf == 3:
                weight_prefetch()
        issue(R + s if s < E else s - E, pcap if pcap else None)
    if wpf:
        A(f"s_waitcnt vmcnt({4 * (R + E) - pre0 if wpf != 1 else 4 * (R + E)})")
    for rr in range(4):
        A(f"v_cmp_eq_u32 vcc, {rr+4}, v9")
        A("s_nop 1")
        A(f"v_cndmask_b32 v{MK+rr}, 0, v8, vcc")
    A(f"v_lshlrev_b32 v{vVA}, 9, v3")
    A(f"v_lshl_add_u32 v{vVA}, v2, 4, v{vVA}")
    A(f"v_mov_b32 v{vM}, 0xff7fffff")
    A(f"v_mov_b32 v{vL}, 0")
    for i in range(4):
        A(f"v_mov_b32 v{vACC+i}, 0")
    A(f"v_lshlrev_b32 v{vT0}, 3, v1")
    A(f"s_lshl_b32 s{sT0}, s{sWAVE}, 8")
    A(f"s_add_u32 s{sT0}, s{sT0}, {QB}")
    A(f"v_lshl_add_u32 v{vT1}, v1, 2, s{sT0}")
    A(f"v_lshl_add_u32 v{vTM}, v3, 4, s{sT0}")
    A(f"v_lshrrev_b32 v{vNM}, 3, v2")
    A(f"v_lshl_add_u32 v{vTM}, v{vNM}, 6, v{vTM}")
    vEA, vEB = 8, 9
    A(f"s_lshl_b32 s{sT1}, s{sWAVE}, 8")
    A(f"s_add_u32 s{sT1}, s{sT1}, {OP - 16}")
    A(f"v_lshlrev_b32 v{vEA}, 4, v2")
    A(f"v_lshl_add_u32 v{vEA}, v3, 3, v{vEA}")
    A(f"v_add_u32 v{vEA}, s{sT1}, v{vEA}")
    A(f"s_lshl_b32 s{sT1}, s{sWAVE}, 3")
    A(f"s_add_u32 s{sT1}, s{sT1}, {ML}")
    A(f"v_mov_b32 v{vEB}, s{sT1}")
    A(f"s_mul_i32 s{sT3}, s{sWAVE}, 2304")
    A(f"s_add_u32 s{sT3}, s{sT3}, {SC}")
    A(f"v_lshl_add_u32 v{vSA}, v3, 3, s{sT3}")
    A(f"s_mov_b32 s{sEX}, 0x80008000")
    A(f"s_mov_b32 s{sEX+1}, 0x80008000")
    A("s_barrier")
    for a in range(NA):
        A(f"ds_read_b64 v[{vA+2*a}:{vA+2*a+1}], v{vT0} offset:{QP + a*512}")
    A("s_waitcnt lgkmcnt(0)")
    for a in range(1, NA):
        A(f"v_add_f32 v{vA}, v{vA}, v{vA+2*a}")
        A(f"v_add_f32 v{vA+1}, v{vA+1}, v{vA+2*a+1}")
    A(f"v_cvt_pk_bf16_f32 v{vA}, v{vA}, v{vA+1}")
    A(f"ds_write_b32 v{vT1}, v{vA}")
    A("s_waitcnt lgkmcnt(0)")
    for j in range(2):
        A(f"ds_read_b128 v[{vQ+4*j}:{vQ+4*j+3}], v{vTM} offset:{128*j}")
    A("s_waitcnt lgkmcnt(0)")
    W = 4 * (R - 1)
    vMD, vPA, vPW = (vQ, vQ + 1, vQ + 2) if not kctl else (0, 1, 2)
    if ctl and kctl:
        A(f"v_mov_b32 v{vMD}, 1")
        A(f"v_mov_b32 v{vPA}, 0")
        A(f"s_cmp_eq_u32 s{sWAVE}, 0")
        A(f"s_cselect_b32 s{sT1}, 0, 8")
        A(f"v_mov_b32 v{vPW}, s{sT1}")
    def tstamp(phase):
        if tl:
            A("s_memrealtime s[92:93]")
            A(f"s_lshr_b32 m0, s{sCNT}, 1")
            if phase == 0:
                A("s_add_u32 m0, m0, 32")
            A("s_and_b32 m0, m0, 63")
            A("s_waitcnt lgkmcnt(0)")
            A(f"v_writelane_b32 v{RING + 16*(R+E)}, s92, m0")
    def kbody(s, refill, vaddr, off, steer=False):
        for (j, d, qj) in ((0, vS2, 0), (2, vS2 + 4, 0), (1, vS2, 1), (3, vS2 + 4, 1)):
            r = reg(s, j)
            c = "0" if qj == 0 else f"v[{d}:{d+3}]"
            A(f"v_mfma_f32_16x16x32_bf16 v[{d}:{d+3}], v[{r}:{r+3}], v[{vQ+4*qj}:{vQ+4*qj+3}], {c}")
        if steer:
            for m in range(len(modes)):
                if m < len(modes) - 1:
                    A(f"s_cmp_lg_u32 s{sT2}, {m}")
                    A(f"s_cbranch_scc1 L_km{s}_{m}")
                issue(s, modes[m][s & 1])
                if m < len(modes) - 1:
                    A(f"s_branch L_kd{s}")
                    A.label(f"L_km{s}_{m}")
            A.label(f"L_kd{s}")
        elif refill:
            issue(s, window(s))
        else:
            A("s_nop 7")
        for i in range(4):
            A(f"v_add_f32_dpp v{vS+i}, v{vS2+2*i}, v{vS2+2*i+1} row_ror:8 row_mask:0xf bank_mask:0xf")
        A(f"v_cvt_pk_bf16_f32 v{vT0}, v{vS}, v{vS+1}")
        A(f"v_cvt_pk_bf16_f32 v{vT1}, v{vS+2}, v{vS+3}")
        A(f"v_max3_f32 v{vM}, v{vS}, v{vS+1}, v{vM}")
        A(f"v_lshlrev_b32 v{vP}, 16, v{vT0}")
        A(f"v_and_b32 v{vP+1}, 0xffff0000, v{vT0}")
        A(f"v_lshlrev_b32 v{vP+2}, 16, v{vT1}")
        A(f"v_and_b32 v{vP+3}, 0xffff0000, v{vT1}")
        A(f"v_max3_f32 v{vM}, v{vS+2}, v{vS+3}, v{vM}")
        for i in range(4):
            A(f"v_mul_f32 v{vP+i}, s{sSC}, v{vP+i}")
        A(f"v_cvt_pk_bf16_f32 v{vT0}, v{vP}, v{vP+1}")
        A(f"v_cvt_pk_bf16_f32 v{vT1}, v{vP+2}, v{vP+3}")
        A(f"s_mov_b64 exec, s[{sEX}:{sEX+1}]")
        A(f"ds_write_b64 v{vaddr}, v[{vT0}:{vT1}] offset:{off}")
        A("s_mov_b64 exec, -1")
    if E:
        ex = list(range(E))
        for s in range(R):
            A(f"s_waitcnt vmcnt({W})")
            kbody(s, True, vSA, 32 * (E + s))
            for _ in range((E + R - 1) // R):
                if ex:
                    e = ex.pop(0)
                    kbody(R + e, False, vSA, 32 * e)
        A(f"v_add_u32 v{vSA}, {32 * (E + R)}, v{vSA}")
        A(f"s_sub_u32 s{sCNT}, s{sCNT}, {E + R}")
    for s in range(R):
        A.label(f"L_k{s}")
        A(f"s_cmp_lg_u32 s{sCNT}, {R}")
        A(f"s_cbranch_scc1 L_kk{s}")
        A(f"s_mov_b32 s{KS}, s{VS}")
        A(f"s_mov_b32 s{KS+1}, s{VS+1}")
        A(f"s_mov_b32 s{sOFF}, s{sOFF0}")
        A(f"v_mov_b32 v{vOA_}, v{vVA}")
        A(f"v_add_u32 v{vOB_}, 256, v{vVA}")
        A.label(f"L_kk{s}")
        if ctl and kctl:
            A("s_waitcnt lgkmcnt(0)")
            A(f"v_readfirstlane_b32 s{sT2}, v{vMD}")
            A(f"s_add_u32 s{sT1}, s{sCNT}, s{sN}")
            A(f"v_mov_b32 v{vP}, s{sT1}")
            A(f"ds_read_b32 v{vMD}, v{vPA} offset:{PM + 4}")
            A(f"ds_write_b32 v{vPW}, v{vP} offset:{PM}")
        A(f"s_waitcnt vmcnt({W})")
        kbody(s, True, vSA, 0, steer=bool(ctl and kctl))
        A(f"v_add_u32 v{vSA}, 32, v{vSA}")
        tstamp(0)
        A(f"s_sub_u32 s{sCNT}, s{sCNT}, 1")
        A(f"s_cmp_eq_u32 s{sCNT}, 0")
        A(f"s_cbranch_scc1 L_t{(s + 1) % R}")
    A("s_branch L_k0")
    for s in range(R):
        A.label(f"L_t{s}")
        A(f"s_mov_b32 s{sT0}, {s}")
        if s < R - 1:
            A("s_branch L_tr")
    A.label("L_tr")
    if ctl and not kctl:
        A(f"v_mov_b32 v{vMD}, 1")
        A(f"v_mov_b32 v{vPA}, 0")
        A(f"s_cmp_eq_u32 s{sWAVE}, 0")
        A(f"s_cselect_b32 s{sT1}, 0, 8")
        A(f"v_mov_b32 v{vPW}, s{sT1}")
    A(f"v_lshl_add_u32 v{vSA}, v3, 3, s{sT3}")
    A("s_waitcnt lgkmcnt(0)")
    A(f"ds_read_b64 v[{vT0}:{vT1}], v{vSA}")
    A(f"v_max_f32_dpp v{vM}, v{vM}, v{vM} row_bcast:15 row_mask:0xa bank_mask:0xf")
    A("s_nop 1")
    A(f"v_max_f32_dpp v{vM}, v{vM}, v{vM} row_bcast:31 row_mask:0xc bank_mask:0xf")
    A("s_nop 0")
    A(f"v_readlane_b32 s{sM}, v{vM}, 63")
    A(f"s_mov_b32 s{sCNT}, s{sN}")
    A("s_nop 0")
    A(f"v_mov_b32 v{vM}, s{sM}")
    A(f"v_cvt_pk_bf16_f32 v{vM}, v{vM}, v{vM}")
    A(f"v_and_b32 v{vM}, 0xffff0000, v{vM}")
    A(f"v_mul_f32 v{vM}, s{sSC}, v{vM}")
    A(f"v_cvt_pk_bf16_f32 v{vM}, v{vM}, v{vM}")
    A(f"v_and_b32 v{vM}, 0xffff0000, v{vM}")
    A(f"v_mul_f32 v{vNM}, s{sL2E}, v{vM}")
    for s in range(1, R):
        A(f"s_cmp_eq_u32 s{sT0}, {s}")
        A(f"s_cbranch_scc1 L_v{s}")
    for s in range(R):
        A.label(f"L_v{s}")
        A(f"s_cmp_le_u32 s{sCNT}, {R}")
        A(f"s_cselect_b32 s{KS+2}, 0, {RB}")
        A("s_waitcnt lgkmcnt(0)")
        A(f"v_lshlrev_b32 v{vP}, 16, v{vT0}")
        A(f"v_and_b32 v{vP+1}, 0xffff0000, v{vT0}")
        A(f"v_lshlrev_b32 v{vP+2}, 16, v{vT1}")
        A(f"v_and_b32 v{vP+3}, 0xffff0000, v{vT1}")
        A(f"v_add_u32 v{vSA}, 32, v{vSA}")
        for i in range(4):
            A(f"v_fma_f32 v{vP+i}, v{vP+i}, s{sL2E}, -v{vNM}")
        A(f"ds_read_b64 v[{vT0}:{vT1}], v{vSA}")
        if ctl:
            A(f"v_readfirstlane_b32 s{sT2}, v{vMD}")
            A(f"v_mov_b32 v{vS+1}, s{sCNT}")
            A(f"ds_read_b32 v{vMD}, v{vPA} offset:{PM + 4}")
            A(f"ds_write_b32 v{vPW}, v{vS+1} offset:{PM}")
        for i in range(4):
            A(f"v_exp_f32 v{vP+i}, v{vP+i}")
        A(f"v_add_f32 v{vS}, v{vP}, v{vP+1}")
        A(f"v_add_f32 v{vL}, v{vL}, v{vP+2}")
        A(f"v_add_f32 v{vS}, v{vS}, v{vP+3}")
        for i in range(4):
            A(f"v_cvt_pk_bf16_f32 v{vP+i}, v{vP+i}, v{vP+i}")
        A(f"v_add_f32 v{vL}, v{vL}, v{vS}")
        for i in range(4):
            for rr in range(4):
                A(f"v_and_b32 v{vA+4*i+rr}, v{vP+i}, v{MK+rr}")
        A(f"s_waitcnt vmcnt({W})")
        A("s_nop 0")
        for i in range(4):
            r = reg(s, i)
            A(f"v_mfma_f32_16x16x32_bf16 v[{vACC}:{vACC+3}], v[{vA+4*i}:{vA+4*i+3}], v[{r}:{r+3}], v[{vACC}:{vACC+3}]")
        tstamp(1)
        A(f"s_sub_u32 s{sCNT}, s{sCNT}, 1")
        A(f"s_cmp_eq_u32 s{sCNT}, 0")
        A("s_cbranch_scc1 L_sdone")
        A(f"s_cmp_lt_u32 s{sCNT}, {max(R, endn)}")
        A(f"s_cbranch_scc1 L_vf{s}")
        if ctl:
            for m in range(len(modes)):
                if m < len(modes) - 1:
                    A(f"s_cmp_lg_u32 s{sT2}, {m}")
                    A(f"s_cbranch_scc1 L_vm{s}_{m}")
                issue(s, modes[m][s & 1])
                A(f"s_branch L_v{(s + 1) % R}")
                if m < len(modes) - 1:
                    A.label(f"L_vm{s}_{m}")
        else:
            issue(s, window(s))
            A(f"s_branch L_v{(s + 1) % R}")
        A.label(f"L_vf{s}")
        issue(s)
    A("s_branch L_v0")
    A.label("L_sdone")
    A(f"v_add_f32_dpp v{vL}, v{vL}, v{vL} row_bcast:15 row_mask:0xa bank_mask:0xf")
    A("s_nop 1")
    A(f"v_add_f32_dpp v{vL}, v{vL}, v{vL} row_bcast:31 row_mask:0xc bank_mask:0xf")
    A("s_mov_b32 exec_lo, 0")
    A("s_mov_b32 exec_hi, 0x80000000")
    A(f"ds_write_b64 v{vEB}, v[{vM}:{vM+1}]")
    A("s_mov_b32 exec_hi, -1")
    A(f"v_cvt_pk_bf16_f32 v{vACC}, v{vACC}, v{vACC+1}")
    A(f"v_cvt_pk_bf16_f32 v{vACC+1}, v{vACC+2}, v{vACC+3}")
    A(f"ds_write_b64 v{vEA}, v[{vACC}:{vACC+1}]")
    A("s_mov_b64 exec, -1")
    A("s_waitcnt lgkmcnt(0)")
    A("s_barrier")
    if tl:
        A(f"s_lshl_b32 s{sT0}, s2, 2")
        A(f"s_add_u32 s{sT0}, s{sT0}, s{sWAVE}")
        A(f"s_lshl_b32 s{sT0}, s{sT0}, 8")
        A(f"s_add_u32 s{sT0}, s{sT0}, 0x300000")
        A("v_mbcnt_lo_u32_b32 v1, -1, 0")
        A("v_mbcnt_hi_u32_b32 v1, -1, v1")
        A(f"v_lshl_add_u32 v16, v1, 2, s{sT0}")
        A(f"global_store_dword v16, v{RING + 16*(R+E)}, s[{pWS}:{pWS+1}]")
    A("s_endpgm")

    A.label("L_aux")
    A.c("---- aux wave ----")
    NL = 160 // NA
    RW = 640 // NA
    RT = RW // 4
    RO = 128 // NA
    OT = RO // 4
    vTO = 13
    vO1, vO2, vO3 = 10, 11, 12
    vX = 14
    vF = 20
    vC = 30
    vAA = 36
    vQA = 44
    vX2 = 48
    vXD = 56
    vW = 96
    if auxprio:
        A(f"s_setprio {auxprio}")
    A(f"s_mov_b32 s{sA}, s{sWAVE}")
    if noaux:
        A("s_waitcnt lgkmcnt(0)")
        if bar0: A("s_barrier")
        if stag: A("s_barrier")
        stamp(1)
        A("s_barrier")
        stamp(2); stamp(3)
        A("s_barrier")
        stamp(4); stamp(5); stamp(6)
        A("s_branch L_fin")
    A(f"v_lshlrev_b32 v{vO1}, 2, v1")
    WQR = 256 if nowqd == 2 else 8192
    A(f"v_mul_u32_u24 v{vO2}, {RT*WQR}, v3")
    A(f"v_lshl_add_u32 v{vO2}, v2, 4, v{vO2}")
    A(f"s_mul_i32 s{sT0}, s{sA}, 1280")
    A(f"s_mul_i32 s{sT3}, s{sB}, 1280")
    A(f"s_mul_i32 s{sT1}, s{sH}, {(256, 0, 163840)[nowqd]}")
    A(f"s_mul_i32 s{sT2}, s{sA}, {RW*WQR}")
    A(f"s_add_u32 s{sT1}, s{sT1}, s{sT2}")
    A(f"s_sub_u32 s{sT2}, {640*8192}, s{sT1}")
    A("s_waitcnt lgkmcnt(0)")
    srd(XS, pX, None, 5120)
    for i in range(5):
        A(f"buffer_load_dword v{vX+i}, v{vO1}, s[{XS}:{XS+3}], s{sT3} offen offset:{256*i}")
    for i in range(5):
        A(f"buffer_load_dword v{vX2+i}, v{vO1}, s[{XS}:{XS+3}], s{sT0} offen offset:{256*i}")
    A(f"s_load_dword s{sTAG}, s[{pWS}:{pWS+1}], {WS_EP:#x}")
    srd(WQS, pWQ, f"s{sT1}", 0 if nowq else f"s{sT2}")
    if rotq:
        A(f"s_and_b32 s{sHS}, s{sSLOT}, 7")
        A(f"s_mul_i32 s{sHS}, s{sHS}, 5")
        A(f"s_lshr_b32 s{sHS}, s{sHS}, 2")
        A(f"s_mul_i32 s{sOFF}, s{sHS}, {4*WQR}")
    else:
        A(f"s_mov_b32 s{sOFF}, 0")
    def wq_issue(t):
        r = vW + 4 * t
        A(f"buffer_load_dwordx4 v[{r}:{r+3}], v{vO2}, s[{WQS}:{WQS+3}], s{sOFF} offen {wqflags}")
        A(f"s_add_u32 s{sOFF}, s{sOFF}, {WQR}")
        if rotq and t % 4 == 3:
            A(f"s_cmp_eq_u32 s{sOFF}, {RT*WQR}")
            A(f"s_cselect_b32 s{sOFF}, 0, s{sOFF}")
    NLQ = nowqn if nowqn else NL
    wqwin = min(wqwin, NLQ)
    def aux_masks():
        A("v_and_b32 v9, 3, v9")
        for rr in range(4):
            A(f"v_cmp_eq_u32 vcc, {rr}, v9")
            A("s_nop 1")
            A(f"v_cndmask_b32 v{MK+rr}, 0, v8, vcc")
    if not lnfirst:
        for t in range(wqwin):
            wq_issue(t)
            if stag and t == 4:
                A("s_barrier")
            if bar0 and t == min(wqwin, bar0at) - 1:
                A("s_barrier")
        aux_masks()
    def wave_sum(v, s):
        for sh in (1, 2, 4, 8):
            A("s_nop 1")
            A(f"v_add_f32_dpp v{v}, v{v}, v{v} row_shr:{sh} row_mask:0xf bank_mask:0xf bound_ctrl:0")
        A("s_nop 1")
        A(f"v_add_f32_dpp v{v}, v{v}, v{v} row_bcast:15 row_mask:0xa bank_mask:0xf")
        A("s_nop 1")
        A(f"v_add_f32_dpp v{v}, v{v}, v{v} row_bcast:31 row_mask:0xc bank_mask:0xf")
        A("s_nop 0")
        A(f"v_readlane_b32 s{s}, v{v}, 63")
        A("s_nop 1")
    def layernorm(vX, dup):
        for i in range(5):
            A(f"v_lshlrev_b32 v{vF+2*i}, 16, v{vX+i}")
            A(f"v_and_b32 v{vF+2*i+1}, 0xffff0000, v{vX+i}")
        A(f"v_add_f32 v{vC+4}, v{vF}, v{vF+1}")
        for i in range(2, 10):
            A(f"v_add_f32 v{vC+4}, v{vC+4}, v{vF+i}")
        wave_sum(vC + 4, sT0)
        A(f"v_mov_b32 v{vC+5}, {f2u(1.0/640):#x}")
        A(f"v_mul_f32 v{vC+4}, s{sT0}, v{vC+5}")
        A(f"v_sub_f32 v{vC}, v{vF}, v{vC+4}")
        A(f"v_mul_f32 v{vC+1}, v{vC}, v{vC}")
        for i in range(1, 10):
            A(f"v_sub_f32 v{vC}, v{vF+i}, v{vC+4}")
            A(f"v_fmac_f32 v{vC+1}, v{vC}, v{vC}")
        wave_sum(vC + 1, sT0)
        A(f"v_mul_f32 v{vC+1}, s{sT0}, v{vC+5}")
        A(f"v_cvt_pk_bf16_f32 v{vC}, v{vC+4}, v{vC+1}")
        A(f"v_lshlrev_b32 v{vC+4}, 16, v{vC}")
        A(f"v_and_b32 v{vC+1}, 0xffff0000, v{vC}")
        A(f"v_add_f32 v{vC+1}, {f2u(1e-5):#x}, v{vC+1}")
        A(f"v_cvt_pk_bf16_f32 v{vC+1}, v{vC+1}, v{vC+1}")
        A(f"v_and_b32 v{vC+1}, 0xffff0000, v{vC+1}")
        A(f"v_sqrt_f32 v{vC+1}, v{vC+1}")
        A("s_nop 0")
        A(f"v_cvt_pk_bf16_f32 v{vC+1}, v{vC+1}, v{vC+1}")
        A(f"v_and_b32 v{vC+1}, 0xffff0000, v{vC+1}")
        A(f"v_rcp_f32 v{vC+1}, v{vC+1}")
        for i in range(10):
            A(f"v_sub_f32 v{vF+i}, v{vF+i}, v{vC+4}")
        if dup:
            A(f"s_mul_i32 s{sT2}, s{sA}, 2560")
            A(f"v_lshl_add_u32 v{vC+3}, v1, 3, s{sT2}")
        else:
            A(f"s_mul_i32 s{sT1}, s{sA}, 1280")
            A(f"v_add_u32 v{vC+2}, s{sT1}, v{vO1}")
        for i in range(5):
            A(f"v_cvt_pk_bf16_f32 v{vX+i}, v{vF+2*i}, v{vF+2*i+1}")
            A(f"v_lshlrev_b32 v{vF+2*i}, 16, v{vX+i}")
            A(f"v_and_b32 v{vF+2*i+1}, 0xffff0000, v{vX+i}")
            A(f"v_mul_f32 v{vF+2*i}, v{vF+2*i}, v{vC+1}")
            A(f"v_mul_f32 v{vF+2*i+1}, v{vF+2*i+1}, v{vC+1}")
            if dup:
                A(f"v_cvt_pk_bf16_f32 v{vF+2*i}, v{vF+2*i}, v{vF+2*i}")
                A(f"v_cvt_pk_bf16_f32 v{vF+2*i+1}, v{vF+2*i+1}, v{vF+2*i+1}")
                A(f"ds_write_b64 v{vC+3}, v[{vF+2*i}:{vF+2*i+1}] offset:{XND + 512*i}")
            else:
                A(f"v_cvt_pk_bf16_f32 v{vX+i}, v{vF+2*i}, v{vF+2*i+1}")
                A(f"ds_write_b32 v{vC+2}, v{vX+i} offset:{XNB + 256*i}")
    if lnfirst:
        for t in range(lnfirst):
            wq_issue(t)
        aux_masks()
        A(f"s_waitcnt vmcnt({lnfirst + 5})")
    else:
        A(f"s_waitcnt vmcnt({wqwin + 5})")
    layernorm(vX, True)
    stamp(1)
    A(f"s_mul_i32 s{sT1}, s{sA}, {RW*4}")
    A(f"s_add_u32 s{sT0}, s{sT2}, s{sT1}")
    A(f"v_mul_u32_u24 v{vX}, {RT*4}, v3")
    A(f"v_add_u32 v{vX}, s{sT0}, v{vX}")
    A("s_waitcnt lgkmcnt(0)")
    if rotq:
        A(f"s_lshl_b32 s{sT1}, s{sHS}, 4")
        for i in range(RT // 4):
            A(f"v_add_u32 v{vX+1+(i&1)}, s{sT1}, v{vX}")
            A(f"s_add_u32 s{sT1}, s{sT1}, 16")
            A(f"ds_read_b128 v[{vXD+4*i}:{vXD+4*i+3}], v{vX+1+(i&1)} offset:{XND}")
            A(f"s_cmp_eq_u32 s{sT1}, {RT*4}")
            A(f"s_cselect_b32 s{sT1}, 0, s{sT1}")
    else:
        for i in range(RT // 4):
            A(f"ds_read_b128 v[{vXD+4*i}:{vXD+4*i+3}], v{vX} offset:{XND + 16*i}")
    A("s_waitcnt lgkmcnt(0)")
    if lnfirst:
        if stag:
            A("s_barrier")
        for t in range(lnfirst, NL):
            wq_issue(t)
            if bar0 and t == bar0at - 1:
                A("s_barrier")
        def ands(t):
            aa = vAA + 4 * (t & 1)
            for rr in range(4):
                A(f"v_and_b32 v{aa+rr}, v{vXD+t}, v{MK+rr}")
        ands(0)
        for t in range(NL):
            if t + 1 < NL:
                ands(t + 1)
            else:
                A("s_nop 1")
            if t % 4 == 0 or t >= NL - 12:
                last = t if t >= NL - 12 else t + 3
                A(f"s_waitcnt vmcnt({NL - 1 - last})")
            aa = vAA + 4 * (t & 1)
            r = vW + 4 * t
            c = "0" if t == 0 else f"v[{vQA}:{vQA+3}]"
            A(f"v_mfma_f32_16x16x32_bf16 v[{vQA}:{vQA+3}], v[{aa}:{aa+3}], v[{r}:{r+3}], {c}")
    else:
        for t in range(NLQ):
            aa = vAA + 4 * (t & 1)
            for rr in range(4):
                A(f"v_and_b32 v{aa+rr}, v{vXD+t}, v{MK+rr}")
            issued = min(NLQ, wqwin + t)
            A(f"s_waitcnt vmcnt({issued - 1 - t})")
            if wqwin + t < NLQ:
                wq_issue(wqwin + t)
            else:
                A("s_nop 0")
            r = vW + 4 * t
            c = "0" if t == 0 else f"v[{vQA}:{vQA+3}]"
            A(f"v_mfma_f32_16x16x32_bf16 v[{vQA}:{vQA+3}], v[{aa}:{aa+3}], v[{r}:{r+3}], {c}")
    A(f"s_lshl_b32 s{sT0}, s{sA}, 9")
    A(f"s_add_u32 s{sT0}, s{sT0}, {QP}")
    A(f"v_lshlrev_b32 v{vC}, 5, v2")
    A(f"v_lshl_add_u32 v{vC}, v3, 4, v{vC}")
    A(f"v_add_u32 v{vC}, s{sT0}, v{vC}")
    A("s_nop 3")
    A("s_mov_b64 exec, 0xffffffff")
    A(f"ds_write_b128 v{vC}, v[{vQA}:{vQA+3}]")
    A("s_mov_b64 exec, -1")
    A(f"s_lshl_b32 s{sT0}, s{sA}, 2")
    A(f"v_mov_b32 v{vC+1}, s{sT0}")
    A(f"v_mov_b32 v{vC+2}, 0")
    A(f"ds_write_b32 v{vC+1}, v{vC+2} offset:{FLG}")
    if ctl:
        A(f"v_mov_b32 v{vC+4}, 1000")
        if ctltest:
            A(f"s_cmp_eq_u32 s{sSLOT}, 5")
            A(f"s_cselect_b32 s{sT0}, {ctltest - 1}, 1")
            A(f"v_mov_b32 v{vC+5}, s{sT0}")
        else:
            A(f"v_mov_b32 v{vC+5}, 1")
        A(f"ds_write_b64 v{vC+2}, v[{vC+4}:{vC+5}] offset:{PM}")
    A("s_waitcnt lgkmcnt(0)")
    A("s_barrier")
    stamp(2)
    layernorm(vX2, False)
    srd(WSS, pWS, None, WS_SIZE)
    A(f"s_mul_i32 s{sTAG}, s{sTAG}, 0x9e3779b1")
    A(f"s_add_u32 s{sTAG}, s{sTAG}, 0x7f4a7c15")
    A(f"s_lshl_b32 s{sHS}, s{sH}, 1")
    A(f"s_add_u32 s{sHS}, s{sHS}, s{sSPLIT}")
    A(f"s_lshl_b32 s{sT0}, s{sB}, 6")
    A(f"s_add_u32 s{sT0}, s{sT0}, s{sHS}")
    A(f"s_lshl_b32 s{sT1}, s{sT0}, 6")
    A(f"v_lshrrev_b32 v{vTO}, 2, v0")
    A(f"v_lshlrev_b32 v{vTO}, 14, v{vTO}")
    A(f"v_and_b32 v{vC}, 3, v0")
    A(f"v_lshl_add_u32 v{vTO}, v{vC}, 4, v{vTO}")
    A(f"v_add_u32 v{vTO}, s{sT1}, v{vTO}")
    A(f"s_lshr_b32 s{sT1}, s{sT0}, 1")
    A(f"s_lshl_b32 s{sT1}, s{sT1}, 7")
    A(f"s_lshl_b32 s{sT2}, s{sSPLIT}, 3")
    A(f"s_add_u32 s{sT1}, s{sT1}, s{sT2}")
    A(f"s_add_u32 s{sT1}, s{sT1}, {WS_ML}")
    A(f"v_mov_b32 v{vO3}, s{sT1}")
    for i in range(4):
        A(f"v_mov_b32 v{vC+i}, -1")
    A(f"v_cmp_gt_u32 vcc, 160, v0")
    A(f"s_and_saveexec_b64 s[{sEX}:{sEX+1}], vcc")
    A("s_cbranch_execz L_noclr")
    if not noclear:
        A(f"buffer_store_dwordx4 v[{vC}:{vC+3}], v{vTO}, s[{WSS}:{WSS+3}], 0 offen {'sc1' if noclrf is None else noclrf}")
    A.label("L_noclr")
    A(f"s_mov_b64 exec, s[{sEX}:{sEX+1}]")
    A(f"v_cmp_eq_u32 vcc, 192, v0")
    A(f"s_and_saveexec_b64 s[{sEX}:{sEX+1}], vcc")
    A("s_cbranch_execz L_noclr2")
    A(f"buffer_store_dwordx2 v[{vC}:{vC+1}], v{vO3}, s[{WSS}:{WSS+3}], 0 offen sc1")
    A.label("L_noclr2")
    A(f"s_mov_b64 exec, s[{sEX}:{sEX+1}]")
    A("s_waitcnt vmcnt(0) lgkmcnt(0)")
    A(f"s_lshl_b32 s{sT0}, s{sA}, 2")
    A(f"v_mov_b32 v{vC}, s{sT0}")
    A(f"v_mov_b32 v{vC+1}, 1")
    A(f"ds_write_b32 v{vC}, v{vC+1} offset:{FLG}")
    A(f"s_add_u32 s{sT0}, s{sX8}, 1")
    A(f"s_lshr_b32 s{sT0}, s{sT0}, 1")
    A(f"s_min_u32 s{sT0}, s{sT0}, 3")
    A(f"s_lshr_b32 s{sT1}, s{sSLOT}, 1")
    A(f"s_mul_i32 s{sT2}, s{sX8}, 12")
    A(f"s_lshl_b32 s{sT3}, s{sT0}, 2")
    A(f"s_add_u32 s{sT2}, s{sT2}, s{sT3}")
    A(f"s_add_u32 s{sT2}, s{sT2}, s{sT1}")
    A(f"s_cmp_eq_u32 s{sSPLIT}, 1")
    A(f"s_cselect_b32 s{sT2}, s{sT2}, 255")
    A(f"s_sub_u32 s{sT3}, s{sX8}, s{sT0}")
    A(f"s_lshl_b32 s{sT3}, s{sT3}, 3")
    A(f"s_add_u32 s{sT3}, s{sT3}, s{sSLOT}")
    A(f"s_add_u32 s{sT3}, s{sT3}, {128 - 24}")
    A(f"s_cmp_lt_u32 s{sT1}, s{sNU}")
    A(f"s_cselect_b32 s{sROLE}, s{sT2}, s{sT3}")
    def wo_load():
        vPH = 36
        A(f"s_mul_i32 s{sT0}, s{sH}, {0 if nowoh else 128*1280}")
        srd(WOS, pWO, f"s{sT0}", 128 * 1280)
        if nowolin:
            A(f"s_and_b32 s{sT1}, s{sSLOT}, 7")
            A(f"s_lshl_b32 s{sT1}, s{sT1}, 2")
            A(f"s_add_u32 s{sT1}, s{sT1}, s{sA}")
            A(f"s_mul_i32 s{sT1}, s{sT1}, 5120")
            A("v_lshlrev_b32 v41, 4, v1")
            for i in range(5):
                A(f"buffer_load_dwordx4 v[{vW+4*i}:{vW+4*i+3}], v41, s[{WOS}:{WOS+3}], s{sT1} offen {woflags}")
                A(f"s_add_u32 s{sT1}, s{sT1}, 1024")
            A("s_waitcnt vmcnt(0)")
            if nowolin == 1:
                return
        A(f"s_mul_i32 s{sT1}, s{sA}, 320")
        A(f"s_mov_b32 s{sT2}, 52429")
        for p in range(5):
            A(f"v_add_u32 v{vPH+p}, {64*p}, v1")
            A(f"v_mul_u32_u24 v41, s{sT2}, v{vPH+p}")
            A("v_lshrrev_b32 v41, 20, v41")
            A(f"v_mul_u32_u24 v42, {1280 - 320}, v41")
            A(f"v_lshl_add_u32 v{vPH+p}, v{vPH+p}, 4, v42")
            A(f"v_add_u32 v{vPH+p}, s{sT1}, v{vPH+p}")
        A(f"s_mul_i32 s{sT1}, s{sA}, 10240")
        A(f"s_add_u32 s{sT1}, s{sT1}, {TP}")
        A("v_lshrrev_b32 v41, 2, v2")
        A("v_lshl_add_u32 v41, v3, 3, v41")
        A("v_mul_u32_u24 v41, 320, v41")
        A("v_and_b32 v42, 3, v1")
        A("v_lshl_add_u32 v41, v42, 3, v41")
        A(f"v_add_u32 v41, s{sT1}, v41")
        A(f"s_mov_b32 s{sOFF}, 0")
        if fast1:
            A(f"s_cmp_eq_u32 s{sA}, 1")
            A("s_cselect_b64 vcc, 0, -1")
        for ks in range(4):
            for i in range(10):
                A(f"s_add_u32 m0, s{sT1}, {1024*i}")
                if i == 5:
                    A(f"s_add_u32 s{sOFF}, s{sOFF}, {16*1280}")
                else:
                    A("s_nop 0")
                if not nowo:
                    A(f"buffer_load_dwordx4 v{vPH+i%5}, s[{WOS}:{WOS+3}], s{sOFF} offen {woflags} lds")
                if fast1:
                    A(f"s_cbranch_vccz L_wf{ks}_{i}")
                A(f"s_waitcnt vmcnt({wowin - 1})")
                if fast1:
                    A.label(f"L_wf{ks}_{i}")
            A(f"s_add_u32 s{sOFF}, s{sOFF}, {16*1280}")
            A("s_waitcnt vmcnt(0)")
            for cb in range(10):
                r = vW + 4 * (cb * 4 + ks)
                A(f"ds_read_b64_tr_b16 v[{r}:{r+1}], v41 offset:{32*cb}")
                A(f"ds_read_b64_tr_b16 v[{r+2}:{r+3}], v41 offset:{32*cb + 1280}")
                if cb == 5:
                    A("s_waitcnt lgkmcnt(4)")
            A("s_waitcnt lgkmcnt(0)")
    vTR, vAO = 14, 15
    vFA, vFB, vFD = 20, 24, 28
    def round_bf16(regs):
        for v in regs:
            A(f"v_cvt_pk_bf16_f32 v{v}, v{v}, v{v}")
        for v in regs:
            A(f"v_and_b32 v{v}, 0xffff0000, v{v}")
    A(f"s_cmp_lg_u32 s{sA}, 0")
    A("s_cbranch_scc1 L_wo")
    A(f"v_mov_b32 v{vC+4}, 0")
    A.label("L_flg")
    A(f"ds_read_b128 v[{vFA}:{vFA+3}], v{vC+4} offset:{FLG}")
    A("s_waitcnt lgkmcnt(0)")
    A(f"v_add3_u32 v{vFA}, v{vFA}, v{vFA+1}, v{vFA+2}")
    A(f"v_add_u32 v{vFA}, v{vFA}, v{vFA+3}")
    A(f"v_cmp_ne_u32 vcc, 4, v{vFA}")
    A("s_nop 1")
    A("s_cbranch_vccnz L_flg")
    A(f"s_lshl_b32 s{sT3}, s2, 7")
    A(f"s_add_u32 s{sT3}, s{sT3}, {WS_H}")
    A(f"v_mov_b32 v{vC+4}, s{sT3}")
    A(f"v_mov_b32 v{vC+5}, s{sTAG}")
    A("s_mov_b64 exec, 1")
    A(f"buffer_store_dword v{vC+5}, v{vC+4}, s[{WSS}:{WSS+3}], 0 offen sc1")
    A("s_mov_b64 exec, -1")
    if not ffn1:
        A.label("L_wo")
        wo_load()
        if ctl:
            A(f"s_cmp_lg_u32 s{sA}, 1")
            A("s_cbranch_scc1 L_noctl")
            A.c("pacing: at every checkpoint mark this workgroup's word in the line of its group, count who is already there")
            A.c("and who is a whole checkpoint further; the counts pick the load window of the streaming waves (speed hint only)")
            A(f"s_lshl_b32 s{sT0}, s{sX8}, 7")
            A(f"v_and_b32 v{vC}, 31, v1")
            A(f"v_lshl_add_u32 v{vC}, v{vC}, 2, s{sT0}")
            A(f"v_lshrrev_b32 v{vC+1}, 5, v1")
            A(f"v_lshl_add_u32 v{vC}, v{vC+1}, 10, v{vC}")
            A(f"s_lshl_b32 s{sT1}, s{sSLOT}, 2")
            A(f"s_add_u32 s{sT0}, s{sT0}, s{sT1}")
            A(f"v_mov_b32 v{vC+1}, s{sT0}")
            A(f"v_mov_b32 v{vC+2}, s{sTAG}")
            A(f"v_mov_b32 v{vC+3}, 0")
            A(f"s_mov_b32 s{sOFF}, {WS_CP}")
            A(f"s_mov_b32 s{sCNT}, {ctl[0]}")
            A.label("L_cw")
            A(f"s_sleep {csleep}")
            A(f"ds_read_b32 v{vC+4}, v{vC+3} offset:{PM}")
            A("s_waitcnt lgkmcnt(0)")
            A(f"v_readfirstlane_b32 s{sT1}, v{vC+4}")
            A("s_nop 0")
            A(f"s_cmp_gt_u32 s{sT1}, s{sCNT}")
            A("s_cbranch_scc1 L_cw")
            A("s_mov_b64 exec, 1")
            A(f"buffer_store_dword v{vC+2}, v{vC+1}, s[{WSS}:{WSS+3}], s{sOFF} offen")
            A("s_mov_b64 exec, -1")
            A(f"buffer_load_dword v{vC+4}, v{vC}, s[{WSS}:{WSS+3}], s{sOFF} offen sc1")
            A("s_waitcnt vmcnt(0)")
            A(f"v_cmp_eq_u32 vcc, s{sTAG}, v{vC+4}")
            A(f"s_mov_b32 s{sT2}, 0")
            A(f"s_mov_b32 s{sT0}, 0")
            A(f"s_bcnt1_i32_b32 s{sT1}, vcc_lo")
            for m, t_ in enumerate(thr):
                A(f"s_cmp_ge_u32 s{sT1}, {t_}")
                A(f"s_cselect_b32 s{sT2}, {m + 1}, s{sT2}")
            for m, t_ in enumerate(kthr):
                A(f"s_cmp_ge_u32 s{sT1}, {t_}")
                A(f"s_cselect_b32 s{sT0}, {m + 1}, s{sT0}")
            A(f"s_cmp_gt_u32 s{sCNT}, 62")
            A(f"s_cselect_b32 s{sT2}, s{sT0}, s{sT2}")
            A(f"s_bcnt1_i32_b32 s{sT1}, vcc_hi")
            for m, t_ in enumerate(sthr):
                A(f"s_cmp_ge_u32 s{sT1}, {t_}")
                A(f"s_cselect_b32 s{sT2}, {len(thr) + 1 + m}, s{sT2}")
            A(f"v_mov_b32 v{vC+4}, s{sT2}")
            A(f"ds_write_b32 v{vC+3}, v{vC+4} offset:{PM + 4}")
            A(f"s_add_u32 s{sOFF}, s{sOFF}, 1024")
            A(f"s_sub_u32 s{sCNT}, s{sCNT}, {ctl[1]}")
            A(f"s_cmp_ge_i32 s{sCNT}, {ctl[2]}")
            A("s_cbranch_scc1 L_cw")
            A("s_waitcnt lgkmcnt(0)")
            A.label("L_noctl")
        A(f"s_cmp_lg_u32 s{sA}, 0")
        A("s_cbranch_scc1 L_idle")
        if nosig:
            A("s_branch L_idle")
        A(f"s_cmp_eq_u32 s{sROLE}, 255")
        A("s_cbranch_scc1 L_idle")
        A(f"s_cmp_ge_u32 s{sROLE}, 128")
        A("s_cbranch_scc1 L_f2")
        A.c("F1 unit: 16 columns of gate/up for all 4 batches")
        vFU = 32
        A(f"s_lshl_b32 s{sT0}, s{sROLE}, 5")
        srd(F0S, pWG, None, 640 * 3456)
        srd(F1S, pWU, None, 640 * 3456)
        A(f"v_lshrrev_b32 v{vC}, 1, v1")
        A(f"v_mul_u32_u24 v{vC}, 3456, v{vC}")
        A(f"v_and_b32 v{vC+1}, 1, v1")
        A(f"v_lshl_add_u32 v{vC}, v{vC+1}, 4, v{vC}")
        A(f"v_add_u32 v{vC}, s{sT0}, v{vC}")
        A(f"s_mov_b32 s{sOFF}, 0")
        A(f"s_mov_b32 s{sT1}, {WT}")
        A(f"s_mov_b32 s{sCNT}, 20")
        A.label("L_f1_ld")
        A(f"s_mov_b32 m0, s{sT1}")
        A(f"s_add_u32 s{sT2}, s{sT1}, 20480")
        if not noffn:
            A(f"buffer_load_dwordx4 v{vC}, s[{F0S}:{F0S+3}], s{sOFF} offen {ffnflags} lds")
        A(f"s_waitcnt vmcnt({f1win - 1})")
        A(f"s_mov_b32 m0, s{sT2}")
        A(f"s_add_u32 s{sT1}, s{sT1}, 1024")
        if not noffn:
            A(f"buffer_load_dwordx4 v{vC}, s[{F1S}:{F1S+3}], s{sOFF} offen {ffnflags} lds")
        A(f"s_add_u32 s{sOFF}, s{sOFF}, {32*3456}")
        A(f"s_waitcnt vmcnt({f1win - 1})")
        A(f"s_sub_u32 s{sCNT}, s{sCNT}, 1")
        A(f"s_cmp_lg_u32 s{sCNT}, 0")
        A("s_cbranch_scc1 L_f1_ld")
        A(f"v_lshrrev_b32 v{vC+1}, 2, v2")
        A(f"v_lshl_add_u32 v{vC+1}, v3, 3, v{vC+1}")
        A(f"v_lshlrev_b32 v{vTR}, 5, v{vC+1}")
        A(f"v_and_b32 v{vC+1}, 3, v1")
        A(f"v_lshl_add_u32 v{vTR}, v{vC+1}, 3, v{vTR}")
        A(f"v_add_u32 v{vTR}, {WT}, v{vTR}")
        A(f"v_mul_u32_u24 v{vAO}, 1280, v{vC+1}")
        A(f"v_lshl_add_u32 v{vAO}, v3, 4, v{vAO}")
        A(f"v_add_u32 v{vAO}, {XNB}, v{vAO}")
        for i in range(4):
            A(f"v_mov_b32 v{vFD+i}, 0")
            A(f"v_mov_b32 v{vFU+i}, 0")
        A(f"s_mov_b32 s{sCNT}, 20")
        A("s_waitcnt vmcnt(0)")
        vFB2 = 36
        A.label("L_f1_mm")
        A(f"ds_read_b128 v[{vFA}:{vFA+3}], v{vAO}")
        A(f"ds_read_b64_tr_b16 v[{vFB}:{vFB+1}], v{vTR}")
        A(f"ds_read_b64_tr_b16 v[{vFB+2}:{vFB+3}], v{vTR} offset:128")
        A(f"ds_read_b64_tr_b16 v[{vFB2}:{vFB2+1}], v{vTR} offset:20480")
        A(f"ds_read_b64_tr_b16 v[{vFB2+2}:{vFB2+3}], v{vTR} offset:{20480+128}")
        A(f"v_add_u32 v{vAO}, 64, v{vAO}")
        A(f"v_add_u32 v{vTR}, 1024, v{vTR}")
        A("s_waitcnt lgkmcnt(0)")
        A(f"v_mfma_f32_16x16x32_bf16 v[{vFD}:{vFD+3}], v[{vFA}:{vFA+3}], v[{vFB}:{vFB+3}], v[{vFD}:{vFD+3}]")
        A(f"v_mfma_f32_16x16x32_bf16 v[{vFU}:{vFU+3}], v[{vFA}:{vFA+3}], v[{vFB2}:{vFB2+3}], v[{vFU}:{vFU+3}]")
        A(f"s_sub_u32 s{sCNT}, s{sCNT}, 1")
        A(f"s_cmp_lg_u32 s{sCNT}, 0")
        A("s_cbranch_scc1 L_f1_mm")
        A("s_nop 7")
        for i in range(1, 4):
            A(f"v_cmp_eq_u32 vcc, {i}, v3")
            A("s_nop 1")
            A(f"v_cndmask_b32 v{vFD}, v{vFD}, v{vFD+i}, vcc")
            A(f"v_cndmask_b32 v{vFU}, v{vFU}, v{vFU+i}, vcc")
        round_bf16([vFD, vFU])
        K0 = 0.7978845608028654
        A(f"s_mov_b32 s{sT0}, {f2u(0.044715):#x}")
        A(f"s_mov_b32 s{sT1}, {f2u(-2.0 * K0 * L2E):#x}")
        A(f"v_mul_f32 v{vFA}, v{vFD}, v{vFD}")
        A(f"v_fma_f32 v{vFA}, v{vFA}, s{sT0}, 1.0")
        A(f"v_mul_f32 v{vFA}, v{vFA}, v{vFD}")
        A(f"v_mul_f32 v{vFA}, s{sT1}, v{vFA}")
        A(f"v_exp_f32 v{vFA}, v{vFA}")
        A("s_nop 0")
        A(f"v_add_f32 v{vFA}, 1.0, v{vFA}")
        A(f"v_rcp_f32 v{vFA}, v{vFA}")
        A("s_nop 0")
        A(f"v_mul_f32 v{vFA}, v{vFA}, v{vFD}")
        round_bf16([vFA])
        A(f"v_mul_f32 v{vFA}, v{vFA}, v{vFU}")
        A(f"s_lshl_b32 s{sT0}, s{sROLE}, 8")
        A(f"s_add_u32 s{sT0}, s{sT0}, {WS_HL}")
        A(f"v_mov_b32_dpp v{vFB}, v{vFA} quad_perm:[1,0,3,2] row_mask:0xf bank_mask:0xf")
        A(f"v_cvt_pk_bf16_f32 v{vFA}, v{vFA}, v{vFB}")
        A(f"v_mov_b32 v{vFA+1}, s{sTAG}")
        A("s_mov_b32 exec_lo, 0x55555555")
        A("s_mov_b32 exec_hi, 0x55555555")
        A(f"buffer_store_dwordx2 v[{vFA}:{vFA+1}], v{vO1}, s[{WSS}:{WSS+3}], s{sT0} offen sc1")
        A("s_mov_b64 exec, -1")
        A("s_branch L_idle")

        A.label("L_f2")
        A.c("F2 job: 64 columns x one quarter of K of the down projection, then the gate of 16 columns")
        sC, sKQ, sST_, sN = sT3, sHS, sM, sSC
        A(f"s_sub_u32 s{sC}, s{sROLE}, 128")
        A(f"s_and_b32 s{sKQ}, s{sC}, 3")
        A(f"s_mul_i32 s{sST_}, s{sKQ}, 14")
        A(f"s_cmp_eq_u32 s{sKQ}, 3")
        A(f"s_cselect_b32 s{sST_}, 41, s{sST_}")
        A(f"s_lshr_b32 s{sN}, s{sKQ}, 1")
        A(f"s_sub_u32 s{sN}, 14, s{sN}")
        srd(F0S, pWD, None, 1728 * 1280)
        A(f"s_lshr_b32 s{sT0}, s{sC}, 2")
        A(f"s_lshl_b32 s{sT0}, s{sT0}, 7")
        A(f"v_lshrrev_b32 v{vC}, 3, v1")
        A(f"v_mul_u32_u24 v{vC}, 1280, v{vC}")
        A(f"v_and_b32 v{vC+1}, 7, v1")
        A(f"v_lshl_add_u32 v{vC}, v{vC+1}, 4, v{vC}")
        A(f"v_add_u32 v{vC}, s{sT0}, v{vC}")
        A(f"s_mul_i32 s{sOFF}, s{sST_}, {32*1280}")
        A(f"s_mov_b32 s{sT1}, {WT}")
        A(f"s_lshl_b32 s{sCNT}, s{sN}, 2")
        A.label("L_f2_ld")
        A(f"s_mov_b32 m0, s{sT1}")
        A(f"s_add_u32 s{sT1}, s{sT1}, 1024")
        if not noffn:
            A(f"buffer_load_dwordx4 v{vC}, s[{F0S}:{F0S+3}], s{sOFF} offen {ffnflags} lds")
        A(f"s_add_u32 s{sOFF}, s{sOFF}, {8*1280}")
        A(f"s_waitcnt vmcnt({f2win - 1})")
        A(f"s_sub_u32 s{sCNT}, s{sCNT}, 1")
        A(f"s_cmp_lg_u32 s{sCNT}, 0")
        A("s_cbranch_scc1 L_f2_ld")
        vH = 36
        A(f"s_lshl_b32 s{sT0}, s{sST_}, 1")
        A(f"s_min_u32 s{sT1}, s{sT0}, 80")
        A(f"s_sub_u32 s{sT2}, s{sT0}, s{sT1}")
        A(f"s_lshl_b32 s{sT2}, s{sT2}, 5")
        A(f"s_lshl_b32 s{sT1}, s{sT1}, 8")
        A(f"s_add_u32 s{sT1}, s{sT1}, {WS_HL}")
        A(f"s_lshl_b32 s{sT0}, s{sKQ}, 13")
        A(f"s_add_u32 s{sT0}, s{sT0}, {WS_H}")
        A(f"v_lshlrev_b32 v{vC}, 4, v1")
        A(f"v_lshlrev_b32 v{vC+1}, 7, v1")
        A(f"v_lshrrev_b32 v{vC+2}, 2, v2")
        A(f"v_mul_u32_u24 v{vC+2}, 896, v{vC+2}")
        A(f"v_lshl_add_u32 v{vC+2}, v3, 5, v{vC+2}")
        A(f"v_and_b32 v{vC+3}, 3, v1")
        A(f"v_lshl_add_u32 v{vC+2}, v{vC+3}, 3, v{vC+2}")
        A(f"s_add_u32 s{sOFF}, s{sT1}, 4096")
        A("s_branch L_g")
        A.label("L_gr")
        A(f"s_sleep {gsleep}")
        A.label("L_g")
        for i in range(7):
            A(f"buffer_load_dwordx4 v[{vH+4*i}:{vH+4*i+3}], v{vC}, s[{WSS}:{WSS+3}], s{sT1 if i < 4 else sOFF} offen offset:{1024*(i&3)} sc1")
        A(f"buffer_load_dword v{vH+28}, v{vC+1}, s[{WSS}:{WSS+3}], s{sT0} offen sc1")
        A("s_waitcnt vmcnt(0)")
        A(f"v_xor_b32 v{vH+28}, s{sTAG}, v{vH+28}")
        for i in range(7):
            A(f"v_xor_b32 v{vH+4*i+1}, s{sTAG}, v{vH+4*i+1}")
            A(f"v_xor_b32 v{vH+4*i+3}, s{sTAG}, v{vH+4*i+3}")
            A(f"v_or3_b32 v{vH+28}, v{vH+28}, v{vH+4*i+1}, v{vH+4*i+3}")
        A(f"v_cmp_ne_u32 vcc, 0, v{vH+28}")
        A("s_nop 1")
        A("s_cbranch_vccnz L_gr")
        for i in range(7):
            A(f"v_mov_b32 v{vH+4*i+1}, v{vH+4*i+2}")
            A(f"ds_write_b64 v{vC+2}, v[{vH+4*i}:{vH+4*i+1}] offset:{HB + 128*i}")
        A(f"v_lshrrev_b32 v{vC+4}, 2, v2")
        A(f"v_lshl_add_u32 v{vC+4}, v3, 3, v{vC+4}")
        A(f"v_lshlrev_b32 v{vTR}, 7, v{vC+4}")
        A(f"v_lshl_add_u32 v{vTR}, v{vC+3}, 3, v{vTR}")
        A(f"v_add_u32 v{vTR}, {WT}, v{vTR}")
        A(f"v_mul_u32_u24 v{vAO}, 896, v{vC+3}")
        A(f"v_lshl_add_u32 v{vAO}, v3, 4, v{vAO}")
        A(f"v_add_u32 v{vAO}, s{sT2}, v{vAO}")
        A("s_waitcnt lgkmcnt(0)")
        vB4, vD4 = 36, 52
        for i in range(16):
            A(f"v_mov_b32 v{vD4+i}, 0")
        A(f"s_mov_b32 s{sCNT}, s{sN}")
        A.label("L_f2_mm")
        A(f"ds_read_b128 v[{vFA}:{vFA+3}], v{vAO} offset:{HB}")
        for cb in range(4):
            A(f"ds_read_b64_tr_b16 v[{vB4+4*cb}:{vB4+4*cb+1}], v{vTR} offset:{32*cb}")
            A(f"ds_read_b64_tr_b16 v[{vB4+4*cb+2}:{vB4+4*cb+3}], v{vTR} offset:{32*cb+512}")
        A(f"v_add_u32 v{vAO}, 64, v{vAO}")
        A(f"v_add_u32 v{vTR}, 4096, v{vTR}")
        A("s_waitcnt lgkmcnt(0)")
        for cb in range(4):
            d = vD4 + 4 * cb
            A(f"v_mfma_f32_16x16x32_bf16 v[{d}:{d+3}], v[{vFA}:{vFA+3}], v[{vB4+4*cb}:{vB4+4*cb+3}], v[{d}:{d+3}]")
        A(f"s_sub_u32 s{sCNT}, s{sCNT}, 1")
        A(f"s_cmp_lg_u32 s{sCNT}, 0")
        A("s_cbranch_scc1 L_f2_mm")
        A("s_nop 7")
        for i in range(1, 4):
            A(f"v_cmp_eq_u32 vcc, {i}, v3")
            A("s_nop 1")
            for cb in range(4):
                A(f"v_cndmask_b32 v{vD4+4*cb}, v{vD4+4*cb}, v{vD4+4*cb+i}, vcc")
        for cb in range(4):
            A(f"v_mov_b32 v{vD4+4*cb+1}, s{sTAG}")
        A(f"v_lshlrev_b32 v{vC}, 3, v1")
        A(f"s_and_b32 s{sT0}, s{sC}, 0xfc")
        A(f"s_lshl_b32 s{sT0}, s{sT0}, 2")
        A(f"s_add_u32 s{sT0}, s{sT0}, s{sKQ}")
        A(f"s_lshl_b32 s{sT0}, s{sT0}, 9")
        A(f"s_add_u32 s{sT0}, s{sT0}, {WS_FQ}")
        for cb in range(4):
            A(f"buffer_store_dwordx2 v[{vD4+4*cb}:{vD4+4*cb+1}], v{vC}, s[{WSS}:{WSS+3}], s{sT0} offen sc1")
            A(f"s_add_u32 s{sT0}, s{sT0}, 2048")
        A(f"s_lshl_b32 s{sT0}, s{sC}, 11")
        A(f"s_add_u32 s{sT0}, s{sT0}, {WS_FQ}")
        A("s_waitcnt vmcnt(0)")
        A("s_branch L_p")
        A.label("L_pr")
        A(f"s_sleep {gsleep // 2}")
        A.label("L_p")
        for i in range(4):
            A(f"buffer_load_dwordx2 v[{vH+2*i}:{vH+2*i+1}], v{vC}, s[{WSS}:{WSS+3}], s{sT0} offen offset:{512*i} sc1")
        A("s_waitcnt vmcnt(0)")
        for i in range(4):
            A(f"v_xor_b32 v{vH+2*i+1}, s{sTAG}, v{vH+2*i+1}")
        A(f"v_or3_b32 v{vH+1}, v{vH+1}, v{vH+3}, v{vH+5}")
        A(f"v_or_b32 v{vH+1}, v{vH+1}, v{vH+7}")
        A(f"v_cmp_ne_u32 vcc, 0, v{vH+1}")
        A("s_nop 1")
        A("s_cbranch_vccnz L_pr")
        A(f"s_cmp_lg_u32 s{sROLE}, 128")
        A("s_cbranch_scc1 L_noep")
        A(f"v_mov_b32 v{vC+2}, {WS_EP:#x}")
        A(f"v_mov_b32 v{vC+3}, s{sTAG}")
        A("s_mov_b64 exec, 1")
        A(f"buffer_store_dword v{vC+3}, v{vC+2}, s[{WSS}:{WSS+3}], 0 offen sc1")
        A("s_mov_b64 exec, -1")
        A.label("L_noep")
        A(f"v_add_f32 v20, v{vH}, v{vH+2}")
        A(f"v_add_f32 v21, v{vH+4}, v{vH+6}")
        A("v_add_f32 v20, v20, v21")
        round_bf16([20])
        A(f"s_mov_b32 s{sT1}, {f2u(-L2E):#x}")
        A(f"v_mul_f32 v21, s{sT1}, v20")
        A("v_exp_f32 v21, v21")
        A("s_nop 0")
        A("v_add_f32 v21, 1.0, v21")
        A("v_rcp_f32 v21, v21")
        A("s_nop 0")
        A("v_mul_f32 v21, v21, v20")
        round_bf16([21])
        A(f"ds_write_b32 v{vO1}, v21 offset:{GB}")
        A("s_waitcnt lgkmcnt(0)")
    else:
        A(f"s_cmp_eq_u32 s{sROLE}, 255")
        A("s_cbranch_scc1 L_wo")
        A(f"s_cmp_ge_u32 s{sROLE}, 128")
        A("s_cbranch_scc1 L_f2")
        A.c("F1 unit: 16 columns of gate/up for all 4 batches")
        vFU = 32
        A(f"s_lshl_b32 s{sT0}, s{sROLE}, 5")
        srd(F0S, pWG, None, 640 * 3456)
        srd(F1S, pWU, None, 640 * 3456)
        A(f"v_lshrrev_b32 v{vC}, 1, v1")
        A(f"v_mul_u32_u24 v{vC}, 3456, v{vC}")
        A(f"v_and_b32 v{vC+1}, 1, v1")
        A(f"v_lshl_add_u32 v{vC}, v{vC+1}, 4, v{vC}")
        A(f"v_add_u32 v{vC}, s{sT0}, v{vC}")
        A(f"s_mov_b32 s{sOFF}, 0")
        A(f"s_mov_b32 s{sT1}, {WT}")
        A(f"s_mov_b32 s{sCNT}, 20")
        A.label("L_f1_ld")
        A(f"s_mov_b32 m0, s{sT1}")
        A(f"s_add_u32 s{sT2}, s{sT1}, 20480")
        if not noffn:
            A(f"buffer_load_dwordx4 v{vC}, s[{F0S}:{F0S+3}], s{sOFF} offen {ffnflags} lds")
        A(f"s_waitcnt vmcnt({f1win - 1})")
        A(f"s_mov_b32 m0, s{sT2}")
        A(f"s_add_u32 s{sT1}, s{sT1}, 1024")
        if not noffn:
            A(f"buffer_load_dwordx4 v{vC}, s[{F1S}:{F1S+3}], s{sOFF} offen {ffnflags} lds")
        A(f"s_add_u32 s{sOFF}, s{sOFF}, {32*3456}")
        A(f"s_waitcnt vmcnt({f1win - 1})")
        A(f"s_sub_u32 s{sCNT}, s{sCNT}, 1")
        A(f"s_cmp_lg_u32 s{sCNT}, 0")
        A("s_cbranch_scc1 L_f1_ld")
        A(f"v_lshrrev_b32 v{vC+1}, 2, v2")
        A(f"v_lshl_add_u32 v{vC+1}, v3, 3, v{vC+1}")
        A(f"v_lshlrev_b32 v{vTR}, 5, v{vC+1}")
        A(f"v_and_b32 v{vC+1}, 3, v1")
        A(f"v_lshl_add_u32 v{vTR}, v{vC+1}, 3, v{vTR}")
        A(f"v_add_u32 v{vTR}, {WT}, v{vTR}")
        A(f"v_mul_u32_u24 v{vAO}, 1280, v{vC+1}")
        A(f"v_lshl_add_u32 v{vAO}, v3, 4, v{vAO}")
        A(f"v_add_u32 v{vAO}, {XNB}, v{vAO}")
        for i in range(4):
            A(f"v_mov_b32 v{vFD+i}, 0")
            A(f"v_mov_b32 v{vFU+i}, 0")
        A(f"s_mov_b32 s{sCNT}, 20")
        A("s_waitcnt vmcnt(0)")
        vFB2 = 36
        A.label("L_f1_mm")
        A(f"ds_read_b128 v[{vFA}:{vFA+3}], v{vAO}")
        A(f"ds_read_b64_tr_b16 v[{vFB}:{vFB+1}], v{vTR}")
        A(f"ds_read_b64_tr_b16 v[{vFB+2}:{vFB+3}], v{vTR} offset:128")
        A(f"ds_read_b64_tr_b16 v[{vFB2}:{vFB2+1}], v{vTR} offset:20480")
        A(f"ds_read_b64_tr_b16 v[{vFB2+2}:{vFB2+3}], v{vTR} offset:{20480+128}")
        A(f"v_add_u32 v{vAO}, 64, v{vAO}")
        A(f"v_add_u32 v{vTR}, 1024, v{vTR}")
        A("s_waitcnt lgkmcnt(0)")
        A(f"v_mfma_f32_16x16x32_bf16 v[{vFD}:{vFD+3}], v[{vFA}:{vFA+3}], v[{vFB}:{vFB+3}], v[{vFD}:{vFD+3}]")
        A(f"v_mfma_f32_16x16x32_bf16 v[{vFU}:{vFU+3}], v[{vFA}:{vFA+3}], v[{vFB2}:{vFB2+3}], v[{vFU}:{vFU+3}]")
        A(f"s_sub_u32 s{sCNT}, s{sCNT}, 1")
        A(f"s_cmp_lg_u32 s{sCNT}, 0")
        A("s_cbranch_scc1 L_f1_mm")
        A("s_nop 7")
        for i in range(1, 4):
            A(f"v_cmp_eq_u32 vcc, {i}, v3")
            A("s_nop 1")
            A(f"v_cndmask_b32 v{vFD}, v{vFD}, v{vFD+i}, vcc")
            A(f"v_cndmask_b32 v{vFU}, v{vFU}, v{vFU+i}, vcc")
        round_bf16([vFD, vFU])
        K0 = 0.7978845608028654
        A(f"s_mov_b32 s{sT0}, {f2u(0.044715):#x}")
        A(f"s_mov_b32 s{sT1}, {f2u(-2.0 * K0 * L2E):#x}")
        A(f"v_mul_f32 v{vFA}, v{vFD}, v{vFD}")
        A(f"v_fma_f32 v{vFA}, v{vFA}, s{sT0}, 1.0")
        A(f"v_mul_f32 v{vFA}, v{vFA}, v{vFD}")
        A(f"v_mul_f32 v{vFA}, s{sT1}, v{vFA}")
        A(f"v_exp_f32 v{vFA}, v{vFA}")
        A("s_nop 0")
        A(f"v_add_f32 v{vFA}, 1.0, v{vFA}")
        A(f"v_rcp_f32 v{vFA}, v{vFA}")
        A("s_nop 0")
        A(f"v_mul_f32 v{vFA}, v{vFA}, v{vFD}")
        round_bf16([vFA])
        A(f"v_mul_f32 v{vFA}, v{vFA}, v{vFU}")
        A(f"s_lshl_b32 s{sT0}, s{sROLE}, 8")
        A(f"s_add_u32 s{sT0}, s{sT0}, {WS_HL}")
        A(f"v_mov_b32_dpp v{vFB}, v{vFA} quad_perm:[1,0,3,2] row_mask:0xf bank_mask:0xf")
        A(f"v_cvt_pk_bf16_f32 v{vFA}, v{vFA}, v{vFB}")
        A(f"v_mov_b32 v{vFA+1}, s{sTAG}")
        A("s_mov_b32 exec_lo, 0x55555555")
        A("s_mov_b32 exec_hi, 0x55555555")
        A(f"buffer_store_dwordx2 v[{vFA}:{vFA+1}], v{vO1}, s[{WSS}:{WSS+3}], s{sT0} offen sc1")
        A("s_mov_b64 exec, -1")
        A("s_branch L_wo")

        A.label("L_f2")
        A.c("F2 job: 64 columns x one quarter of K of the down projection, then the gate of 16 columns")
        sC, sKQ, sST_, sN = sT3, sHS, sM, sSC
        A(f"s_sub_u32 s{sC}, s{sROLE}, 128")
        A(f"s_and_b32 s{sKQ}, s{sC}, 3")
        A(f"s_mul_i32 s{sST_}, s{sKQ}, 14")
        A(f"s_cmp_eq_u32 s{sKQ}, 3")
        A(f"s_cselect_b32 s{sST_}, 41, s{sST_}")
        A(f"s_lshr_b32 s{sN}, s{sKQ}, 1")
        A(f"s_sub_u32 s{sN}, 14, s{sN}")
        srd(F0S, pWD, None, 1728 * 1280)
        A(f"s_lshr_b32 s{sT0}, s{sC}, 2")
        A(f"s_lshl_b32 s{sT0}, s{sT0}, 7")
        A(f"v_lshrrev_b32 v{vC}, 3, v1")
        A(f"v_mul_u32_u24 v{vC}, 1280, v{vC}")
        A(f"v_and_b32 v{vC+1}, 7, v1")
        A(f"v_lshl_add_u32 v{vC}, v{vC+1}, 4, v{vC}")
        A(f"v_add_u32 v{vC}, s{sT0}, v{vC}")
        A(f"s_mul_i32 s{sOFF}, s{sST_}, {32*1280}")
        A(f"s_mov_b32 s{sT1}, {WT}")
        A(f"s_lshl_b32 s{sCNT}, s{sN}, 2")
        A.label("L_f2_ld")
        A(f"s_mov_b32 m0, s{sT1}")
        A(f"s_add_u32 s{sT1}, s{sT1}, 1024")
        if not noffn:
            A(f"buffer_load_dwordx4 v{vC}, s[{F0S}:{F0S+3}], s{sOFF} offen {ffnflags} lds")
        A(f"s_add_u32 s{sOFF}, s{sOFF}, {8*1280}")
        A(f"s_waitcnt vmcnt({f2win - 1})")
        A(f"s_sub_u32 s{sCNT}, s{sCNT}, 1")
        A(f"s_cmp_lg_u32 s{sCNT}, 0")
        A("s_cbranch_scc1 L_f2_ld")
        A.label("L_wo")
        wo_load()
        if ctl:
            A(f"s_cmp_lg_u32 s{sA}, 1")
            A("s_cbranch_scc1 L_noctl")
            A.c("pacing: at every checkpoint mark this workgroup's word in the line of its group, count who is already there")
            A.c("and who is a whole checkpoint further; the counts pick the load window of the streaming waves (speed hint only)")
            A(f"s_lshl_b32 s{sT0}, s{sX8}, 7")
            A(f"v_and_b32 v{vC}, 31, v1")
            A(f"v_lshl_add_u32 v{vC}, v{vC}, 2, s{sT0}")
            A(f"v_lshrrev_b32 v{vC+1}, 5, v1")
            A(f"v_lshl_add_u32 v{vC}, v{vC+1}, 10, v{vC}")
            A(f"s_lshl_b32 s{sT1}, s{sSLOT}, 2")
            A(f"s_add_u32 s{sT0}, s{sT0}, s{sT1}")
            A(f"v_mov_b32 v{vC+1}, s{sT0}")
            A(f"v_mov_b32 v{vC+2}, s{sTAG}")
            A(f"v_mov_b32 v{vC+3}, 0")
            A(f"s_mov_b32 s{sOFF}, {WS_CP}")
            A(f"s_mov_b32 s{sCNT}, {ctl[0]}")
            A.label("L_cw")
            A(f"s_sleep {csleep}")
            A(f"ds_read_b32 v{vC+4}, v{vC+3} offset:{PM}")
            A("s_waitcnt lgkmcnt(0)")
            A(f"v_readfirstlane_b32 s{sT1}, v{vC+4}")
            A("s_nop 0")
            A(f"s_cmp_gt_u32 s{sT1}, s{sCNT}")
            A("s_cbranch_scc1 L_cw")
            A("s_mov_b64 exec, 1")
            A(f"buffer_store_dword v{vC+2}, v{vC+1}, s[{WSS}:{WSS+3}], s{sOFF} offen")
            A("s_mov_b64 exec, -1")
            A(f"buffer_load_dword v{vC+4}, v{vC}, s[{WSS}:{WSS+3}], s{sOFF} offen sc1")
            A("s_waitcnt vmcnt(0)")
            A(f"v_cmp_eq_u32 vcc, s{sTAG}, v{vC+4}")
            A(f"s_mov_b32 s{sT2}, 0")
            A(f"s_mov_b32 s{sT0}, 0")
            A(f"s_bcnt1_i32_b32 s{sT1}, vcc_lo")
            for m, t_ in enumerate(thr):
                A(f"s_cmp_ge_u32 s{sT1}, {t_}")
                A(f"s_cselect_b32 s{sT2}, {m + 1}, s{sT2}")
            for m, t_ in enumerate(kthr):
                A(f"s_cmp_ge_u32 s{sT1}, {t_}")
                A(f"s_cselect_b32 s{sT0}, {m + 1}, s{sT0}")
            A(f"s_cmp_gt_u32 s{sCNT}, 62")
            A(f"s_cselect_b32 s{sT2}, s{sT0}, s{sT2}")
            A(f"s_bcnt1_i32_b32 s{sT1}, vcc_hi")
            for m, t_ in enumerate(sthr):
                A(f"s_cmp_ge_u32 s{sT1}, {t_}")
                A(f"s_cselect_b32 s{sT2}, {len(thr) + 1 + m}, s{sT2}")
            A(f"v_mov_b32 v{vC+4}, s{sT2}")
            A(f"ds_write_b32 v{vC+3}, v{vC+4} offset:{PM + 4}")
            A(f"s_add_u32 s{sOFF}, s{sOFF}, 1024")
            A(f"s_sub_u32 s{sCNT}, s{sCNT}, {ctl[1]}")
            A(f"s_cmp_ge_i32 s{sCNT}, {ctl[2]}")
            A("s_cbranch_scc1 L_cw")
            A("s_waitcnt lgkmcnt(0)")
            A.label("L_noctl")
        A(f"s_cmp_lg_u32 s{sA}, 0")
        A("s_cbranch_scc1 L_idle")
        A(f"s_sub_u32 s{sT0}, s{sROLE}, 128")
        A(f"s_cmp_ge_u32 s{sT0}, 40")
        A("s_cbranch_scc1 L_idle")
        vH = 36
        A(f"s_lshl_b32 s{sT0}, s{sST_}, 1")
        A(f"s_min_u32 s{sT1}, s{sT0}, 80")
        A(f"s_sub_u32 s{sT2}, s{sT0}, s{sT1}")
        A(f"s_lshl_b32 s{sT2}, s{sT2}, 5")
        A(f"s_lshl_b32 s{sT1}, s{sT1}, 8")
        A(f"s_add_u32 s{sT1}, s{sT1}, {WS_HL}")
        A(f"s_lshl_b32 s{sT0}, s{sKQ}, 13")
        A(f"s_add_u32 s{sT0}, s{sT0}, {WS_H}")
        A(f"v_lshlrev_b32 v{vC}, 4, v1")
        A(f"v_lshlrev_b32 v{vC+1}, 7, v1")
        A(f"v_lshrrev_b32 v{vC+2}, 2, v2")
        A(f"v_mul_u32_u24 v{vC+2}, 896, v{vC+2}")
        A(f"v_lshl_add_u32 v{vC+2}, v3, 5, v{vC+2}")
        A(f"v_and_b32 v{vC+3}, 3, v1")
        A(f"v_lshl_add_u32 v{vC+2}, v{vC+3}, 3, v{vC+2}")
        A(f"s_add_u32 s{sOFF}, s{sT1}, 4096")
        A("s_branch L_g")
        A.label("L_gr")
        A(f"s_sleep {gsleep}")
        A.label("L_g")
        for i in range(7):
            A(f"buffer_load_dwordx4 v[{vH+4*i}:{vH+4*i+3}], v{vC}, s[{WSS}:{WSS+3}], s{sT1 if i < 4 else sOFF} offen offset:{1024*(i&3)} sc1")
        A(f"buffer_load_dword v{vH+28}, v{vC+1}, s[{WSS}:{WSS+3}], s{sT0} offen sc1")
        A("s_waitcnt vmcnt(0)")
        A(f"v_xor_b32 v{vH+28}, s{sTAG}, v{vH+28}")
        for i in range(7):
            A(f"v_xor_b32 v{vH+4*i+1}, s{sTAG}, v{vH+4*i+1}")
            A(f"v_xor_b32 v{vH+4*i+3}, s{sTAG}, v{vH+4*i+3}")
            A(f"v_or3_b32 v{vH+28}, v{vH+28}, v{vH+4*i+1}, v{vH+4*i+3}")
        A(f"v_cmp_ne_u32 vcc, 0, v{vH+28}")
        A("s_nop 1")
        A("s_cbranch_vccnz L_gr")
        for i in range(7):
            A(f"v_mov_b32 v{vH+4*i+1}, v{vH+4*i+2}")
            A(f"ds_write_b64 v{vC+2}, v[{vH+4*i}:{vH+4*i+1}] offset:{HB + 128*i}")
        A(f"v_lshrrev_b32 v{vC+4}, 2, v2")
        A(f"v_lshl_add_u32 v{vC+4}, v3, 3, v{vC+4}")
        A(f"v_lshlrev_b32 v{vTR}, 7, v{vC+4}")
        A(f"v_lshl_add_u32 v{vTR}, v{vC+3}, 3, v{vTR}")
        A(f"v_add_u32 v{vTR}, {WT}, v{vTR}")
        A(f"v_mul_u32_u24 v{vAO}, 896, v{vC+3}")
        A(f"v_lshl_add_u32 v{vAO}, v3, 4, v{vAO}")
        A(f"v_add_u32 v{vAO}, s{sT2}, v{vAO}")
        A("s_waitcnt lgkmcnt(0)")
        vB4, vD4 = 36, 52
        for i in range(16):
            A(f"v_mov_b32 v{vD4+i}, 0")
        A(f"s_mov_b32 s{sCNT}, s{sN}")
        A.label("L_f2_mm")
        A(f"ds_read_b128 v[{vFA}:{vFA+3}], v{vAO} offset:{HB}")
        for cb in range(4):
            A(f"ds_read_b64_tr_b16 v[{vB4+4*cb}:{vB4+4*cb+1}], v{vTR} offset:{32*cb}")
            A(f"ds_read_b64_tr_b16 v[{vB4+4*cb+2}:{vB4+4*cb+3}], v{vTR} offset:{32*cb+512}")
        A(f"v_add_u32 v{vAO}, 64, v{vAO}")
        A(f"v_add_u32 v{vTR}, 4096, v{vTR}")
        A("s_waitcnt lgkmcnt(0)")
        for cb in range(4):
            d = vD4 + 4 * cb
            A(f"v_mfma_f32_16x16x32_bf16 v[{d}:{d+3}], v[{vFA}:{vFA+3}], v[{vB4+4*cb}:{vB4+4*cb+3}], v[{d}:{d+3}]")
        A(f"s_sub_u32 s{sCNT}, s{sCNT}, 1")
        A(f"s_cmp_lg_u32 s{sCNT}, 0")
        A("s_cbranch_scc1 L_f2_mm")
        A("s_nop 7")
        for i in range(1, 4):
            A(f"v_cmp_eq_u32 vcc, {i}, v3")
            A("s_nop 1")
            for cb in range(4):
                A(f"v_cndmask_b32 v{vD4+4*cb}, v{vD4+4*cb}, v{vD4+4*cb+i}, vcc")
        for cb in range(4):
            A(f"v_mov_b32 v{vD4+4*cb+1}, s{sTAG}")
        A(f"v_lshlrev_b32 v{vC}, 3, v1")
        A(f"s_and_b32 s{sT0}, s{sC}, 0xfc")
        A(f"s_lshl_b32 s{sT0}, s{sT0}, 2")
        A(f"s_add_u32 s{sT0}, s{sT0}, s{sKQ}")
        A(f"s_lshl_b32 s{sT0}, s{sT0}, 9")
        A(f"s_add_u32 s{sT0}, s{sT0}, {WS_FQ}")
        for cb in range(4):
            A(f"buffer_store_dwordx2 v[{vD4+4*cb}:{vD4+4*cb+1}], v{vC}, s[{WSS}:{WSS+3}], s{sT0} offen sc1")
            A(f"s_add_u32 s{sT0}, s{sT0}, 2048")
        A(f"s_lshl_b32 s{sT0}, s{sC}, 11")
        A(f"s_add_u32 s{sT0}, s{sT0}, {WS_FQ}")
        A("s_waitcnt vmcnt(0)")
        A("s_branch L_p")
        A.label("L_pr")
        A(f"s_sleep {gsleep // 2}")
        A.label("L_p")
        for i in range(4):
            A(f"buffer_load_dwordx2 v[{vH+2*i}:{vH+2*i+1}], v{vC}, s[{WSS}:{WSS+3}], s{sT0} offen offset:{512*i} sc1")
        A("s_waitcnt vmcnt(0)")
        for i in range(4):
            A(f"v_xor_b32 v{vH+2*i+1}, s{sTAG}, v{vH+2*i+1}")
        A(f"v_or3_b32 v{vH+1}, v{vH+1}, v{vH+3}, v{vH+5}")
        A(f"v_or_b32 v{vH+1}, v{vH+1}, v{vH+7}")
        A(f"v_cmp_ne_u32 vcc, 0, v{vH+1}")
        A("s_nop 1")
        A("s_cbranch_vccnz L_pr")
        A(f"s_cmp_lg_u32 s{sROLE}, 128")
        A("s_cbranch_scc1 L_noep")
        A(f"v_mov_b32 v{vC+2}, {WS_EP:#x}")
        A(f"v_mov_b32 v{vC+3}, s{sTAG}")
        A("s_mov_b64 exec, 1")
        A(f"buffer_store_dword v{vC+3}, v{vC+2}, s[{WSS}:{WSS+3}], 0 offen sc1")
        A("s_mov_b64 exec, -1")
        A.label("L_noep")
        A(f"v_add_f32 v20, v{vH}, v{vH+2}")
        A(f"v_add_f32 v21, v{vH+4}, v{vH+6}")
        A("v_add_f32 v20, v20, v21")
        round_bf16([20])
        A(f"s_mov_b32 s{sT1}, {f2u(-L2E):#x}")
        A(f"v_mul_f32 v21, s{sT1}, v20")
        A("v_exp_f32 v21, v21")
        A("s_nop 0")
        A("v_add_f32 v21, 1.0, v21")
        A("v_rcp_f32 v21, v21")
        A("s_nop 0")
        A("v_mul_f32 v21, v21, v20")
        round_bf16([21])
        A(f"ds_write_b32 v{vO1}, v21 offset:{GB}")
        A("s_waitcnt lgkmcnt(0)")
    A.label("L_idle")
    vML = 20
    vE = 28
    vAd = 30
    vZ = 31
    vSO = 32
    vOUT = 33
    vOA = 36
    vTA = 52
    A(f"v_and_b32 v{vAd}, 3, v1")
    A(f"v_lshlrev_b32 v{vAd}, 8, v{vAd}")
    A(f"v_lshl_add_u32 v{vAd}, v3, 4, v{vAd}")
    A(f"v_mov_b32 v{vZ}, 0")
    A(f"s_lshl_b32 s{sT0}, s{sB}, 5")
    A(f"s_add_u32 s{sT0}, s{sT0}, s{sH}")
    A(f"s_lshl_b32 s{sT0}, s{sT0}, 1")
    A(f"s_add_u32 s{sT0}, s{sT0}, s{sSPLIT}")
    A(f"s_lshl_b32 s{sT0}, s{sT0}, 6")
    A(f"s_mul_i32 s{sT1}, s{sA}, {10*16384}")
    A(f"s_add_u32 s{sT0}, s{sT0}, s{sT1}")
    A(f"v_lshlrev_b32 v{vSO}, 14, v3")
    A(f"v_lshl_add_u32 v{vSO}, v2, 2, v{vSO}")
    A(f"v_add_u32 v{vSO}, s{sT0}, v{vSO}")
    A(f"s_mov_b32 s{sCNT}, {4*16384}")
    vSO2 = 92
    sGM = F0S
    A(f"v_add_u32 v{vSO2}, {8*16384}, v{vSO}")
    A("v_mov_b32 v93, 0x7ffffff0")
    A("v_cmp_gt_u32 vcc, 32, v1")
    A(f"s_mov_b32 s{sGM}, 0xffff0000")
    A(f"s_mov_b32 s{sGM+1}, 0")
    A(f"v_cndmask_b32 v{vSO2}, v93, v{vSO2}, vcc")
    A("v_cmp_eq_u32 vcc, 192, v0")
    A(f"s_mov_b32 s{sGM+2}, 0")
    A(f"s_mov_b32 s{sGM+3}, 0xffff")
    A(f"v_cndmask_b32 v{vO3}, v93, v{vO3}, vcc")
    A(f"s_mov_b32 s{sGM+4}, 0")
    A(f"s_mov_b32 s{sGM+5}, 0xffff0000")
    A(f"s_sub_u32 s{sT3}, s{sROLE}, 128")
    A(f"s_lshl_b32 s{sT0}, s{sT3}, 2")
    A(f"s_add_u32 s{sT0}, s{sT0}, s{sA}")
    A(f"s_lshl_b32 s{sT0}, s{sT0}, 12")
    A(f"v_lshlrev_b32 v14, 4, v1")
    A(f"s_lshl_b32 s{sT1}, s{sA}, 12")
    A(f"s_add_u32 s{sT1}, s{sT1}, {WS_ML}")
    A(f"v_lshrrev_b32 v15, 3, v1")
    A(f"v_lshlrev_b32 v15, 7, v15")
    A("v_and_b32 v16, 3, v1")
    A("v_lshlrev_b32 v16, 2, v16")
    A("v_and_b32 v17, 1, v3")
    A("v_lshl_add_u32 v16, v17, 1, v16")
    A("v_lshrrev_b32 v17, 1, v3")
    A("v_add_u32 v16, v16, v17")
    A(f"s_mul_i32 s{sT2}, s{sA}, 1280")
    A(f"s_lshl_b32 s{sOFF}, s{sT3}, 5")
    A(f"s_add_u32 s{sT2}, s{sT2}, s{sOFF}")
    A(f"v_lshl_add_u32 v17, v16, 1, s{sT2}")
    A(f"s_lshl_b32 s{sOFF}, s{sA}, 6")
    A(f"v_lshl_add_u32 v19, v16, 2, s{sOFF}")
    srd(OUTS, pOUT, None, 5120)
    A(f"s_cmp_ge_u32 s{sT3}, 40")
    A("s_cbranch_scc1 L_nopre")
    A(f"buffer_load_ushort v18, v17, s[{XS}:{XS+3}], 0 offen")
    if touchout:
        A(f"buffer_load_ushort v94, v17, s[{OUTS}:{OUTS+3}], 0 offen")
    A.label("L_nopre")
    A("s_waitcnt vmcnt(0)")
    stamp(3)
    A("s_barrier")
    stamp(4)
    if stamps: A("s_waitcnt lgkmcnt(0)")
    for ks in range(4):
        A(f"ds_read_b128 v[{vOA+4*ks}:{vOA+4*ks+3}], v{vAd} offset:{OP + 64*ks}")
    for w in range(0, NS, 2):
        A(f"ds_read_b128 v[{vML+2*w}:{vML+2*w+3}], v{vZ} offset:{ML + 8*w}")
    queue = []
    slot = [0]
    def emit(x):
        A(x); slot[0] += 1
    def drain(budget):
        while queue and budget > 0 and queue[0][0] <= slot[0]:
            _, x, wgt = queue.pop(0)
            emit(x); budget -= wgt
    def push(xs, earliest=0, wgt=1):
        for x in xs: queue.append((earliest, x, wgt))
    push(["s_waitcnt lgkmcnt(0)"], wgt=0)
    push([f"v_max3_f32 v{vE}, v{vML}, v{vML+2}, v{vML+4}", f"v_max_f32 v{vE}, v{vE}, v{vML+6}"])
    push([f"v_sub_f32 v{vML+2*w}, v{vML+2*w}, v{vE}" for w in range(4)])
    push([f"v_mul_f32 v{vML+2*w}, s{sL2E}, v{vML+2*w}" for w in range(4)])
    push([f"v_exp_f32 v{vML+2*w}, v{vML+2*w}" for w in range(4)], wgt=2)
    push([f"v_min_u32 v{vE}, -2, v{vE}", f"v_mul_f32 v{vE+1}, v{vML}, v{vML+1}"])
    push([f"v_fmac_f32 v{vE+1}, v{vML+2*w}, v{vML+2*w+1}" for w in range(1, 4)])
    push([f"v_min_u32 v{vE+1}, -2, v{vE+1}",
          f"buffer_store_dwordx2 v[{vE}:{vE+1}], v{vO3}, s[{WSS}:{WSS+3}], 0 offen sc1"])
    def comb(cb):
        q, g = divmod(cb, 4)
        d = vTA + 4 * cb
        tgt = vOUT + q if g == 0 else d
        r = [f"v_mul_f32 v{tgt}, v{d}, v{vML}"] + [f"v_fmac_f32 v{tgt}, v{d+w}, v{vML+2*w}" for w in range(1, 4)]
        if g:
            r.append(f"v_cndmask_b32 v{vOUT+q}, v{vOUT+q}, v{d}, s[{sGM+2*(g-1)}:{sGM+2*(g-1)+1}]")
        if g == 3 or cb == 9:
            so = ("0", f"s{sCNT}", "0")[q]
            vo = vSO if q < 2 else vSO2
            r += [f"v_min_u32 v{vOUT+q}, -2, v{vOUT+q}",
                  f"buffer_store_dword v{vOUT+q}, v{vo}, s[{WSS}:{WSS+3}], {so} offen sc1" if not nopub else "s_nop 0"]
        return r
    for cb in range(10):
        for ks in range(4):
            if cb == 0:
                emit(f"s_waitcnt lgkmcnt({5 - ks})")
            r = vW + 4 * (cb * 4 + ks)
            d = vTA + 4 * cb
            c = "0" if ks == 0 else f"v[{d}:{d+3}]"
            emit(f"v_mfma_f32_16x16x32_bf16 v[{d}:{d+3}], v[{vOA+4*ks}:{vOA+4*ks+3}], v[{r}:{r+3}], {c}")
            if ks == 3:
                push(comb(cb), earliest=slot[0] + 8)
            if cb > 0 or ks == 3:
                drain(2)
    while queue:
        gap = queue[0][0] - slot[0]
        if gap > 0:
            A(f"s_nop {gap - 1}"); slot[0] += gap
        drain(100)
    stamp(6)
    A(f"s_cmp_ge_u32 s{sT3}, 40")
    A("s_cbranch_scc1 L_fin")
    if nofinal:
        A("s_branch L_fin")
    A(f"ds_read_b32 v19, v19 offset:{GB}")
    vT, vMLp = 96, 112
    if poll2:
        def tload():
            for n in range(4):
                A(f"buffer_load_dwordx4 v[{vT+4*n}:{vT+4*n+3}], v14, s[{WSS}:{WSS+3}], s{sT0} offen offset:{1024*n} sc1")
        def anymark(v):
            A(f"v_max3_u32 v20, v{v}, v{v+1}, v{v+2}")
            A(f"v_max3_u32 v21, v{v+3}, v{v+4}, v{v+5}")
            for i in range(6, 14, 4):
                A(f"v_max3_u32 v20, v20, v{v+i}, v{v+i+1}")
                A(f"v_max3_u32 v21, v21, v{v+i+2}, v{v+i+3}")
            A(f"v_max3_u32 v20, v20, v{v+14}, v{v+15}")
            A("v_max_u32 v20, v20, v21")
            A("v_cmp_eq_u32 vcc, -1, v20")
        A.label("L_poll")
        for n in range(4):
            A(f"buffer_load_dwordx4 v[{vMLp+4*n}:{vMLp+4*n+3}], v15, s[{WSS}:{WSS+3}], s{sT1} offen offset:{1024*n} sc1")
        A("s_waitcnt vmcnt(0)")
        anymark(vMLp)
        A("s_nop 1")
        A("s_cbranch_vccnz L_poll")
        tload()
        A("v_bfe_u32 v20, v1, 2, 1")
        A("v_cmp_eq_u32 vcc, 1, v20")
        for n in range(4):
            m0, l0, m1, l1 = [vMLp + 4 * n + i for i in range(4)]
            A(f"v_max_f32 v21, v{m0}, v{m1}")
            A(f"v_sub_f32 v{m0}, v{m0}, v21")
            A(f"v_sub_f32 v{m1}, v{m1}, v21")
            A(f"v_mul_f32 v{m0}, s{sL2E}, v{m0}")
            A(f"v_mul_f32 v{m1}, s{sL2E}, v{m1}")
            A(f"v_exp_f32 v{m0}, v{m0}")
            A(f"v_exp_f32 v{m1}, v{m1}")
        A("s_nop 0")
        for n in range(4):
            m0, l0, m1, l1 = [vMLp + 4 * n + i for i in range(4)]
            A(f"v_mul_f32 v{l0}, v{l0}, v{m0}")
            A(f"v_fmac_f32 v{l0}, v{l1}, v{m1}")
            A(f"v_rcp_f32 v{l0}, v{l0}")
            A(f"v_cndmask_b32 v{m0}, v{m0}, v{m1}, vcc")
        A("s_nop 0")
        for n in range(4):
            m0, l0, m1, l1 = [vMLp + 4 * n + i for i in range(4)]
            A(f"v_mul_f32 v{m0}, v{m0}, v{l0}")
        A("s_branch L_pt1")
        A.label("L_pt")
        tload()
        A.label("L_pt1")
        A("s_waitcnt vmcnt(0)")
        anymark(vT)
    else:
        if psleep:
            A("s_branch L_poll1")
        A.label("L_poll")
        if psleep:
            A(f"s_sleep {psleep}")
            A.label("L_poll1")
        for n in range(4):
            A(f"buffer_load_dwordx4 v[{vT+4*n}:{vT+4*n+3}], v14, s[{WSS}:{WSS+3}], s{sT0} offen offset:{1024*n} sc1")
        for n in range(4):
            A(f"buffer_load_dwordx4 v[{vMLp+4*n}:{vMLp+4*n+3}], v15, s[{WSS}:{WSS+3}], s{sT1} offen offset:{1024*n} sc1")
        A("s_waitcnt vmcnt(0)")
        A(f"v_max3_u32 v20, v{vT}, v{vT+1}, v{vT+2}")
        A(f"v_max3_u32 v21, v{vT+3}, v{vT+4}, v{vT+5}")
        for i in range(6, 30, 4):
            A(f"v_max3_u32 v20, v20, v{vT+i}, v{vT+i+1}")
            A(f"v_max3_u32 v21, v21, v{vT+i+2}, v{vT+i+3}")
        A(f"v_max3_u32 v20, v20, v{vT+30}, v{vT+31}")
        A("v_max_u32 v20, v20, v21")
        A("v_cmp_eq_u32 vcc, -1, v20")
        A("s_nop 1")
        A("s_cbranch_vccnz L_poll")
        stamp(5)
        A("v_bfe_u32 v20, v1, 2, 1")
        A("v_cmp_eq_u32 vcc, 1, v20")
        for n in range(4):
            m0, l0, m1, l1 = [vMLp + 4 * n + i for i in range(4)]
            A(f"v_max_f32 v21, v{m0}, v{m1}")
            A(f"v_sub_f32 v{m0}, v{m0}, v21")
            A(f"v_sub_f32 v{m1}, v{m1}, v21")
            A(f"v_mul_f32 v{m0}, s{sL2E}, v{m0}")
            A(f"v_mul_f32 v{m1}, s{sL2E}, v{m1}")
            A(f"v_exp_f32 v{m0}, v{m0}")
            A(f"v_exp_f32 v{m1}, v{m1}")
        A("s_nop 0")
        for n in range(4):
            m0, l0, m1, l1 = [vMLp + 4 * n + i for i in range(4)]
            A(f"v_mul_f32 v{l0}, v{l0}, v{m0}")
            A(f"v_fmac_f32 v{l0}, v{l1}, v{m1}")
            A(f"v_rcp_f32 v{l0}, v{l0}")
            A(f"v_cndmask_b32 v{m0}, v{m0}, v{m1}, vcc")
        A("s_nop 0")
        for n in range(4):
            m0, l0, m1, l1 = [vMLp + 4 * n + i for i in range(4)]
            A(f"v_mul_f32 v{m0}, v{m0}, v{l0}")
    for n in range(4):
        for i in range(4):
            if n == 0:
                A(f"v_mul_f32 v{24+i}, v{vT+i}, v{vMLp}")
            else:
                A(f"v_fmac_f32 v{24+i}, v{vT+4*n+i}, v{vMLp+4*n}")
    if poll2:
        A("s_cbranch_vccnz L_pt")
        stamp(5)
        A("s_nop 0")
    else:
        A("s_nop 1")
    A("v_permlane32_swap_b32 v24, v25")
    A("v_permlane32_swap_b32 v26, v27")
    A("v_add_f32 v24, v24, v25")
    A("v_add_f32 v26, v26, v27")
    A("s_nop 1")
    A("v_permlane16_swap_b32 v24, v26")
    A("v_add_f32 v24, v24, v26")
    A("s_nop 1")
    A("v_add_f32_dpp v24, v24, v24 row_ror:4 row_mask:0xf bank_mask:0xf")
    A("s_nop 1")
    A("v_add_f32_dpp v24, v24, v24 row_ror:8 row_mask:0xf bank_mask:0xf")
    A("s_waitcnt lgkmcnt(0)")
    round_bf16([24])
    A("v_mul_f32 v24, v24, v19")
    round_bf16([24])
    A("v_lshlrev_b32 v18, 16, v18")
    A("v_add_f32 v24, v24, v18")
    A("v_cvt_pk_bf16_f32 v24, v24, v24")
    A("s_mov_b32 exec_lo, 0x000f000f")
    A("s_mov_b32 exec_hi, 0x000f000f")
    A(f"buffer_store_short v24, v17, s[{OUTS}:{OUTS+3}], 0 offen")
    A("s_mov_b64 exec, -1")
    A.label("L_fin")
    if stamps:
        A("s_waitcnt vmcnt(0)")
        stamp(7)
        A(f"s_cmp_lg_u32 s{sA}, 0")
        A("s_cbranch_scc1 L_end")
        A("s_waitcnt lgkmcnt(0)")
        for i in range(NSTAMP):
            A(f"v_mov_b32 v{20+i}, s{sST+2*i}")
        if dbgst:
            A("s_cmp_eq_u32 s2, 0")
            A("s_cbranch_scc1 L_dbgw")
            A("s_cmp_lg_u32 s2, 255")
            A("s_cbranch_scc1 L_end")
            A.label("L_dbgw")
            for i in range(1, NSTAMP):
                A(f"v_sub_u32 v{20+i}, v{20+i}, v20")
            A("s_and_b32 s61, s2, 32")
            A("v_mov_b32 v30, s61")
            A("s_mov_b64 exec, 1")
            A(f"global_store_dwordx4 v30, v[20:23], s[{pDBG}:{pDBG+1}]")
            A(f"global_store_dwordx4 v30, v[24:27], s[{pDBG}:{pDBG+1}] offset:16")
            A("s_endpgm")
        A(f"s_getreg_b32 s{sT1}, hwreg(HW_REG_XCC_ID)")
        A(f"s_getreg_b32 s{sT2}, hwreg(HW_REG_HW_ID)")
        A(f"s_lshl_b32 s{sT0}, s2, 3")
        A(f"s_add_u32 s{sT0}, s{sT0}, {WS_STAMP + 0x10000}")
        A(f"v_mov_b32 v30, s{sT0}")
        A(f"v_mov_b32 v28, s{sT1}")
        A(f"v_mov_b32 v29, s{sT2}")
        A("s_mov_b64 exec, 1")
        A(f"global_store_dwordx2 v30, v[28:29], s[{pWS}:{pWS+1}]")
        A("s_mov_b64 exec, -1")
        A(f"s_lshl_b32 s{sT0}, s2, 5")
        A(f"s_add_u32 s{sT0}, s{sT0}, {WS_STAMP}")
        A(f"v_mov_b32 v30, s{sT0}")
        A("s_mov_b64 exec, 1")
        A(f"global_store_dwordx4 v30, v[20:23], s[{pWS}:{pWS+1}]")
        A(f"global_store_dwordx4 v30, v[24:27], s[{pWS}:{pWS+1}] offset:16")
    A.label("L_end")
    A("s_endpgm")
    out += A.text()
    nv = max(RING + 16 * (R + E) + (1 if tl else 0), vW + 4 * NL, 128)
    assert nv <= 256
    out += f"""
.section .rodata,"a"
.p2align 6
.amdhsa_kernel {NAME}
  .amdhsa_next_free_vgpr {nv}
  .amdhsa_next_free_sgpr 96
  .amdhsa_accum_offset {(nv + 3) // 4 * 4}
  .amdhsa_group_segment_fixed_size 0
  .amdhsa_kernarg_size 96
  .amdhsa_user_sgpr_count 2
  .amdhsa_user_sgpr_kernarg_segment_ptr 1
  .amdhsa_system_sgpr_workgroup_id_x 1
  .amdhsa_float_denorm_mode_32 3
.end_amdhsa_kernel
"""
    return out

if __name__ == "__main__":
    kw = eval("dict(" + (sys.argv[1] if len(sys.argv) > 1 else "") + ")")
    sys.stdout.write(gen(**kw))
```

```python
import sys, struct

NAME = "recurrent_scan__mha_block_cached__geglu_ffn__decode_kernel"

def f2u(x):
    return struct.unpack("<I", struct.pack("<f", x))[0]

HEADER = """; Kernarg layout for this problem (96 bytes, ptrs only, base s[0:1]):
;
"""

class Gen:
    def __init__(self):
        self.o = []
    def __call__(self, s):
        self.o.append("    " + s)
    def label(self, s):
        self.o.append(s + ":")
    def c(self, s):
        self.o.append("    ; " + s)
    def text(self):
        return "\n".join(self.o) + "\n"


def gen(dbgst=0, tl=0, NS=4, DEPTH=4, kvflags="nt", wqflags="nt", woflags="nt", ffnflags="nt", auxprio=1, stamps=0,
        wqwin=40, wowin=40, f1win=20, f2win=16, shift=0, gsleep=127,
        nowo=0, noffn=0, nowq=0, noaux=0, nosig=0, nofinal=0, bar0=0, badloc=0, cap=0, ffnfirst=0, fine=0, pcap=0, nowqn=0, endn=0, tlbpf=0, tlbflags="nt", evenc=0, hmap=0, rotq=0, pre0=0, bar0at=40, nofp=0, nogather=0, predelay=0, noflagpoll=0, nofpf=None, noclear=0, noclrf=None, boost=0, bcap=1, st4x=0, touchout=1, pb=None, pball=0, who="odd", capv=None, R=4, nowoh=0, nowolin=0, wpf=0, pfflags="", stag=None, lnfirst=0, nowqd=0, psleep=0, nopub=0, E=0, ctl=None, modes=((5,5),(6,5),(7,6),(8,8)), thr=(4, 11, 14), npeer=16, ctltest=0, csleep=2, cloc=1, cst="", cld="sc1", xg=0, ffn1=0, poll2=0, kctl=1, sthr=(4, 16), kthr=(0, 40, 40), emodes=((9, 9), (16, 16)), fast1=1, xbias=0, gmask=0x15, bmask=0xf0, auxtop=0):
    A = Gen()
    modes = tuple(modes) + tuple(emodes)
    NA = 4
    NW = NS + NA
    XND = 0
    XNB = XND + 10240
    QP = XNB + 5120
    QB = QP + NA * 512
    OP = QB + NS * 256
    ML = OP + NS * 256
    FLG = ML + 64
    PM = FLG + 16
    GB = PM + 16
    HB = GB + 256
    SC = HB + 3584
    TP = SC + NS * 2304
    WT = TP + NA * 10240
    LDS = WT + 448 * 128
    assert WT % 16 == 0 and HB % 16 == 0 and TP % 16 == 0
    WS_T = 0
    WS_ML = 0xA0000
    WS_H = 0xA4000
    WS_EP = 0xAC000
    WS_HL = 0xB0000
    WS_FQ = 0xB8000
    WS_CP = 0xD0000
    WS_SIZE = WS_CP + 64 * 4096
    WS_STAMP = 0x200000
    L2E = 1.4426950408889634
    SCALE = 128 ** -0.5

    sWAVE, sX8, sSLOT, sSPLIT, sB, sH = 3, 4, 5, 6, 7, 60
    KS, VS = 8, 12
    WQS, WOS = 8, 12
    WSS = 16
    XS = 20
    F0S, F1S = 24, 28
    OUTS = 32
    P = 36
    pX, pK, pV, pWQ, pWO, pBX, pWG, pWU, pWD, pOUT, pDBG, pWS = [P + 2 * i for i in range(12)]
    sT0, sT1, sT2, sT3 = 61, 62, 63, 64
    sOFF, sCNT, sM, sL2E, sSC, sA, sHS = 65, 66, 67, 68, 69, 70, 71
    sEX = 72
    sTAG, sROLE = 74, 75
    sST = 76
    sNU = 95
    NSTAMP = 8
    def stamp(i):
        if stamps:
            A(f"s_memrealtime s[{sST+2*i}:{sST+2*i+1}]")

    def srd(dst, ptr, add_lo, nrec):
        if add_lo is None:
            A(f"s_mov_b32 s{dst}, s{ptr}")
            A(f"s_mov_b32 s{dst+1}, s{ptr+1}")
        else:
            A(f"s_add_u32 s{dst}, s{ptr}, {add_lo}")
            A(f"s_addc_u32 s{dst+1}, s{ptr+1}, 0")
        A(f"s_mov_b32 s{dst+2}, {nrec}")
        A(f"s_mov_b32 s{dst+3}, 0x20000")

    out = HEADER
    out += f"; @launch grid=(256,1,1) block=({NW*64},1,1) lds={LDS}\n"
    out += '.amdgcn_target "amdgcn-amd-amdhsa--gfx950"\n.text\n'
    out += f".globl {NAME}\n.p2align 8\n.type {NAME},@function\n{NAME}:\n"

    A("s_cmp_ge_u32 s2, 256")
    A("s_cbranch_scc1 L_end")
    stamp(0)
    A(f"s_load_dwordx16 s[{P}:{P+15}], s[0:1], 0")
    A(f"s_load_dwordx8 s[{P+16}:{P+23}], s[0:1], 64")
    A("v_lshrrev_b32 v4, 6, v0")
    A("v_and_b32 v1, 63, v0")
    A(f"v_readfirstlane_b32 s{sWAVE}, v4")
    A("v_and_b32 v2, 15, v1")
    A("v_lshrrev_b32 v3, 4, v1")
    if badloc:
        A(f"s_lshr_b32 s{sX8}, s2, 5")
        A(f"s_and_b32 s{sSLOT}, s2, 31")
    else:
        A(f"s_and_b32 s{sX8}, s2, 7")
        A(f"s_lshr_b32 s{sSLOT}, s2, 3")
    A(f"s_and_b32 s{sSPLIT}, s{sSLOT}, 1")
    A(f"s_lshr_b32 s{sB}, s{sSLOT}, 1")
    A(f"s_and_b32 s{sB}, s{sB}, 3")
    if hmap == "plan2":
        A(f"s_lshr_b32 s{sH}, s{sSLOT}, 3")
        A(f"s_lshl_b32 s{sT0}, s{sX8}, 2")
        A(f"s_add_u32 s{sH}, s{sH}, s{sT0}")
    else:
        A(f"s_lshr_b32 s{sH}, s{sSLOT}, 3")
        A(f"s_mul_i32 s{sT0}, s{sH}, {hmap}")
        A(f"s_add_u32 s{sT0}, s{sT0}, s{sX8}")
        A(f"s_and_b32 s{sT0}, s{sT0}, 7")
        A(f"s_lshl_b32 s{sH}, s{sH}, 3")
        A(f"s_add_u32 s{sH}, s{sH}, s{sT0}")
    A(f"s_mov_b32 s{sL2E}, {f2u(L2E):#x}")
    A(f"s_mov_b32 s{sSC}, {f2u(SCALE):#x}")
    MK = 4
    A("v_and_b32 v8, 1, v2")
    A("v_lshlrev_b32 v8, 4, v8")
    A("v_mov_b32 v9, 0xffff")
    A("v_lshlrev_b32 v8, v8, v9")
    A("v_lshrrev_b32 v9, 1, v2")
    A(f"s_lshr_b32 s{sT0}, {gmask:#x}, s{sX8}")
    A(f"s_and_b32 s{sT0}, s{sT0}, 1")
    A(f"s_lshl_b32 s{sT0}, s{sT0}, 2")
    A(f"s_add_u32 s{sNU}, s{sT0}, 12")
    A(f"s_cmp_lt_u32 s{sWAVE}, {NA}")
    A("s_cbranch_scc1 L_aux")

    vOA_, vOB_ = 18, 19
    vM, vL, vNM, vSA, vTM = 10, 11, 12, 13, 17
    vT0, vT1 = 14, 15
    vVA = 16
    vACC = 20
    vS = 24
    vP = 28
    vQ = 32
    vS2 = 40
    vA = 48
    RING = 64
    sN, sOFF0 = sHS, sA
    def reg(slot, i): return RING + slot * 16 + i * 4
    A.c("---- streaming wave ----")
    A(f"s_sub_u32 s{sWAVE}, s{sWAVE}, {NA}")
    A(f"v_lshlrev_b32 v{vOA_}, 8, v9")
    A(f"v_and_b32 v{vOB_}, 1, v2")
    A(f"v_lshl_add_u32 v{vOA_}, v{vOB_}, 6, v{vOA_}")
    A(f"v_lshl_add_u32 v{vOA_}, v3, 4, v{vOA_}")
    A(f"v_add_u32 v{vOB_}, 128, v{vOA_}")
    RB = 2 << 20
    STEP = NS * 4096
    A(f"s_lshr_b32 s{sT2}, s{sSLOT}, 1")
    A(f"s_cmp_lt_u32 s{sT2}, s{sNU}")
    A(f"s_cselect_b32 s{sT1}, {shift}, 0")
    A(f"s_add_u32 s{sT1}, s{sT1}, 256")
    A(f"s_sub_u32 s{sT2}, 512, s{sT1}")
    A(f"s_cmp_eq_u32 s{sSPLIT}, 0")
    A(f"s_cselect_b32 s{sCNT}, s{sT1}, s{sT2}")
    A(f"s_cselect_b32 s{sOFF}, 0, s{sT1}")
    A(f"s_add_u32 s{sOFF}, s{sOFF}, s{sWAVE}")
    A(f"s_lshl_b32 s{sOFF}, s{sOFF}, 12")
    A(f"s_mov_b32 s{sOFF0}, s{sOFF}")
    A(f"s_sub_u32 s{sCNT}, s{sCNT}, s{sWAVE}")
    A(f"s_add_u32 s{sCNT}, s{sCNT}, {NS-1}")
    A(f"s_lshr_b32 s{sCNT}, s{sCNT}, {NS.bit_length()-1}")
    A(f"s_mov_b32 s{sN}, s{sCNT}")
    A(f"s_lshl_b32 s{sT0}, s{sB}, 5")
    A(f"s_add_u32 s{sT0}, s{sT0}, s{sH}")
    A(f"s_lshl_b32 s{sT0}, s{sT0}, 21")
    A("s_waitcnt lgkmcnt(0)")
    srd(KS, pK, f"s{sT0}", RB)
    A(f"s_add_u32 s{VS}, s{pV}, s{sT0}")
    A(f"s_addc_u32 s{VS+1}, s{pV+1}, 0")
    def issue(slot, w=None):
        for i in range(4):
            r = reg(slot, i)
            if w is not None: A(f"s_waitcnt vmcnt({w - 1})")
            A(f"buffer_load_dwordx4 v[{r}:{r+3}], v{(vOA_, vOB_)[i & 1]}, s[{KS}:{KS+3}], s{sOFF} offen offset:{2048*(i >> 1)} {kvflags}")
        A(f"s_add_u32 s{sOFF}, s{sOFF}, {STEP}")
    def window(slot):
        return cap if (slot & 1) == 0 or not capv else capv
    def weight_prefetch():
        PS = F0S
        vPF, vD = 20, 24
        A(f"s_bfm_b32 s{sT0}, s{sX8}, 0")
        A(f"s_and_b32 s{sT0}, s{sT0}, {gmask:#x}")
        A(f"s_bcnt1_i32_b32 s{sT0}, s{sT0}")
        A(f"s_cmp_eq_u32 s{sWAVE}, 0")
        A("s_cbranch_scc1 L_pf_wo")
        A(f"s_cmp_eq_u32 s{sWAVE}, 3")
        A("s_cbranch_scc1 L_pf_wd")
        A(f"s_cmp_eq_u32 s{sWAVE}, 1")
        A(f"s_cselect_b32 s{PS}, s{pWG}, s{pWU}")
        A(f"s_cselect_b32 s{PS+1}, s{pWG+1}, s{pWU+1}")
        A(f"s_mov_b32 s{PS+2}, {640*3456}")
        A(f"s_mov_b32 s{PS+3}, 0x20000")
        A(f"s_mul_i32 s{sT1}, s{sX8}, {12*32}")
        A(f"s_lshl_b32 s{sT2}, s{sT0}, 7")
        A(f"s_add_u32 s{sT1}, s{sT1}, s{sT2}")
        A(f"s_mul_i32 s{sT2}, s{sSLOT}, {20*3456}")
        A(f"s_add_u32 s{sT1}, s{sT1}, s{sT2}")
        A(f"v_lshrrev_b32 v{vPF}, 3, v1")
        A(f"v_mul_u32_u24 v{vPF}, 3456, v{vPF}")
        A(f"v_and_b32 v{vPF+1}, 7, v1")
        A(f"v_lshl_add_u32 v{vPF}, v{vPF+1}, 6, v{vPF}")
        A(f"s_lshr_b32 s{sT2}, s{sNU}, 1")
        A(f"v_cmp_gt_u32 vcc, s{sT2}, v{vPF+1}")
        A(f"v_mov_b32 v{vPF+2}, 0x7ffffff0")
        A("s_nop 0")
        A(f"v_cndmask_b32 v{vPF}, v{vPF+2}, v{vPF}, vcc")
        A(f"v_cmp_gt_u32 vcc, 32, v1")
        A(f"buffer_load_dword v{vD}, v{vPF}, s[{PS}:{PS+3}], s{sT1} offen {pfflags}")
        A(f"s_add_u32 s{sT1}, s{sT1}, {8*3456}")
        A(f"buffer_load_dword v{vD+1}, v{vPF}, s[{PS}:{PS+3}], s{sT1} offen {pfflags}")
        A(f"s_add_u32 s{sT1}, s{sT1}, {8*3456}")
        A(f"v_cndmask_b32 v{vPF+3}, v{vPF+2}, v{vPF}, vcc")
        A(f"buffer_load_dword v{vD+2}, v{vPF+3}, s[{PS}:{PS+3}], s{sT1} offen {pfflags}")
        A("s_branch L_pf_done")
        A.label("L_pf_wo")
        A(f"s_mul_i32 s{sT1}, s{sH}, {128*1280}")
        A(f"s_and_b32 s{sT2}, s{sSLOT}, 7")
        A(f"s_mul_i32 s{sT2}, s{sT2}, 20480")
        A(f"s_add_u32 s{sT1}, s{sT1}, s{sT2}")
        srd(PS, pWO, None, 4096 * 1280)
        A(f"v_lshlrev_b32 v{vPF}, 6, v1")
        for i in range(5):
            A(f"buffer_load_dword v{vD+i}, v{vPF}, s[{PS}:{PS+3}], s{sT1} offen {pfflags}")
            A(f"s_add_u32 s{sT1}, s{sT1}, 4096")
        A("s_branch L_pf_done")
        A.label("L_pf_wd")
        A(f"s_cmp_eq_u32 s{sNU}, 16")
        A("s_cbranch_scc1 L_pf_done")
        A(f"s_sub_u32 s{sT1}, s{sX8}, s{sT0}")
        A(f"s_lshl_b32 s{sT1}, s{sT1}, 8")
        A(f"s_mul_i32 s{sT2}, s{sSLOT}, {54*1280}")
        A(f"s_add_u32 s{sT1}, s{sT1}, s{sT2}")
        srd(PS, pWD, None, 1728 * 1280)
        A(f"v_lshrrev_b32 v{vPF}, 2, v1")
        A(f"v_mul_u32_u24 v{vPF}, 1280, v{vPF}")
        A(f"v_and_b32 v{vPF+1}, 3, v1")
        A(f"v_lshl_add_u32 v{vPF}, v{vPF+1}, 6, v{vPF}")
        A(f"v_cmp_gt_u32 vcc, 24, v1")
        A(f"v_mov_b32 v{vPF+2}, 0x7ffffff0")
        for i in range(3):
            A(f"buffer_load_dword v{vD+i}, v{vPF}, s[{PS}:{PS+3}], s{sT1} offen {pfflags}")
            A(f"s_add_u32 s{sT1}, s{sT1}, {16*1280}")
        A(f"v_cndmask_b32 v{vPF+3}, v{vPF+2}, v{vPF}, vcc")
        A(f"buffer_load_dword v{vD+3}, v{vPF+3}, s[{PS}:{PS+3}], s{sT1} offen {pfflags}")
        A.label("L_pf_done")
    if wpf == 1:
        weight_prefetch()
    for s in range(E + R):
        if stag:
            if s == 1 and wpf == 2:
                weight_prefetch()
            for grp in range(len(stag)):
                if stag[grp] == s:
                    A(f"s_and_b32 s{sT0}, s{sSLOT}, {len(stag) - 1}")
                    A(f"s_cmp_lg_u32 s{sT0}, {grp}")
                    A(f"s_cbranch_scc1 L_sg{grp}")
                    A("s_barrier")
                    A("s_barrier")
                    A.label(f"L_sg{grp}")
        elif pre0 == 4 * s:
            if wpf == 2:
                weight_prefetch()
            if bar0:
                A("s_barrier")
            if wpf == 3:
                weight_prefetch()
        issue(R + s if s < E else s - E, pcap if pcap else None)
    if wpf:
        A(f"s_waitcnt vmcnt({4 * (R + E) - pre0 if wpf != 1 else 4 * (R + E)})")
    for rr in range(4):
        A(f"v_cmp_eq_u32 vcc, {rr+4}, v9")
        A("s_nop 1")
        A(f"v_cndmask_b32 v{MK+rr}, 0, v8, vcc")
    A(f"v_lshlrev_b32 v{vVA}, 9, v3")
    A(f"v_lshl_add_u32 v{vVA}, v2, 4, v{vVA}")
    A(f"v_mov_b32 v{vM}, 0xff7fffff")
    A(f"v_mov_b32 v{vL}, 0")
    for i in range(4):
        A(f"v_mov_b32 v{vACC+i}, 0")
    A(f"v_lshlrev_b32 v{vT0}, 3, v1")
    A(f"s_lshl_b32 s{sT0}, s{sWAVE}, 8")
    A(f"s_add_u32 s{sT0}, s{sT0}, {QB}")
    A(f"v_lshl_add_u32 v{vT1}, v1, 2, s{sT0}")
    A(f"v_lshl_add_u32 v{vTM}, v3, 4, s{sT0}")
    A(f"v_lshrrev_b32 v{vNM}, 3, v2")
    A(f"v_lshl_add_u32 v{vTM}, v{vNM}, 6, v{vTM}")
    vEA, vEB = 8, 9
    A(f"s_lshl_b32 s{sT1}, s{sWAVE}, 8")
    A(f"s_add_u32 s{sT1}, s{sT1}, {OP - 16}")
    A(f"v_lshlrev_b32 v{vEA}, 4, v2")
    A(f"v_lshl_add_u32 v{vEA}, v3, 3, v{vEA}")
    A(f"v_add_u32 v{vEA}, s{sT1}, v{vEA}")
    A(f"s_lshl_b32 s{sT1}, s{sWAVE}, 3")
    A(f"s_add_u32 s{sT1}, s{sT1}, {ML}")
    A(f"v_mov_b32 v{vEB}, s{sT1}")
    A(f"s_mul_i32 s{sT3}, s{sWAVE}, 2304")
    A(f"s_add_u32 s{sT3}, s{sT3}, {SC}")
    A(f"v_lshl_add_u32 v{vSA}, v3, 3, s{sT3}")
    A(f"s_mov_b32 s{sEX}, 0x80008000")
    A(f"s_mov_b32 s{sEX+1}, 0x80008000")
    A("s_barrier")
    for a in range(NA):
        A(f"ds_read_b64 v[{vA+2*a}:{vA+2*a+1}], v{vT0} offset:{QP + a*512}")
    A("s_waitcnt lgkmcnt(0)")
    for a in range(1, NA):
        A(f"v_add_f32 v{vA}, v{vA}, v{vA+2*a}")
        A(f"v_add_f32 v{vA+1}, v{vA+1}, v{vA+2*a+1}")
    A(f"v_cvt_pk_bf16_f32 v{vA}, v{vA}, v{vA+1}")
    A(f"ds_write_b32 v{vT1}, v{vA}")
    A("s_waitcnt lgkmcnt(0)")
    for j in range(2):
        A(f"ds_read_b128 v[{vQ+4*j}:{vQ+4*j+3}], v{vTM} offset:{128*j}")
    A("s_waitcnt lgkmcnt(0)")
    W = 4 * (R - 1)
    vMD, vPA, vPW = (vQ, vQ + 1, vQ + 2) if not kctl else (0, 1, 2)
    if ctl and kctl:
        A(f"v_mov_b32 v{vMD}, 1")
        A(f"v_mov_b32 v{vPA}, 0")
        A(f"s_cmp_eq_u32 s{sWAVE}, 0")
        A(f"s_cselect_b32 s{sT1}, 0, 8")
        A(f"v_mov_b32 v{vPW}, s{sT1}")
    def tstamp(phase):
        if tl:
            A("s_memrealtime s[92:93]")
            A(f"s_lshr_b32 m0, s{sCNT}, 1")
            if phase == 0:
                A("s_add_u32 m0, m0, 32")
            A("s_and_b32 m0, m0, 63")
            A("s_waitcnt lgkmcnt(0)")
            A(f"v_writelane_b32 v{RING + 16*(R+E)}, s92, m0")
    def kbody(s, refill, vaddr, off, steer=False):
        for (j, d, qj) in ((0, vS2, 0), (2, vS2 + 4, 0), (1, vS2, 1), (3, vS2 + 4, 1)):
            r = reg(s, j)
            c = "0" if qj == 0 else f"v[{d}:{d+3}]"
            A(f"v_mfma_f32_16x16x32_bf16 v[{d}:{d+3}], v[{r}:{r+3}], v[{vQ+4*qj}:{vQ+4*qj+3}], {c}")
        if steer:
            for m in range(len(modes)):
                if m < len(modes) - 1:
                    A(f"s_cmp_lg_u32 s{sT2}, {m}")
                    A(f"s_cbranch_scc1 L_km{s}_{m}")
                issue(s, modes[m][s & 1])
                if m < len(modes) - 1:
                    A(f"s_branch L_kd{s}")
                    A.label(f"L_km{s}_{m}")
            A.label(f"L_kd{s}")
        elif refill:
            issue(s, window(s))
        else:
            A("s_nop 7")
        for i in range(4):
            A(f"v_add_f32_dpp v{vS+i}, v{vS2+2*i}, v{vS2+2*i+1} row_ror:8 row_mask:0xf bank_mask:0xf")
        A(f"v_cvt_pk_bf16_f32 v{vT0}, v{vS}, v{vS+1}")
        A(f"v_cvt_pk_bf16_f32 v{vT1}, v{vS+2}, v{vS+3}")
        A(f"v_max3_f32 v{vM}, v{vS}, v{vS+1}, v{vM}")
        A(f"v_lshlrev_b32 v{vP}, 16, v{vT0}")
        A(f"v_and_b32 v{vP+1}, 0xffff0000, v{vT0}")
        A(f"v_lshlrev_b32 v{vP+2}, 16, v{vT1}")
        A(f"v_and_b32 v{vP+3}, 0xffff0000, v{vT1}")
        A(f"v_max3_f32 v{vM}, v{vS+2}, v{vS+3}, v{vM}")
        for i in range(4):
            A(f"v_mul_f32 v{vP+i}, s{sSC}, v{vP+i}")
        A(f"v_cvt_pk_bf16_f32 v{vT0}, v{vP}, v{vP+1}")
        A(f"v_cvt_pk_bf16_f32 v{vT1}, v{vP+2}, v{vP+3}")
        A(f"s_mov_b64 exec, s[{sEX}:{sEX+1}]")
        A(f"ds_write_b64 v{vaddr}, v[{vT0}:{vT1}] offset:{off}")
        A("s_mov_b64 exec, -1")
    if E:
        ex = list(range(E))
        for s in range(R):
            A(f"s_waitcnt vmcnt({W})")
            kbody(s, True, vSA, 32 * (E + s))
            for _ in range((E + R - 1) // R):
                if ex:
                    e = ex.pop(0)
                    kbody(R + e, False, vSA, 32 * e)
        A(f"v_add_u32 v{vSA}, {32 * (E + R)}, v{vSA}")
        A(f"s_sub_u32 s{sCNT}, s{sCNT}, {E + R}")
    for s in range(R):
        A.label(f"L_k{s}")
        A(f"s_cmp_lg_u32 s{sCNT}, {R}")
        A(f"s_cbranch_scc1 L_kk{s}")
        A(f"s_mov_b32 s{KS}, s{VS}")
        A(f"s_mov_b32 s{KS+1}, s{VS+1}")
        A(f"s_mov_b32 s{sOFF}, s{sOFF0}")
        A(f"v_mov_b32 v{vOA_}, v{vVA}")
        A(f"v_add_u32 v{vOB_}, 256, v{vVA}")
        A.label(f"L_kk{s}")
        if ctl and kctl:
            A("s_waitcnt lgkmcnt(0)")
            A(f"v_readfirstlane_b32 s{sT2}, v{vMD}")
            A(f"s_add_u32 s{sT1}, s{sCNT}, s{sN}")
            A(f"v_mov_b32 v{vP}, s{sT1}")
            A(f"ds_read_b32 v{vMD}, v{vPA} offset:{PM + 4}")
            A(f"ds_write_b32 v{vPW}, v{vP} offset:{PM}")
        A(f"s_waitcnt vmcnt({W})")
        kbody(s, True, vSA, 0, steer=bool(ctl and kctl))
        A(f"v_add_u32 v{vSA}, 32, v{vSA}")
        tstamp(0)
        A(f"s_sub_u32 s{sCNT}, s{sCNT}, 1")
        A(f"s_cmp_eq_u32 s{sCNT}, 0")
        A(f"s_cbranch_scc1 L_t{(s + 1) % R}")
    A("s_branch L_k0")
    for s in range(R):
        A.label(f"L_t{s}")
        A(f"s_mov_b32 s{sT0}, {s}")
        if s < R - 1:
            A("s_branch L_tr")
    A.label("L_tr")
    if ctl and not kctl:
        A(f"v_mov_b32 v{vMD}, 1")
        A(f"v_mov_b32 v{vPA}, 0")
        A(f"s_cmp_eq_u32 s{sWAVE}, 0")
        A(f"s_cselect_b32 s{sT1}, 0, 8")
        A(f"v_mov_b32 v{vPW}, s{sT1}")
    A(f"v_lshl_add_u32 v{vSA}, v3, 3, s{sT3}")
    A("s_waitcnt lgkmcnt(0)")
    A(f"ds_read_b64 v[{vT0}:{vT1}], v{vSA}")
    A(f"v_max_f32_dpp v{vM}, v{vM}, v{vM} row_bcast:15 row_mask:0xa bank_mask:0xf")
    A("s_nop 1")
    A(f"v_max_f32_dpp v{vM}, v{vM}, v{vM} row_bcast:31 row_mask:0xc bank_mask:0xf")
    A("s_nop 0")
    A(f"v_readlane_b32 s{sM}, v{vM}, 63")
    A(f"s_mov_b32 s{sCNT}, s{sN}")
    A("s_nop 0")
    A(f"v_mov_b32 v{vM}, s{sM}")
    A(f"v_cvt_pk_bf16_f32 v{vM}, v{vM}, v{vM}")
    A(f"v_and_b32 v{vM}, 0xffff0000, v{vM}")
    A(f"v_mul_f32 v{vM}, s{sSC}, v{vM}")
    A(f"v_cvt_pk_bf16_f32 v{vM}, v{vM}, v{vM}")
    A(f"v_and_b32 v{vM}, 0xffff0000, v{vM}")
    A(f"v_mul_f32 v{vNM}, s{sL2E}, v{vM}")
    for s in range(1, R):
        A(f"s_cmp_eq_u32 s{sT0}, {s}")
        A(f"s_cbranch_scc1 L_v{s}")
    for s in range(R):
        A.label(f"L_v{s}")
        A(f"s_cmp_le_u32 s{sCNT}, {R}")
        A(f"s_cselect_b32 s{KS+2}, 0, {RB}")
        A("s_waitcnt lgkmcnt(0)")
        A(f"v_lshlrev_b32 v{vP}, 16, v{vT0}")
        A(f"v_and_b32 v{vP+1}, 0xffff0000, v{vT0}")
        A(f"v_lshlrev_b32 v{vP+2}, 16, v{vT1}")
        A(f"v_and_b32 v{vP+3}, 0xffff0000, v{vT1}")
        A(f"v_add_u32 v{vSA}, 32, v{vSA}")
        for i in range(4):
            A(f"v_fma_f32 v{vP+i}, v{vP+i}, s{sL2E}, -v{vNM}")
        A(f"ds_read_b64 v[{vT0}:{vT1}], v{vSA}")
        if ctl:
            A(f"v_readfirstlane_b32 s{sT2}, v{vMD}")
            A(f"v_mov_b32 v{vS+1}, s{sCNT}")
            A(f"ds_read_b32 v{vMD}, v{vPA} offset:{PM + 4}")
            A(f"ds_write_b32 v{vPW}, v{vS+1} offset:{PM}")
        for i in range(4):
            A(f"v_exp_f32 v{vP+i}, v{vP+i}")
        A(f"v_add_f32 v{vS}, v{vP}, v{vP+1}")
        A(f"v_add_f32 v{vL}, v{vL}, v{vP+2}")
        A(f"v_add_f32 v{vS}, v{vS}, v{vP+3}")
        for i in range(4):
            A(f"v_cvt_pk_bf16_f32 v{vP+i}, v{vP+i}, v{vP+i}")
        A(f"v_add_f32 v{vL}, v{vL}, v{vS}")
        for i in range(4):
            for rr in range(4):
                A(f"v_and_b32 v{vA+4*i+rr}, v{vP+i}, v{MK+rr}")
        A(f"s_waitcnt vmcnt({W})")
        A("s_nop 0")
        for i in range(4):
            r = reg(s, i)
            A(f"v_mfma_f32_16x16x32_bf16 v[{vACC}:{vACC+3}], v[{vA+4*i}:{vA+4*i+3}], v[{r}:{r+3}], v[{vACC}:{vACC+3}]")
        tstamp(1)
        A(f"s_sub_u32 s{sCNT}, s{sCNT}, 1")
        A(f"s_cmp_eq_u32 s{sCNT}, 0")
        A("s_cbranch_scc1 L_sdone")
        A(f"s_cmp_lt_u32 s{sCNT}, {max(R, endn)}")
        A(f"s_cbranch_scc1 L_vf{s}")
        if ctl:
            for m in range(len(modes)):
                if m < len(modes) - 1:
                    A(f"s_cmp_lg_u32 s{sT2}, {m}")
                    A(f"s_cbranch_scc1 L_vm{s}_{m}")
                issue(s, modes[m][s & 1])
                A(f"s_branch L_v{(s + 1) % R}")
                if m < len(modes) - 1:
                    A.label(f"L_vm{s}_{m}")
        else:
            issue(s, window(s))
            A(f"s_branch L_v{(s + 1) % R}")
        A.label(f"L_vf{s}")
        issue(s)
    A("s_branch L_v0")
    A.label("L_sdone")
    A(f"v_add_f32_dpp v{vL}, v{vL}, v{vL} row_bcast:15 row_mask:0xa bank_mask:0xf")
    A("s_nop 1")
    A(f"v_add_f32_dpp v{vL}, v{vL}, v{vL} row_bcast:31 row_mask:0xc bank_mask:0xf")
    A("s_mov_b32 exec_lo, 0")
    A("s_mov_b32 exec_hi, 0x80000000")
    A(f"ds_write_b64 v{vEB}, v[{vM}:{vM+1}]")
    A("s_mov_b32 exec_hi, -1")
    A(f"v_cvt_pk_bf16_f32 v{vACC}, v{vACC}, v{vACC+1}")
    A(f"v_cvt_pk_bf16_f32 v{vACC+1}, v{vACC+2}, v{vACC+3}")
    A(f"ds_write_b64 v{vEA}, v[{vACC}:{vACC+1}]")
    A("s_mov_b64 exec, -1")
    A("s_waitcnt lgkmcnt(0)")
    A("s_barrier")
    if tl:
        A(f"s_lshl_b32 s{sT0}, s2, 2")
        A(f"s_add_u32 s{sT0}, s{sT0}, s{sWAVE}")
        A(f"s_lshl_b32 s{sT0}, s{sT0}, 8")
        A(f"s_add_u32 s{sT0}, s{sT0}, 0x300000")
        A("v_mbcnt_lo_u32_b32 v1, -1, 0")
        A("v_mbcnt_hi_u32_b32 v1, -1, v1")
        A(f"v_lshl_add_u32 v16, v1, 2, s{sT0}")
        A(f"global_store_dword v16, v{RING + 16*(R+E)}, s[{pWS}:{pWS+1}]")
    A("s_endpgm")

    A.label("L_aux")
    A.c("---- aux wave ----")
    NL = 160 // NA
    RW = 640 // NA
    RT = RW // 4
    RO = 128 // NA
    OT = RO // 4
    vTO = 13
    vO1, vO2, vO3 = 10, 11, 12
    vX = 14
    vF = 20
    vC = 30
    vAA = 36
    vQA = 44
    vX2 = 48
    vXD = 56
    vW = 96
    if auxprio:
        A(f"s_setprio {auxprio}")
    A(f"s_mov_b32 s{sA}, s{sWAVE}")
    if noaux:
        A("s_waitcnt lgkmcnt(0)")
        if bar0: A("s_barrier")
        if stag: A("s_barrier")
        stamp(1)
        A("s_barrier")
        stamp(2); stamp(3)
        A("s_barrier")
        stamp(4); stamp(5); stamp(6)
        A("s_branch L_fin")
    A(f"v_lshlrev_b32 v{vO1}, 2, v1")
    WQR = 256 if nowqd == 2 else 8192
    A(f"v_mul_u32_u24 v{vO2}, {RT*WQR}, v3")
    A(f"v_lshl_add_u32 v{vO2}, v2, 4, v{vO2}")
    A(f"s_mul_i32 s{sT0}, s{sA}, 1280")
    A(f"s_mul_i32 s{sT3}, s{sB}, 1280")
    A(f"s_mul_i32 s{sT1}, s{sH}, {(256, 0, 163840)[nowqd]}")
    A(f"s_mul_i32 s{sT2}, s{sA}, {RW*WQR}")
    A(f"s_add_u32 s{sT1}, s{sT1}, s{sT2}")
    A(f"s_sub_u32 s{sT2}, {640*8192}, s{sT1}")
    A("s_waitcnt lgkmcnt(0)")
    srd(XS, pX, None, 5120)
    for i in range(5):
        A(f"buffer_load_dword v{vX+i}, v{vO1}, s[{XS}:{XS+3}], s{sT3} offen offset:{256*i}")
    for i in range(5):
        A(f"buffer_load_dword v{vX2+i}, v{vO1}, s[{XS}:{XS+3}], s{sT0} offen offset:{256*i}")
    A(f"s_load_dword s{sTAG}, s[{pWS}:{pWS+1}], {WS_EP:#x}")
    srd(WQS, pWQ, f"s{sT1}", 0 if nowq else f"s{sT2}")
    if rotq:
        A(f"s_and_b32 s{sHS}, s{sSLOT}, 7")
        A(f"s_mul_i32 s{sHS}, s{sHS}, 5")
        A(f"s_lshr_b32 s{sHS}, s{sHS}, 2")
        A(f"s_mul_i32 s{sOFF}, s{sHS}, {4*WQR}")
    else:
        A(f"s_mov_b32 s{sOFF}, 0")
    def wq_issue(t):
        r = vW + 4 * t
        A(f"buffer_load_dwordx4 v[{r}:{r+3}], v{vO2}, s[{WQS}:{WQS+3}], s{sOFF} offen {wqflags}")
        A(f"s_add_u32 s{sOFF}, s{sOFF}, {WQR}")
        if rotq and t % 4 == 3:
            A(f"s_cmp_eq_u32 s{sOFF}, {RT*WQR}")
            A(f"s_cselect_b32 s{sOFF}, 0, s{sOFF}")
    NLQ = nowqn if nowqn else NL
    wqwin = min(wqwin, NLQ)
    def aux_masks():
        A("v_and_b32 v9, 3, v9")
        for rr in range(4):
            A(f"v_cmp_eq_u32 vcc, {rr}, v9")
            A("s_nop 1")
            A(f"v_cndmask_b32 v{MK+rr}, 0, v8, vcc")
    if not lnfirst:
        for t in range(wqwin):
            wq_issue(t)
            if stag and t == 4:
                A("s_barrier")
            if bar0 and t == min(wqwin, bar0at) - 1:
                A("s_barrier")
        aux_masks()
    def wave_sum(v, s):
        for sh in (1, 2, 4, 8):
            A("s_nop 1")
            A(f"v_add_f32_dpp v{v}, v{v}, v{v} row_shr:{sh} row_mask:0xf bank_mask:0xf bound_ctrl:0")
        A("s_nop 1")
        A(f"v_add_f32_dpp v{v}, v{v}, v{v} row_bcast:15 row_mask:0xa bank_mask:0xf")
        A("s_nop 1")
        A(f"v_add_f32_dpp v{v}, v{v}, v{v} row_bcast:31 row_mask:0xc bank_mask:0xf")
        A("s_nop 0")
        A(f"v_readlane_b32 s{s}, v{v}, 63")
        A("s_nop 1")
    def layernorm(vX, dup):
        for i in range(5):
            A(f"v_lshlrev_b32 v{vF+2*i}, 16, v{vX+i}")
            A(f"v_and_b32 v{vF+2*i+1}, 0xffff0000, v{vX+i}")
        A(f"v_add_f32 v{vC+4}, v{vF}, v{vF+1}")
        for i in range(2, 10):
            A(f"v_add_f32 v{vC+4}, v{vC+4}, v{vF+i}")
        wave_sum(vC + 4, sT0)
        A(f"v_mov_b32 v{vC+5}, {f2u(1.0/640):#x}")
        A(f"v_mul_f32 v{vC+4}, s{sT0}, v{vC+5}")
        A(f"v_sub_f32 v{vC}, v{vF}, v{vC+4}")
        A(f"v_mul_f32 v{vC+1}, v{vC}, v{vC}")
        for i in range(1, 10):
            A(f"v_sub_f32 v{vC}, v{vF+i}, v{vC+4}")
            A(f"v_fmac_f32 v{vC+1}, v{vC}, v{vC}")
        wave_sum(vC + 1, sT0)
        A(f"v_mul_f32 v{vC+1}, s{sT0}, v{vC+5}")
        A(f"v_cvt_pk_bf16_f32 v{vC}, v{vC+4}, v{vC+1}")
        A(f"v_lshlrev_b32 v{vC+4}, 16, v{vC}")
        A(f"v_and_b32 v{vC+1}, 0xffff0000, v{vC}")
        A(f"v_add_f32 v{vC+1}, {f2u(1e-5):#x}, v{vC+1}")
        A(f"v_cvt_pk_bf16_f32 v{vC+1}, v{vC+1}, v{vC+1}")
        A(f"v_and_b32 v{vC+1}, 0xffff0000, v{vC+1}")
        A(f"v_sqrt_f32 v{vC+1}, v{vC+1}")
        A("s_nop 0")
        A(f"v_cvt_pk_bf16_f32 v{vC+1}, v{vC+1}, v{vC+1}")
        A(f"v_and_b32 v{vC+1}, 0xffff0000, v{vC+1}")
        A(f"v_rcp_f32 v{vC+1}, v{vC+1}")
        for i in range(10):
            A(f"v_sub_f32 v{vF+i}, v{vF+i}, v{vC+4}")
        if dup:
            A(f"s_mul_i32 s{sT2}, s{sA}, 2560")
            A(f"v_lshl_add_u32 v{vC+3}, v1, 3, s{sT2}")
        else:
            A(f"s_mul_i32 s{sT1}, s{sA}, 1280")
            A(f"v_add_u32 v{vC+2}, s{sT1}, v{vO1}")
        for i in range(5):
            A(f"v_cvt_pk_bf16_f32 v{vX+i}, v{vF+2*i}, v{vF+2*i+1}")
            A(f"v_lshlrev_b32 v{vF+2*i}, 16, v{vX+i}")
            A(f"v_and_b32 v{vF+2*i+1}, 0xffff0000, v{vX+i}")
            A(f"v_mul_f32 v{vF+2*i}, v{vF+2*i}, v{vC+1}")
            A(f"v_mul_f32 v{vF+2*i+1}, v{vF+2*i+1}, v{vC+1}")
            if dup:
                A(f"v_cvt_pk_bf16_f32 v{vF+2*i}, v{vF+2*i}, v{vF+2*i}")
                A(f"v_cvt_pk_bf16_f32 v{vF+2*i+1}, v{vF+2*i+1}, v{vF+2*i+1}")
                A(f"ds_write_b64 v{vC+3}, v[{vF+2*i}:{vF+2*i+1}] offset:{XND + 512*i}")
            else:
                A(f"v_cvt_pk_bf16_f32 v{vX+i}, v{vF+2*i}, v{vF+2*i+1}")
                A(f"ds_write_b32 v{vC+2}, v{vX+i} offset:{XNB + 256*i}")
    if lnfirst:
        for t in range(lnfirst):
            wq_issue(t)
        aux_masks()
        A(f"s_waitcnt vmcnt({lnfirst + 5})")
    else:
        A(f"s_waitcnt vmcnt({wqwin + 5})")
    layernorm(vX, True)
    stamp(1)
    A(f"s_mul_i32 s{sT1}, s{sA}, {RW*4}")
    A(f"s_add_u32 s{sT0}, s{sT2}, s{sT1}")
    A(f"v_mul_u32_u24 v{vX}, {RT*4}, v3")
    A(f"v_add_u32 v{vX}, s{sT0}, v{vX}")
    A("s_waitcnt lgkmcnt(0)")
    if rotq:
        A(f"s_lshl_b32 s{sT1}, s{sHS}, 4")
        for i in range(RT // 4):
            A(f"v_add_u32 v{vX+1+(i&1)}, s{sT1}, v{vX}")
            A(f"s_add_u32 s{sT1}, s{sT1}, 16")
            A(f"ds_read_b128 v[{vXD+4*i}:{vXD+4*i+3}], v{vX+1+(i&1)} offset:{XND}")
            A(f"s_cmp_eq_u32 s{sT1}, {RT*4}")
            A(f"s_cselect_b32 s{sT1}, 0, s{sT1}")
    else:
        for i in range(RT // 4):
            A(f"ds_read_b128 v[{vXD+4*i}:{vXD+4*i+3}], v{vX} offset:{XND + 16*i}")
    A("s_waitcnt lgkmcnt(0)")
    if lnfirst:
        if stag:
            A("s_barrier")
        for t in range(lnfirst, NL):
            wq_issue(t)
            if bar0 and t == bar0at - 1:
                A("s_barrier")
        def ands(t):
            aa = vAA + 4 * (t & 1)
            for rr in range(4):
                A(f"v_and_b32 v{aa+rr}, v{vXD+t}, v{MK+rr}")
        ands(0)
        for t in range(NL):
            if t + 1 < NL:
                ands(t + 1)
            else:
                A("s_nop 1")
            if t % 4 == 0 or t >= NL - 12:
                last = t if t >= NL - 12 else t + 3
                A(f"s_waitcnt vmcnt({NL - 1 - last})")
            aa = vAA + 4 * (t & 1)
            r = vW + 4 * t
            c = "0" if t == 0 else f"v[{vQA}:{vQA+3}]"
            A(f"v_mfma_f32_16x16x32_bf16 v[{vQA}:{vQA+3}], v[{aa}:{aa+3}], v[{r}:{r+3}], {c}")
    else:
        for t in range(NLQ):
            aa = vAA + 4 * (t & 1)
            for rr in range(4):
                A(f"v_and_b32 v{aa+rr}, v{vXD+t}, v{MK+rr}")
            issued = min(NLQ, wqwin + t)
            A(f"s_waitcnt vmcnt({issued - 1 - t})")
            if wqwin + t < NLQ:
                wq_issue(wqwin + t)
            else:
                A("s_nop 0")
            r = vW + 4 * t
            c = "0" if t == 0 else f"v[{vQA}:{vQA+3}]"
            A(f"v_mfma_f32_16x16x32_bf16 v[{vQA}:{vQA+3}], v[{aa}:{aa+3}], v[{r}:{r+3}], {c}")
    A(f"s_lshl_b32 s{sT0}, s{sA}, 9")
    A(f"s_add_u32 s{sT0}, s{sT0}, {QP}")
    A(f"v_lshlrev_b32 v{vC}, 5, v2")
    A(f"v_lshl_add_u32 v{vC}, v3, 4, v{vC}")
    A(f"v_add_u32 v{vC}, s{sT0}, v{vC}")
    A("s_nop 3")
    A("s_mov_b64 exec, 0xffffffff")
    A(f"ds_write_b128 v{vC}, v[{vQA}:{vQA+3}]")
    A("s_mov_b64 exec, -1")
    A(f"s_lshl_b32 s{sT0}, s{sA}, 2")
    A(f"v_mov_b32 v{vC+1}, s{sT0}")
    A(f"v_mov_b32 v{vC+2}, 0")
    A(f"ds_write_b32 v{vC+1}, v{vC+2} offset:{FLG}")
    if ctl:
        A(f"v_mov_b32 v{vC+4}, 1000")
        if ctltest:
            A(f"s_cmp_eq_u32 s{sSLOT}, 5")
            A(f"s_cselect_b32 s{sT0}, {ctltest - 1}, 1")
            A(f"v_mov_b32 v{vC+5}, s{sT0}")
        else:
            A(f"v_mov_b32 v{vC+5}, 1")
        A(f"ds_write_b64 v{vC+2}, v[{vC+4}:{vC+5}] offset:{PM}")
    A("s_waitcnt lgkmcnt(0)")
    A("s_barrier")
    stamp(2)
    layernorm(vX2, False)
    srd(WSS, pWS, None, WS_SIZE)
    A(f"s_mul_i32 s{sTAG}, s{sTAG}, 0x9e3779b1")
    A(f"s_add_u32 s{sTAG}, s{sTAG}, 0x7f4a7c15")
    A(f"s_lshl_b32 s{sHS}, s{sH}, 1")
    A(f"s_add_u32 s{sHS}, s{sHS}, s{sSPLIT}")
    A(f"s_lshl_b32 s{sT0}, s{sB}, 6")
    A(f"s_add_u32 s{sT0}, s{sT0}, s{sHS}")
    A(f"s_lshl_b32 s{sT1}, s{sT0}, 6")
    A(f"v_lshrrev_b32 v{vTO}, 2, v0")
    A(f"v_lshlrev_b32 v{vTO}, 14, v{vTO}")
    A(f"v_and_b32 v{vC}, 3, v0")
    A(f"v_lshl_add_u32 v{vTO}, v{vC}, 4, v{vTO}")
    A(f"v_add_u32 v{vTO}, s{sT1}, v{vTO}")
    A(f"s_lshr_b32 s{sT1}, s{sT0}, 1")
    A(f"s_lshl_b32 s{sT1}, s{sT1}, 7")
    A(f"s_lshl_b32 s{sT2}, s{sSPLIT}, 3")
    A(f"s_add_u32 s{sT1}, s{sT1}, s{sT2}")
    A(f"s_add_u32 s{sT1}, s{sT1}, {WS_ML}")
    A(f"v_mov_b32 v{vO3}, s{sT1}")
    for i in range(4):
        A(f"v_mov_b32 v{vC+i}, -1")
    A(f"v_cmp_gt_u32 vcc, 160, v0")
    A(f"s_and_saveexec_b64 s[{sEX}:{sEX+1}], vcc")
    A("s_cbranch_execz L_noclr")
    if not noclear:
        A(f"buffer_store_dwordx4 v[{vC}:{vC+3}], v{vTO}, s[{WSS}:{WSS+3}], 0 offen {'sc1' if noclrf is None else noclrf}")
    A.label("L_noclr")
    A(f"s_mov_b64 exec, s[{sEX}:{sEX+1}]")
    A(f"v_cmp_eq_u32 vcc, 192, v0")
    A(f"s_and_saveexec_b64 s[{sEX}:{sEX+1}], vcc")
    A("s_cbranch_execz L_noclr2")
    A(f"buffer_store_dwordx2 v[{vC}:{vC+1}], v{vO3}, s[{WSS}:{WSS+3}], 0 offen sc1")
    A.label("L_noclr2")
    A(f"s_mov_b64 exec, s[{sEX}:{sEX+1}]")
    A("s_waitcnt vmcnt(0) lgkmcnt(0)")
    A(f"s_lshl_b32 s{sT0}, s{sA}, 2")
    A(f"v_mov_b32 v{vC}, s{sT0}")
    A(f"v_mov_b32 v{vC+1}, 1")
    A(f"ds_write_b32 v{vC}, v{vC+1} offset:{FLG}")
    A(f"s_bfm_b32 s{sT0}, s{sX8}, 0")
    A(f"s_and_b32 s{sT0}, s{sT0}, {gmask:#x}")
    A(f"s_bcnt1_i32_b32 s{sT0}, s{sT0}")
    A(f"s_lshr_b32 s{sT1}, s{sSLOT}, 1")
    A(f"s_mul_i32 s{sT2}, s{sX8}, 12")
    A(f"s_lshl_b32 s{sT3}, s{sT0}, 2")
    A(f"s_add_u32 s{sT2}, s{sT2}, s{sT3}")
    A(f"s_add_u32 s{sT2}, s{sT2}, s{sT1}")
    A(f"s_cmp_eq_u32 s{sSPLIT}, 1")
    A(f"s_cselect_b32 s{sT2}, s{sT2}, 255")
    A(f"s_sub_u32 s{sT3}, s{sX8}, s{sT0}")
    A(f"s_lshl_b32 s{sT3}, s{sT3}, 3")
    A(f"s_add_u32 s{sT3}, s{sT3}, s{sSLOT}")
    A(f"s_add_u32 s{sT3}, s{sT3}, {128 - 24}")
    A(f"s_cmp_lt_u32 s{sT1}, s{sNU}")
    A(f"s_cselect_b32 s{sROLE}, s{sT2}, s{sT3}")
    def wo_load():
        vPH = 36
        A(f"s_mul_i32 s{sT0}, s{sH}, {0 if nowoh else 128*1280}")
        srd(WOS, pWO, f"s{sT0}", 128 * 1280)
        if nowolin:
            A(f"s_and_b32 s{sT1}, s{sSLOT}, 7")
            A(f"s_lshl_b32 s{sT1}, s{sT1}, 2")
            A(f"s_add_u32 s{sT1}, s{sT1}, s{sA}")
            A(f"s_mul_i32 s{sT1}, s{sT1}, 5120")
            A("v_lshlrev_b32 v41, 4, v1")
            for i in range(5):
                A(f"buffer_load_dwordx4 v[{vW+4*i}:{vW+4*i+3}], v41, s[{WOS}:{WOS+3}], s{sT1} offen {woflags}")
                A(f"s_add_u32 s{sT1}, s{sT1}, 1024")
            A("s_waitcnt vmcnt(0)")
            if nowolin == 1:
                return
        A(f"s_mul_i32 s{sT1}, s{sA}, 320")
        A(f"s_mov_b32 s{sT2}, 52429")
        for p in range(5):
            A(f"v_add_u32 v{vPH+p}, {64*p}, v1")
            A(f"v_mul_u32_u24 v41, s{sT2}, v{vPH+p}")
            A("v_lshrrev_b32 v41, 20, v41")
            A(f"v_mul_u32_u24 v42, {1280 - 320}, v41")
            A(f"v_lshl_add_u32 v{vPH+p}, v{vPH+p}, 4, v42")
            A(f"v_add_u32 v{vPH+p}, s{sT1}, v{vPH+p}")
        A(f"s_mul_i32 s{sT1}, s{sA}, 10240")
        A(f"s_add_u32 s{sT1}, s{sT1}, {TP}")
        A("v_lshrrev_b32 v41, 2, v2")
        A("v_lshl_add_u32 v41, v3, 3, v41")
        A("v_mul_u32_u24 v41, 320, v41")
        A("v_and_b32 v42, 3, v1")
        A("v_lshl_add_u32 v41, v42, 3, v41")
        A(f"v_add_u32 v41, s{sT1}, v41")
        A(f"s_mov_b32 s{sOFF}, 0")
        if fast1:
            A(f"s_cmp_eq_u32 s{sA}, 1")
            A("s_cselect_b64 vcc, 0, -1")
        for ks in range(4):
            for i in range(10):
                A(f"s_add_u32 m0, s{sT1}, {1024*i}")
                if i == 5:
                    A(f"s_add_u32 s{sOFF}, s{sOFF}, {16*1280}")
                else:
                    A("s_nop 0")
                if not nowo:
                    A(f"buffer_load_dwordx4 v{vPH+i%5}, s[{WOS}:{WOS+3}], s{sOFF} offen {woflags} lds")
                if fast1:
                    A(f"s_cbranch_vccz L_wf{ks}_{i}")
                A(f"s_waitcnt vmcnt({wowin - 1})")
                if fast1:
                    A.label(f"L_wf{ks}_{i}")
            A(f"s_add_u32 s{sOFF}, s{sOFF}, {16*1280}")
            A("s_waitcnt vmcnt(0)")
            for cb in range(10):
                r = vW + 4 * (cb * 4 + ks)
                A(f"ds_read_b64_tr_b16 v[{r}:{r+1}], v41 offset:{32*cb}")
                A(f"ds_read_b64_tr_b16 v[{r+2}:{r+3}], v41 offset:{32*cb + 1280}")
                if cb == 5:
                    A("s_waitcnt lgkmcnt(4)")
            A("s_waitcnt lgkmcnt(0)")
    vTR, vAO = 14, 15
    vFA, vFB, vFD = 20, 24, 28
    def round_bf16(regs):
        for v in regs:
            A(f"v_cvt_pk_bf16_f32 v{v}, v{v}, v{v}")
        for v in regs:
            A(f"v_and_b32 v{v}, 0xffff0000, v{v}")
    A(f"s_cmp_lg_u32 s{sA}, 0")
    A("s_cbranch_scc1 L_wo")
    A(f"v_mov_b32 v{vC+4}, 0")
    A.label("L_flg")
    A(f"ds_read_b128 v[{vFA}:{vFA+3}], v{vC+4} offset:{FLG}")
    A("s_waitcnt lgkmcnt(0)")
    A(f"v_add3_u32 v{vFA}, v{vFA}, v{vFA+1}, v{vFA+2}")
    A(f"v_add_u32 v{vFA}, v{vFA}, v{vFA+3}")
    A(f"v_cmp_ne_u32 vcc, 4, v{vFA}")
    A("s_nop 1")
    A("s_cbranch_vccnz L_flg")
    A(f"s_lshl_b32 s{sT3}, s2, 7")
    A(f"s_add_u32 s{sT3}, s{sT3}, {WS_H}")
    A(f"v_mov_b32 v{vC+4}, s{sT3}")
    A(f"v_mov_b32 v{vC+5}, s{sTAG}")
    A("s_mov_b64 exec, 1")
    A(f"buffer_store_dword v{vC+5}, v{vC+4}, s[{WSS}:{WSS+3}], 0 offen sc1")
    A("s_mov_b64 exec, -1")
    if not ffn1:
        A.label("L_wo")
        wo_load()
        if ctl:
            A(f"s_cmp_lg_u32 s{sA}, 1")
            A("s_cbranch_scc1 L_noctl")
            A.c("pacing: at every checkpoint mark this workgroup's word in the line of its group, count who is already there")
            A.c("and who is a whole checkpoint further; the counts pick the load window of the streaming waves (speed hint only)")
            A(f"s_lshl_b32 s{sT0}, s{sX8}, 7")
            A(f"v_and_b32 v{vC}, 31, v1")
            A(f"v_lshl_add_u32 v{vC}, v{vC}, 2, s{sT0}")
            A(f"v_lshrrev_b32 v{vC+1}, 5, v1")
            A(f"v_lshl_add_u32 v{vC}, v{vC+1}, 10, v{vC}")
            A(f"s_lshl_b32 s{sT1}, s{sSLOT}, 2")
            A(f"s_add_u32 s{sT0}, s{sT0}, s{sT1}")
            A(f"v_mov_b32 v{vC+1}, s{sT0}")
            A(f"v_mov_b32 v{vC+2}, s{sTAG}")
            A(f"v_mov_b32 v{vC+3}, 0")
            A(f"s_mov_b32 s{sOFF}, {WS_CP}")
            A(f"s_mov_b32 s{sCNT}, {ctl[0]}")
            A.label("L_cw")
            A(f"s_sleep {csleep}")
            A(f"ds_read_b32 v{vC+4}, v{vC+3} offset:{PM}")
            A("s_waitcnt lgkmcnt(0)")
            A(f"v_readfirstlane_b32 s{sT1}, v{vC+4}")
            A("s_nop 0")
            A(f"s_cmp_gt_u32 s{sT1}, s{sCNT}")
            A("s_cbranch_scc1 L_cw")
            A("s_mov_b64 exec, 1")
            A(f"buffer_store_dword v{vC+2}, v{vC+1}, s[{WSS}:{WSS+3}], s{sOFF} offen")
            A("s_mov_b64 exec, -1")
            A(f"buffer_load_dword v{vC+4}, v{vC}, s[{WSS}:{WSS+3}], s{sOFF} offen sc1")
            A("s_waitcnt vmcnt(0)")
            A(f"v_cmp_eq_u32 vcc, s{sTAG}, v{vC+4}")
            A(f"s_mov_b32 s{sT2}, 0")
            A(f"s_mov_b32 s{sT0}, 0")
            A(f"s_bcnt1_i32_b32 s{sT1}, vcc_lo")
            if xbias:
                A(f"s_bitcmp1_b32 {bmask:#x}, s{sX8}")
                A(f"s_cselect_b32 s{sM}, {2 * xbias}, 0")
                A(f"s_add_u32 s{sT1}, s{sT1}, s{sM}")
            for m, t_ in enumerate(thr):
                A(f"s_cmp_ge_u32 s{sT1}, {t_ + xbias}")
                A(f"s_cselect_b32 s{sT2}, {m + 1}, s{sT2}")
            for m, t_ in enumerate(kthr):
                A(f"s_cmp_ge_u32 s{sT1}, {t_ + 2 * xbias if t_ >= 40 else t_}")
                A(f"s_cselect_b32 s{sT0}, {m + 1}, s{sT0}")
            A(f"s_cmp_gt_u32 s{sCNT}, 62")
            A(f"s_cselect_b32 s{sT2}, s{sT0}, s{sT2}")
            A(f"s_bcnt1_i32_b32 s{sT1}, vcc_hi")
            for m, t_ in enumerate(sthr):
                A(f"s_cmp_ge_u32 s{sT1}, {t_}")
                A(f"s_cselect_b32 s{sT2}, {len(thr) + 1 + m}, s{sT2}")
            A(f"v_mov_b32 v{vC+4}, s{sT2}")
            A(f"ds_write_b32 v{vC+3}, v{vC+4} offset:{PM + 4}")
            A(f"s_add_u32 s{sOFF}, s{sOFF}, 1024")
            A(f"s_sub_u32 s{sCNT}, s{sCNT}, {ctl[1]}")
            A(f"s_cmp_ge_i32 s{sCNT}, {ctl[2]}")
            A("s_cbranch_scc1 L_cw")
            A("s_waitcnt lgkmcnt(0)")
            A.label("L_noctl")
        A(f"s_cmp_lg_u32 s{sA}, 0")
        A("s_cbranch_scc1 L_idle")
        if nosig:
            A("s_branch L_idle")
        A(f"s_cmp_eq_u32 s{sROLE}, 255")
        A("s_cbranch_scc1 L_idle")
        A(f"s_cmp_ge_u32 s{sROLE}, 128")
        A("s_cbranch_scc1 L_f2")
        A.c("F1 unit: 16 columns of gate/up for all 4 batches")
        vFU = 32
        A(f"s_lshl_b32 s{sT0}, s{sROLE}, 5")
        srd(F0S, pWG, None, 640 * 3456)
        srd(F1S, pWU, None, 640 * 3456)
        A(f"v_lshrrev_b32 v{vC}, 1, v1")
        A(f"v_mul_u32_u24 v{vC}, 3456, v{vC}")
        A(f"v_and_b32 v{vC+1}, 1, v1")
        A(f"v_lshl_add_u32 v{vC}, v{vC+1}, 4, v{vC}")
        A(f"v_add_u32 v{vC}, s{sT0}, v{vC}")
        A(f"s_mov_b32 s{sOFF}, 0")
        A(f"s_mov_b32 s{sT1}, {WT}")
        A(f"s_mov_b32 s{sCNT}, 20")
        A.label("L_f1_ld")
        A(f"s_mov_b32 m0, s{sT1}")
        A(f"s_add_u32 s{sT2}, s{sT1}, 20480")
        if not noffn:
            A(f"buffer_load_dwordx4 v{vC}, s[{F0S}:{F0S+3}], s{sOFF} offen {ffnflags} lds")
        A(f"s_waitcnt vmcnt({f1win - 1})")
        A(f"s_mov_b32 m0, s{sT2}")
        A(f"s_add_u32 s{sT1}, s{sT1}, 1024")
        if not noffn:
            A(f"buffer_load_dwordx4 v{vC}, s[{F1S}:{F1S+3}], s{sOFF} offen {ffnflags} lds")
        A(f"s_add_u32 s{sOFF}, s{sOFF}, {32*3456}")
        A(f"s_waitcnt vmcnt({f1win - 1})")
        A(f"s_sub_u32 s{sCNT}, s{sCNT}, 1")
        A(f"s_cmp_lg_u32 s{sCNT}, 0")
        A("s_cbranch_scc1 L_f1_ld")
        A(f"v_lshrrev_b32 v{vC+1}, 2, v2")
        A(f"v_lshl_add_u32 v{vC+1}, v3, 3, v{vC+1}")
        A(f"v_lshlrev_b32 v{vTR}, 5, v{vC+1}")
        A(f"v_and_b32 v{vC+1}, 3, v1")
        A(f"v_lshl_add_u32 v{vTR}, v{vC+1}, 3, v{vTR}")
        A(f"v_add_u32 v{vTR}, {WT}, v{vTR}")
        A(f"v_mul_u32_u24 v{vAO}, 1280, v{vC+1}")
        A(f"v_lshl_add_u32 v{vAO}, v3, 4, v{vAO}")
        A(f"v_add_u32 v{vAO}, {XNB}, v{vAO}")
        for i in range(4):
            A(f"v_mov_b32 v{vFD+i}, 0")
            A(f"v_mov_b32 v{vFU+i}, 0")
        A(f"s_mov_b32 s{sCNT}, 20")
        A("s_waitcnt vmcnt(0)")
        vFB2 = 36
        A.label("L_f1_mm")
        A(f"ds_read_b128 v[{vFA}:{vFA+3}], v{vAO}")
        A(f"ds_read_b64_tr_b16 v[{vFB}:{vFB+1}], v{vTR}")
        A(f"ds_read_b64_tr_b16 v[{vFB+2}:{vFB+3}], v{vTR} offset:128")
        A(f"ds_read_b64_tr_b16 v[{vFB2}:{vFB2+1}], v{vTR} offset:20480")
        A(f"ds_read_b64_tr_b16 v[{vFB2+2}:{vFB2+3}], v{vTR} offset:{20480+128}")
        A(f"v_add_u32 v{vAO}, 64, v{vAO}")
        A(f"v_add_u32 v{vTR}, 1024, v{vTR}")
        A("s_waitcnt lgkmcnt(0)")
        A(f"v_mfma_f32_16x16x32_bf16 v[{vFD}:{vFD+3}], v[{vFA}:{vFA+3}], v[{vFB}:{vFB+3}], v[{vFD}:{vFD+3}]")
        A(f"v_mfma_f32_16x16x32_bf16 v[{vFU}:{vFU+3}], v[{vFA}:{vFA+3}], v[{vFB2}:{vFB2+3}], v[{vFU}:{vFU+3}]")
        A(f"s_sub_u32 s{sCNT}, s{sCNT}, 1")
        A(f"s_cmp_lg_u32 s{sCNT}, 0")
        A("s_cbranch_scc1 L_f1_mm")
        A("s_nop 7")
        for i in range(1, 4):
            A(f"v_cmp_eq_u32 vcc, {i}, v3")
            A("s_nop 1")
            A(f"v_cndmask_b32 v{vFD}, v{vFD}, v{vFD+i}, vcc")
            A(f"v_cndmask_b32 v{vFU}, v{vFU}, v{vFU+i}, vcc")
        round_bf16([vFD, vFU])
        K0 = 0.7978845608028654
        A(f"s_mov_b32 s{sT0}, {f2u(0.044715):#x}")
        A(f"s_mov_b32 s{sT1}, {f2u(-2.0 * K0 * L2E):#x}")
        A(f"v_mul_f32 v{vFA}, v{vFD}, v{vFD}")
        A(f"v_fma_f32 v{vFA}, v{vFA}, s{sT0}, 1.0")
        A(f"v_mul_f32 v{vFA}, v{vFA}, v{vFD}")
        A(f"v_mul_f32 v{vFA}, s{sT1}, v{vFA}")
        A(f"v_exp_f32 v{vFA}, v{vFA}")
        A("s_nop 0")
        A(f"v_add_f32 v{vFA}, 1.0, v{vFA}")
        A(f"v_rcp_f32 v{vFA}, v{vFA}")
        A("s_nop 0")
        A(f"v_mul_f32 v{vFA}, v{vFA}, v{vFD}")
        round_bf16([vFA])
        A(f"v_mul_f32 v{vFA}, v{vFA}, v{vFU}")
        A(f"s_lshl_b32 s{sT0}, s{sROLE}, 8")
        A(f"s_add_u32 s{sT0}, s{sT0}, {WS_HL}")
        A(f"v_mov_b32_dpp v{vFB}, v{vFA} quad_perm:[1,0,3,2] row_mask:0xf bank_mask:0xf")
        A(f"v_cvt_pk_bf16_f32 v{vFA}, v{vFA}, v{vFB}")
        A(f"v_mov_b32 v{vFA+1}, s{sTAG}")
        A("s_mov_b32 exec_lo, 0x55555555")
        A("s_mov_b32 exec_hi, 0x55555555")
        A(f"buffer_store_dwordx2 v[{vFA}:{vFA+1}], v{vO1}, s[{WSS}:{WSS+3}], s{sT0} offen sc1")
        A("s_mov_b64 exec, -1")
        A("s_branch L_idle")

        A.label("L_f2")
        A.c("F2 job: 64 columns x one quarter of K of the down projection, then the gate of 16 columns")
        sC, sKQ, sST_, sN = sT3, sHS, sM, sSC
        A(f"s_sub_u32 s{sC}, s{sROLE}, 128")
        A(f"s_and_b32 s{sKQ}, s{sC}, 3")
        A(f"s_mul_i32 s{sST_}, s{sKQ}, 14")
        A(f"s_cmp_eq_u32 s{sKQ}, 3")
        A(f"s_cselect_b32 s{sST_}, 41, s{sST_}")
        A(f"s_lshr_b32 s{sN}, s{sKQ}, 1")
        A(f"s_sub_u32 s{sN}, 14, s{sN}")
        srd(F0S, pWD, None, 1728 * 1280)
        A(f"s_lshr_b32 s{sT0}, s{sC}, 2")
        A(f"s_lshl_b32 s{sT0}, s{sT0}, 7")
        A(f"v_lshrrev_b32 v{vC}, 3, v1")
        A(f"v_mul_u32_u24 v{vC}, 1280, v{vC}")
        A(f"v_and_b32 v{vC+1}, 7, v1")
        A(f"v_lshl_add_u32 v{vC}, v{vC+1}, 4, v{vC}")
        A(f"v_add_u32 v{vC}, s{sT0}, v{vC}")
        A(f"s_mul_i32 s{sOFF}, s{sST_}, {32*1280}")
        A(f"s_mov_b32 s{sT1}, {WT}")
        A(f"s_lshl_b32 s{sCNT}, s{sN}, 2")
        A.label("L_f2_ld")
        A(f"s_mov_b32 m0, s{sT1}")
        A(f"s_add_u32 s{sT1}, s{sT1}, 1024")
        if not noffn:
            A(f"buffer_load_dwordx4 v{vC}, s[{F0S}:{F0S+3}], s{sOFF} offen {ffnflags} lds")
        A(f"s_add_u32 s{sOFF}, s{sOFF}, {8*1280}")
        A(f"s_waitcnt vmcnt({f2win - 1})")
        A(f"s_sub_u32 s{sCNT}, s{sCNT}, 1")
        A(f"s_cmp_lg_u32 s{sCNT}, 0")
        A("s_cbranch_scc1 L_f2_ld")
        vH = 36
        A(f"s_lshl_b32 s{sT0}, s{sST_}, 1")
        A(f"s_min_u32 s{sT1}, s{sT0}, 80")
        A(f"s_sub_u32 s{sT2}, s{sT0}, s{sT1}")
        A(f"s_lshl_b32 s{sT2}, s{sT2}, 5")
        A(f"s_lshl_b32 s{sT1}, s{sT1}, 8")
        A(f"s_add_u32 s{sT1}, s{sT1}, {WS_HL}")
        A(f"s_lshl_b32 s{sT0}, s{sKQ}, 13")
        A(f"s_add_u32 s{sT0}, s{sT0}, {WS_H}")
        A(f"v_lshlrev_b32 v{vC}, 4, v1")
        A(f"v_lshlrev_b32 v{vC+1}, 7, v1")
        A(f"v_lshrrev_b32 v{vC+2}, 2, v2")
        A(f"v_mul_u32_u24 v{vC+2}, 896, v{vC+2}")
        A(f"v_lshl_add_u32 v{vC+2}, v3, 5, v{vC+2}")
        A(f"v_and_b32 v{vC+3}, 3, v1")
        A(f"v_lshl_add_u32 v{vC+2}, v{vC+3}, 3, v{vC+2}")
        A(f"s_add_u32 s{sOFF}, s{sT1}, 4096")
        A("s_branch L_g")
        A.label("L_gr")
        A(f"s_sleep {gsleep}")
        A.label("L_g")
        for i in range(7):
            A(f"buffer_load_dwordx4 v[{vH+4*i}:{vH+4*i+3}], v{vC}, s[{WSS}:{WSS+3}], s{sT1 if i < 4 else sOFF} offen offset:{1024*(i&3)} sc1")
        A(f"buffer_load_dword v{vH+28}, v{vC+1}, s[{WSS}:{WSS+3}], s{sT0} offen sc1")
        A("s_waitcnt vmcnt(0)")
        A(f"v_xor_b32 v{vH+28}, s{sTAG}, v{vH+28}")
        for i in range(7):
            A(f"v_xor_b32 v{vH+4*i+1}, s{sTAG}, v{vH+4*i+1}")
            A(f"v_xor_b32 v{vH+4*i+3}, s{sTAG}, v{vH+4*i+3}")
            A(f"v_or3_b32 v{vH+28}, v{vH+28}, v{vH+4*i+1}, v{vH+4*i+3}")
        A(f"v_cmp_ne_u32 vcc, 0, v{vH+28}")
        A("s_nop 1")
        A("s_cbranch_vccnz L_gr")
        for i in range(7):
            A(f"v_mov_b32 v{vH+4*i+1}, v{vH+4*i+2}")
            A(f"ds_write_b64 v{vC+2}, v[{vH+4*i}:{vH+4*i+1}] offset:{HB + 128*i}")
        A(f"v_lshrrev_b32 v{vC+4}, 2, v2")
        A(f"v_lshl_add_u32 v{vC+4}, v3, 3, v{vC+4}")
        A(f"v_lshlrev_b32 v{vTR}, 7, v{vC+4}")
        A(f"v_lshl_add_u32 v{vTR}, v{vC+3}, 3, v{vTR}")
        A(f"v_add_u32 v{vTR}, {WT}, v{vTR}")
        A(f"v_mul_u32_u24 v{vAO}, 896, v{vC+3}")
        A(f"v_lshl_add_u32 v{vAO}, v3, 4, v{vAO}")
        A(f"v_add_u32 v{vAO}, s{sT2}, v{vAO}")
        A("s_waitcnt lgkmcnt(0)")
        vB4, vD4 = 36, 52
        for i in range(16):
            A(f"v_mov_b32 v{vD4+i}, 0")
        A(f"s_mov_b32 s{sCNT}, s{sN}")
        A.label("L_f2_mm")
        A(f"ds_read_b128 v[{vFA}:{vFA+3}], v{vAO} offset:{HB}")
        for cb in range(4):
            A(f"ds_read_b64_tr_b16 v[{vB4+4*cb}:{vB4+4*cb+1}], v{vTR} offset:{32*cb}")
            A(f"ds_read_b64_tr_b16 v[{vB4+4*cb+2}:{vB4+4*cb+3}], v{vTR} offset:{32*cb+512}")
        A(f"v_add_u32 v{vAO}, 64, v{vAO}")
        A(f"v_add_u32 v{vTR}, 4096, v{vTR}")
        A("s_waitcnt lgkmcnt(0)")
        for cb in range(4):
            d = vD4 + 4 * cb
            A(f"v_mfma_f32_16x16x32_bf16 v[{d}:{d+3}], v[{vFA}:{vFA+3}], v[{vB4+4*cb}:{vB4+4*cb+3}], v[{d}:{d+3}]")
        A(f"s_sub_u32 s{sCNT}, s{sCNT}, 1")
        A(f"s_cmp_lg_u32 s{sCNT}, 0")
        A("s_cbranch_scc1 L_f2_mm")
        A("s_nop 7")
        for i in range(1, 4):
            A(f"v_cmp_eq_u32 vcc, {i}, v3")
            A("s_nop 1")
            for cb in range(4):
                A(f"v_cndmask_b32 v{vD4+4*cb}, v{vD4+4*cb}, v{vD4+4*cb+i}, vcc")
        for cb in range(4):
            A(f"v_mov_b32 v{vD4+4*cb+1}, s{sTAG}")
        A(f"v_lshlrev_b32 v{vC}, 3, v1")
        A(f"s_and_b32 s{sT0}, s{sC}, 0xfc")
        A(f"s_lshl_b32 s{sT0}, s{sT0}, 2")
        A(f"s_add_u32 s{sT0}, s{sT0}, s{sKQ}")
        A(f"s_lshl_b32 s{sT0}, s{sT0}, 9")
        A(f"s_add_u32 s{sT0}, s{sT0}, {WS_FQ}")
        for cb in range(4):
            A(f"buffer_store_dwordx2 v[{vD4+4*cb}:{vD4+4*cb+1}], v{vC}, s[{WSS}:{WSS+3}], s{sT0} offen sc1")
            A(f"s_add_u32 s{sT0}, s{sT0}, 2048")
        A(f"s_lshl_b32 s{sT0}, s{sC}, 11")
        A(f"s_add_u32 s{sT0}, s{sT0}, {WS_FQ}")
        A("s_waitcnt vmcnt(0)")
        A("s_branch L_p")
        A.label("L_pr")
        A(f"s_sleep {gsleep // 2}")
        A.label("L_p")
        for i in range(4):
            A(f"buffer_load_dwordx2 v[{vH+2*i}:{vH+2*i+1}], v{vC}, s[{WSS}:{WSS+3}], s{sT0} offen offset:{512*i} sc1")
        A("s_waitcnt vmcnt(0)")
        for i in range(4):
            A(f"v_xor_b32 v{vH+2*i+1}, s{sTAG}, v{vH+2*i+1}")
        A(f"v_or3_b32 v{vH+1}, v{vH+1}, v{vH+3}, v{vH+5}")
        A(f"v_or_b32 v{vH+1}, v{vH+1}, v{vH+7}")
        A(f"v_cmp_ne_u32 vcc, 0, v{vH+1}")
        A("s_nop 1")
        A("s_cbranch_vccnz L_pr")
        A(f"s_cmp_lg_u32 s{sROLE}, 128")
        A("s_cbranch_scc1 L_noep")
        A(f"v_mov_b32 v{vC+2}, {WS_EP:#x}")
        A(f"v_mov_b32 v{vC+3}, s{sTAG}")
        A("s_mov_b64 exec, 1")
        A(f"buffer_store_dword v{vC+3}, v{vC+2}, s[{WSS}:{WSS+3}], 0 offen sc1")
        A("s_mov_b64 exec, -1")
        A.label("L_noep")
        A(f"v_add_f32 v20, v{vH}, v{vH+2}")
        A(f"v_add_f32 v21, v{vH+4}, v{vH+6}")
        A("v_add_f32 v20, v20, v21")
        round_bf16([20])
        A(f"s_mov_b32 s{sT1}, {f2u(-L2E):#x}")
        A(f"v_mul_f32 v21, s{sT1}, v20")
        A("v_exp_f32 v21, v21")
        A("s_nop 0")
        A("v_add_f32 v21, 1.0, v21")
        A("v_rcp_f32 v21, v21")
        A("s_nop 0")
        A("v_mul_f32 v21, v21, v20")
        round_bf16([21])
        A(f"ds_write_b32 v{vO1}, v21 offset:{GB}")
        A("s_waitcnt lgkmcnt(0)")
    else:
        A(f"s_cmp_eq_u32 s{sROLE}, 255")
        A("s_cbranch_scc1 L_wo")
        A(f"s_cmp_ge_u32 s{sROLE}, 128")
        A("s_cbranch_scc1 L_f2")
        A.c("F1 unit: 16 columns of gate/up for all 4 batches")
        vFU = 32
        A(f"s_lshl_b32 s{sT0}, s{sROLE}, 5")
        srd(F0S, pWG, None, 640 * 3456)
        srd(F1S, pWU, None, 640 * 3456)
        A(f"v_lshrrev_b32 v{vC}, 1, v1")
        A(f"v_mul_u32_u24 v{vC}, 3456, v{vC}")
        A(f"v_and_b32 v{vC+1}, 1, v1")
        A(f"v_lshl_add_u32 v{vC}, v{vC+1}, 4, v{vC}")
        A(f"v_add_u32 v{vC}, s{sT0}, v{vC}")
        A(f"s_mov_b32 s{sOFF}, 0")
        A(f"s_mov_b32 s{sT1}, {WT}")
        A(f"s_mov_b32 s{sCNT}, 20")
        A.label("L_f1_ld")
        A(f"s_mov_b32 m0, s{sT1}")
        A(f"s_add_u32 s{sT2}, s{sT1}, 20480")
        if not noffn:
            A(f"buffer_load_dwordx4 v{vC}, s[{F0S}:{F0S+3}], s{sOFF} offen {ffnflags} lds")
        A(f"s_waitcnt vmcnt({f1win - 1})")
        A(f"s_mov_b32 m0, s{sT2}")
        A(f"s_add_u32 s{sT1}, s{sT1}, 1024")
        if not noffn:
            A(f"buffer_load_dwordx4 v{vC}, s[{F1S}:{F1S+3}], s{sOFF} offen {ffnflags} lds")
        A(f"s_add_u32 s{sOFF}, s{sOFF}, {32*3456}")
        A(f"s_waitcnt vmcnt({f1win - 1})")
        A(f"s_sub_u32 s{sCNT}, s{sCNT}, 1")
        A(f"s_cmp_lg_u32 s{sCNT}, 0")
        A("s_cbranch_scc1 L_f1_ld")
        A(f"v_lshrrev_b32 v{vC+1}, 2, v2")
        A(f"v_lshl_add_u32 v{vC+1}, v3, 3, v{vC+1}")
        A(f"v_lshlrev_b32 v{vTR}, 5, v{vC+1}")
        A(f"v_and_b32 v{vC+1}, 3, v1")
        A(f"v_lshl_add_u32 v{vTR}, v{vC+1}, 3, v{vTR}")
        A(f"v_add_u32 v{vTR}, {WT}, v{vTR}")
        A(f"v_mul_u32_u24 v{vAO}, 1280, v{vC+1}")
        A(f"v_lshl_add_u32 v{vAO}, v3, 4, v{vAO}")
        A(f"v_add_u32 v{vAO}, {XNB}, v{vAO}")
        for i in range(4):
            A(f"v_mov_b32 v{vFD+i}, 0")
            A(f"v_mov_b32 v{vFU+i}, 0")
        A(f"s_mov_b32 s{sCNT}, 20")
        A("s_waitcnt vmcnt(0)")
        vFB2 = 36
        A.label("L_f1_mm")
        A(f"ds_read_b128 v[{vFA}:{vFA+3}], v{vAO}")
        A(f"ds_read_b64_tr_b16 v[{vFB}:{vFB+1}], v{vTR}")
        A(f"ds_read_b64_tr_b16 v[{vFB+2}:{vFB+3}], v{vTR} offset:128")
        A(f"ds_read_b64_tr_b16 v[{vFB2}:{vFB2+1}], v{vTR} offset:20480")
        A(f"ds_read_b64_tr_b16 v[{vFB2+2}:{vFB2+3}], v{vTR} offset:{20480+128}")
        A(f"v_add_u32 v{vAO}, 64, v{vAO}")
        A(f"v_add_u32 v{vTR}, 1024, v{vTR}")
        A("s_waitcnt lgkmcnt(0)")
        A(f"v_mfma_f32_16x16x32_bf16 v[{vFD}:{vFD+3}], v[{vFA}:{vFA+3}], v[{vFB}:{vFB+3}], v[{vFD}:{vFD+3}]")
        A(f"v_mfma_f32_16x16x32_bf16 v[{vFU}:{vFU+3}], v[{vFA}:{vFA+3}], v[{vFB2}:{vFB2+3}], v[{vFU}:{vFU+3}]")
        A(f"s_sub_u32 s{sCNT}, s{sCNT}, 1")
        A(f"s_cmp_lg_u32 s{sCNT}, 0")
        A("s_cbranch_scc1 L_f1_mm")
        A("s_nop 7")
        for i in range(1, 4):
            A(f"v_cmp_eq_u32 vcc, {i}, v3")
            A("s_nop 1")
            A(f"v_cndmask_b32 v{vFD}, v{vFD}, v{vFD+i}, vcc")
            A(f"v_cndmask_b32 v{vFU}, v{vFU}, v{vFU+i}, vcc")
        round_bf16([vFD, vFU])
        K0 = 0.7978845608028654
        A(f"s_mov_b32 s{sT0}, {f2u(0.044715):#x}")
        A(f"s_mov_b32 s{sT1}, {f2u(-2.0 * K0 * L2E):#x}")
        A(f"v_mul_f32 v{vFA}, v{vFD}, v{vFD}")
        A(f"v_fma_f32 v{vFA}, v{vFA}, s{sT0}, 1.0")
        A(f"v_mul_f32 v{vFA}, v{vFA}, v{vFD}")
        A(f"v_mul_f32 v{vFA}, s{sT1}, v{vFA}")
        A(f"v_exp_f32 v{vFA}, v{vFA}")
        A("s_nop 0")
        A(f"v_add_f32 v{vFA}, 1.0, v{vFA}")
        A(f"v_rcp_f32 v{vFA}, v{vFA}")
        A("s_nop 0")
        A(f"v_mul_f32 v{vFA}, v{vFA}, v{vFD}")
        round_bf16([vFA])
        A(f"v_mul_f32 v{vFA}, v{vFA}, v{vFU}")
        A(f"s_lshl_b32 s{sT0}, s{sROLE}, 8")
        A(f"s_add_u32 s{sT0}, s{sT0}, {WS_HL}")
        A(f"v_mov_b32_dpp v{vFB}, v{vFA} quad_perm:[1,0,3,2] row_mask:0xf bank_mask:0xf")
        A(f"v_cvt_pk_bf16_f32 v{vFA}, v{vFA}, v{vFB}")
        A(f"v_mov_b32 v{vFA+1}, s{sTAG}")
        A("s_mov_b32 exec_lo, 0x55555555")
        A("s_mov_b32 exec_hi, 0x55555555")
        A(f"buffer_store_dwordx2 v[{vFA}:{vFA+1}], v{vO1}, s[{WSS}:{WSS+3}], s{sT0} offen sc1")
        A("s_mov_b64 exec, -1")
        A("s_branch L_wo")

        A.label("L_f2")
        A.c("F2 job: 64 columns x one quarter of K of the down projection, then the gate of 16 columns")
        sC, sKQ, sST_, sN = sT3, sHS, sM, sSC
        A(f"s_sub_u32 s{sC}, s{sROLE}, 128")
        A(f"s_and_b32 s{sKQ}, s{sC}, 3")
        A(f"s_mul_i32 s{sST_}, s{sKQ}, 14")
        A(f"s_cmp_eq_u32 s{sKQ}, 3")
        A(f"s_cselect_b32 s{sST_}, 41, s{sST_}")
        A(f"s_lshr_b32 s{sN}, s{sKQ}, 1")
        A(f"s_sub_u32 s{sN}, 14, s{sN}")
        srd(F0S, pWD, None, 1728 * 1280)
        A(f"s_lshr_b32 s{sT0}, s{sC}, 2")
        A(f"s_lshl_b32 s{sT0}, s{sT0}, 7")
        A(f"v_lshrrev_b32 v{vC}, 3, v1")
        A(f"v_mul_u32_u24 v{vC}, 1280, v{vC}")
        A(f"v_and_b32 v{vC+1}, 7, v1")
        A(f"v_lshl_add_u32 v{vC}, v{vC+1}, 4, v{vC}")
        A(f"v_add_u32 v{vC}, s{sT0}, v{vC}")
        A(f"s_mul_i32 s{sOFF}, s{sST_}, {32*1280}")
        A(f"s_mov_b32 s{sT1}, {WT}")
        A(f"s_lshl_b32 s{sCNT}, s{sN}, 2")
        A.label("L_f2_ld")
        A(f"s_mov_b32 m0, s{sT1}")
        A(f"s_add_u32 s{sT1}, s{sT1}, 1024")
        if not noffn:
            A(f"buffer_load_dwordx4 v{vC}, s[{F0S}:{F0S+3}], s{sOFF} offen {ffnflags} lds")
        A(f"s_add_u32 s{sOFF}, s{sOFF}, {8*1280}")
        A(f"s_waitcnt vmcnt({f2win - 1})")
        A(f"s_sub_u32 s{sCNT}, s{sCNT}, 1")
        A(f"s_cmp_lg_u32 s{sCNT}, 0")
        A("s_cbranch_scc1 L_f2_ld")
        A.label("L_wo")
        wo_load()
        if ctl:
            A(f"s_cmp_lg_u32 s{sA}, 1")
            A("s_cbranch_scc1 L_noctl")
            A.c("pacing: at every checkpoint mark this workgroup's word in the line of its group, count who is already there")
            A.c("and who is a whole checkpoint further; the counts pick the load window of the streaming waves (speed hint only)")
            A(f"s_lshl_b32 s{sT0}, s{sX8}, 7")
            A(f"v_and_b32 v{vC}, 31, v1")
            A(f"v_lshl_add_u32 v{vC}, v{vC}, 2, s{sT0}")
            A(f"v_lshrrev_b32 v{vC+1}, 5, v1")
            A(f"v_lshl_add_u32 v{vC}, v{vC+1}, 10, v{vC}")
            A(f"s_lshl_b32 s{sT1}, s{sSLOT}, 2")
            A(f"s_add_u32 s{sT0}, s{sT0}, s{sT1}")
            A(f"v_mov_b32 v{vC+1}, s{sT0}")
            A(f"v_mov_b32 v{vC+2}, s{sTAG}")
            A(f"v_mov_b32 v{vC+3}, 0")
            A(f"s_mov_b32 s{sOFF}, {WS_CP}")
            A(f"s_mov_b32 s{sCNT}, {ctl[0]}")
            A.label("L_cw")
            A(f"s_sleep {csleep}")
            A(f"ds_read_b32 v{vC+4}, v{vC+3} offset:{PM}")
            A("s_waitcnt lgkmcnt(0)")
            A(f"v_readfirstlane_b32 s{sT1}, v{vC+4}")
            A("s_nop 0")
            A(f"s_cmp_gt_u32 s{sT1}, s{sCNT}")
            A("s_cbranch_scc1 L_cw")
            A("s_mov_b64 exec, 1")
            A(f"buffer_store_dword v{vC+2}, v{vC+1}, s[{WSS}:{WSS+3}], s{sOFF} offen")
            A("s_mov_b64 exec, -1")
            A(f"buffer_load_dword v{vC+4}, v{vC}, s[{WSS}:{WSS+3}], s{sOFF} offen sc1")
            A("s_waitcnt vmcnt(0)")
            A(f"v_cmp_eq_u32 vcc, s{sTAG}, v{vC+4}")
            A(f"s_mov_b32 s{sT2}, 0")
            A(f"s_mov_b32 s{sT0}, 0")
            A(f"s_bcnt1_i32_b32 s{sT1}, vcc_lo")
            if xbias:
                A(f"s_bitcmp1_b32 {bmask:#x}, s{sX8}")
                A(f"s_cselect_b32 s{sM}, {2 * xbias}, 0")
                A(f"s_add_u32 s{sT1}, s{sT1}, s{sM}")
            for m, t_ in enumerate(thr):
                A(f"s_cmp_ge_u32 s{sT1}, {t_ + xbias}")
                A(f"s_cselect_b32 s{sT2}, {m + 1}, s{sT2}")
            for m, t_ in enumerate(kthr):
                A(f"s_cmp_ge_u32 s{sT1}, {t_ + 2 * xbias if t_ >= 40 else t_}")
                A(f"s_cselect_b32 s{sT0}, {m + 1}, s{sT0}")
            A(f"s_cmp_gt_u32 s{sCNT}, 62")
            A(f"s_cselect_b32 s{sT2}, s{sT0}, s{sT2}")
            A(f"s_bcnt1_i32_b32 s{sT1}, vcc_hi")
            for m, t_ in enumerate(sthr):
                A(f"s_cmp_ge_u32 s{sT1}, {t_}")
                A(f"s_cselect_b32 s{sT2}, {len(thr) + 1 + m}, s{sT2}")
            A(f"v_mov_b32 v{vC+4}, s{sT2}")
            A(f"ds_write_b32 v{vC+3}, v{vC+4} offset:{PM + 4}")
            A(f"s_add_u32 s{sOFF}, s{sOFF}, 1024")
            A(f"s_sub_u32 s{sCNT}, s{sCNT}, {ctl[1]}")
            A(f"s_cmp_ge_i32 s{sCNT}, {ctl[2]}")
            A("s_cbranch_scc1 L_cw")
            A("s_waitcnt lgkmcnt(0)")
            A.label("L_noctl")
        A(f"s_cmp_lg_u32 s{sA}, 0")
        A("s_cbranch_scc1 L_idle")
        A(f"s_sub_u32 s{sT0}, s{sROLE}, 128")
        A(f"s_cmp_ge_u32 s{sT0}, 40")
        A("s_cbranch_scc1 L_idle")
        vH = 36
        A(f"s_lshl_b32 s{sT0}, s{sST_}, 1")
        A(f"s_min_u32 s{sT1}, s{sT0}, 80")
        A(f"s_sub_u32 s{sT2}, s{sT0}, s{sT1}")
        A(f"s_lshl_b32 s{sT2}, s{sT2}, 5")
        A(f"s_lshl_b32 s{sT1}, s{sT1}, 8")
        A(f"s_add_u32 s{sT1}, s{sT1}, {WS_HL}")
        A(f"s_lshl_b32 s{sT0}, s{sKQ}, 13")
        A(f"s_add_u32 s{sT0}, s{sT0}, {WS_H}")
        A(f"v_lshlrev_b32 v{vC}, 4, v1")
        A(f"v_lshlrev_b32 v{vC+1}, 7, v1")
        A(f"v_lshrrev_b32 v{vC+2}, 2, v2")
        A(f"v_mul_u32_u24 v{vC+2}, 896, v{vC+2}")
        A(f"v_lshl_add_u32 v{vC+2}, v3, 5, v{vC+2}")
        A(f"v_and_b32 v{vC+3}, 3, v1")
        A(f"v_lshl_add_u32 v{vC+2}, v{vC+3}, 3, v{vC+2}")
        A(f"s_add_u32 s{sOFF}, s{sT1}, 4096")
        A("s_branch L_g")
        A.label("L_gr")
        A(f"s_sleep {gsleep}")
        A.label("L_g")
        for i in range(7):
            A(f"buffer_load_dwordx4 v[{vH+4*i}:{vH+4*i+3}], v{vC}, s[{WSS}:{WSS+3}], s{sT1 if i < 4 else sOFF} offen offset:{1024*(i&3)} sc1")
        A(f"buffer_load_dword v{vH+28}, v{vC+1}, s[{WSS}:{WSS+3}], s{sT0} offen sc1")
        A("s_waitcnt vmcnt(0)")
        A(f"v_xor_b32 v{vH+28}, s{sTAG}, v{vH+28}")
        for i in range(7):
            A(f"v_xor_b32 v{vH+4*i+1}, s{sTAG}, v{vH+4*i+1}")
            A(f"v_xor_b32 v{vH+4*i+3}, s{sTAG}, v{vH+4*i+3}")
            A(f"v_or3_b32 v{vH+28}, v{vH+28}, v{vH+4*i+1}, v{vH+4*i+3}")
        A(f"v_cmp_ne_u32 vcc, 0, v{vH+28}")
        A("s_nop 1")
        A("s_cbranch_vccnz L_gr")
        for i in range(7):
            A(f"v_mov_b32 v{vH+4*i+1}, v{vH+4*i+2}")
            A(f"ds_write_b64 v{vC+2}, v[{vH+4*i}:{vH+4*i+1}] offset:{HB + 128*i}")
        A(f"v_lshrrev_b32 v{vC+4}, 2, v2")
        A(f"v_lshl_add_u32 v{vC+4}, v3, 3, v{vC+4}")
        A(f"v_lshlrev_b32 v{vTR}, 7, v{vC+4}")
        A(f"v_lshl_add_u32 v{vTR}, v{vC+3}, 3, v{vTR}")
        A(f"v_add_u32 v{vTR}, {WT}, v{vTR}")
        A(f"v_mul_u32_u24 v{vAO}, 896, v{vC+3}")
        A(f"v_lshl_add_u32 v{vAO}, v3, 4, v{vAO}")
        A(f"v_add_u32 v{vAO}, s{sT2}, v{vAO}")
        A("s_waitcnt lgkmcnt(0)")
        vB4, vD4 = 36, 52
        for i in range(16):
            A(f"v_mov_b32 v{vD4+i}, 0")
        A(f"s_mov_b32 s{sCNT}, s{sN}")
        A.label("L_f2_mm")
        A(f"ds_read_b128 v[{vFA}:{vFA+3}], v{vAO} offset:{HB}")
        for cb in range(4):
            A(f"ds_read_b64_tr_b16 v[{vB4+4*cb}:{vB4+4*cb+1}], v{vTR} offset:{32*cb}")
            A(f"ds_read_b64_tr_b16 v[{vB4+4*cb+2}:{vB4+4*cb+3}], v{vTR} offset:{32*cb+512}")
        A(f"v_add_u32 v{vAO}, 64, v{vAO}")
        A(f"v_add_u32 v{vTR}, 4096, v{vTR}")
        A("s_waitcnt lgkmcnt(0)")
        for cb in range(4):
            d = vD4 + 4 * cb
            A(f"v_mfma_f32_16x16x32_bf16 v[{d}:{d+3}], v[{vFA}:{vFA+3}], v[{vB4+4*cb}:{vB4+4*cb+3}], v[{d}:{d+3}]")
        A(f"s_sub_u32 s{sCNT}, s{sCNT}, 1")
        A(f"s_cmp_lg_u32 s{sCNT}, 0")
        A("s_cbranch_scc1 L_f2_mm")
        A("s_nop 7")
        for i in range(1, 4):
            A(f"v_cmp_eq_u32 vcc, {i}, v3")
            A("s_nop 1")
            for cb in range(4):
                A(f"v_cndmask_b32 v{vD4+4*cb}, v{vD4+4*cb}, v{vD4+4*cb+i}, vcc")
        for cb in range(4):
            A(f"v_mov_b32 v{vD4+4*cb+1}, s{sTAG}")
        A(f"v_lshlrev_b32 v{vC}, 3, v1")
        A(f"s_and_b32 s{sT0}, s{sC}, 0xfc")
        A(f"s_lshl_b32 s{sT0}, s{sT0}, 2")
        A(f"s_add_u32 s{sT0}, s{sT0}, s{sKQ}")
        A(f"s_lshl_b32 s{sT0}, s{sT0}, 9")
        A(f"s_add_u32 s{sT0}, s{sT0}, {WS_FQ}")
        for cb in range(4):
            A(f"buffer_store_dwordx2 v[{vD4+4*cb}:{vD4+4*cb+1}], v{vC}, s[{WSS}:{WSS+3}], s{sT0} offen sc1")
            A(f"s_add_u32 s{sT0}, s{sT0}, 2048")
        A(f"s_lshl_b32 s{sT0}, s{sC}, 11")
        A(f"s_add_u32 s{sT0}, s{sT0}, {WS_FQ}")
        A("s_waitcnt vmcnt(0)")
        A("s_branch L_p")
        A.label("L_pr")
        A(f"s_sleep {gsleep // 2}")
        A.label("L_p")
        for i in range(4):
            A(f"buffer_load_dwordx2 v[{vH+2*i}:{vH+2*i+1}], v{vC}, s[{WSS}:{WSS+3}], s{sT0} offen offset:{512*i} sc1")
        A("s_waitcnt vmcnt(0)")
        for i in range(4):
            A(f"v_xor_b32 v{vH+2*i+1}, s{sTAG}, v{vH+2*i+1}")
        A(f"v_or3_b32 v{vH+1}, v{vH+1}, v{vH+3}, v{vH+5}")
        A(f"v_or_b32 v{vH+1}, v{vH+1}, v{vH+7}")
        A(f"v_cmp_ne_u32 vcc, 0, v{vH+1}")
        A("s_nop 1")
        A("s_cbranch_vccnz L_pr")
        A(f"s_cmp_lg_u32 s{sROLE}, 128")
        A("s_cbranch_scc1 L_noep")
        A(f"v_mov_b32 v{vC+2}, {WS_EP:#x}")
        A(f"v_mov_b32 v{vC+3}, s{sTAG}")
        A("s_mov_b64 exec, 1")
        A(f"buffer_store_dword v{vC+3}, v{vC+2}, s[{WSS}:{WSS+3}], 0 offen sc1")
        A("s_mov_b64 exec, -1")
        A.label("L_noep")
        A(f"v_add_f32 v20, v{vH}, v{vH+2}")
        A(f"v_add_f32 v21, v{vH+4}, v{vH+6}")
        A("v_add_f32 v20, v20, v21")
        round_bf16([20])
        A(f"s_mov_b32 s{sT1}, {f2u(-L2E):#x}")
        A(f"v_mul_f32 v21, s{sT1}, v20")
        A("v_exp_f32 v21, v21")
        A("s_nop 0")
        A("v_add_f32 v21, 1.0, v21")
        A("v_rcp_f32 v21, v21")
        A("s_nop 0")
        A("v_mul_f32 v21, v21, v20")
        round_bf16([21])
        A(f"ds_write_b32 v{vO1}, v21 offset:{GB}")
        A("s_waitcnt lgkmcnt(0)")
    A.label("L_idle")
    vML = 20
    vE = 28
    vAd = 30
    vZ = 31
    vSO = 32
    vOUT = 33
    vOA = 36
    vTA = 52
    A(f"v_and_b32 v{vAd}, 3, v1")
    A(f"v_lshlrev_b32 v{vAd}, 8, v{vAd}")
    A(f"v_lshl_add_u32 v{vAd}, v3, 4, v{vAd}")
    A(f"v_mov_b32 v{vZ}, 0")
    A(f"s_lshl_b32 s{sT0}, s{sB}, 5")
    A(f"s_add_u32 s{sT0}, s{sT0}, s{sH}")
    A(f"s_lshl_b32 s{sT0}, s{sT0}, 1")
    A(f"s_add_u32 s{sT0}, s{sT0}, s{sSPLIT}")
    A(f"s_lshl_b32 s{sT0}, s{sT0}, 6")
    A(f"s_mul_i32 s{sT1}, s{sA}, {10*16384}")
    A(f"s_add_u32 s{sT0}, s{sT0}, s{sT1}")
    A(f"v_lshlrev_b32 v{vSO}, 14, v3")
    A(f"v_lshl_add_u32 v{vSO}, v2, 2, v{vSO}")
    A(f"v_add_u32 v{vSO}, s{sT0}, v{vSO}")
    A(f"s_mov_b32 s{sCNT}, {4*16384}")
    vSO2 = 92
    sGM = F0S
    A(f"v_add_u32 v{vSO2}, {8*16384}, v{vSO}")
    A("v_mov_b32 v93, 0x7ffffff0")
    A("v_cmp_gt_u32 vcc, 32, v1")
    A(f"s_mov_b32 s{sGM}, 0xffff0000")
    A(f"s_mov_b32 s{sGM+1}, 0")
    A(f"v_cndmask_b32 v{vSO2}, v93, v{vSO2}, vcc")
    A("v_cmp_eq_u32 vcc, 192, v0")
    A(f"s_mov_b32 s{sGM+2}, 0")
    A(f"s_mov_b32 s{sGM+3}, 0xffff")
    A(f"v_cndmask_b32 v{vO3}, v93, v{vO3}, vcc")
    A(f"s_mov_b32 s{sGM+4}, 0")
    A(f"s_mov_b32 s{sGM+5}, 0xffff0000")
    A(f"s_sub_u32 s{sT3}, s{sROLE}, 128")
    A(f"s_lshl_b32 s{sT0}, s{sT3}, 2")
    A(f"s_add_u32 s{sT0}, s{sT0}, s{sA}")
    A(f"s_lshl_b32 s{sT0}, s{sT0}, 12")
    A(f"v_lshlrev_b32 v14, 4, v1")
    A(f"s_lshl_b32 s{sT1}, s{sA}, 12")
    A(f"s_add_u32 s{sT1}, s{sT1}, {WS_ML}")
    A(f"v_lshrrev_b32 v15, 3, v1")
    A(f"v_lshlrev_b32 v15, 7, v15")
    A("v_and_b32 v16, 3, v1")
    A("v_lshlrev_b32 v16, 2, v16")
    A("v_and_b32 v17, 1, v3")
    A("v_lshl_add_u32 v16, v17, 1, v16")
    A("v_lshrrev_b32 v17, 1, v3")
    A("v_add_u32 v16, v16, v17")
    A(f"s_mul_i32 s{sT2}, s{sA}, 1280")
    A(f"s_lshl_b32 s{sOFF}, s{sT3}, 5")
    A(f"s_add_u32 s{sT2}, s{sT2}, s{sOFF}")
    A(f"v_lshl_add_u32 v17, v16, 1, s{sT2}")
    A(f"s_lshl_b32 s{sOFF}, s{sA}, 6")
    A(f"v_lshl_add_u32 v19, v16, 2, s{sOFF}")
    srd(OUTS, pOUT, None, 5120)
    A(f"s_cmp_ge_u32 s{sT3}, 40")
    A("s_cbranch_scc1 L_nopre")
    A(f"buffer_load_ushort v18, v17, s[{XS}:{XS+3}], 0 offen")
    if touchout:
        A(f"buffer_load_ushort v94, v17, s[{OUTS}:{OUTS+3}], 0 offen")
    A.label("L_nopre")
    A("s_waitcnt vmcnt(0)")
    stamp(3)
    A("s_barrier")
    stamp(4)
    if stamps: A("s_waitcnt lgkmcnt(0)")
    for ks in range(4):
        A(f"ds_read_b128 v[{vOA+4*ks}:{vOA+4*ks+3}], v{vAd} offset:{OP + 64*ks}")
    for w in range(0, NS, 2):
        A(f"ds_read_b128 v[{vML+2*w}:{vML+2*w+3}], v{vZ} offset:{ML + 8*w}")
    queue = []
    slot = [0]
    def emit(x):
        A(x); slot[0] += 1
    def drain(budget):
        while queue and budget > 0 and queue[0][0] <= slot[0]:
            _, x, wgt = queue.pop(0)
            emit(x); budget -= wgt
    def push(xs, earliest=0, wgt=1):
        for x in xs: queue.append((earliest, x, wgt))
    push(["s_waitcnt lgkmcnt(0)"], wgt=0)
    push([f"v_max3_f32 v{vE}, v{vML}, v{vML+2}, v{vML+4}", f"v_max_f32 v{vE}, v{vE}, v{vML+6}"])
    push([f"v_sub_f32 v{vML+2*w}, v{vML+2*w}, v{vE}" for w in range(4)])
    push([f"v_mul_f32 v{vML+2*w}, s{sL2E}, v{vML+2*w}" for w in range(4)])
    push([f"v_exp_f32 v{vML+2*w}, v{vML+2*w}" for w in range(4)], wgt=2)
    push([f"v_min_u32 v{vE}, -2, v{vE}", f"v_mul_f32 v{vE+1}, v{vML}, v{vML+1}"])
    push([f"v_fmac_f32 v{vE+1}, v{vML+2*w}, v{vML+2*w+1}" for w in range(1, 4)])
    push([f"v_min_u32 v{vE+1}, -2, v{vE+1}",
          f"buffer_store_dwordx2 v[{vE}:{vE+1}], v{vO3}, s[{WSS}:{WSS+3}], 0 offen sc1"])
    def comb(cb):
        q, g = divmod(cb, 4)
        d = vTA + 4 * cb
        tgt = vOUT + q if g == 0 else d
        r = [f"v_mul_f32 v{tgt}, v{d}, v{vML}"] + [f"v_fmac_f32 v{tgt}, v{d+w}, v{vML+2*w}" for w in range(1, 4)]
        if g:
            r.append(f"v_cndmask_b32 v{vOUT+q}, v{vOUT+q}, v{d}, s[{sGM+2*(g-1)}:{sGM+2*(g-1)+1}]")
        if g == 3 or cb == 9:
            so = ("0", f"s{sCNT}", "0")[q]
            vo = vSO if q < 2 else vSO2
            r += [f"v_min_u32 v{vOUT+q}, -2, v{vOUT+q}",
                  f"buffer_store_dword v{vOUT+q}, v{vo}, s[{WSS}:{WSS+3}], {so} offen sc1" if not nopub else "s_nop 0"]
        return r
    for cb in range(10):
        for ks in range(4):
            if cb == 0:
                emit(f"s_waitcnt lgkmcnt({5 - ks})")
            r = vW + 4 * (cb * 4 + ks)
            d = vTA + 4 * cb
            c = "0" if ks == 0 else f"v[{d}:{d+3}]"
            emit(f"v_mfma_f32_16x16x32_bf16 v[{d}:{d+3}], v[{vOA+4*ks}:{vOA+4*ks+3}], v[{r}:{r+3}], {c}")
            if ks == 3:
                push(comb(cb), earliest=slot[0] + 8)
            if cb > 0 or ks == 3:
                drain(2)
    while queue:
        gap = queue[0][0] - slot[0]
        if gap > 0:
            A(f"s_nop {gap - 1}"); slot[0] += gap
        drain(100)
    stamp(6)
    A(f"s_cmp_ge_u32 s{sT3}, 40")
    A("s_cbranch_scc1 L_fin")
    if nofinal:
        A("s_branch L_fin")
    A(f"ds_read_b32 v19, v19 offset:{GB}")
    vT, vMLp = 96, 112
    if poll2:
        def tload():
            for n in range(4):
                A(f"buffer_load_dwordx4 v[{vT+4*n}:{vT+4*n+3}], v14, s[{WSS}:{WSS+3}], s{sT0} offen offset:{1024*n} sc1")
        def anymark(v):
            A(f"v_max3_u32 v20, v{v}, v{v+1}, v{v+2}")
            A(f"v_max3_u32 v21, v{v+3}, v{v+4}, v{v+5}")
            for i in range(6, 14, 4):
                A(f"v_max3_u32 v20, v20, v{v+i}, v{v+i+1}")
                A(f"v_max3_u32 v21, v21, v{v+i+2}, v{v+i+3}")
            A(f"v_max3_u32 v20, v20, v{v+14}, v{v+15}")
            A("v_max_u32 v20, v20, v21")
            A("v_cmp_eq_u32 vcc, -1, v20")
        A.label("L_poll")
        for n in range(4):
            A(f"buffer_load_dwordx4 v[{vMLp+4*n}:{vMLp+4*n+3}], v15, s[{WSS}:{WSS+3}], s{sT1} offen offset:{1024*n} sc1")
        A("s_waitcnt vmcnt(0)")
        anymark(vMLp)
        A("s_nop 1")
        A("s_cbranch_vccnz L_poll")
        tload()
        A("v_bfe_u32 v20, v1, 2, 1")
        A("v_cmp_eq_u32 vcc, 1, v20")
        for n in range(4):
            m0, l0, m1, l1 = [vMLp + 4 * n + i for i in range(4)]
            A(f"v_max_f32 v21, v{m0}, v{m1}")
            A(f"v_sub_f32 v{m0}, v{m0}, v21")
            A(f"v_sub_f32 v{m1}, v{m1}, v21")
            A(f"v_mul_f32 v{m0}, s{sL2E}, v{m0}")
            A(f"v_mul_f32 v{m1}, s{sL2E}, v{m1}")
            A(f"v_exp_f32 v{m0}, v{m0}")
            A(f"v_exp_f32 v{m1}, v{m1}")
        A("s_nop 0")
        for n in range(4):
            m0, l0, m1, l1 = [vMLp + 4 * n + i for i in range(4)]
            A(f"v_mul_f32 v{l0}, v{l0}, v{m0}")
            A(f"v_fmac_f32 v{l0}, v{l1}, v{m1}")
            A(f"v_rcp_f32 v{l0}, v{l0}")
            A(f"v_cndmask_b32 v{m0}, v{m0}, v{m1}, vcc")
        A("s_nop 0")
        for n in range(4):
            m0, l0, m1, l1 = [vMLp + 4 * n + i for i in range(4)]
            A(f"v_mul_f32 v{m0}, v{m0}, v{l0}")
        A("s_branch L_pt1")
        A.label("L_pt")
        tload()
        A.label("L_pt1")
        A("s_waitcnt vmcnt(0)")
        anymark(vT)
    else:
        if psleep:
            A("s_branch L_poll1")
        A.label("L_poll")
        if psleep:
            A(f"s_sleep {psleep}")
            A.label("L_poll1")
        for n in range(4):
            A(f"buffer_load_dwordx4 v[{vT+4*n}:{vT+4*n+3}], v14, s[{WSS}:{WSS+3}], s{sT0} offen offset:{1024*n} sc1")
        for n in range(4):
            A(f"buffer_load_dwordx4 v[{vMLp+4*n}:{vMLp+4*n+3}], v15, s[{WSS}:{WSS+3}], s{sT1} offen offset:{1024*n} sc1")
        A("s_waitcnt vmcnt(0)")
        A(f"v_max3_u32 v20, v{vT}, v{vT+1}, v{vT+2}")
        A(f"v_max3_u32 v21, v{vT+3}, v{vT+4}, v{vT+5}")
        for i in range(6, 30, 4):
            A(f"v_max3_u32 v20, v20, v{vT+i}, v{vT+i+1}")
            A(f"v_max3_u32 v21, v21, v{vT+i+2}, v{vT+i+3}")
        A(f"v_max3_u32 v20, v20, v{vT+30}, v{vT+31}")
        A("v_max_u32 v20, v20, v21")
        A("v_cmp_eq_u32 vcc, -1, v20")
        A("s_nop 1")
        A("s_cbranch_vccnz L_poll")
        stamp(5)
        A("v_bfe_u32 v20, v1, 2, 1")
        A("v_cmp_eq_u32 vcc, 1, v20")
        for n in range(4):
            m0, l0, m1, l1 = [vMLp + 4 * n + i for i in range(4)]
            A(f"v_max_f32 v21, v{m0}, v{m1}")
            A(f"v_sub_f32 v{m0}, v{m0}, v21")
            A(f"v_sub_f32 v{m1}, v{m1}, v21")
            A(f"v_mul_f32 v{m0}, s{sL2E}, v{m0}")
            A(f"v_mul_f32 v{m1}, s{sL2E}, v{m1}")
            A(f"v_exp_f32 v{m0}, v{m0}")
            A(f"v_exp_f32 v{m1}, v{m1}")
        A("s_nop 0")
        for n in range(4):
            m0, l0, m1, l1 = [vMLp + 4 * n + i for i in range(4)]
            A(f"v_mul_f32 v{l0}, v{l0}, v{m0}")
            A(f"v_fmac_f32 v{l0}, v{l1}, v{m1}")
            A(f"v_rcp_f32 v{l0}, v{l0}")
            A(f"v_cndmask_b32 v{m0}, v{m0}, v{m1}, vcc")
        A("s_nop 0")
        for n in range(4):
            m0, l0, m1, l1 = [vMLp + 4 * n + i for i in range(4)]
            A(f"v_mul_f32 v{m0}, v{m0}, v{l0}")
    for n in range(4):
        for i in range(4):
            if n == 0:
                A(f"v_mul_f32 v{24+i}, v{vT+i}, v{vMLp}")
            else:
                A(f"v_fmac_f32 v{24+i}, v{vT+4*n+i}, v{vMLp+4*n}")
    if poll2:
        A("s_cbranch_vccnz L_pt")
        stamp(5)
        A("s_nop 0")
    else:
        A("s_nop 1")
    A("v_permlane32_swap_b32 v24, v25")
    A("v_permlane32_swap_b32 v26, v27")
    A("v_add_f32 v24, v24, v25")
    A("v_add_f32 v26, v26, v27")
    A("s_nop 1")
    A("v_permlane16_swap_b32 v24, v26")
    A("v_add_f32 v24, v24, v26")
    A("s_nop 1")
    A("v_add_f32_dpp v24, v24, v24 row_ror:4 row_mask:0xf bank_mask:0xf")
    A("s_nop 1")
    A("v_add_f32_dpp v24, v24, v24 row_ror:8 row_mask:0xf bank_mask:0xf")
    A("s_waitcnt lgkmcnt(0)")
    round_bf16([24])
    A("v_mul_f32 v24, v24, v19")
    round_bf16([24])
    A("v_lshlrev_b32 v18, 16, v18")
    A("v_add_f32 v24, v24, v18")
    A("v_cvt_pk_bf16_f32 v24, v24, v24")
    A("s_mov_b32 exec_lo, 0x000f000f")
    A("s_mov_b32 exec_hi, 0x000f000f")
    A(f"buffer_store_short v24, v17, s[{OUTS}:{OUTS+3}], 0 offen")
    A("s_mov_b64 exec, -1")
    A.label("L_fin")
    if stamps:
        A("s_waitcnt vmcnt(0)")
        stamp(7)
        A(f"s_cmp_lg_u32 s{sA}, 0")
        A("s_cbranch_scc1 L_end")
        A("s_waitcnt lgkmcnt(0)")
        for i in range(NSTAMP):
            A(f"v_mov_b32 v{20+i}, s{sST+2*i}")
        if dbgst:
            A("s_cmp_eq_u32 s2, 0")
            A("s_cbranch_scc1 L_dbgw")
            A("s_cmp_lg_u32 s2, 255")
            A("s_cbranch_scc1 L_end")
            A.label("L_dbgw")
            for i in range(1, NSTAMP):
                A(f"v_sub_u32 v{20+i}, v{20+i}, v20")
            A("s_and_b32 s61, s2, 32")
            A("v_mov_b32 v30, s61")
            A("s_mov_b64 exec, 1")
            A(f"global_store_dwordx4 v30, v[20:23], s[{pDBG}:{pDBG+1}]")
            A(f"global_store_dwordx4 v30, v[24:27], s[{pDBG}:{pDBG+1}] offset:16")
            A("s_endpgm")
        A(f"s_getreg_b32 s{sT1}, hwreg(HW_REG_XCC_ID)")
        A(f"s_getreg_b32 s{sT2}, hwreg(HW_REG_HW_ID)")
        A(f"s_lshl_b32 s{sT0}, s2, 3")
        A(f"s_add_u32 s{sT0}, s{sT0}, {WS_STAMP + 0x10000}")
        A(f"v_mov_b32 v30, s{sT0}")
        A(f"v_mov_b32 v28, s{sT1}")
        A(f"v_mov_b32 v29, s{sT2}")
        A("s_mov_b64 exec, 1")
        A(f"global_store_dwordx2 v30, v[28:29], s[{pWS}:{pWS+1}]")
        A("s_mov_b64 exec, -1")
        A(f"s_lshl_b32 s{sT0}, s2, 5")
        A(f"s_add_u32 s{sT0}, s{sT0}, {WS_STAMP}")
        A(f"v_mov_b32 v30, s{sT0}")
        A("s_mov_b64 exec, 1")
        A(f"global_store_dwordx4 v30, v[20:23], s[{pWS}:{pWS+1}]")
        A(f"global_store_dwordx4 v30, v[24:27], s[{pWS}:{pWS+1}] offset:16")
    A.label("L_end")
    A("s_endpgm")
    if auxtop:
        i0 = A.o.index("    s_cbranch_scc1 L_aux")
        i1 = A.o.index("L_aux:")
        strm = A.o[i0 + 1:i1]
        A.o = A.o[:i0] + ["    s_cbranch_scc0 L_str"] + A.o[i1:] + ["L_str:"] + strm
    out += A.text()
    nv = max(RING + 16 * (R + E) + (1 if tl else 0), vW + 4 * NL, 128)
    assert nv <= 256
    out += f"""
.section .rodata,"a"
.p2align 6
.amdhsa_kernel {NAME}
  .amdhsa_next_free_vgpr {nv}
  .amdhsa_next_free_sgpr 96
  .amdhsa_accum_offset {(nv + 3) // 4 * 4}
  .amdhsa_group_segment_fixed_size 0
  .amdhsa_kernarg_size 96
  .amdhsa_user_sgpr_count 2
  .amdhsa_user_sgpr_kernarg_segment_ptr 1
  .amdhsa_system_sgpr_workgroup_id_x 1
  .amdhsa_float_denorm_mode_32 3
.end_amdhsa_kernel
"""
    return out

if __name__ == "__main__":
    kw = eval("dict(" + (sys.argv[1] if len(sys.argv) > 1 else "") + ")")
    sys.stdout.write(gen(**kw))
```
